```python
import torch

def _softmax(x, axis=-1):
    return torch.softmax(x, dim=axis)
def _gelu(x):
    return torch.nn.functional.gelu(x, approximate="tanh")
def _silu(x):
    return torch.nn.functional.silu(x)
def _sigmoid(x):
    return torch.sigmoid(x)
def _layernorm(x, axis=-1, eps=1e-5):
    m = x.mean(dim=axis, keepdim=True)
    v = x.var(dim=axis, keepdim=True, unbiased=False)
    return (x - m) / torch.sqrt(v + eps)
def _scatter_add(tgt, idx, src, axis=0):
    return tgt.clone().index_add_(axis, idx, src)
def _segment_sum(src, seg, n):
    out = torch.zeros((n,) + src.shape[1:], dtype=src.dtype)
    return out.index_add_(0, seg, src)
def _pad(x, pw):
    flat = tuple(v for pair in reversed(pw) for v in pair)
    return torch.nn.functional.pad(x, flat)

kernel_name = 'gated_mix__gqa_block_cached__geglu_ffn__decode'

def setup_inputs():

    _w = (lambda a: (lambda t: t.to(torch.bfloat16) if t.is_floating_point() else t)(torch.as_tensor(a)))
    def _A_setup():
        B, Sq, D = 1, 1, 448
        Hq, Hkv, Sk, Dh = 16, 8, 65536, 256
        assert Hq % Hkv == 0, (Hq, Hkv)
        return {
            "x": _w((lambda *s: torch.randn(*s, dtype=torch.bfloat16) * 0.05)(B, Sq, D)),
            "k_cache": _w((lambda *s: torch.randn(*s, dtype=torch.bfloat16) * 6.4)(B, Hkv, Sk, Dh)),
            "v_cache": _w((lambda *s: torch.randn(*s, dtype=torch.bfloat16) * 0.2)(B, Hkv, Sk, Dh)),
            "wq": _w((lambda *s: torch.randn(*s, dtype=torch.bfloat16) * 6.4)(D, Hq * Dh) * (D ** -0.5)),
            "wo": _w((lambda *s: torch.randn(*s, dtype=torch.bfloat16) * 0.2)(Hq * Dh, D) * ((Hq * Dh) ** -0.5)),
        }
    _A_in = _A_setup()

    def _B_setup():
        B, S, D, F = 1, 1, 448, 1792
        return {
            "x": _w((lambda *s: torch.randn(*s, dtype=torch.bfloat16) * 0.05)(B, S, D)),
            "w_gate": _w((lambda *s: torch.randn(*s, dtype=torch.bfloat16) * 0.05)(D, F)),
            "w_up": _w((lambda *s: torch.randn(*s, dtype=torch.bfloat16) * 0.05)(D, F)),
            "w_down": _w((lambda *s: torch.randn(*s, dtype=torch.bfloat16) * 0.05)(F, D)),
        }
    _B_in = _B_setup()

    return {
        "A_x": _A_in["x"],
        "A_k_cache": _A_in["k_cache"],
        "A_v_cache": _A_in["v_cache"],
        "A_wq": _A_in["wq"],
        "A_wo": _A_in["wo"],
        "B_x": _B_in["x"],
        "B_w_gate": _B_in["w_gate"],
        "B_w_up": _B_in["w_up"],
        "B_w_down": _B_in["w_down"],
        "gate_w": _w((lambda *s: torch.randn(*s, dtype=torch.bfloat16) * 0.05)(448) * 16.0),
    }

def reference(A_x, A_k_cache, A_v_cache, A_wq, A_wo, B_x, B_w_gate, B_w_up, B_w_down, gate_w):
    def _A_ref(x, k_cache, v_cache, wq, wo):
        B, Sq, D = x.shape
        Hq, Dh = 16, 256
        Hkv = k_cache.shape[1]
        rep = Hq // Hkv
        q = (lambda x, *d: x.permute(*d))((x @ wq).reshape(B, Sq, Hq, Dh), 0, 2, 1, 3)
        k = (lambda x, n, axis: torch.repeat_interleave(x, n, dim=axis))(k_cache, rep, axis=1)
        v = (lambda x, n, axis: torch.repeat_interleave(x, n, dim=axis))(v_cache, rep, axis=1)
        scores = torch.einsum("bhqd,bhkd->bhqk", q, k) * (Dh ** -0.5)
        p = _softmax(scores, axis=-1)
        o = torch.einsum("bhqk,bhkd->bhqd", p, v)
        return (lambda x, *d: x.permute(*d))(o, 0, 2, 1, 3).reshape(B, Sq, Hq * Dh) @ wo

    def _B_ref(x, w_gate, w_up, w_down):
        return (_gelu(x @ w_gate) * (x @ w_up)) @ w_down

    x = A_x
    g = _sigmoid((x * gate_w).sum(-1, keepdims=True))
    a = _A_ref(x, A_k_cache, A_v_cache, A_wq, A_wo)
    b = _B_ref(x, B_w_gate, B_w_up, B_w_down)
    return g * a + (1 - g) * b
```

```python
class Asm:
    def __init__(self):
        self.lines = []
        self.nlabel = 0
    def __call__(self, s):
        for l in s.strip('\n').split('\n'):
            self.lines.append('    ' + l.strip())
    def c(self, s):
        self.lines.append('    ; ' + s)
    def label(self, name):
        self.lines.append(name + ':')
    def newlabel(self, base='L'):
        self.nlabel += 1
        return f'{base}_{self.nlabel}'
    def raw(self, s):
        self.lines.append(s)
    def text(self):
        return '\n'.join(self.lines) + '\n'

def vr(a, n=1):
    return f'v{a}' if n == 1 else f'v[{a}:{a+n-1}]'
def sr(a, n=1):
    return f's{a}' if n == 1 else f's[{a}:{a+n-1}]'

class Regs:
    def __init__(self, start, limit):
        self.n = start
        self.limit = limit
    def alloc(self, cnt=1, align=1):
        self.n = (self.n + align - 1) // align * align
        r = self.n
        self.n += cnt
        assert self.n <= self.limit, f'out of regs {self.n} > {self.limit}'
        return r

def kernel_header(name):
    return f'''.text
.globl {name}
.p2align 8
.type {name},@function
{name}:
'''

def kernel_desc(name, vgpr, sgpr=102, accum=None):
    if accum is None:
        accum = (vgpr + 3) // 4 * 4
    return f'''.section .rodata,"a"
.p2align 6
.amdhsa_kernel {name}
  .amdhsa_next_free_vgpr {vgpr}
  .amdhsa_next_free_sgpr {sgpr}
  .amdhsa_accum_offset {accum}
  .amdhsa_group_segment_fixed_size 0
  .amdhsa_kernarg_size 104
  .amdhsa_user_sgpr_count 2
  .amdhsa_user_sgpr_kernarg_segment_ptr 1
  .amdhsa_system_sgpr_workgroup_id_x 1
.end_amdhsa_kernel
'''
```

```python
import sys, struct, json
from asmlib import *

def f2u(f): return struct.unpack('<I', struct.pack('<f', f))[0]
C_SCALE = f2u(1.4426950408889634 / 16.0)
LOG2E = f2u(1.4426950408889634)

WS_Q = 0x0
WS_H = 0x4000
WS_ML = 0x8000
WS_PROF = 0x10000
WS_O = 0x100000
WS_Y = 0x200000
WS_SIZE = 0x400000

NAME = 'gated_mix__gqa_block_cached__geglu_ffn__decode_kernel'

P_X, P_K, P_V, P_WQ, P_WO, P_BX, P_WG, P_WU, P_WD, P_GW, P_OUT, P_DBG, P_WS = [16 + 2 * i for i in range(13)]
S_WS = 12
S_WAVE = 3
S_SELLO = 60; S_SELHI = 61
POLL_MAX = 1 << 14


class VM:
    def __init__(self, a):
        self.a = a; self.n = 0
    def issue(self, s):
        self.a(s); self.n += 1
        return self.n - 1
    def wait(self, idx):
        k = self.n - idx - 1
        assert 0 <= k <= 63
        self.a(f's_waitcnt vmcnt({k})')
    def waitall(self):
        self.a('s_waitcnt vmcnt(0)')


def srd(a, d, p, nbytes):
    a(f's_mov_b32 s{d}, s{p}')
    a(f's_mov_b32 s{d+1}, s{p+1}')
    a(f's_mov_b32 s{d+2}, {nbytes:#x}')
    a(f's_mov_b32 s{d+3}, 0x00020000')


def dpp(op, d, s0, s1, ctrl):
    return f'{op}_dpp v{d}, v{s0}, v{s1} {ctrl} row_mask:0xf bank_mask:0xf'


def xlane_reduce(a, regs, tmps, op, steps):
    n = len(regs)
    for st in steps:
        if st in ('x1', 'x2', 'r4', 'r8'):
            ctrl = {'x1': 'quad_perm:[1,0,3,2]', 'x2': 'quad_perm:[2,3,0,1]', 'r4': 'row_ror:4', 'r8': 'row_ror:8'}[st]
            if n < 3: a('s_nop 1')
            for r in regs:
                a(dpp(op, r, r, r, ctrl))
        else:
            ins = 'v_permlane16_swap_b32' if st == 'p16' else 'v_permlane32_swap_b32'
            for r, t in zip(regs, tmps):
                a(f'v_mov_b32 v{t}, v{r}')
            a('s_nop 1')
            for r, t in zip(regs, tmps):
                a(f'{ins} v{r}, v{t}')
            if n < 2: a('s_nop 0')
            for r, t in zip(regs, tmps):
                a(f'{op} v{r}, v{r}, v{t}')


def poll(a, loads, regs, vt, scnt, expect=None, name='poll'):
    L = a.newlabel(name); D = a.newlabel(name + '_done')
    a(f's_mov_b32 s{scnt}, {POLL_MAX}')
    a.label(L)
    for l in loads: a(l)
    a('s_waitcnt vmcnt(0)')
    if expect is None:
        rs = list(regs)
        cur = rs.pop(0)
        while rs:
            if len(rs) >= 2:
                a(f'v_max3_u32 v{vt}, v{cur}, v{rs.pop(0)}, v{rs.pop(0)}')
            else:
                a(f'v_max_u32 v{vt}, v{cur}, v{rs.pop(0)}')
            cur = vt
        a(f'v_cmp_eq_u32 vcc, -1, v{cur}')
    else:
        a(f'v_cmp_ne_u32 vcc, {expect}, v{regs[0]}')
    a('s_mov_b64 exec, vcc')
    a(f's_cbranch_execz {D}')
    a(f's_sub_u32 s{scnt}, s{scnt}, 1')
    a(f's_cbranch_scc1 {D}')
    a('s_sleep 1')
    a(f's_branch {L}')
    a.label(D)
    a('s_mov_b64 exec, -1')


def prof(a, cfg, slot, vt, st):
    if not cfg.get('prof'): return
    st = 76
    a(f's_memrealtime s[{st}:{st+1}]')
    a(f's_lshl_b32 s{st+2}, s2, 6')
    a(f's_add_u32 s{st+2}, s{st+2}, {WS_PROF + slot*4:#x}')
    a('s_waitcnt lgkmcnt(0)')
    a(f'v_mov_b32 v{vt}, s{st}')
    a(f'v_mov_b32 v{vt+1}, 0')
    a(f'buffer_store_dword v{vt}, v{vt+1}, s[{S_WS}:{S_WS+3}], s{st+2} offen')


def gen_stream(a, cfg):
    D = 2
    flags = 'nt'
    V = Regs(1, 256)
    vKoff = V.alloc(); vVoff = V.alloc()
    vm = V.alloc(); vl = V.alloc(); vt0 = V.alloc(); vt1 = V.alloc(); valpha = V.alloc(); vmc = V.alloc()
    vc = V.alloc(); vg = V.alloc()
    vmask = V.alloc(4, 4)
    vS = V.alloc(4, 4)
    vP = V.alloc(4, 4)
    vacc = V.alloc(8, 4)
    vA = V.alloc(16, 4)
    vQ = V.alloc(32, 4)
    vKb = [V.alloc(32, 4) for _ in range(D)]
    vVb = [V.alloc(32, 4) for _ in range(D)]
    sK = 4; sVv = 8
    sOff = [44, 45]
    sEnd = 46; sC = 47; sTmp = 48; sBase = 49; sHead = 50; sSplit = 51; sT2 = 52
    NW = 2
    KEYS = 2048
    stride = NW * 8192
    srd(a, sK, P_K, 0x10000000)
    srd(a, sVv, P_V, 0x10000000)
    a(f's_lshr_b32 s{sHead}, s2, 5')
    a(f's_and_b32 s{sSplit}, s2, 31')
    a(f's_lshl_b32 s{sBase}, s{sHead}, 25')
    a(f's_mul_i32 s{sTmp}, s{sSplit}, {KEYS*512}')
    a(f's_add_u32 s{sBase}, s{sBase}, s{sTmp}')
    a(f's_add_u32 s{sEnd}, s{sBase}, {KEYS*512}')
    a(f's_lshl_b32 s{sTmp}, s{S_WAVE}, 13')
    a(f's_add_u32 s{sOff[0]}, s{sBase}, s{sTmp}')
    a(f's_add_u32 s{sOff[1]}, s{sOff[0]}, {stride}')
    a(f's_mov_b32 s{sC}, {C_SCALE:#x}')
    a(f'v_and_b32 v{vc}, 15, v0')
    a(f'v_lshrrev_b32 v{vg}, 4, v0')
    a(f'v_lshlrev_b32 v{vKoff}, 9, v{vc}')
    a(f'v_lshl_add_u32 v{vKoff}, v{vg}, 4, v{vKoff}')
    a(f'v_lshlrev_b32 v{vVoff}, 11, v{vg}')
    a(f'v_lshl_add_u32 v{vVoff}, v{vc}, 4, v{vVoff}')
    koffs = [j * 64 for j in range(8)]
    voffs = [i * 512 + hf * 256 for i in range(4) for hf in range(2)]
    def issueK(s):
        for j in range(8):
            a(f'buffer_load_dwordx4 {vr(vKb[s]+4*j,4)}, v{vKoff}, {sr(sK,4)}, s{sOff[s]} offen offset:{koffs[j]} {flags}')
    def issueV(s):
        for j in range(8):
            a(f'buffer_load_dwordx4 {vr(vVb[s]+4*j,4)}, v{vVoff}, {sr(sVv,4)}, s{sOff[s]} offen offset:{voffs[j]} {flags}')
    for s in range(D):
        issueK(s); issueV(s)
    a(f'v_lshrrev_b32 v{vt1}, 2, v{vc}')
    a(f'v_and_b32 v{vt0}, 2, v0')
    a(f'v_lshlrev_b32 v{vt0}, 3, v{vt0}')
    a(f'v_mov_b32 v{vl}, 0xffff')
    a(f'v_lshlrev_b32 v{vt0}, v{vt0}, v{vl}')
    for j in range(4):
        a(f'v_cmp_eq_u32 vcc, {j}, v{vt1}')
        a('s_nop 1')
        a(f'v_cndmask_b32 v{vmask+j}, 0, v{vt0}, vcc')
    a(f'v_mov_b32 v{vm}, 0xf149f2ca')
    a(f'v_mov_b32 v{vl}, 0')
    for i in range(8):
        a(f'v_mov_b32 v{vacc+i}, 0')
    a(f'v_and_b32 v{vt0}, 1, v0')
    a(f'v_lshlrev_b32 v{vt0}, 9, v{vt0}')
    a(f'v_lshl_add_u32 v{vt0}, v{vg}, 4, v{vt0}')
    a('s_barrier')
    for j in range(8):
        a(f'ds_read_b128 {vr(vQ+4*j,4)}, v{vt0} offset:{j*64}')
    a('s_waitcnt lgkmcnt(0)')
    Lloop = a.newlabel('st_loop'); Ldone = a.newlabel('st_done')
    a.label(Lloop)
    for s in range(D):
        N1 = 8 + 16 * (D - 1)
        a(f's_waitcnt vmcnt({N1})')
        for j in range(8):
            cc = '0' if j == 0 else vr(vS, 4)
            a(f'v_mfma_f32_16x16x32_bf16 {vr(vS,4)}, {vr(vKb[s]+4*j,4)}, {vr(vQ+4*j,4)}, {cc}')
        a(f's_add_u32 s{sOff[s]}, s{sOff[s]}, {stride*D}')
        a(f's_cmp_ge_u32 s{sOff[s]}, s{sEnd}')
        a(f's_cselect_b32 s{sOff[s]}, 0x20000000, s{sOff[s]}')
        issueK(s)
        a(f'v_cvt_pk_bf16_f32 v{vt0}, v{vS}, v{vS+1}')
        a(f'v_cvt_pk_bf16_f32 v{vt1}, v{vS+2}, v{vS+3}')
        a(f'v_lshlrev_b32 v{vS}, 16, v{vt0}')
        a(f'v_and_b32 v{vS+1}, 0xffff0000, v{vt0}')
        a(f'v_lshlrev_b32 v{vS+2}, 16, v{vt1}')
        a(f'v_and_b32 v{vS+3}, 0xffff0000, v{vt1}')
        a(f'v_max3_f32 v{vt0}, v{vS}, v{vS+1}, v{vm}')
        a(f'v_max3_f32 v{vt0}, v{vS+2}, v{vS+3}, v{vt0}')
        a(f'v_mov_b32 v{vt1}, v{vt0}')
        a('s_nop 1')
        a(f'v_permlane32_swap_b32 v{vt0}, v{vt1}')
        a(f'v_max_f32 v{vt0}, v{vt0}, v{vt1}')
        a(f'v_mov_b32 v{vt1}, v{vt0}')
        a('s_nop 1')
        a(f'v_permlane16_swap_b32 v{vt0}, v{vt1}')
        a(f'v_max_f32 v{vt0}, v{vt0}, v{vt1}')
        a(f'v_sub_f32 v{valpha}, v{vm}, v{vt0}')
        a(f'v_mul_f32 v{valpha}, s{sC}, v{valpha}')
        a(f'v_exp_f32 v{valpha}, v{valpha}')
        a(f'v_mov_b32 v{vm}, v{vt0}')
        a(f'v_mul_f32 v{vmc}, s{sC}, v{vt0}')
        for i in range(4):
            a(f'v_fma_f32 v{vP+i}, v{vS+i}, s{sC}, -v{vmc}')
        for i in range(4):
            a(f'v_exp_f32 v{vP+i}, v{vP+i}')
        a(f'v_mul_f32 v{vl}, v{vl}, v{valpha}')
        a(f'v_add_f32 v{vt0}, v{vP}, v{vP+1}')
        a(f'v_add_f32 v{vt1}, v{vP+2}, v{vP+3}')
        a(f'v_add_f32 v{vl}, v{vl}, v{vt0}')
        a(f'v_add_f32 v{vl}, v{vl}, v{vt1}')
        for i in range(8):
            qp = '[0,0,2,2]' if (i & 1) == 0 else '[1,1,3,3]'
            a(f'v_mul_f32_dpp v{vacc+i}, v{valpha}, v{vacc+i} quad_perm:{qp} row_mask:0xf bank_mask:0xf')
        for i in range(4):
            a(f'v_cvt_pk_bf16_f32 v{vP+i}, v{vP+i}, v{vP+i}')
        for i in range(4):
            for j in range(4):
                a(f'v_and_b32 v{vA+4*i+j}, v{vP+i}, v{vmask+j}')
        a(f's_waitcnt vmcnt({N1})')
        a('s_nop 0')
        for i in range(4):
            for hf in range(2):
                a(f'v_mfma_f32_16x16x32_bf16 {vr(vacc+4*hf,4)}, {vr(vA+4*i,4)}, {vr(vVb[s]+4*(2*i+hf),4)}, {vr(vacc+4*hf,4)}')
        issueV(s)
        nx = (s + 1) % D
        a(f's_cmp_ge_u32 s{sOff[nx]}, 0x20000000')
        if s == D - 1:
            a(f's_cbranch_scc0 {Lloop}')
        else:
            a(f's_cbranch_scc1 {Ldone}')
    a.label(Ldone)
    xlane_reduce(a, [vl], [vt0], 'v_add_f32', ['p32', 'p16'])
    a(f's_lshl_b32 s{sTmp}, s{sSplit}, 1')
    a(f's_add_u32 s{sTmp}, s{sTmp}, s{S_WAVE}')
    a(f's_lshl_b32 s{sT2}, s{sHead}, 6')
    a(f's_add_u32 s{sT2}, s{sT2}, s{sTmp}')
    a(f's_lshl_b32 s{sT2}, s{sT2}, 4')
    a(f's_add_u32 s{sT2}, s{sT2}, {WS_ML:#x}')
    a(f's_lshl_b32 s{sBase}, s{sHead}, 11')
    a(f's_add_u32 s{sBase}, s{sBase}, s{sTmp}')
    a(f's_lshl_b32 s{sBase}, s{sBase}, 6')
    a(f's_add_u32 s{sBase}, s{sBase}, {WS_O:#x}')
    a(f's_add_u32 s{sTmp}, s{sBase}, 0x10000')
    a(f'v_lshlrev_b32 v{vt1}, 12, v{vc}')
    a(f'v_lshl_add_u32 v{vt1}, v{vg}, 4, v{vt1}')
    a(f'v_min_u32 v{vP}, -2, v{vm}')
    a(f'v_min_u32 v{vP+2}, -2, v{vl}')
    a('s_nop 1')
    a(f'v_mov_b32_dpp v{vP+1}, v{vP} quad_perm:[1,1,3,3] row_mask:0xf bank_mask:0xf')
    a(f'v_mov_b32_dpp v{vP+3}, v{vP+2} quad_perm:[1,1,3,3] row_mask:0xf bank_mask:0xf')
    for i in range(8):
        a(f'v_min_u32 v{vacc+i}, -2, v{vacc+i}')
    a(f'v_mov_b32 v{vt0}, 0')
    a(f'buffer_store_dwordx4 {vr(vacc,4)}, v{vt1}, {sr(S_WS,4)}, s{sBase} offen sc1')
    a(f'buffer_store_dwordx4 {vr(vacc+4,4)}, v{vt1}, {sr(S_WS,4)}, s{sTmp} offen sc1')
    a('s_mov_b64 exec, 1')
    a(f'buffer_store_dwordx4 {vr(vP,4)}, v{vt0}, {sr(S_WS,4)}, s{sT2} offen sc1')
    a('s_mov_b64 exec, -1')
    if cfg.get('prof'):
        a(f's_add_u32 s{sT2}, s{S_WAVE}, 4')
        a(f's_memrealtime s[54:55]')
        a(f's_lshl_b32 s56, s2, 4')
        a(f's_add_u32 s56, s56, s{sT2}')
        a(f's_lshl_b32 s56, s56, 2')
        a(f's_add_u32 s56, s56, {WS_PROF:#x}')
        a('s_waitcnt lgkmcnt(0)')
        a(f'v_mov_b32 v{vt1}, s54')
        a(f'buffer_store_dword v{vt1}, v{vt0}, {sr(S_WS,4)}, s56 offen')
    a('s_barrier')
    a('s_endpgm')
    return V.n


def gemv_pairs(a, vm, W, nrows, ndw, vX, acc, tmps, loads):
    for t in range(nrows // 2):
        if loads is not None:
            vm.wait(loads[2 * t + 1])
        for d in range(ndw):
            lo, hi = tmps[2 * d], tmps[2 * d + 1]
            a(f'v_perm_b32 v{lo}, v{W[2*t+1]+d}, v{W[2*t]+d}, s{S_SELLO}')
            a(f'v_perm_b32 v{hi}, v{W[2*t+1]+d}, v{W[2*t]+d}, s{S_SELHI}')
        for d in range(ndw):
            lo, hi = tmps[2 * d], tmps[2 * d + 1]
            c0 = '0' if t == 0 else f'v{acc[2*d]}'
            c1 = '0' if t == 0 else f'v{acc[2*d+1]}'
            a(f'v_dot2_f32_bf16 v{acc[2*d]}, v{lo}, v{vX+t}, {c0}')
            a(f'v_dot2_f32_bf16 v{acc[2*d+1]}, v{hi}, v{vX+t}, {c1}')
    a('s_nop 2')


def rnd_bf16(a, d, s, t):
    a(f'v_cvt_pk_bf16_f32 v{t}, v{s}, v{s}')
    a(f'v_lshlrev_b32 v{d}, 16, v{t}')


def gen_auxA(a, cfg):
    V = Regs(1, 256)
    vt = V.alloc(8, 4)
    vX = V.alloc(8, 4)
    vacc = V.alloc(8, 4)
    vtmp = V.alloc(8, 4)
    vo1 = V.alloc(); vo2 = V.alloc(); vo3 = V.alloc(); vSent = V.alloc(4, 4)
    vW = V.alloc(64, 4)
    vWp = V.alloc(64, 4)
    vOq = V.alloc(16, 4)
    vML = V.alloc(16, 4)
    sX = 4; sWQ = 8; sDBG = 44; sWO = 48
    sT = 52; sT2 = 53; sHead = 54; sJ = 55; sCnt = 56; sC = 57
    sPk = 64
    vm = VM(a)
    srd(a, sX, P_X, 896)
    srd(a, sWQ, P_WQ, 448 * 8192)
    srd(a, sDBG, P_DBG, 256)
    srd(a, sWO, P_WO, 4096 * 896)
    prof(a, cfg, 0, vt, 58)
    vm.n += 1 if cfg.get('prof') else 0
    a(f'v_lshrrev_b32 v{vo1}, 1, v0')
    a(f'v_mul_u32_u24 v{vo2}, 28, v{vo1}')
    lx0 = vm.issue(f'buffer_load_dwordx4 {vr(vX,4)}, v{vo2}, {sr(sX,4)}, 0 offen')
    lx1 = vm.issue(f'buffer_load_dwordx3 {vr(vX+4,3)}, v{vo2}, {sr(sX,4)}, 0 offen offset:16')
    a(f'v_mul_u32_u24 v{vo2}, {14*8192}, v{vo1}')
    a(f'v_and_b32 v{vo3}, 1, v0')
    a(f'v_lshl_add_u32 v{vo2}, v{vo3}, 4, v{vo2}')
    a(f's_and_b32 s{sT}, s2, 7')
    a(f's_lshl_b32 s{sT}, s{sT}, 10')
    a(f's_lshr_b32 s{sT2}, s2, 3')
    a(f's_lshl_b32 s{sT2}, s{sT2}, 5')
    a(f's_add_u32 s{sT}, s{sT}, s{sT2}')
    a(f's_mov_b32 s{sT2}, s{sT}')
    lw = []
    for k in range(14):
        lw.append(vm.issue(f'buffer_load_dwordx4 {vr(vW+4*k,4)}, v{vo2}, {sr(sWQ,4)}, s{sT2} offen'))
        if k < 13: a(f's_add_u32 s{sT2}, s{sT2}, 8192')
    for i in range(4): a(f'v_mov_b32 v{vSent+i}, -1')
    a(f's_lshr_b32 s{sHead}, s2, 5')
    a(f's_and_b32 s{sJ}, s2, 31')
    a(f'v_and_b32 v{vo1}, 15, v0')
    a(f'v_lshrrev_b32 v{vo3}, 4, v0')
    a(f'v_lshlrev_b32 v{vo1}, 12, v{vo1}')
    a(f'v_lshl_add_u32 v{vo1}, v{vo3}, 4, v{vo1}')
    a(f's_lshl_b32 s{sT2}, s{sHead}, 10')
    a(f's_add_u32 s{sT2}, s{sT2}, s{sJ}')
    a(f's_lshl_b32 s{sT2}, s{sT2}, 7')
    a(f's_add_u32 s{sT2}, s{sT2}, {WS_O:#x}')
    vm.issue(f'buffer_store_dwordx4 {vr(vSent,4)}, v{vo1}, {sr(S_WS,4)}, s{sT2} offen sc1')
    vm.issue(f'buffer_store_dwordx4 {vr(vSent,4)}, v{vo1}, {sr(S_WS,4)}, s{sT2} offen offset:64 sc1')
    a(f's_add_u32 s{sT2}, s{sT2}, 0x10000')
    vm.issue(f'buffer_store_dwordx4 {vr(vSent,4)}, v{vo1}, {sr(S_WS,4)}, s{sT2} offen sc1')
    vm.issue(f'buffer_store_dwordx4 {vr(vSent,4)}, v{vo1}, {sr(S_WS,4)}, s{sT2} offen offset:64 sc1')
    a(f'v_lshlrev_b32 v{vo1}, 13, v0')
    a(f's_lshl_b32 s{sT2}, s2, 5')
    a(f's_add_u32 s{sT2}, s{sT2}, {WS_Y:#x}')
    a('s_mov_b32 exec_hi, 0x00ffffff')
    vm.issue(f'buffer_store_dwordx4 {vr(vSent,4)}, v{vo1}, {sr(S_WS,4)}, s{sT2} offen sc1')
    vm.issue(f'buffer_store_dwordx4 {vr(vSent,4)}, v{vo1}, {sr(S_WS,4)}, s{sT2} offen offset:16 sc1')
    a(f'v_lshlrev_b32 v{vo1}, 4, v0')
    a(f's_lshl_b32 s{sT2}, s2, 5')
    a(f's_add_u32 s{sT2}, s{sT2}, {WS_ML:#x}')
    a('s_mov_b64 exec, 3')
    vm.issue(f'buffer_store_dwordx4 {vr(vSent,4)}, v{vo1}, {sr(S_WS,4)}, s{sT2} offen sc1')
    a('s_mov_b64 exec, 1')
    Lnoh = a.newlabel('noh')
    a(f's_lshr_b32 s{sT2}, s2, 3')
    a(f's_cmp_ge_u32 s{sT2}, 28')
    a(f's_cselect_b32 s{sCnt}, 1, 0')
    a(f's_and_b32 s{sC}, s2, 7')
    a(f's_mul_i32 s{sC}, s{sC}, 7')
    a(f's_lshr_b32 s{sPk}, s{sT2}, 2')
    a(f's_add_u32 s{sC}, s{sC}, s{sPk}')
    a(f's_lshl_b32 s{sC}, s{sC}, 6')
    a(f's_and_b32 s{sPk}, s{sT2}, 3')
    a(f's_lshl_b32 s{sPk}, s{sPk}, 4')
    a(f's_add_u32 s{sC}, s{sC}, s{sPk}')
    a(f's_add_u32 s{sC}, s{sC}, {WS_H:#x}')
    a(f's_cmp_eq_u32 s{sCnt}, 1')
    a(f's_cselect_b32 s{sC}, {WS_SIZE:#x}, s{sC}')
    vm.issue(f'buffer_store_dwordx4 {vr(vSent,4)}, v{vo1}, {sr(S_WS,4)}, s{sC} offen sc1')
    a('s_mov_b64 exec, -1')
    vm.wait(lx1)
    gemv_pairs(a, vm, [vW + 4 * k for k in range(14)], 14, 4, vX, [vacc + i for i in range(8)], [vtmp + i for i in range(8)], lw)
    xlane_reduce(a, [vacc + i for i in range(8)], [vtmp + i for i in range(8)], 'v_add_f32', ['x2', 'r4', 'r8', 'p16', 'p32'])
    for i in range(4):
        a(f'v_cvt_pk_bf16_f32 v{vt+i}, v{vacc+2*i}, v{vacc+2*i+1}')
    a(f'v_lshlrev_b32 v{vo1}, 4, v0')
    a('s_mov_b64 exec, 3')
    a(f'buffer_store_dwordx4 {vr(vt,4)}, v{vo1}, {sr(S_WS,4)}, s{sT} offen sc1')
    a('s_waitcnt vmcnt(0)')
    a('s_mov_b64 exec, 1')
    a(f's_and_b32 s{sT}, s2, 7')
    a(f's_lshl_b32 s{sT}, s{sT}, 5')
    a(f's_lshr_b32 s{sT2}, s2, 3')
    a(f's_add_u32 s{sT}, s{sT}, s{sT2}')
    a(f'v_mov_b32 v{vo2}, 1')
    a(f'v_mov_b32 v{vo3}, 0')
    a(f'buffer_store_byte v{vo2}, v{vo3}, {sr(sDBG,4)}, s{sT} offen sc1')
    a('s_mov_b64 exec, 0xff')
    a(f'v_lshlrev_b32 v{vo1}, 2, v0')
    a(f's_lshl_b32 s{sT}, s{sHead}, 5')
    a(f's_mov_b32 s{sT2}, 0x01010101')
    poll(a, [f'buffer_load_dword v{vo2}, v{vo1}, {sr(sDBG,4)}, s{sT} offen sc1'], [vo2], vo3, sCnt, expect=f's{sT2}', name='pq')
    a(f'v_lshlrev_b32 v{vo1}, 4, v0')
    a(f's_lshl_b32 s{sT}, s{sHead}, 10')
    a(f'buffer_load_dwordx4 {vr(vt,4)}, v{vo1}, {sr(S_WS,4)}, s{sT} offen sc1')
    a('s_waitcnt vmcnt(0)')
    a(f'ds_write_b128 v{vo1}, {vr(vt,4)}')
    a('s_waitcnt lgkmcnt(0)')
    a('s_barrier')
    prof(a, cfg, 1, vt, 58)
    a(f's_lshl_b32 s{sT}, s{sHead}, 9')
    a(f's_lshl_b32 s{sT2}, s{sJ}, 3')
    a(f's_add_u32 s{sT}, s{sT}, s{sT2}')
    a(f's_mul_i32 s{sT}, s{sT}, 896')
    a(f's_add_u32 s{sT2}, s{sT}, {256*896}')
    a(f'v_min_u32 v{vo2}, 55, v0')
    a(f'v_lshlrev_b32 v{vo2}, 4, v{vo2}')
    a(f's_add_u32 s{sC}, s{sT}, {4*896}')
    a(f's_add_u32 s{sCnt}, s{sT2}, {4*896}')
    for hh in range(2):
        for e in range(8):
            so = [[sT, sC], [sT2, sCnt]][hh][e // 4]
            a(f'buffer_load_dwordx4 {vr(vW+4*(8*hh+e),4)}, v{vo2}, {sr(sWO,4)}, s{so} offen offset:{(e%4)*896}')
    a('s_waitcnt vmcnt(0)')
    for pr in range(8):
        r0 = vW + 4 * (2 * pr); r1 = vW + 4 * (2 * pr + 1)
        for d in range(4):
            a(f'v_perm_b32 v{vWp+8*pr+2*d}, v{r1+d}, v{r0+d}, s{S_SELLO}')
            a(f'v_perm_b32 v{vWp+8*pr+2*d+1}, v{r1+d}, v{r0+d}, s{S_SELHI}')
    a(f'v_lshlrev_b32 v{vo1}, 2, v0')
    a(f's_mov_b32 s{sT2}, 0x01010101')
    poll(a, [f'buffer_load_dword v{vo2}, v{vo1}, {sr(sDBG,4)}, 0 offen sc1'], [vo2], vo3, sCnt, expect=f's{sT2}', name='pall')
    a(f'v_lshlrev_b32 v{vo1}, 4, v0')
    a(f'v_and_b32 v{vo2}, 0x3f0, v{vo1}')
    a(f'v_lshrrev_b32 v{vo2}, 2, v{vo2}')
    a(f'v_and_b32 v{vo2}, 0xf0, v{vo2}')
    a(f's_lshl_b32 s{sT}, s2, 12')
    a(f's_add_u32 s{sT}, s{sT}, {WS_O:#x}')
    a(f's_lshl_b32 s{sT2}, s{sHead}, 10')
    a(f's_add_u32 s{sT2}, s{sT2}, {WS_ML:#x}')
    a(f's_mov_b32 s{sC}, {C_SCALE:#x}')
    a('s_barrier')
    loads = []
    for k in range(4):
        loads.append(f'buffer_load_dwordx4 {vr(vML+4*k,4)}, v{vo2}, {sr(S_WS,4)}, s{sT2} offen offset:{k*256} sc1')
    for k in range(4):
        loads.append(f'buffer_load_dwordx4 {vr(vOq+4*k,4)}, v{vo1}, {sr(S_WS,4)}, s{sT} offen offset:{k*1024} sc1')
    poll(a, loads, [vML + i for i in range(16)] + [vOq + i for i in range(16)], vo3, sCnt, name='ps2')
    prof(a, cfg, 2, vt, 58)
    M = [vt, vt + 1]
    for hh in range(2):
        a(f'v_max3_f32 v{M[hh]}, v{vML+hh}, v{vML+4+hh}, v{vML+8+hh}')
        a(f'v_max_f32 v{M[hh]}, v{M[hh]}, v{vML+12+hh}')
    xlane_reduce(a, M, [vt + 2, vt + 3], 'v_max_f32', ['r4', 'r8', 'p16', 'p32'])
    for k in range(4):
        for hh in range(2):
            a(f'v_sub_f32 v{vML+4*k+hh}, v{vML+4*k+hh}, v{M[hh]}')
            a(f'v_mul_f32 v{vML+4*k+hh}, s{sC}, v{vML+4*k+hh}')
    for k in range(4):
        for hh in range(2):
            a(f'v_exp_f32 v{vML+4*k+hh}, v{vML+4*k+hh}')
    a('s_nop 0')
    for k in range(4):
        for i in range(4):
            w = vML + 4 * k + (i & 1)
            if k == 0: a(f'v_mul_f32 v{vacc+i}, v{w}, v{vOq+4*k+i}')
            else: a(f'v_fmac_f32 v{vacc+i}, v{w}, v{vOq+4*k+i}')
        for hh in range(2):
            if k == 0: a(f'v_mul_f32 v{vacc+4+hh}, v{vML+4*k+hh}, v{vML+4*k+2+hh}')
            else: a(f'v_fmac_f32 v{vacc+4+hh}, v{vML+4*k+hh}, v{vML+4*k+2+hh}')
    xlane_reduce(a, [vacc + i for i in range(6)], [vtmp + i for i in range(6)], 'v_add_f32', ['r4', 'r8', 'p16', 'p32'])
    a(f'v_rcp_f32 v{vacc+4}, v{vacc+4}')
    a(f'v_rcp_f32 v{vacc+5}, v{vacc+5}')
    a('s_nop 0')
    for i in range(4):
        a(f'v_mul_f32 v{vacc+i}, v{vacc+i}, v{vacc+4+(i&1)}')
    a(f'v_cvt_pk_bf16_f32 v{vt}, v{vacc}, v{vacc+2}')
    a(f'v_cvt_pk_bf16_f32 v{vt+1}, v{vacc+1}, v{vacc+3}')
    a('s_nop 0')
    for hh in range(2):
        for g in range(4):
            a(f'v_readlane_b32 s{sPk+4*hh+g}, v{vt+hh}, {g}')
    a('s_nop 1')
    for pr in range(8):
        for col in range(8):
            c0 = '0' if pr == 0 else f'v{vacc+col}'
            a(f'v_dot2_f32_bf16 v{vacc+col}, v{vWp+8*pr+col}, s{sPk+pr}, {c0}')
    a('s_nop 2')
    for col in range(8):
        a(f'v_min_u32 v{vacc+col}, -2, v{vacc+col}')
    a(f'v_lshlrev_b32 v{vo1}, 13, v0')
    a(f's_lshl_b32 s{sT2}, s2, 5')
    a(f's_add_u32 s{sT2}, s{sT2}, {WS_Y:#x}')
    a('s_mov_b32 exec_hi, 0x00ffffff')
    a(f'buffer_store_dwordx4 {vr(vacc,4)}, v{vo1}, {sr(S_WS,4)}, s{sT2} offen sc1')
    a(f'buffer_store_dwordx4 {vr(vacc+4,4)}, v{vo1}, {sr(S_WS,4)}, s{sT2} offen offset:16 sc1')
    a('s_mov_b64 exec, -1')
    prof(a, cfg, 3, vt, 58)
    a('s_endpgm')
    return V.n


def gen_auxB(a, cfg):
    V = Regs(1, 256)
    vt = V.alloc(8, 4)
    vX = V.alloc(16, 4)
    vacc = V.alloc(8, 4)
    vtmp = V.alloc(8, 4)
    vb = V.alloc(8, 4)
    vo1 = V.alloc(); vo2 = V.alloc(); vo3 = V.alloc(); vg = V.alloc()
    vW = V.alloc(112, 4)
    vY = V.alloc(32, 4)
    sX = 4; sWG = 8; sWU = 44; sWD = 48; sDBG = 64; sGW = 68; sOUT = 72
    sT = 52; sT2 = 53; sI = 54; sJ = 55; sCnt = 56; sCb = 57; sG = 62; sG1 = 63
    vm = VM(a)
    srd(a, sX, P_X, 896)
    srd(a, sWG, P_WG, 448 * 3584)
    srd(a, sWU, P_WU, 448 * 3584)
    srd(a, sWD, P_WD, 1792 * 896)
    srd(a, sDBG, P_DBG, 256)
    srd(a, sGW, P_GW, 896)
    srd(a, sOUT, P_OUT, 896)
    Lnoffn = a.newlabel('noffn'); Lffn_done = a.newlabel('ffn_done'); Lnofin = a.newlabel('nofin')
    a(f's_lshr_b32 s{sI}, s2, 3')
    a(f's_cmp_ge_u32 s{sI}, 28')
    a(f's_cbranch_scc1 {Lnoffn}')
    a(f's_and_b32 s{sCb}, s2, 7')
    a(f's_mul_i32 s{sCb}, s{sCb}, 7')
    a(f's_lshr_b32 s{sT}, s{sI}, 2')
    a(f's_add_u32 s{sCb}, s{sCb}, s{sT}')
    a(f's_lshl_b32 s{sCb}, s{sCb}, 6')
    a(f's_and_b32 s{sT}, s{sI}, 3')
    a(f's_lshl_b32 s{sT}, s{sT}, 4')
    a(f's_add_u32 s{sCb}, s{sCb}, s{sT}')
    a(f'v_lshrrev_b32 v{vo1}, 1, v0')
    a(f'v_mul_u32_u24 v{vo2}, 28, v{vo1}')
    vm.issue(f'buffer_load_dwordx4 {vr(vX,4)}, v{vo2}, {sr(sX,4)}, 0 offen')
    lx1 = vm.issue(f'buffer_load_dwordx3 {vr(vX+4,3)}, v{vo2}, {sr(sX,4)}, 0 offen offset:16')
    a(f'v_mul_u32_u24 v{vo2}, {14*3584}, v{vo1}')
    a(f'v_and_b32 v{vo3}, 1, v0')
    a(f'v_lshl_add_u32 v{vo2}, v{vo3}, 3, v{vo2}')
    a(f's_mov_b32 s{sT2}, s{sCb}')
    lg = []; lu = []
    for k in range(14):
        lg.append(vm.issue(f'buffer_load_dwordx2 {vr(vW+2*k,2)}, v{vo2}, {sr(sWG,4)}, s{sT2} offen'))
        lu.append(vm.issue(f'buffer_load_dwordx2 {vr(vW+28+2*k,2)}, v{vo2}, {sr(sWU,4)}, s{sT2} offen'))
        if k < 13: a(f's_add_u32 s{sT2}, s{sT2}, 3584')
    a('s_barrier')
    vm.waitall()
    gemv_pairs(a, vm, [vW + 2 * k for k in range(14)], 14, 2, vX, [vacc + i for i in range(4)], [vtmp + i for i in range(4)], None)
    gemv_pairs(a, vm, [vW + 28 + 2 * k for k in range(14)], 14, 2, vX, [vacc + 4 + i for i in range(4)], [vtmp + 4 + i for i in range(4)], None)
    xlane_reduce(a, [vacc + i for i in range(8)], [vtmp + i for i in range(8)], 'v_add_f32', ['x2', 'r4', 'r8', 'p16', 'p32'])
    for i in range(8):
        rnd_bf16(a, vacc + i, vacc + i, vtmp + i)
    a(f's_mov_b32 s{sT}, {f2u(0.044715):#x}')
    a(f's_mov_b32 s{sT2}, {f2u(-2*0.7978845608028654*1.4426950408889634):#x}')
    for i in range(4):
        x = vacc + i; t = vtmp + i
        a(f'v_mul_f32 v{t}, v{x}, v{x}')
        a(f'v_mul_f32 v{t}, v{t}, v{x}')
        a(f'v_fma_f32 v{t}, v{t}, s{sT}, v{x}')
        a(f'v_mul_f32 v{t}, s{sT2}, v{t}')
    for i in range(4):
        a(f'v_exp_f32 v{vtmp+i}, v{vtmp+i}')
    a('s_nop 0')
    for i in range(4):
        a(f'v_add_f32 v{vtmp+i}, 1.0, v{vtmp+i}')
    for i in range(4):
        a(f'v_rcp_f32 v{vtmp+i}, v{vtmp+i}')
    a('s_nop 0')
    for i in range(4):
        a(f'v_mul_f32 v{vacc+i}, v{vacc+i}, v{vtmp+i}')
    for i in range(4):
        rnd_bf16(a, vacc + i, vacc + i, vtmp + i)
    for i in range(4):
        a(f'v_mul_f32 v{vacc+i}, v{vacc+i}, v{vacc+4+i}')
    a(f'v_cvt_pk_bf16_f32 v{vt}, v{vacc}, v{vacc+1}')
    a(f'v_cvt_pk_bf16_f32 v{vt+1}, v{vacc+2}, v{vacc+3}')
    a(f'v_min_u32 v{vt}, -2, v{vt}')
    a(f'v_min_u32 v{vt+1}, -2, v{vt+1}')
    a(f'v_lshlrev_b32 v{vo1}, 3, v0')
    a(f's_add_u32 s{sT}, s{sCb}, {WS_H:#x}')
    a('s_mov_b64 exec, 3')
    a(f'buffer_store_dwordx2 {vr(vt,2)}, v{vo1}, {sr(S_WS,4)}, s{sT} offen sc1')
    a('s_mov_b64 exec, -1')
    a(f's_branch {Lffn_done}')
    a.label(Lnoffn)
    a('s_barrier')
    a.label(Lffn_done)
    a(f's_and_b32 s{sT}, s2, 7')
    a(f's_cmp_ge_u32 s{sT}, 7')
    a(f's_cbranch_scc1 {Lnofin}')
    a(f's_cmp_lt_u32 s{sI}, 24')
    a(f's_cbranch_scc1 {Lnofin}')
    a(f's_lshl_b32 s{sJ}, s{sT}, 3')
    a(f's_add_u32 s{sJ}, s{sJ}, s{sI}')
    a(f's_sub_u32 s{sJ}, s{sJ}, 24')
    a(f'v_mul_u32_u24 v{vo2}, {28*896}, v0')
    a(f's_lshl_b32 s{sT2}, s{sJ}, 4')
    for k in range(28):
        a(f'buffer_load_dwordx4 {vr(vW+4*k,4)}, v{vo2}, {sr(sWD,4)}, s{sT2} offen offset:{(k%4)*896}')
        if k % 4 == 3 and k < 27: a(f's_add_u32 s{sT2}, s{sT2}, {4*896}')
    a(f'v_lshlrev_b32 v{vo1}, 4, v0')
    a(f'buffer_load_dwordx4 {vr(vX,4)}, v{vo1}, {sr(sX,4)}, 0 offen')
    a(f'buffer_load_dwordx4 {vr(vX+4,4)}, v{vo1}, {sr(sGW,4)}, 0 offen')
    a('s_waitcnt vmcnt(0)')
    for d in range(4):
        a(f'v_lshlrev_b32 v{vt}, 16, v{vX+d}')
        a(f'v_lshlrev_b32 v{vt+1}, 16, v{vX+4+d}')
        a(f'v_and_b32 v{vt+2}, 0xffff0000, v{vX+d}')
        a(f'v_and_b32 v{vt+3}, 0xffff0000, v{vX+4+d}')
        a(f'v_mul_f32 v{vt}, v{vt}, v{vt+1}')
        a(f'v_mul_f32 v{vt+2}, v{vt+2}, v{vt+3}')
        a(f'v_cvt_pk_bf16_f32 v{vt}, v{vt}, v{vt+2}')
        a(f'v_lshlrev_b32 v{vt+1}, 16, v{vt}')
        a(f'v_and_b32 v{vt+2}, 0xffff0000, v{vt}')
        if d == 0:
            a(f'v_add_f32 v{vg}, v{vt+1}, v{vt+2}')
        else:
            a(f'v_add_f32 v{vg}, v{vg}, v{vt+1}')
            a(f'v_add_f32 v{vg}, v{vg}, v{vt+2}')
    xlane_reduce(a, [vg], [vt], 'v_add_f32', ['x1', 'x2', 'r4', 'r8', 'p16', 'p32'])
    rnd_bf16(a, vg, vg, vt)
    a(f'v_mul_f32 v{vg}, {f2u(-1.4426950408889634):#x}, v{vg}')
    a(f'v_exp_f32 v{vg}, v{vg}')
    a('s_nop 0')
    a(f'v_add_f32 v{vg}, 1.0, v{vg}')
    a(f'v_rcp_f32 v{vg}, v{vg}')
    a('s_nop 0')
    rnd_bf16(a, vg, vg, vt)
    a(f'v_sub_f32 v{vt+1}, 1.0, v{vg}')
    rnd_bf16(a, vt + 1, vt + 1, vt)
    a('s_nop 0')
    a(f'v_readfirstlane_b32 s{sG}, v{vg}')
    a(f'v_readfirstlane_b32 s{sG1}, v{vt+1}')
    a(f'v_lshlrev_b32 v{vo1}, 2, v0')
    a(f's_mov_b32 s{sT2}, 0x01010101')
    poll(a, [f'buffer_load_dword v{vo2}, v{vo1}, {sr(sDBG,4)}, 0 offen sc1'], [vo2], vo3, sCnt, expect=f's{sT2}', name='pallb')
    a(f'v_mul_u32_u24 v{vo1}, 56, v0')
    a(f's_mov_b32 s{sT}, {WS_H:#x}')
    loads = [f'buffer_load_dwordx4 {vr(vX+4*i,4)}, v{vo1}, {sr(S_WS,4)}, s{sT} offen offset:{16*i} sc1' for i in range(3)]
    loads.append(f'buffer_load_dwordx2 {vr(vX+12,2)}, v{vo1}, {sr(S_WS,4)}, s{sT} offen offset:48 sc1')
    poll(a, loads, [vX + i for i in range(14)], vo3, sCnt, name='ph')
    gemv_pairs(a, vm, [vW + 4 * k for k in range(28)], 28, 4, vX, [vb + i for i in range(8)], [vtmp + i for i in range(8)], None)
    xlane_reduce(a, [vb + i for i in range(8)], [vtmp + i for i in range(8)], 'v_add_f32', ['x1', 'x2', 'r4', 'r8', 'p16', 'p32'])
    a(f'v_and_b32 v{vo1}, 1, v0')
    a(f'v_cmp_eq_u32 vcc, 1, v{vo1}')
    a('s_nop 1')
    for i in range(4):
        a(f'v_cndmask_b32 v{vb+i}, v{vb+i}, v{vb+4+i}, vcc')
    for i in range(4):
        rnd_bf16(a, vb + i, vb + i, vtmp + i)
        a(f'v_mul_f32 v{vb+i}, s{sG1}, v{vb+i}')
        rnd_bf16(a, vb + i, vb + i, vtmp + i)
    a(f'v_lshlrev_b32 v{vo1}, 4, v0')
    a(f's_lshl_b32 s{sT}, s{sJ}, 13')
    a(f's_add_u32 s{sT}, s{sT}, {WS_Y:#x}')
    a(f's_add_u32 s{sT2}, s{sT}, 4096')
    a('s_barrier')
    loads = [f'buffer_load_dwordx4 {vr(vY+4*k,4)}, v{vo1}, {sr(S_WS,4)}, s{[sT,sT2][k//4]} offen offset:{(k%4)*1024} sc1' for k in range(8)]
    poll(a, loads, [vY + i for i in range(32)], vo3, sCnt, name='py')
    for i in range(4):
        a(f'v_add_f32 v{vacc+i}, v{vY+i}, v{vY+4+i}')
        for k in range(2, 8):
            a(f'v_add_f32 v{vacc+i}, v{vacc+i}, v{vY+4*k+i}')
    xlane_reduce(a, [vacc + i for i in range(4)], [vtmp + i for i in range(4)], 'v_add_f32', ['x2', 'r4', 'r8', 'p16', 'p32'])
    for i in range(4):
        rnd_bf16(a, vacc + i, vacc + i, vtmp + i)
        a(f'v_mul_f32 v{vacc+i}, s{sG}, v{vacc+i}')
        rnd_bf16(a, vacc + i, vacc + i, vtmp + i)
        a(f'v_add_f32 v{vacc+i}, v{vacc+i}, v{vb+i}')
    a(f'v_cvt_pk_bf16_f32 v{vt}, v{vacc}, v{vacc+1}')
    a(f'v_cvt_pk_bf16_f32 v{vt+1}, v{vacc+2}, v{vacc+3}')
    a(f'v_lshlrev_b32 v{vo1}, 3, v0')
    a(f's_lshl_b32 s{sT}, s{sJ}, 4')
    a('s_mov_b64 exec, 3')
    a(f'buffer_store_dwordx2 {vr(vt,2)}, v{vo1}, {sr(sOUT,4)}, s{sT} offen')
    a('s_mov_b64 exec, -1')
    prof(a, cfg, 6, vt, 58)
    a('s_endpgm')
    a.label(Lnofin)
    a('s_barrier')
    a('s_endpgm')
    return V.n


def gen(cfg):
    a = Asm()
    a.raw(kernel_header(NAME))
    a('s_cmp_ge_u32 s2, 256')
    a('s_cbranch_scc1 L_end')
    a('s_load_dwordx16 s[16:31], s[0:1], 0')
    a('s_load_dwordx8 s[32:39], s[0:1], 64')
    a('s_load_dwordx2 s[40:41], s[0:1], 96')
    a('v_lshrrev_b32 v1, 6, v0')
    a('v_and_b32 v0, 63, v0')
    a(f'v_readfirstlane_b32 s{S_WAVE}, v1')
    a(f's_mov_b32 s{S_SELLO}, 0x05040100')
    a(f's_mov_b32 s{S_SELHI}, 0x07060302')
    a('s_waitcnt lgkmcnt(0)')
    srd(a, S_WS, P_WS, WS_SIZE)
    a(f's_cmp_eq_u32 s{S_WAVE}, 2')
    a('s_cbranch_scc1 L_auxA')
    a(f's_cmp_eq_u32 s{S_WAVE}, 3')
    a('s_cbranch_scc1 L_auxB')
    n0 = gen_stream(a, cfg)
    a.label('L_auxA')
    n1 = gen_auxA(a, cfg)
    a.label('L_auxB')
    n2 = gen_auxB(a, cfg)
    a.label('L_end')
    a('s_endpgm')
    nv = max(n0, n1, n2)
    print('vgprs', n0, n1, n2, file=sys.stderr)
    hdr = open('gated_mix__gqa_block_cached__geglu_ffn__decode.s.ref').read().split('; @launch')[0]
    lds = cfg.get('lds', 1024)
    hdr += f'; @launch grid=(256,1,1) block=(256,1,1) lds={lds}\n.amdgcn_target "amdgcn-amd-amdhsa--gfx950"\n'
    return hdr + a.text() + kernel_desc(NAME, nv, 80)


if __name__ == '__main__':
    cfg = json.loads(sys.argv[2]) if len(sys.argv) > 2 else {}
    open(sys.argv[1], 'w').write(gen(cfg))
```

```python
import sys, struct, json
from asmlib import *

def f2u(f): return struct.unpack('<I', struct.pack('<f', f))[0]
C_SCALE = f2u(1.4426950408889634 / 16.0)

WS_QP = 0x0
WS_TK = 0x20000
WS_PROF = 0x24000
WS_GP = 0x40000
WS_IT = 0x80000
WS_ML = 0x60000
WS_O = 0x100000
WS_Y = 0x300000
WS_B = 0x400000
WS_SIZE = 0x500000

NAME = 'gated_mix__gqa_block_cached__geglu_ffn__decode_kernel'
P_X, P_K, P_V, P_WQ, P_WO, P_BX, P_WG, P_WU, P_WD, P_GW, P_OUT, P_DBG, P_WS = [16 + 2 * i for i in range(13)]
S_WS = 12
S_WAVE = 3
S_SELLO = 60; S_SELHI = 61
S_TA = 88; S_TB = 89
POLL_MAX = 1 << 14
FIN0 = 200
INVALID = 0x20000000
LDS_TAG = 1024


class VM:
    def __init__(self, a):
        self.a = a; self.n = 0
    def issue(self, s):
        self.a(s); self.n += 1
        return self.n - 1
    def wait(self, idx):
        k = self.n - idx - 1
        assert 0 <= k <= 63
        self.a(f's_waitcnt vmcnt({k})')


def srd(a, d, p, nbytes):
    a(f's_mov_b32 s{d}, s{p}')
    a(f's_mov_b32 s{d+1}, s{p+1}')
    a(f's_mov_b32 s{d+2}, {nbytes:#x}')
    a(f's_mov_b32 s{d+3}, 0x00020000')


def dpp(op, d, s0, s1, ctrl):
    return f'{op}_dpp v{d}, v{s0}, v{s1} {ctrl} row_mask:0xf bank_mask:0xf'


def xlane_reduce(a, regs, tmps, op, steps):
    n = len(regs)
    for st in steps:
        if st in ('x1', 'x2', 'r4', 'r8'):
            ctrl = {'x1': 'quad_perm:[1,0,3,2]', 'x2': 'quad_perm:[2,3,0,1]', 'r4': 'row_ror:4', 'r8': 'row_ror:8'}[st]
            if n < 3: a('s_nop 1')
            for r in regs:
                a(dpp(op, r, r, r, ctrl))
        else:
            ins = 'v_permlane16_swap_b32' if st == 'p16' else 'v_permlane32_swap_b32'
            for r, t in zip(regs, tmps):
                a(f'v_mov_b32 v{t}, v{r}')
            a('s_nop 1')
            for r, t in zip(regs, tmps):
                a(f'{ins} v{r}, v{t}')
            if n < 2: a('s_nop 0')
            for r, t in zip(regs, tmps):
                a(f'{op} v{r}, v{r}, v{t}')


def tagB(a):
    a(f's_mul_i32 s{S_TB}, s{S_TA}, 0x9e3779b1')
    a(f's_add_u32 s{S_TB}, s{S_TB}, 0x7f4a7c15')


def poll(a, loads, chunks, vt, scnt, name='poll', sleep=1):
    L = a.newlabel(name); D = a.newlabel(name + '_done')
    a(f's_mov_b32 s{scnt}, {POLL_MAX}')
    a.label(L)
    for l in loads: a(l)
    n = len(chunks)
    for i, c in enumerate(chunks):
        if i % 4 == 0:
            a(f's_waitcnt vmcnt({max(0, n - i - 4)})')
        a(f'v_xor_b32 v{vt+1}, s{S_TA}, v{c+1}')
        a(f'v_xor_b32 v{vt+2}, s{S_TB}, v{c+3}')
        if i == 0: a(f'v_or_b32 v{vt}, v{vt+1}, v{vt+2}')
        else: a(f'v_or3_b32 v{vt}, v{vt}, v{vt+1}, v{vt+2}')
    a(f'v_cmp_ne_u32 vcc, 0, v{vt}')
    a('s_mov_b64 exec, vcc')
    a(f's_cbranch_execz {D}')
    a(f's_sub_u32 s{scnt}, s{scnt}, 1')
    a(f's_cbranch_scc1 {D}')
    if sleep: a(f's_sleep {sleep}')
    a(f's_branch {L}')
    a.label(D)
    a('s_mov_b64 exec, -1')


def mkchunks(a, dst, vals):
    for i, v in enumerate(vals):
        a(f'v_mov_b32 v{dst+2*i}, v{v}')
        a(f'v_mov_b32 v{dst+2*i+1}, s{S_TA if i % 2 == 0 else S_TB}')


def stamp(a, cfg, sreg):
    if cfg.get('prof'): a(f's_memrealtime s[{sreg}:{sreg+1}]')

def stamp_store(a, cfg, pairs, vt):
    if not cfg.get('prof'): return
    a(f's_lshl_b32 s78, s2, 6')
    a(f's_add_u32 s78, s78, {WS_PROF:#x}')
    a('s_waitcnt lgkmcnt(0)')
    a(f'v_mov_b32 v{vt+1}, 0')
    for slot, sreg in pairs:
        a(f'v_mov_b32 v{vt}, s{sreg}')
        a(f'buffer_store_dword v{vt}, v{vt+1}, s[{S_WS}:{S_WS+3}], s78 offen offset:{slot*4}')


def gen_stream(a, cfg):
    D = 2
    NPRE = cfg.get('npre', 4)
    NSTAT = cfg.get('nstat', 56)
    DYN = NSTAT < 64
    flags = 'nt'
    V = Regs(1, 256)
    vKoff = V.alloc(); vVoff = V.alloc()
    vm = V.alloc(); vl = V.alloc(); vt0 = V.alloc(); vt1 = V.alloc(); valpha = V.alloc(); vmc = V.alloc()
    vc = V.alloc(); vg = V.alloc(); vAt = V.alloc()
    vTk = [V.alloc(), V.alloc()]
    vIt = V.alloc()
    vmask = V.alloc(4, 4)
    vS = V.alloc(4, 4)
    vP = V.alloc(4, 4)
    vacc = V.alloc(8, 4)
    vA = V.alloc(16, 4)
    vQ = V.alloc(32, 4)
    vKb = [V.alloc(32, 4) for _ in range(D)]
    vVb = [V.alloc(32, 4) for _ in range(D)]
    sK = 4; sVv = 8
    sOff = [44, 45]
    sEnd = 46; sC = 47; sTmp = 48; sBase = 49; sHead = 50; sSplit = 51; sT2 = 52
    sDyn = 53; sCtr = 54; sAt = 55; sTk = 56
    stride = 16384
    WGBYTES = NSTAT * 2 * 8192
    NDYN = (4096 - 64 * NSTAT) // 2
    srd(a, sK, P_K, 0x10000000)
    srd(a, sVv, P_V, 0x10000000)
    a(f's_lshr_b32 s{sHead}, s2, 5')
    a(f's_and_b32 s{sSplit}, s2, 31')
    a(f's_lshl_b32 s{sBase}, s{sHead}, 25')
    a(f's_mul_i32 s{sTmp}, s{S_WAVE}, {NDYN*8192}')
    a(f's_add_u32 s{sDyn}, s{sBase}, s{sTmp}')
    a(f's_add_u32 s{sDyn}, s{sDyn}, {32*WGBYTES}')
    a(f's_lshl_b32 s{sCtr}, s{sHead}, 1')
    a(f's_add_u32 s{sCtr}, s{sCtr}, s{S_WAVE}')
    a(f's_lshl_b32 s{sCtr}, s{sCtr}, 8')
    a(f's_add_u32 s{sCtr}, s{sCtr}, {WS_TK:#x}')
    a(f's_mul_i32 s{sTmp}, s{sSplit}, {WGBYTES}')
    a(f's_add_u32 s{sBase}, s{sBase}, s{sTmp}')
    a(f's_add_u32 s{sEnd}, s{sBase}, {WGBYTES}')
    a(f's_lshl_b32 s{sTmp}, s{S_WAVE}, 13')
    a(f's_add_u32 s{sBase}, s{sBase}, s{sTmp}')
    a(f's_mov_b32 s{sC}, {C_SCALE:#x}')
    a(f'v_and_b32 v{vc}, 15, v0')
    a(f'v_lshrrev_b32 v{vg}, 4, v0')
    a(f'v_lshlrev_b32 v{vKoff}, 9, v{vc}')
    a(f'v_lshl_add_u32 v{vKoff}, v{vg}, 4, v{vKoff}')
    a(f'v_lshlrev_b32 v{vVoff}, 11, v{vg}')
    a(f'v_lshl_add_u32 v{vVoff}, v{vc}, 4, v{vVoff}')
    a(f'v_cmp_eq_u32 vcc, 0, v0')
    a(f'v_mov_b32 v{vt0}, 0x40000000')
    a(f's_mov_b32 s{sAt}, 0x40000000')
    a(f'v_cndmask_b32 v{vAt}, v{vt0}, 0, vcc')
    koffs = [j * 64 for j in range(8)]
    voffs = [i * 512 + hf * 256 for i in range(4) for hf in range(2)]
    def R(file, base, n): return f'{file}[{base}:{base+n-1}]'
    def issueK(file, base, so):
        for j in range(8):
            a(f'buffer_load_dwordx4 {R(file,base+4*j,4)}, v{vKoff}, {sr(sK,4)}, s{so} offen offset:{koffs[j]} {flags}')
    def issueV(file, base, so):
        for j in range(8):
            a(f'buffer_load_dwordx4 {R(file,base+4*j,4)}, v{vVoff}, {sr(sVv,4)}, s{so} offen offset:{voffs[j]} {flags}')
    def issueAt(s):
        if DYN:
            a(f'v_mov_b32 v{vTk[s]}, 1')
            a(f'buffer_atomic_add v{vTk[s]}, v{vAt}, {sr(S_WS,4)}, s{sAt} offen sc0')
    NA = 1 if DYN else 0
    a('s_barrier')
    seq = [('a', 64 * i, 64 * i + 32) for i in range(NPRE)] + [('v', vKb[s], vVb[s]) for s in range(D)]
    a(f's_mov_b32 s{sTmp}, s{sBase}')
    for i, (file, kb, vb) in enumerate(seq):
        ex1 = NA if (i - 1) >= NPRE else 0
        exi = NA if i >= NPRE else 0
        if i >= 2:
            a(f's_waitcnt vmcnt({8 + 16 + ex1})')
        if file == 'v':
            s = i - NPRE
            a(f's_mov_b32 s{sOff[s]}, s{sTmp}')
            issueAt(s)
        issueK(file, kb, sTmp)
        if i >= 2:
            a(f's_waitcnt vmcnt({16 + ex1 + 8 + exi})')
        issueV(file, vb, sTmp)
        a(f's_add_u32 s{sTmp}, s{sTmp}, {stride}')
        if i == 1:
            a(f'v_lshrrev_b32 v{vt1}, 2, v{vc}')
            a(f'v_and_b32 v{vt0}, 2, v0')
            a(f'v_lshlrev_b32 v{vt0}, 3, v{vt0}')
            a(f'v_mov_b32 v{vl}, 0xffff')
            a(f'v_lshlrev_b32 v{vt0}, v{vt0}, v{vl}')
            for j in range(4):
                a(f'v_cmp_eq_u32 vcc, {j}, v{vt1}')
                a('s_nop 1')
                a(f'v_cndmask_b32 v{vmask+j}, 0, v{vt0}, vcc')
            a(f'v_mov_b32 v{vm}, 0xf149f2ca')
            a(f'v_mov_b32 v{vl}, 0')
            for k in range(8):
                a(f'v_mov_b32 v{vacc+k}, 0')
    a(f'v_and_b32 v{vt0}, 1, v0')
    a(f'v_lshlrev_b32 v{vt0}, 9, v{vt0}')
    a(f'v_lshl_add_u32 v{vt0}, v{vg}, 4, v{vt0}')
    a(f'v_mov_b32 v{vt1}, 0')
    stamp(a, cfg, 62)
    a('s_barrier')
    for j in range(8):
        a(f'ds_read_b128 {vr(vQ+4*j,4)}, v{vt0} offset:{j*64}')
    a(f'ds_read_b32 v{vt1}, v{vt1} offset:{LDS_TAG}')
    a('s_waitcnt lgkmcnt(0)')
    a(f'v_readfirstlane_b32 s{S_TA}, v{vt1}')

    def qk(file, kb):
        for j in range(8):
            cc = '0' if j == 0 else vr(vS, 4)
            a(f'v_mfma_f32_16x16x32_bf16 {vr(vS,4)}, {R(file,kb+4*j,4)}, {vr(vQ+4*j,4)}, {cc}')
    def softmax():
        a(f'v_cvt_pk_bf16_f32 v{vt0}, v{vS}, v{vS+1}')
        a(f'v_cvt_pk_bf16_f32 v{vt1}, v{vS+2}, v{vS+3}')
        a(f'v_lshlrev_b32 v{vS}, 16, v{vt0}')
        a(f'v_and_b32 v{vS+1}, 0xffff0000, v{vt0}')
        a(f'v_lshlrev_b32 v{vS+2}, 16, v{vt1}')
        a(f'v_and_b32 v{vS+3}, 0xffff0000, v{vt1}')
        a(f'v_max3_f32 v{vt0}, v{vS}, v{vS+1}, v{vm}')
        a(f'v_max3_f32 v{vt0}, v{vS+2}, v{vS+3}, v{vt0}')
        a(f'v_mov_b32 v{vt1}, v{vt0}')
        a('s_nop 1')
        a(f'v_permlane32_swap_b32 v{vt0}, v{vt1}')
        a(f'v_max_f32 v{vt0}, v{vt0}, v{vt1}')
        a(f'v_mov_b32 v{vt1}, v{vt0}')
        a('s_nop 1')
        a(f'v_permlane16_swap_b32 v{vt0}, v{vt1}')
        a(f'v_max_f32 v{vt0}, v{vt0}, v{vt1}')
        a(f'v_sub_f32 v{valpha}, v{vm}, v{vt0}')
        a(f'v_mul_f32 v{valpha}, s{sC}, v{valpha}')
        a(f'v_exp_f32 v{valpha}, v{valpha}')
        a(f'v_mov_b32 v{vm}, v{vt0}')
        a(f'v_mul_f32 v{vmc}, s{sC}, v{vt0}')
        for i in range(4):
            a(f'v_fma_f32 v{vP+i}, v{vS+i}, s{sC}, -v{vmc}')
        for i in range(4):
            a(f'v_exp_f32 v{vP+i}, v{vP+i}')
        a(f'v_mul_f32 v{vl}, v{vl}, v{valpha}')
        a(f'v_add_f32 v{vt0}, v{vP}, v{vP+1}')
        a(f'v_add_f32 v{vt1}, v{vP+2}, v{vP+3}')
        a(f'v_add_f32 v{vl}, v{vl}, v{vt0}')
        a(f'v_add_f32 v{vl}, v{vl}, v{vt1}')
        for i in range(8):
            qp = '[0,0,2,2]' if (i & 1) == 0 else '[1,1,3,3]'
            a(f'v_mul_f32_dpp v{vacc+i}, v{valpha}, v{vacc+i} quad_perm:{qp} row_mask:0xf bank_mask:0xf')
        for i in range(4):
            a(f'v_cvt_pk_bf16_f32 v{vP+i}, v{vP+i}, v{vP+i}')
        for i in range(4):
            for j in range(4):
                a(f'v_and_b32 v{vA+4*i+j}, v{vP+i}, v{vmask+j}')
    def pv(file, vb):
        for i in range(4):
            for hf in range(2):
                a(f'v_mfma_f32_16x16x32_bf16 {vr(vacc+4*hf,4)}, {vr(vA+4*i,4)}, {R(file,vb+4*(2*i+hf),4)}, {vr(vacc+4*hf,4)}')
    def body(s):
        a(f's_waitcnt vmcnt({24 + NA})')
        if DYN:
            a(f'v_readfirstlane_b32 s{sTk}, v{vTk[s]}')
        qk('v', vKb[s])
        a(f's_add_u32 s{sOff[s]}, s{sOff[s]}, {stride*D}')
        if DYN:
            a(f's_lshl_b32 s{sTmp}, s{sTk}, 13')
            a(f's_add_u32 s{sTmp}, s{sTmp}, s{sDyn}')
            a(f's_cmp_ge_u32 s{sTk}, {NDYN}')
            a(f's_cselect_b32 s{sTmp}, {INVALID:#x}, s{sTmp}')
            a(f's_cmp_ge_u32 s{sOff[s]}, s{sEnd}')
            a(f's_cselect_b32 s{sOff[s]}, s{sTmp}, s{sOff[s]}')
            a(f's_add_u32 s{sTmp}, s{sOff[s]}, {stride*D}')
            a(f's_cmp_ge_u32 s{sTmp}, s{sEnd}')
            a(f's_cselect_b32 s{sAt}, s{sCtr}, 0x40000000')
            a(f's_cmp_ge_u32 s{sOff[s]}, {INVALID:#x}')
            a(f's_cselect_b32 s{sAt}, 0x40000000, s{sAt}')
            issueAt(s)
        else:
            a(f's_cmp_ge_u32 s{sOff[s]}, s{sEnd}')
            a(f's_cselect_b32 s{sOff[s]}, {INVALID:#x}, s{sOff[s]}')
        issueK('v', vKb[s], sOff[s])
        softmax()
        a(f's_waitcnt vmcnt({24 + 2*NA})')
        a('s_nop 0')
        pv('v', vVb[s])
        issueV('v', vVb[s], sOff[s])
    tagB(a)
    if NPRE > 0:
        for s in range(D): body(s)
        for i in range(NPRE):
            qk('a', 64 * i)
            a('s_nop 7')
            softmax()
            a('s_nop 1')
            pv('a', 64 * i + 32)
    Lloop = a.newlabel('st_loop'); Ldone = a.newlabel('st_done')
    if cfg.get('prof'):
        a('s_mov_b32 s57, 0')
        a(f'v_mov_b32 v{vIt}, 0')
    a.label(Lloop)
    if cfg.get('prof'):
        a('s_memrealtime s[64:65]')
        a('s_mov_b32 m0, s57')
        a('s_waitcnt lgkmcnt(0)')
        a(f'v_writelane_b32 v{vIt}, s64, m0')
        a('s_add_u32 s57, s57, 1')
    for s in range(D):
        body(s)
        nx = (s + 1) % D
        a(f's_cmp_ge_u32 s{sOff[nx]}, {INVALID:#x}')
        if s == D - 1:
            a(f's_cbranch_scc0 {Lloop}')
        else:
            a(f's_cbranch_scc1 {Ldone}')
    a.label(Ldone)
    xlane_reduce(a, [vl], [vt0], 'v_add_f32', ['p32', 'p16'])
    a(f's_lshl_b32 s{sTmp}, s{sSplit}, 1')
    a(f's_add_u32 s{sTmp}, s{sTmp}, s{S_WAVE}')
    a(f's_lshl_b32 s{sT2}, s{sHead}, 6')
    a(f's_add_u32 s{sT2}, s{sT2}, s{sTmp}')
    a(f's_lshl_b32 s{sT2}, s{sT2}, 6')
    a(f's_add_u32 s{sT2}, s{sT2}, {WS_ML:#x}')
    a(f's_lshl_b32 s{sBase}, s{sHead}, 11')
    a(f's_add_u32 s{sBase}, s{sBase}, s{sTmp}')
    a(f's_lshl_b32 s{sBase}, s{sBase}, 7')
    a(f's_add_u32 s{sBase}, s{sBase}, {WS_O:#x}')
    a(f's_add_u32 s{sTmp}, s{sBase}, 0x10000')
    a(f's_add_u32 s{sDyn}, s{sBase}, 0x20000')
    a(f's_add_u32 s{sCtr}, s{sBase}, 0x30000')
    a(f'v_lshrrev_b32 v{vt1}, 1, v{vc}')
    a(f'v_lshlrev_b32 v{vt1}, 13, v{vt1}')
    a(f'v_lshl_add_u32 v{vt1}, v{vg}, 4, v{vt1}')
    a(f'v_and_b32 v{vt0}, 1, v{vc}')
    a(f'v_lshl_add_u32 v{vt1}, v{vt0}, 6, v{vt1}')
    a(f'v_cmp_eq_u32 vcc, 1, v{vt0}')
    a(f'v_mov_b32_dpp v{vP}, v{vm} quad_perm:[1,0,3,2] row_mask:0xf bank_mask:0xf')
    a(f'v_mov_b32_dpp v{vP+1}, v{vl} quad_perm:[1,0,3,2] row_mask:0xf bank_mask:0xf')
    a(f'v_mov_b32 v{vS+1}, s{S_TA}')
    a(f'v_mov_b32 v{vS+3}, s{S_TB}')
    a(f'v_cndmask_b32 v{vS}, v{vm}, v{vP+1}, vcc')
    a(f'v_cndmask_b32 v{vS+2}, v{vP}, v{vl}, vcc')
    mkchunks(a, vA, [vacc + i for i in range(8)])
    a(f'v_lshlrev_b32 v{vt0}, 4, v0')
    for i, so in enumerate([sBase, sTmp, sDyn, sCtr]):
        a(f'buffer_store_dwordx4 {vr(vA+4*i,4)}, v{vt1}, {sr(S_WS,4)}, s{so} offen sc1')
    a('s_mov_b64 exec, 15')
    a(f'buffer_store_dwordx4 {vr(vS,4)}, v{vt0}, {sr(S_WS,4)}, s{sT2} offen sc1')
    a('s_mov_b64 exec, -1')
    a(f'v_mov_b32 v{vt0}, 0')
    if cfg.get('prof'):
        a(f's_memrealtime s[58:59]')
    a('s_barrier')
    if cfg.get('prof'):
        a(f's_add_u32 s{sT2}, s{S_WAVE}, 4')
        a(f's_lshl_b32 s{sTmp}, s2, 4')
        a(f's_add_u32 s{sTmp}, s{sTmp}, s{sT2}')
        a(f's_lshl_b32 s{sTmp}, s{sTmp}, 2')
        a(f's_add_u32 s{sTmp}, s{sTmp}, {WS_PROF:#x}')
        a('s_waitcnt lgkmcnt(0)')
        a(f'v_mov_b32 v{vt1}, s58')
        a(f'buffer_store_dword v{vt1}, v{vt0}, {sr(S_WS,4)}, s{sTmp} offen')
        a(f'v_mov_b32 v{vt1}, s62')
        a(f'buffer_store_dword v{vt1}, v{vt0}, {sr(S_WS,4)}, s{sTmp} offen offset:28')
        a(f's_lshl_b32 s{sTmp}, s2, 1')
        a(f's_add_u32 s{sTmp}, s{sTmp}, s{S_WAVE}')
        a(f's_lshl_b32 s{sTmp}, s{sTmp}, 8')
        a(f's_add_u32 s{sTmp}, s{sTmp}, {WS_IT:#x}')
        a(f'v_lshlrev_b32 v{vt0}, 2, v0')
        a(f'buffer_store_dword v{vIt}, v{vt0}, {sr(S_WS,4)}, s{sTmp} offen')
    a('s_endpgm')
    return V.n


def gemv_pairs(a, vm, W, nrows, ndw, vX, acc, tmps, loads):
    for t in range(nrows // 2):
        if loads is not None:
            vm.wait(loads[2 * t + 1])
        for d in range(ndw):
            lo, hi = tmps[2 * d], tmps[2 * d + 1]
            a(f'v_perm_b32 v{lo}, v{W[2*t+1]+d}, v{W[2*t]+d}, s{S_SELLO}')
            a(f'v_perm_b32 v{hi}, v{W[2*t+1]+d}, v{W[2*t]+d}, s{S_SELHI}')
        for d in range(ndw):
            lo, hi = tmps[2 * d], tmps[2 * d + 1]
            c0 = '0' if t == 0 else f'v{acc[2*d]}'
            c1 = '0' if t == 0 else f'v{acc[2*d+1]}'
            a(f'v_dot2_f32_bf16 v{acc[2*d]}, v{lo}, v{vX+t}, {c0}')
            a(f'v_dot2_f32_bf16 v{acc[2*d+1]}, v{hi}, v{vX+t}, {c1}')
    a('s_nop 2')


def rnd_bf16(a, d, s, t):
    a(f'v_cvt_pk_bf16_f32 v{t}, v{s}, v{s}')
    a(f'v_lshlrev_b32 v{d}, 16, v{t}')


def ksplit_loads(a, vm, sX, sW, rowbytes, sKq, sColByte, vX, vW, vo1, vo2, vo3, sT, sT2):
    a(f'v_lshrrev_b32 v{vo1}, 3, v0')
    a(f'v_mul_u32_u24 v{vo2}, {14*rowbytes}, v{vo1}')
    a(f'v_and_b32 v{vo3}, 7, v0')
    a(f'v_lshl_add_u32 v{vo2}, v{vo3}, 4, v{vo2}')
    a(f's_mul_i32 s{sT2}, s{sKq}, {112*rowbytes}')
    a(f's_add_u32 s{sT2}, s{sT2}, s{sColByte}')
    lw = []
    for k in range(14):
        lw.append(vm.issue(f'buffer_load_dwordx4 {vr(vW+4*k,4)}, v{vo2}, {sr(sW,4)}, s{sT2} offen nt'))
        if k < 13: a(f's_add_u32 s{sT2}, s{sT2}, {rowbytes}')
        if k == 0:
            a(f'v_mul_u32_u24 v{vo3}, 28, v{vo1}')
            a(f's_mul_i32 s{sT}, s{sKq}, 224')
            vm.issue(f'buffer_load_dwordx4 {vr(vX,4)}, v{vo3}, {sr(sX,4)}, s{sT} offen')
            vm.issue(f'buffer_load_dwordx3 {vr(vX+4,3)}, v{vo3}, {sr(sX,4)}, s{sT} offen offset:16')
    return lw


def gen_auxA(a, cfg):
    V = Regs(1, 256)
    vt = V.alloc(8, 4)
    vX = V.alloc(8, 4)
    vacc = V.alloc(8, 4)
    vtmp = V.alloc(8, 4)
    vo1 = V.alloc(); vo2 = V.alloc(); vo3 = V.alloc(); vTag = V.alloc()
    vCh = V.alloc(16, 4)
    vW = V.alloc(64, 4)
    vWp = V.alloc(64, 4)
    vOq = V.alloc(32, 4)
    vML = V.alloc(8, 4)
    sX = 4; sWQ = 8; sDBG = 44; sWO = 48
    sT = 52; sT2 = 53; sHead = 54; sJ = 55; sCnt = 56; sC = 57; sKq = 58; sCb = 59
    sPk = 80
    vm = VM(a)
    stamp(a, cfg, 62)
    srd(a, sX, P_X, 896)
    srd(a, sWQ, P_WQ, 448 * 8192)
    a(f's_lshr_b32 s{sHead}, s2, 5')
    a(f's_and_b32 s{sJ}, s2, 31')
    a(f'v_lshlrev_b32 v{vo2}, 8, v0')
    a(f'v_mov_b32 v{vTag}, 0')
    a(f's_lshl_b32 s{sT2}, s{sHead}, 9')
    a(f's_add_u32 s{sT2}, s{sT2}, {WS_TK:#x}')
    a(f's_cmp_lg_u32 s{sJ}, 0')
    a(f's_cselect_b32 s{sT2}, {WS_SIZE:#x}, s{sT2}')
    a('s_mov_b64 exec, 3')
    vm.issue(f'buffer_store_dword v{vTag}, v{vo2}, {sr(S_WS,4)}, s{sT2} offen sc1')
    a('s_mov_b64 exec, -1')
    a(f's_and_b32 s{sKq}, s2, 3')
    a(f's_lshr_b32 s{sCb}, s2, 2')
    a(f's_lshl_b32 s{sCb}, s{sCb}, 7')
    lw = ksplit_loads(a, vm, sX, sWQ, 8192, sKq, sCb, vX, vW, vo1, vo2, vo3, sT, sT2)
    a('s_barrier')
    srd(a, sDBG, P_DBG, 256)
    srd(a, sWO, P_WO, 4096 * 896)
    a(f'v_mov_b32 v{vo3}, 0')
    vm.issue(f'buffer_load_dword v{vTag}, v{vo3}, {sr(sDBG,4)}, 0 offen sc1')
    gemv_pairs(a, vm, [vW + 4 * k for k in range(14)], 14, 4, vX, [vacc + i for i in range(8)], [vtmp + i for i in range(8)], lw)
    xlane_reduce(a, [vacc + i for i in range(8)], [vtmp + i for i in range(8)], 'v_add_f32', ['r8', 'p16', 'p32'])
    stamp(a, cfg, 64)
    a(f'v_lshlrev_b32 v{vo1}, 4, v0')
    a(f's_lshl_b32 s{sT}, s{sHead}, 14')
    a(f's_lshl_b32 s{sT2}, s{sKq}, 12')
    a(f's_add_u32 s{sT2}, s{sT2}, s{sT}')
    a(f's_and_b32 s{sC}, s{sCb}, 0x380')
    a(f's_lshl_b32 s{sC}, s{sC}, 2')
    a(f's_add_u32 s{sT2}, s{sT2}, s{sC}')
    L = a.newlabel('ptag'); Dn = a.newlabel('ptag_done')
    a(f's_mov_b32 s{sCnt}, {POLL_MAX}')
    a.label(L)
    a('s_waitcnt vmcnt(0)')
    a(f'v_readfirstlane_b32 s{S_TA}, v{vTag}')
    a(f's_cmp_lg_u32 s{S_TA}, 0')
    a(f's_cbranch_scc1 {Dn}')
    a(f's_sub_u32 s{sCnt}, s{sCnt}, 1')
    a(f's_cbranch_scc1 {Dn}')
    a('s_sleep 1')
    a(f'buffer_load_dword v{vTag}, v{vo3}, {sr(sDBG,4)}, 0 offen sc1')
    a(f's_branch {L}')
    a.label(Dn)
    tagB(a)
    stamp(a, cfg, 66)
    mkchunks(a, vCh, [vacc + i for i in range(8)])
    a('s_mov_b64 exec, 0xff')
    for c in range(4):
        a(f'buffer_store_dwordx4 {vr(vCh+4*c,4)}, v{vo1}, {sr(S_WS,4)}, s{sT2} offen offset:{128*c} sc1')
    a('s_mov_b64 exec, -1')
    a(f'v_lshrrev_b32 v{vo2}, 5, v0')
    a(f'v_lshlrev_b32 v{vo2}, 7, v{vo2}')
    a(f'v_and_b32 v{vt}, 7, v0')
    a(f'v_lshl_add_u32 v{vo2}, v{vt}, 4, v{vo2}')
    a(f'v_bfe_u32 v{vt}, v0, 3, 2')
    a(f'v_lshl_add_u32 v{vo2}, v{vt}, 2, v{vo2}')
    for kq in range(1, 4):
        a(f's_add_u32 s{80+kq}, s{sT}, {4096*kq}')
    loads = []
    for kq in range(4):
        for i in range(4):
            so = sT if kq == 0 else 80 + kq
            loads.append(f'buffer_load_dwordx4 {vr(vW+4*(4*kq+i),4)}, v{vo1}, {sr(S_WS,4)}, s{so} offen offset:{i*1024} sc1')
    if cfg.get('qsleep'): a(f's_sleep {cfg["qsleep"]}')
    poll(a, loads, [vW + 4 * k for k in range(16)], vt, sCnt, name='pq')
    stamp(a, cfg, 68)
    for i in range(4):
        for e in (0, 2):
            a(f'v_add_f32 v{vW+4*i+e}, v{vW+4*i+e}, v{vW+4*(4+i)+e}')
            a(f'v_add_f32 v{vW+4*(8+i)+e}, v{vW+4*(8+i)+e}, v{vW+4*(12+i)+e}')
    for i in range(4):
        for e in (0, 2):
            a(f'v_add_f32 v{vW+4*i+e}, v{vW+4*i+e}, v{vW+4*(8+i)+e}')
    for i in range(4):
        a(f'v_cvt_pk_bf16_f32 v{vt+i}, v{vW+4*i}, v{vW+4*i+2}')
    for i in range(4):
        a(f'ds_write_b32 v{vo2}, v{vt+i} offset:{256*i}')
    a(f'ds_write_b32 v{vo3}, v{vTag} offset:{LDS_TAG}')
    a('s_waitcnt lgkmcnt(0)')
    a('s_barrier')
    stamp(a, cfg, 70)
    stamp_store(a, cfg, [(0, 62), (7, 64), (8, 66), (9, 68), (1, 70)], vt)
    a(f's_lshl_b32 s{sT}, s{sHead}, 9')
    a(f's_and_b32 s{sT2}, s{sJ}, 16')
    a(f's_lshl_b32 s{sT2}, s{sT2}, 3')
    a(f's_add_u32 s{sT}, s{sT}, s{sT2}')
    a(f's_and_b32 s{sT2}, s{sJ}, 7')
    a(f's_lshl_b32 s{sT2}, s{sT2}, 4')
    a(f's_add_u32 s{sT}, s{sT}, s{sT2}')
    a(f's_bfe_u32 s{sT2}, s{sJ}, 0x10003')
    a(f's_add_u32 s{sT}, s{sT}, s{sT2}')
    a(f's_mul_i32 s{sT}, s{sT}, 896')
    a(f'v_min_u32 v{vo2}, 55, v0')
    a(f'v_lshlrev_b32 v{vo2}, 4, v{vo2}')
    for hh in range(2):
        for e in range(8):
            a(f'buffer_load_dwordx4 {vr(vW+4*(8*hh+e),4)}, v{vo2}, {sr(sWO,4)}, s{sT} offen offset:{(e%2)*1792} nt')
            if e % 2 == 1:
                a(f's_add_u32 s{sT}, s{sT}, {3584 if e < 7 else 3584 + (256-16)*896}')
    a('s_waitcnt vmcnt(0)')
    for pr in range(8):
        r0 = vW + 4 * (2 * pr); r1 = vW + 4 * (2 * pr + 1)
        for d in range(4):
            a(f'v_perm_b32 v{vWp+8*pr+2*d}, v{r1+d}, v{r0+d}, s{S_SELLO}')
            a(f'v_perm_b32 v{vWp+8*pr+2*d+1}, v{r1+d}, v{r0+d}, s{S_SELHI}')
    a(f'v_lshlrev_b32 v{vo2}, 6, v0')
    a(f'v_lshrrev_b32 v{vo3}, 3, v0')
    a(f'v_lshlrev_b32 v{vo3}, 2, v{vo3}')
    a(f's_lshl_b32 s{sT}, s2, 13')
    a(f's_add_u32 s{sT}, s{sT}, {WS_O:#x}')
    a(f's_add_u32 s{sKq}, s{sT}, 4096')
    a(f's_lshl_b32 s{sT2}, s{sHead}, 12')
    a(f's_add_u32 s{sT2}, s{sT2}, {WS_ML:#x}')
    a(f's_mov_b32 s{sC}, {C_SCALE:#x}')
    a(f'v_lshrrev_b32 v{vTag}, 2, v0')
    a(f'v_lshlrev_b32 v{vTag}, 16, v{vTag}')
    a(f'v_and_b32 v{vt}, 3, v0')
    a(f'v_lshl_add_u32 v{vTag}, v{vt}, 4, v{vTag}')
    a(f's_lshl_b32 s72, s2, 6')
    a(f's_add_u32 s72, s72, {WS_Y:#x}')
    for c in range(1, 4):
        a(f's_add_u32 s{72+c}, s72, {c << 14}')
    for i in range(8):
        a(f'v_mov_b32 v{vCh+2*i+1}, s{S_TA if i % 2 == 0 else S_TB}')
    a('s_barrier')
    loads = [f'buffer_load_dwordx4 {vr(vML,4)}, v{vo2}, {sr(S_WS,4)}, s{sT2} offen sc1',
             f'buffer_load_dwordx4 {vr(vML+4,4)}, v{vo2}, {sr(S_WS,4)}, s{sT2} offen offset:16 sc1']
    for k in range(8):
        loads.append(f'buffer_load_dwordx4 {vr(vOq+4*k,4)}, v{vo1}, {sr(S_WS,4)}, s{[sT,sKq][k//4]} offen offset:{(k%4)*1024} sc1')
    poll(a, loads, [vML, vML + 4] + [vOq + 4 * k for k in range(8)], vt, sCnt, name='ps2', sleep=cfg.get('s2sleep', 1))
    stamp(a, cfg, 62)
    M = [vt, vt + 1]
    a(f'v_mov_b32 v{M[0]}, v{vML}')
    a(f'v_mov_b32 v{M[1]}, v{vML+2}')
    xlane_reduce(a, M, [vt + 2, vt + 3], 'v_max_f32', ['x1', 'x2', 'r4', 'r8', 'p16', 'p32'])
    for hh in range(2):
        a(f'v_sub_f32 v{vML+2*hh}, v{vML+2*hh}, v{M[hh]}')
        a(f'v_mul_f32 v{vML+2*hh}, s{sC}, v{vML+2*hh}')
    for hh in range(2):
        a(f'v_exp_f32 v{vML+2*hh}, v{vML+2*hh}')
    a('s_nop 0')
    for k in range(8):
        for hh in range(2):
            a(f'ds_bpermute_b32 v{vW+2*k+hh}, v{vo3}, v{vML+2*hh} offset:{32*k}')
    for hh in range(2):
        a(f'v_mul_f32 v{vacc+2+hh}, v{vML+2*hh}, v{vML+4+2*hh}')
    xlane_reduce(a, [vacc + 2, vacc + 3], [vt + 2, vt + 3], 'v_add_f32', ['x1', 'x2', 'r4'])
    a('s_waitcnt lgkmcnt(0)')
    for k in range(8):
        for hh in range(2):
            if k == 0: a(f'v_mul_f32 v{vacc+hh}, v{vW+2*k+hh}, v{vOq+4*k+2*hh}')
            else: a(f'v_fmac_f32 v{vacc+hh}, v{vW+2*k+hh}, v{vOq+4*k+2*hh}')
    a('s_nop 1')
    xlane_reduce(a, [vacc + i for i in range(4)], [vtmp + i for i in range(4)], 'v_add_f32', ['r8', 'p16', 'p32'])
    a(f'v_rcp_f32 v{vacc+2}, v{vacc+2}')
    a(f'v_rcp_f32 v{vacc+3}, v{vacc+3}')
    a('s_nop 0')
    for hh in range(2):
        a(f'v_mul_f32 v{vacc+hh}, v{vacc+hh}, v{vacc+2+hh}')
    a('s_nop 1')
    for hh in range(2):
        a(f'v_mov_b32_dpp v{vacc+2+hh}, v{vacc+hh} quad_perm:[1,0,3,2] row_mask:0xf bank_mask:0xf')
    for hh in range(2):
        a(f'v_cvt_pk_bf16_f32 v{vt+hh}, v{vacc+hh}, v{vacc+2+hh}')
    a('s_nop 0')
    for hh in range(2):
        for g in range(4):
            a(f'v_readlane_b32 s{sPk+4*hh+g}, v{vt+hh}, {2*g}')
    a('s_nop 1')
    for pr in range(8):
        for col in range(8):
            c0 = '0' if pr == 0 else f'v{vCh+2*col}'
            a(f'v_dot2_f32_bf16 v{vCh+2*col}, v{vWp+8*pr+col}, s{sPk+pr}, {c0}')
    a('s_mov_b32 exec_hi, 0x00ffffff')
    a('s_nop 1')
    for c in range(4):
        a(f'buffer_store_dwordx4 {vr(vCh+4*c,4)}, v{vTag}, {sr(S_WS,4)}, s{72+c} offen sc1')
    a('s_mov_b64 exec, -1')
    stamp(a, cfg, 64)
    if cfg.get('b4', 1): a('s_barrier')
    stamp_store(a, cfg, [(2, 62), (3, 64)], vt)
    a('s_endpgm')
    return V.n


def gen_auxB(a, cfg):
    V = Regs(1, 256)
    vt = V.alloc(8, 4)
    vX = V.alloc(8, 4)
    vacc = V.alloc(8, 4)
    vtmp = V.alloc(8, 4)
    vb = V.alloc(4, 4)
    vo1 = V.alloc(); vo2 = V.alloc(); vo3 = V.alloc(); vg = V.alloc()
    vCh = V.alloc(16, 4)
    vW = V.alloc(64, 4)
    vD = V.alloc(32, 4)
    vDp = V.alloc(32, 4)
    vY = vW
    sX = 4; sWF = 8; sWD = 48; sDBG = 64; sGW = 68; sOUT = 72
    sT = 52; sT2 = 53; sKq = 54; sJ = 55; sCnt = 56; sCb = 57; sG = 62; sG1 = 63
    sPk = 80
    vm = VM(a)
    srd(a, sDBG, P_DBG, 256)
    Lnt = a.newlabel('notag')
    a(f'v_mov_b32 v{vo3}, 0')
    a('s_cmp_lg_u32 s2, 0')
    a(f's_cbranch_scc1 {Lnt}')
    a(f's_memrealtime s[{sG}:{sG1}]')
    a('s_waitcnt lgkmcnt(0)')
    a(f's_or_b32 s{sG}, s{sG}, 1')
    a(f'v_mov_b32 v{vo2}, s{sG}')
    a('s_mov_b64 exec, 1')
    a(f'buffer_store_dword v{vo2}, v{vo3}, {sr(sDBG,4)}, 0 offen sc1')
    a('s_mov_b64 exec, -1')
    a.label(Lnt)
    a('s_barrier')
    srd(a, sX, P_X, 896)
    a(f's_bitcmp1_b32 s2, 0')
    a(f's_cselect_b32 s{sWF}, s{P_WU}, s{P_WG}')
    a(f's_cselect_b32 s{sWF+1}, s{P_WU+1}, s{P_WG+1}')
    a(f's_mov_b32 s{sWF+2}, {448*3584:#x}')
    a(f's_mov_b32 s{sWF+3}, 0x00020000')
    srd(a, sWD, P_WD, 1792 * 896)
    srd(a, sGW, P_GW, 896)
    srd(a, sOUT, P_OUT, 896)
    Lnoffn = a.newlabel('noffn'); Lnofin = a.newlabel('nofin')
    a('s_barrier')
    a(f'ds_read_b32 v{vo2}, v{vo3} offset:{LDS_TAG}')
    a('s_waitcnt lgkmcnt(0)')
    a(f'v_readfirstlane_b32 s{S_TA}, v{vo2}')
    tagB(a)
    for i in range(8):
        a(f'v_mov_b32 v{vCh+2*i+1}, s{S_TA if i % 2 == 0 else S_TB}')
    a(f's_cmp_ge_u32 s2, 224')
    a(f's_cbranch_scc1 {Lnoffn}')
    a(f's_lshr_b32 s{sKq}, s2, 1')
    a(f's_and_b32 s{sKq}, s{sKq}, 3')
    a(f's_lshr_b32 s{sCb}, s2, 3')
    a(f's_lshl_b32 s{sCb}, s{sCb}, 7')
    lw = ksplit_loads(a, vm, sX, sWF, 3584, sKq, sCb, vX, vW, vo1, vo2, vo3, sT, sT2)
    a(f'v_min_u32 v{vo2}, 55, v0')
    a(f'v_lshlrev_b32 v{vo2}, 4, v{vo2}')
    a(f's_lshr_b32 s{sT}, s2, 2')
    a(f's_lshl_b32 s{sT}, s{sT}, 5')
    a(f's_and_b32 s{sT2}, s2, 3')
    a(f's_lshl_b32 s{sT2}, s{sT2}, 1')
    a(f's_add_u32 s{sT}, s{sT}, s{sT2}')
    a(f's_mul_i32 s{sT}, s{sT}, 896')
    for e in range(8):
        vm.issue(f'buffer_load_dwordx4 {vr(vD+4*e,4)}, v{vo2}, {sr(sWD,4)}, s{sT} offen offset:{(e%2)*896} nt')
        if e % 2 == 1 and e < 7: a(f's_add_u32 s{sT}, s{sT}, {8*896}')
    gemv_pairs(a, vm, [vW + 4 * k for k in range(14)], 14, 4, vX, [vacc + i for i in range(8)], [vtmp + i for i in range(8)], lw)
    xlane_reduce(a, [vacc + i for i in range(8)], [vtmp + i for i in range(8)], 'v_add_f32', ['r8', 'p16', 'p32'])
    for i in range(8):
        a(f'v_mov_b32 v{vCh+2*i}, v{vacc+i}')
    a(f's_and_b32 s{sT}, s2, 1')
    a(f's_lshl_b32 s{sT}, s{sT}, 2')
    a(f's_add_u32 s{sT}, s{sT}, s{sKq}')
    a(f's_lshl_b32 s{sT}, s{sT}, 6')
    a(f's_lshl_b32 s{sT2}, s{sCb}, 5')
    a(f's_add_u32 s{sT}, s{sT}, s{sT2}')
    a(f's_add_u32 s{sT}, s{sT}, {WS_GP:#x}')
    a(f'v_lshrrev_b32 v{vo1}, 2, v0')
    a(f'v_lshlrev_b32 v{vo1}, 11, v{vo1}')
    a(f'v_and_b32 v{vo2}, 3, v0')
    a(f'v_lshl_add_u32 v{vo1}, v{vo2}, 4, v{vo1}')
    a('s_mov_b64 exec, 0xff')
    for c in range(4):
        a(f'buffer_store_dwordx4 {vr(vCh+4*c,4)}, v{vo1}, {sr(S_WS,4)}, s{sT} offen offset:{512*c} sc1')
    a('s_mov_b64 exec, -1')
    a('s_waitcnt vmcnt(0)')
    for pr in range(4):
        r0 = vD + 4 * (2 * pr); r1 = vD + 4 * (2 * pr + 1)
        for d in range(4):
            a(f'v_perm_b32 v{vDp+8*pr+2*d}, v{r1+d}, v{r0+d}, s{S_SELLO}')
            a(f'v_perm_b32 v{vDp+8*pr+2*d+1}, v{r1+d}, v{r0+d}, s{S_SELHI}')
    a(f'v_lshlrev_b32 v{vo1}, 4, v0')
    a(f's_lshl_b32 s{sT}, s2, 9')
    a(f's_add_u32 s{sT}, s{sT}, {WS_GP:#x}')
    a('s_mov_b32 exec_hi, 0')
    poll(a, [f'buffer_load_dwordx4 {vr(vacc,4)}, v{vo1}, {sr(S_WS,4)}, s{sT} offen sc1'], [vacc], vt, sCnt, name='pgp', sleep=8)
    a(f'v_mov_b32 v{vacc+1}, v{vacc+2}')
    xlane_reduce(a, [vacc, vacc + 1], None, 'v_add_f32', ['r4', 'r8'])
    for i in range(2):
        rnd_bf16(a, vacc + i, vacc + i, vtmp + i)
    for i in range(2):
        a(f'v_mov_b32 v{vacc+4+i}, v{vacc+i}')
    a('s_nop 1')
    for i in range(2):
        a(f'v_permlane16_swap_b32 v{vacc+i}, v{vacc+4+i}')
    a(f's_mov_b32 s{sT}, {f2u(0.044715):#x}')
    a(f's_mov_b32 s{sT2}, {f2u(-2*0.7978845608028654*1.4426950408889634):#x}')
    for i in range(2):
        x = vacc + i; t = vtmp + i
        a(f'v_mul_f32 v{t}, v{x}, v{x}')
        a(f'v_mul_f32 v{t}, v{t}, v{x}')
        a(f'v_fma_f32 v{t}, v{t}, s{sT}, v{x}')
        a(f'v_mul_f32 v{t}, s{sT2}, v{t}')
    for i in range(2):
        a(f'v_exp_f32 v{vtmp+i}, v{vtmp+i}')
    a('s_nop 0')
    for i in range(2):
        a(f'v_add_f32 v{vtmp+i}, 1.0, v{vtmp+i}')
    for i in range(2):
        a(f'v_rcp_f32 v{vtmp+i}, v{vtmp+i}')
    a('s_nop 0')
    for i in range(2):
        a(f'v_mul_f32 v{vacc+i}, v{vacc+i}, v{vtmp+i}')
    for i in range(2):
        rnd_bf16(a, vacc + i, vacc + i, vtmp + i)
    for i in range(2):
        a(f'v_mul_f32 v{vacc+i}, v{vacc+i}, v{vacc+4+i}')
    a(f'v_cvt_pk_bf16_f32 v{vt}, v{vacc}, v{vacc+1}')
    a('s_nop 0')
    for pr in range(4):
        a(f'v_readlane_b32 s{sPk+pr}, v{vt}, {pr}')
    a(f'v_lshrrev_b32 v{vo1}, 2, v0')
    a(f'v_lshlrev_b32 v{vo1}, 16, v{vo1}')
    a(f'v_and_b32 v{vo2}, 3, v0')
    a(f'v_lshl_add_u32 v{vo1}, v{vo2}, 4, v{vo1}')
    a(f's_lshl_b32 s84, s2, 6')
    a(f's_add_u32 s84, s84, {WS_B:#x}')
    for c in range(1, 4):
        a(f's_add_u32 s{84+c}, s84, {c << 14}')
    for pr in range(4):
        for col in range(8):
            c0 = '0' if pr == 0 else f'v{vCh+2*col}'
            a(f'v_dot2_f32_bf16 v{vCh+2*col}, v{vDp+8*pr+col}, s{sPk+pr}, {c0}')
    a('s_mov_b32 exec_hi, 0x00ffffff')
    a('s_nop 1')
    for c in range(4):
        a(f'buffer_store_dwordx4 {vr(vCh+4*c,4)}, v{vo1}, {sr(S_WS,4)}, s{84+c} offen sc1')
    a('s_mov_b64 exec, -1')
    a.label(Lnoffn)
    a(f's_cmp_lt_u32 s2, {FIN0}')
    a(f's_cbranch_scc1 {Lnofin}')
    a(f's_sub_u32 s{sJ}, s2, {FIN0}')
    a(f'v_lshlrev_b32 v{vo1}, 4, v0')
    a(f'buffer_load_dwordx4 {vr(vX,4)}, v{vo1}, {sr(sX,4)}, 0 offen')
    a(f'buffer_load_dwordx4 {vr(vX+4,4)}, v{vo1}, {sr(sGW,4)}, 0 offen')
    a('s_waitcnt vmcnt(0)')
    for d in range(4):
        a(f'v_lshlrev_b32 v{vt}, 16, v{vX+d}')
        a(f'v_lshlrev_b32 v{vt+1}, 16, v{vX+4+d}')
        a(f'v_and_b32 v{vt+2}, 0xffff0000, v{vX+d}')
        a(f'v_and_b32 v{vt+3}, 0xffff0000, v{vX+4+d}')
        a(f'v_mul_f32 v{vt}, v{vt}, v{vt+1}')
        a(f'v_mul_f32 v{vt+2}, v{vt+2}, v{vt+3}')
        a(f'v_cvt_pk_bf16_f32 v{vt}, v{vt}, v{vt+2}')
        a(f'v_lshlrev_b32 v{vt+1}, 16, v{vt}')
        a(f'v_and_b32 v{vt+2}, 0xffff0000, v{vt}')
        if d == 0:
            a(f'v_add_f32 v{vg}, v{vt+1}, v{vt+2}')
        else:
            a(f'v_add_f32 v{vg}, v{vg}, v{vt+1}')
            a(f'v_add_f32 v{vg}, v{vg}, v{vt+2}')
    xlane_reduce(a, [vg], [vt], 'v_add_f32', ['x1', 'x2', 'r4', 'r8', 'p16', 'p32'])
    rnd_bf16(a, vg, vg, vt)
    a(f'v_mul_f32 v{vg}, {f2u(-1.4426950408889634):#x}, v{vg}')
    a(f'v_exp_f32 v{vg}, v{vg}')
    a('s_nop 0')
    a(f'v_add_f32 v{vg}, 1.0, v{vg}')
    a(f'v_rcp_f32 v{vg}, v{vg}')
    a('s_nop 0')
    rnd_bf16(a, vg, vg, vt)
    a(f'v_sub_f32 v{vt+1}, 1.0, v{vg}')
    rnd_bf16(a, vt + 1, vt + 1, vt)
    a('s_nop 0')
    a(f'v_readfirstlane_b32 s{sG}, v{vg}')
    a(f'v_readfirstlane_b32 s{sG1}, v{vt+1}')
    def gather(base, n, name, sleep):
        a(f's_lshl_b32 s{sT}, s{sJ}, 14')
        a(f's_add_u32 s{sT}, s{sT}, {base:#x}')
        for q in range(1, 4):
            a(f's_add_u32 s{80+q}, s{sT}, {4096*q}')
        return [f'buffer_load_dwordx4 {vr(vY+4*k,4)}, v{vo1}, {sr(S_WS,4)}, s{sT if k < 4 else 80 + k//4} offen offset:{(k%4)*1024} sc1' for k in range(n)]
    def sumup(dst, n):
        for e in range(2):
            a(f'v_add_f32 v{dst+e}, v{vY+2*e}, v{vY+4+2*e}')
            a(f'v_add_f32 v{dst+2+e}, v{vY+8+2*e}, v{vY+12+2*e}')
        for k in range(4, n):
            for e in range(2):
                d = dst + e + 2 * (k & 1)
                a(f'v_add_f32 v{d}, v{d}, v{vY+4*k+2*e}')
        for e in range(2):
            a(f'v_add_f32 v{dst+e}, v{dst+e}, v{dst+2+e}')
        xlane_reduce(a, [dst, dst + 1], [vtmp, vtmp + 1], 'v_add_f32', ['r4', 'r8', 'p16', 'p32'])
    loads = gather(WS_B, 14, 'pb', 8)
    poll(a, loads, [vY + 4 * k for k in range(14)], vt, sCnt, name='pb', sleep=16)
    sumup(vb, 14)
    for i in range(2):
        rnd_bf16(a, vb + i, vb + i, vtmp + i)
        a(f'v_mul_f32 v{vb+i}, s{sG1}, v{vb+i}')
        rnd_bf16(a, vb + i, vb + i, vtmp + i)
    stamp(a, cfg, 76)
    stamp_store(a, cfg, [(10, 76)], vt)
    loads = gather(WS_Y, 16, 'py', 1)
    a(f'v_lshlrev_b32 v{vo2}, 4, v0')
    a(f's_lshr_b32 s{sT2}, s{sJ}, 2')
    a(f's_lshl_b32 s{sT2}, s{sT2}, 6')
    a(f's_and_b32 s{sKq}, s{sJ}, 3')
    a(f's_lshl_b32 s{sKq}, s{sKq}, 2')
    a(f's_add_u32 s{sT2}, s{sT2}, s{sKq}')
    a('s_barrier')
    if cfg.get('b4', 1): a('s_barrier')
    poll(a, loads, [vY + 4 * k for k in range(16)], vt, sCnt, name='py', sleep=cfg.get('ysleep', 1))
    sumup(vacc, 16)
    for i in range(2):
        rnd_bf16(a, vacc + i, vacc + i, vtmp + i)
        a(f'v_mul_f32 v{vacc+i}, s{sG}, v{vacc+i}')
        rnd_bf16(a, vacc + i, vacc + i, vtmp + i)
        a(f'v_add_f32 v{vacc+i}, v{vacc+i}, v{vb+i}')
    a(f'v_cvt_pk_bf16_f32 v{vt}, v{vacc}, v{vacc+1}')
    a('s_mov_b64 exec, 15')
    a(f'buffer_store_dword v{vt}, v{vo2}, {sr(sOUT,4)}, s{sT2} offen')
    a('s_mov_b64 exec, -1')
    stamp(a, cfg, 76)
    stamp_store(a, cfg, [(6, 76)], vt + 2)
    a('s_endpgm')
    a.label(Lnofin)
    a('s_barrier')
    a('s_endpgm')
    return V.n


def gen(cfg):
    a = Asm()
    a.raw(kernel_header(NAME))
    a('s_cmp_ge_u32 s2, 256')
    a('s_cbranch_scc1 L_end')
    a('s_load_dwordx16 s[16:31], s[0:1], 0')
    a('s_load_dwordx8 s[32:39], s[0:1], 64')
    a('s_load_dwordx2 s[40:41], s[0:1], 96')
    a('v_lshrrev_b32 v1, 6, v0')
    a('v_and_b32 v0, 63, v0')
    a(f'v_readfirstlane_b32 s{S_WAVE}, v1')
    a(f's_mov_b32 s{S_SELLO}, 0x05040100')
    a(f's_mov_b32 s{S_SELHI}, 0x07060302')
    a('s_waitcnt lgkmcnt(0)')
    srd(a, S_WS, P_WS, WS_SIZE)
    a(f's_cmp_eq_u32 s{S_WAVE}, 2')
    a('s_cbranch_scc1 L_auxA')
    a(f's_cmp_eq_u32 s{S_WAVE}, 3')
    a('s_cbranch_scc1 L_auxB')
    n0 = gen_stream(a, cfg)
    a.label('L_auxA')
    n1 = gen_auxA(a, cfg)
    a.label('L_auxB')
    n2 = gen_auxB(a, cfg)
    a.label('L_end')
    a('s_endpgm')
    nv = max(n0, n1, n2)
    acc_off = (nv + 3) // 4 * 4
    npre = cfg.get('npre', 4)
    print('vgprs', n0, n1, n2, 'agprs', 64 * npre, file=sys.stderr)
    hdr = open('gated_mix__gqa_block_cached__geglu_ffn__decode.s.ref').read().split('; @launch')[0]
    lds = cfg.get('lds', 2048)
    hdr += f'; @launch grid=(256,1,1) block=(256,1,1) lds={lds}\n.amdgcn_target "amdgcn-amd-amdhsa--gfx950"\n'
    return hdr + a.text() + kernel_desc(NAME, acc_off + 64 * npre, 96, acc_off)


if __name__ == '__main__':
    cfg = json.loads(sys.argv[2]) if len(sys.argv) > 2 else {}
    open(sys.argv[1], 'w').write(gen(cfg))
```

```python
import sys, struct, json
from asmlib import *

def f2u(f): return struct.unpack('<I', struct.pack('<f', f))[0]
C_SCALE = f2u(1.4426950408889634 / 16.0)

WS_QP = 0x0
WS_TK = 0x4e0000
TK_STRIDE = 4352
WS_PROF = 0x24000
WS_GP = 0x40000
WS_IT = 0x80000
WS_ML = 0x60000
WS_O = 0x100000
WS_Y = 0x300000
WS_B = 0x400000
WS_SIZE = 0x500000

NAME = 'gated_mix__gqa_block_cached__geglu_ffn__decode_kernel'
P_X, P_K, P_V, P_WQ, P_WO, P_BX, P_WG, P_WU, P_WD, P_GW, P_OUT, P_DBG, P_WS = [16 + 2 * i for i in range(13)]
S_WS = 12
S_WAVE = 3
S_SELLO = 60; S_SELHI = 61
S_TA = 88; S_TB = 89
POLL_MAX = 1 << 14
FIN0 = 200
INVALID = 0x20000000
LDS_TAG = 1024


class VM:
    def __init__(self, a):
        self.a = a; self.n = 0
    def issue(self, s):
        self.a(s); self.n += 1
        return self.n - 1
    def wait(self, idx):
        k = self.n - idx - 1
        assert 0 <= k <= 63
        self.a(f's_waitcnt vmcnt({k})')


def srd(a, d, p, nbytes):
    a(f's_mov_b32 s{d}, s{p}')
    a(f's_mov_b32 s{d+1}, s{p+1}')
    a(f's_mov_b32 s{d+2}, {nbytes:#x}')
    a(f's_mov_b32 s{d+3}, 0x00020000')


def dpp(op, d, s0, s1, ctrl):
    return f'{op}_dpp v{d}, v{s0}, v{s1} {ctrl} row_mask:0xf bank_mask:0xf'


def xlane_reduce(a, regs, tmps, op, steps):
    n = len(regs)
    for st in steps:
        if st in ('x1', 'x2', 'r4', 'r8'):
            ctrl = {'x1': 'quad_perm:[1,0,3,2]', 'x2': 'quad_perm:[2,3,0,1]', 'r4': 'row_ror:4', 'r8': 'row_ror:8'}[st]
            if n < 3: a('s_nop 1')
            for r in regs:
                a(dpp(op, r, r, r, ctrl))
        else:
            ins = 'v_permlane16_swap_b32' if st == 'p16' else 'v_permlane32_swap_b32'
            for r, t in zip(regs, tmps):
                a(f'v_mov_b32 v{t}, v{r}')
            a('s_nop 1')
            for r, t in zip(regs, tmps):
                a(f'{ins} v{r}, v{t}')
            if n < 2: a('s_nop 0')
            for r, t in zip(regs, tmps):
                a(f'{op} v{r}, v{r}, v{t}')


def tagB(a):
    a(f's_mul_i32 s{S_TB}, s{S_TA}, 0x9e3779b1')
    a(f's_add_u32 s{S_TB}, s{S_TB}, 0x7f4a7c15')


def poll(a, loads, chunks, vt, scnt, name='poll', sleep=1):
    L = a.newlabel(name); D = a.newlabel(name + '_done')
    a(f's_mov_b32 s{scnt}, {POLL_MAX}')
    a.label(L)
    for l in loads: a(l)
    n = len(chunks)
    for i, c in enumerate(chunks):
        if i % 4 == 0:
            a(f's_waitcnt vmcnt({max(0, n - i - 4)})')
        a(f'v_xor_b32 v{vt+1}, s{S_TA}, v{c+1}')
        a(f'v_xor_b32 v{vt+2}, s{S_TB}, v{c+3}')
        if i == 0: a(f'v_or_b32 v{vt}, v{vt+1}, v{vt+2}')
        else: a(f'v_or3_b32 v{vt}, v{vt}, v{vt+1}, v{vt+2}')
    a(f'v_cmp_ne_u32 vcc, 0, v{vt}')
    a('s_mov_b64 exec, vcc')
    a(f's_cbranch_execz {D}')
    a(f's_sub_u32 s{scnt}, s{scnt}, 1')
    a(f's_cbranch_scc1 {D}')
    if sleep: a(f's_sleep {sleep}')
    a(f's_branch {L}')
    a.label(D)
    a('s_mov_b64 exec, -1')


def mkchunks(a, dst, vals):
    for i, v in enumerate(vals):
        a(f'v_mov_b32 v{dst+2*i}, v{v}')
        a(f'v_mov_b32 v{dst+2*i+1}, s{S_TA if i % 2 == 0 else S_TB}')


def stamp(a, cfg, sreg):
    if cfg.get('prof'): a(f's_memrealtime s[{sreg}:{sreg+1}]')

def stamp_store(a, cfg, pairs, vt):
    if not cfg.get('prof'): return
    a(f's_lshl_b32 s78, s2, 7')
    a(f's_add_u32 s78, s78, {WS_PROF:#x}')
    a('s_waitcnt lgkmcnt(0)')
    a(f'v_mov_b32 v{vt+1}, 0')
    for slot, sreg in pairs:
        a(f'v_mov_b32 v{vt}, s{sreg}')
        a(f'buffer_store_dword v{vt}, v{vt+1}, s[{S_WS}:{S_WS+3}], s78 offen offset:{slot*4}')


def gen_stream(a, cfg):
    D = 2
    NPRE = cfg.get('npre', 4)
    NSTAT = cfg.get('nstat', 56)
    DYN = NSTAT < 64
    flags = 'nt'
    V = Regs(1, 256)
    vKoff = V.alloc(); vVoff = V.alloc()
    vm = V.alloc(); vl = V.alloc(); vt0 = V.alloc(); vt1 = V.alloc(); valpha = V.alloc(); vmc = V.alloc()
    vc = V.alloc(); vg = V.alloc(); vAt = V.alloc()
    vTk = [V.alloc(), V.alloc()]
    vIt = V.alloc()
    vmask = V.alloc(4, 4)
    vS = V.alloc(4, 4)
    vP = V.alloc(4, 4)
    vacc = V.alloc(8, 4)
    vA = V.alloc(16, 4)
    vQ = V.alloc(32, 4)
    vKb = [V.alloc(32, 4) for _ in range(D)]
    vVb = [V.alloc(32, 4) for _ in range(D)]
    sK = 4; sVv = 8
    sOff = [44, 45]
    sEnd = 46; sC = 47; sTmp = 48; sBase = 49; sHead = 50; sSplit = 51; sT2 = 52
    sDyn = 53; sCtr = 54; sAt = 55; sTk = 56
    sNs = [42, 43]
    stride = 16384
    WGBYTES = NSTAT * 2 * 8192
    NDYN = (4096 - 64 * NSTAT) // 2
    srd(a, sK, P_K, 0x10000000)
    srd(a, sVv, P_V, 0x10000000)
    a(f's_lshr_b32 s{sHead}, s2, 5')
    a(f's_and_b32 s{sSplit}, s2, 31')
    BL = cfg.get('blk', 64)
    LB = BL.bit_length() - 1
    def kconst(k): return (k // BL) * BL * 524288 + (k % BL) * 16384
    a(f's_lshl_b32 s{sTmp}, s{S_WAVE}, 13')
    a(f's_lshl_b32 s{sDyn}, s{sHead}, 25')
    a(f's_add_u32 s{sDyn}, s{sDyn}, s{sTmp}')
    a(f's_lshl_b32 s{sCtr}, s{sHead}, 1')
    a(f's_add_u32 s{sCtr}, s{sCtr}, s{S_WAVE}')
    a(f's_mul_i32 s{sCtr}, s{sCtr}, {TK_STRIDE}')
    a(f's_add_u32 s{sCtr}, s{sCtr}, {WS_TK:#x}')
    assert BL == 64
    ROT = cfg.get('rot', 0); HROT = cfg.get('hrot', 0)
    sHrot = 46; sR0 = 57
    a(f's_lshl_b32 s{sBase}, s{sSplit}, {14 + LB}')
    a(f's_add_u32 s{sBase}, s{sBase}, s{sDyn}')
    a(f's_mul_i32 s{sHrot}, s{sHead}, {HROT}')
    a(f's_mul_i32 s{sR0}, s{sSplit}, {ROT}')
    a(f's_add_u32 s{sR0}, s{sR0}, s{sHrot}')
    def paddr(k):
        a(f's_add_u32 s{sTmp}, s{sR0}, {k}')
        a(f's_and_b32 s{sTmp}, s{sTmp}, 63')
        a(f's_lshl_b32 s{sTmp}, s{sTmp}, 14')
        a(f's_add_u32 s{sTmp}, s{sTmp}, s{sBase}')
    a(f's_mov_b32 s{sC}, {C_SCALE:#x}')
    for s_ in range(D):
        a(f's_mov_b32 s{sNs[s_]}, {NPRE + s_}')
    a(f'v_and_b32 v{vc}, 15, v0')
    a(f'v_lshrrev_b32 v{vg}, 4, v0')
    a(f'v_lshlrev_b32 v{vKoff}, 9, v{vc}')
    a(f'v_lshl_add_u32 v{vKoff}, v{vg}, 4, v{vKoff}')
    a(f'v_lshlrev_b32 v{vVoff}, 11, v{vg}')
    a(f'v_lshl_add_u32 v{vVoff}, v{vc}, 4, v{vVoff}')
    a(f'v_cmp_eq_u32 vcc, 0, v0')
    a(f'v_mov_b32 v{vt0}, 0x40000000')
    a(f's_mov_b32 s{sAt}, 0x40000000')
    a(f'v_cndmask_b32 v{vAt}, v{vt0}, 0, vcc')
    koffs = [j * 64 for j in range(8)]
    voffs = [i * 512 + hf * 256 for i in range(4) for hf in range(2)]
    def R(file, base, n): return f'{file}[{base}:{base+n-1}]'
    def issueK(file, base, so):
        for j in range(8):
            a(f'buffer_load_dwordx4 {R(file,base+4*j,4)}, v{vKoff}, {sr(sK,4)}, s{so} offen offset:{koffs[j]} {flags}')
    def issueV(file, base, so):
        for j in range(8):
            a(f'buffer_load_dwordx4 {R(file,base+4*j,4)}, v{vVoff}, {sr(sVv,4)}, s{so} offen offset:{voffs[j]} {flags}')
    FAKE = cfg.get('fakeat', 0)
    def issueAt(s):
        if DYN or FAKE:
            a(f'v_mov_b32 v{vTk[s]}, 1')
            a(f'buffer_atomic_add v{vTk[s]}, v{vAt}, {sr(S_WS,4)}, s{sAt} offen sc0')
    NA = 1 if (DYN or FAKE) else 0
    PST = [66 + 2 * i for i in range(11)] + [90 + 2 * i for i in range(6)]
    pst_n = [0]
    def pst():
        if cfg.get('prof'):
            r = PST[pst_n[0]]; pst_n[0] += 1
            a(f's_memrealtime s[{r}:{r+1}]')
    a('s_barrier')
    pst()
    seq = [('a', 64 * i, 64 * i + 32) for i in range(NPRE)] + [('v', vKb[s], vVb[s]) for s in range(D)]
    paddr(0)
    for i, (file, kb, vb) in enumerate(seq):
        ex1 = NA if (i - 1) >= NPRE else 0
        exi = NA if i >= NPRE else 0
        if i >= 2:
            a(f's_waitcnt vmcnt({8 + 16 + ex1})')
            pst()
        if file == 'v':
            s = i - NPRE
            a(f's_mov_b32 s{sOff[s]}, s{sTmp}')
            issueAt(s)
        issueK(file, kb, sTmp)
        if i >= 2:
            a(f's_waitcnt vmcnt({16 + ex1 + 8 + exi})')
            pst()
        issueV(file, vb, sTmp)
        paddr(i + 1)
        if i == 1:
            a(f'v_lshrrev_b32 v{vt1}, 2, v{vc}')
            a(f'v_and_b32 v{vt0}, 2, v0')
            a(f'v_lshlrev_b32 v{vt0}, 3, v{vt0}')
            a(f'v_mov_b32 v{vl}, 0xffff')
            a(f'v_lshlrev_b32 v{vt0}, v{vt0}, v{vl}')
            for j in range(4):
                a(f'v_cmp_eq_u32 vcc, {j}, v{vt1}')
                a('s_nop 1')
                a(f'v_cndmask_b32 v{vmask+j}, 0, v{vt0}, vcc')
            a(f'v_mov_b32 v{vm}, 0xf149f2ca')
            a(f'v_mov_b32 v{vl}, 0')
            for k in range(8):
                a(f'v_mov_b32 v{vacc+k}, 0')
    a(f'v_and_b32 v{vt0}, 1, v0')
    a(f'v_lshlrev_b32 v{vt0}, 9, v{vt0}')
    a(f'v_lshl_add_u32 v{vt0}, v{vg}, 4, v{vt0}')
    a(f'v_mov_b32 v{vt1}, 0')
    stamp(a, cfg, 62)
    a('s_barrier')
    for j in range(8):
        a(f'ds_read_b128 {vr(vQ+4*j,4)}, v{vt0} offset:{j*64}')
    a(f'ds_read_b32 v{vt1}, v{vt1} offset:{LDS_TAG}')
    a('s_waitcnt lgkmcnt(0)')
    a(f'v_readfirstlane_b32 s{S_TA}, v{vt1}')
    pst()

    def qk(file, kb):
        for j in range(8):
            cc = '0' if j == 0 else vr(vS, 4)
            a(f'v_mfma_f32_16x16x32_bf16 {vr(vS,4)}, {R(file,kb+4*j,4)}, {vr(vQ+4*j,4)}, {cc}')
    def softmax():
        a(f'v_cvt_pk_bf16_f32 v{vt0}, v{vS}, v{vS+1}')
        a(f'v_cvt_pk_bf16_f32 v{vt1}, v{vS+2}, v{vS+3}')
        a(f'v_lshlrev_b32 v{vS}, 16, v{vt0}')
        a(f'v_and_b32 v{vS+1}, 0xffff0000, v{vt0}')
        a(f'v_lshlrev_b32 v{vS+2}, 16, v{vt1}')
        a(f'v_and_b32 v{vS+3}, 0xffff0000, v{vt1}')
        a(f'v_max3_f32 v{vt0}, v{vS}, v{vS+1}, v{vm}')
        a(f'v_max3_f32 v{vt0}, v{vS+2}, v{vS+3}, v{vt0}')
        a(f'v_mov_b32 v{vt1}, v{vt0}')
        a('s_nop 1')
        a(f'v_permlane32_swap_b32 v{vt0}, v{vt1}')
        a(f'v_max_f32 v{vt0}, v{vt0}, v{vt1}')
        a(f'v_mov_b32 v{vt1}, v{vt0}')
        a('s_nop 1')
        a(f'v_permlane16_swap_b32 v{vt0}, v{vt1}')
        a(f'v_max_f32 v{vt0}, v{vt0}, v{vt1}')
        a(f'v_sub_f32 v{valpha}, v{vm}, v{vt0}')
        a(f'v_mul_f32 v{valpha}, s{sC}, v{valpha}')
        a(f'v_exp_f32 v{valpha}, v{valpha}')
        a(f'v_mov_b32 v{vm}, v{vt0}')
        a(f'v_mul_f32 v{vmc}, s{sC}, v{vt0}')
        for i in range(4):
            a(f'v_fma_f32 v{vP+i}, v{vS+i}, s{sC}, -v{vmc}')
        for i in range(4):
            a(f'v_exp_f32 v{vP+i}, v{vP+i}')
        a(f'v_mul_f32 v{vl}, v{vl}, v{valpha}')
        a(f'v_add_f32 v{vt0}, v{vP}, v{vP+1}')
        a(f'v_add_f32 v{vt1}, v{vP+2}, v{vP+3}')
        a(f'v_add_f32 v{vl}, v{vl}, v{vt0}')
        a(f'v_add_f32 v{vl}, v{vl}, v{vt1}')
        for i in range(8):
            qp = '[0,0,2,2]' if (i & 1) == 0 else '[1,1,3,3]'
            a(f'v_mul_f32_dpp v{vacc+i}, v{valpha}, v{vacc+i} quad_perm:{qp} row_mask:0xf bank_mask:0xf')
        for i in range(4):
            a(f'v_cvt_pk_bf16_f32 v{vP+i}, v{vP+i}, v{vP+i}')
        for i in range(4):
            for j in range(4):
                a(f'v_and_b32 v{vA+4*i+j}, v{vP+i}, v{vmask+j}')
    def pv(file, vb):
        for i in range(4):
            for hf in range(2):
                a(f'v_mfma_f32_16x16x32_bf16 {vr(vacc+4*hf,4)}, {vr(vA+4*i,4)}, {R(file,vb+4*(2*i+hf),4)}, {vr(vacc+4*hf,4)}')
    def body(s):
        a(f's_waitcnt vmcnt({24 + NA})')
        if DYN:
            a(f'v_readfirstlane_b32 s{sTk}, v{vTk[s]}')
        qk('v', vKb[s])
        a(f's_add_u32 s{sNs[s]}, s{sNs[s]}, 2')
        if DYN:
            a(f's_and_b32 s{sTmp}, s{sTk}, 31')
            a(f's_lshr_b32 s{sT2}, s{sTk}, 5')
            a(f's_add_u32 s{sT2}, s{sT2}, {NSTAT}')
            a(f's_cmp_ge_u32 s{sNs[s]}, {NSTAT}')
            a(f's_cselect_b32 s{sTmp}, s{sTmp}, s{sSplit}')
            a(f's_cselect_b32 s{sT2}, s{sT2}, s{sNs[s]}')
        else:
            a(f's_mov_b32 s{sTmp}, s{sSplit}')
            a(f's_mov_b32 s{sT2}, s{sNs[s]}')
        if ROT:
            a(f's_mul_i32 s{sOff[s]}, s{sTmp}, {ROT}')
            a(f's_add_u32 s{sOff[s]}, s{sOff[s]}, s{sT2}')
            a(f's_add_u32 s{sOff[s]}, s{sOff[s]}, s{sHrot}')
            a(f's_and_b32 s{sOff[s]}, s{sOff[s]}, 63')
        else:
            a(f's_and_b32 s{sOff[s]}, s{sT2}, 63')
        a(f's_lshl_b32 s{sOff[s]}, s{sOff[s]}, 14')
        a(f's_lshl_b32 s{sTmp}, s{sTmp}, 20')
        a(f's_add_u32 s{sOff[s]}, s{sOff[s]}, s{sTmp}')
        a(f's_add_u32 s{sOff[s]}, s{sOff[s]}, s{sDyn}')
        a(f's_cmp_ge_u32 s{sT2}, 64')
        a(f's_cselect_b32 s{sOff[s]}, {INVALID:#x}, s{sOff[s]}')
        if DYN:
            a(f's_cselect_b32 s{sAt}, 0x40000000, s{sCtr}')
            a(f's_cmp_lt_u32 s{sNs[s]}, {NSTAT - 2}')
            a(f's_cselect_b32 s{sAt}, 0x40000000, s{sAt}')
            issueAt(s)
        issueK('v', vKb[s], sOff[s])
        softmax()
        a(f's_waitcnt vmcnt({24 + 2*NA})')
        a('s_nop 0')
        pv('v', vVb[s])
        issueV('v', vVb[s], sOff[s])
    tagB(a)
    if NPRE > 0:
        for s in range(D):
            body(s); pst()
        for i in range(NPRE):
            qk('a', 64 * i)
            a('s_nop 7')
            softmax()
            a('s_nop 1')
            pv('a', 64 * i + 32)
            pst()
    Lloop = a.newlabel('st_loop'); Ldone = a.newlabel('st_done')
    if cfg.get('prof'):
        a('s_mov_b32 s57, 0')
        a(f'v_mov_b32 v{vIt}, 0')
        a('s_waitcnt lgkmcnt(0)')
        for k in range(pst_n[0]):
            a(f'v_writelane_b32 v{vIt}, s{PST[k]}, {40 + k}')
    a.label(Lloop)
    if cfg.get('prof'):
        a('s_memrealtime s[64:65]')
        a('s_mov_b32 m0, s57')
        a('s_waitcnt lgkmcnt(0)')
        a(f'v_writelane_b32 v{vIt}, s64, m0')
        a('s_add_u32 s57, s57, 1')
    for s in range(D):
        body(s)
        nx = (s + 1) % D
        a(f's_cmp_ge_u32 s{sOff[nx]}, {INVALID:#x}')
        if s == D - 1:
            a(f's_cbranch_scc0 {Lloop}')
        else:
            a(f's_cbranch_scc1 {Ldone}')
    a.label(Ldone)
    xlane_reduce(a, [vl], [vt0], 'v_add_f32', ['p32', 'p16'])
    a(f's_lshl_b32 s{sTmp}, s{sSplit}, 1')
    a(f's_add_u32 s{sTmp}, s{sTmp}, s{S_WAVE}')
    a(f's_lshl_b32 s{sT2}, s{sHead}, 6')
    a(f's_add_u32 s{sT2}, s{sT2}, s{sTmp}')
    a(f's_lshl_b32 s{sT2}, s{sT2}, 6')
    a(f's_add_u32 s{sT2}, s{sT2}, {WS_ML:#x}')
    a(f's_lshl_b32 s{sBase}, s{sHead}, 11')
    a(f's_add_u32 s{sBase}, s{sBase}, s{sTmp}')
    a(f's_lshl_b32 s{sBase}, s{sBase}, 7')
    a(f's_add_u32 s{sBase}, s{sBase}, {WS_O:#x}')
    a(f's_add_u32 s{sTmp}, s{sBase}, 0x10000')
    a(f's_add_u32 s{sDyn}, s{sBase}, 0x20000')
    a(f's_add_u32 s{sCtr}, s{sBase}, 0x30000')
    a(f'v_lshrrev_b32 v{vt1}, 1, v{vc}')
    a(f'v_lshlrev_b32 v{vt1}, 13, v{vt1}')
    a(f'v_lshl_add_u32 v{vt1}, v{vg}, 4, v{vt1}')
    a(f'v_and_b32 v{vt0}, 1, v{vc}')
    a(f'v_lshl_add_u32 v{vt1}, v{vt0}, 6, v{vt1}')
    a(f'v_cmp_eq_u32 vcc, 1, v{vt0}')
    a(f'v_mov_b32_dpp v{vP}, v{vm} quad_perm:[1,0,3,2] row_mask:0xf bank_mask:0xf')
    a(f'v_mov_b32_dpp v{vP+1}, v{vl} quad_perm:[1,0,3,2] row_mask:0xf bank_mask:0xf')
    a(f'v_mov_b32 v{vS+1}, s{S_TA}')
    a(f'v_mov_b32 v{vS+3}, s{S_TB}')
    a(f'v_cndmask_b32 v{vS}, v{vm}, v{vP+1}, vcc')
    a(f'v_cndmask_b32 v{vS+2}, v{vP}, v{vl}, vcc')
    mkchunks(a, vA, [vacc + i for i in range(8)])
    a(f'v_lshlrev_b32 v{vt0}, 4, v0')
    for i, so in enumerate([sBase, sTmp, sDyn, sCtr]):
        a(f'buffer_store_dwordx4 {vr(vA+4*i,4)}, v{vt1}, {sr(S_WS,4)}, s{so} offen sc1')
    a('s_mov_b64 exec, 15')
    a(f'buffer_store_dwordx4 {vr(vS,4)}, v{vt0}, {sr(S_WS,4)}, s{sT2} offen sc1')
    a('s_mov_b64 exec, -1')
    a(f'v_mov_b32 v{vt0}, 0')
    if cfg.get('prof'):
        a(f's_memrealtime s[58:59]')
    a('s_barrier')
    if cfg.get('prof'):
        a(f's_add_u32 s{sT2}, s{S_WAVE}, 4')
        a(f's_lshl_b32 s{sTmp}, s2, 5')
        a(f's_add_u32 s{sTmp}, s{sTmp}, s{sT2}')
        a(f's_lshl_b32 s{sTmp}, s{sTmp}, 2')
        a(f's_add_u32 s{sTmp}, s{sTmp}, {WS_PROF:#x}')
        a('s_waitcnt lgkmcnt(0)')
        a(f'v_mov_b32 v{vt1}, s58')
        a(f'buffer_store_dword v{vt1}, v{vt0}, {sr(S_WS,4)}, s{sTmp} offen')
        a(f'v_mov_b32 v{vt1}, s62')
        a(f'buffer_store_dword v{vt1}, v{vt0}, {sr(S_WS,4)}, s{sTmp} offen offset:28')
        a(f's_lshl_b32 s{sTmp}, s2, 1')
        a(f's_add_u32 s{sTmp}, s{sTmp}, s{S_WAVE}')
        a(f's_lshl_b32 s{sTmp}, s{sTmp}, 8')
        a(f's_add_u32 s{sTmp}, s{sTmp}, {WS_IT:#x}')
        a(f'v_lshlrev_b32 v{vt0}, 2, v0')
        a(f'buffer_store_dword v{vIt}, v{vt0}, {sr(S_WS,4)}, s{sTmp} offen')
    a('s_endpgm')
    return V.n


def gemv_pairs(a, vm, W, nrows, ndw, vX, acc, tmps, loads):
    for t in range(nrows // 2):
        if loads is not None:
            vm.wait(loads[2 * t + 1])
        for d in range(ndw):
            lo, hi = tmps[2 * d], tmps[2 * d + 1]
            a(f'v_perm_b32 v{lo}, v{W[2*t+1]+d}, v{W[2*t]+d}, s{S_SELLO}')
            a(f'v_perm_b32 v{hi}, v{W[2*t+1]+d}, v{W[2*t]+d}, s{S_SELHI}')
        for d in range(ndw):
            lo, hi = tmps[2 * d], tmps[2 * d + 1]
            c0 = '0' if t == 0 else f'v{acc[2*d]}'
            c1 = '0' if t == 0 else f'v{acc[2*d+1]}'
            a(f'v_dot2_f32_bf16 v{acc[2*d]}, v{lo}, v{vX+t}, {c0}')
            a(f'v_dot2_f32_bf16 v{acc[2*d+1]}, v{hi}, v{vX+t}, {c1}')
    a('s_nop 2')


def rnd_bf16(a, d, s, t):
    a(f'v_cvt_pk_bf16_f32 v{t}, v{s}, v{s}')
    a(f'v_lshlrev_b32 v{d}, 16, v{t}')


def ksplit_loads(a, vm, sX, sW, rowbytes, sKq, sColByte, vX, vW, vo1, vo2, vo3, sT, sT2):
    a(f'v_lshrrev_b32 v{vo1}, 3, v0')
    a(f'v_mul_u32_u24 v{vo2}, {14*rowbytes}, v{vo1}')
    a(f'v_and_b32 v{vo3}, 7, v0')
    a(f'v_lshl_add_u32 v{vo2}, v{vo3}, 4, v{vo2}')
    a(f's_mul_i32 s{sT2}, s{sKq}, {112*rowbytes}')
    a(f's_add_u32 s{sT2}, s{sT2}, s{sColByte}')
    lw = []
    for k in range(14):
        lw.append(vm.issue(f'buffer_load_dwordx4 {vr(vW+4*k,4)}, v{vo2}, {sr(sW,4)}, s{sT2} offen nt'))
        if k < 13: a(f's_add_u32 s{sT2}, s{sT2}, {rowbytes}')
        if k == 0:
            a(f'v_mul_u32_u24 v{vo3}, 28, v{vo1}')
            a(f's_mul_i32 s{sT}, s{sKq}, 224')
            vm.issue(f'buffer_load_dwordx4 {vr(vX,4)}, v{vo3}, {sr(sX,4)}, s{sT} offen')
            vm.issue(f'buffer_load_dwordx3 {vr(vX+4,3)}, v{vo3}, {sr(sX,4)}, s{sT} offen offset:16')
    return lw


def gen_auxA(a, cfg):
    V = Regs(1, 256)
    vt = V.alloc(8, 4)
    vX = V.alloc(8, 4)
    vacc = V.alloc(8, 4)
    vtmp = V.alloc(8, 4)
    vo1 = V.alloc(); vo2 = V.alloc(); vo3 = V.alloc(); vTag = V.alloc()
    vCh = V.alloc(16, 4)
    vW = V.alloc(64, 4)
    vWp = V.alloc(64, 4)
    vOq = V.alloc(32, 4)
    vML = V.alloc(8, 4)
    sX = 4; sWQ = 8; sDBG = 44; sWO = 48
    sT = 52; sT2 = 53; sHead = 54; sJ = 55; sCnt = 56; sC = 57; sKq = 58; sCb = 59
    sPk = 80
    vm = VM(a)
    stamp(a, cfg, 62)
    srd(a, sX, P_X, 896)
    srd(a, sWQ, P_WQ, 448 * 8192)
    a(f's_lshr_b32 s{sHead}, s2, 5')
    a(f's_and_b32 s{sJ}, s2, 31')
    a(f'v_mul_u32_u24 v{vo2}, {TK_STRIDE}, v0')
    a(f'v_mov_b32 v{vTag}, 0')
    a(f's_mul_i32 s{sT2}, s{sHead}, {2*TK_STRIDE}')
    a(f's_add_u32 s{sT2}, s{sT2}, {WS_TK:#x}')
    a(f's_cmp_lg_u32 s{sJ}, 0')
    a(f's_cselect_b32 s{sT2}, {WS_SIZE:#x}, s{sT2}')
    a('s_mov_b64 exec, 3')
    vm.issue(f'buffer_store_dword v{vTag}, v{vo2}, {sr(S_WS,4)}, s{sT2} offen sc1')
    a('s_mov_b64 exec, -1')
    a(f's_and_b32 s{sKq}, s2, 3')
    a(f's_lshr_b32 s{sCb}, s2, 2')
    a(f's_lshl_b32 s{sCb}, s{sCb}, 7')
    lw = ksplit_loads(a, vm, sX, sWQ, 8192, sKq, sCb, vX, vW, vo1, vo2, vo3, sT, sT2)
    a('s_barrier')
    srd(a, sDBG, P_DBG, 256)
    srd(a, sWO, P_WO, 4096 * 896)
    a(f'v_mov_b32 v{vo3}, 0')
    vm.issue(f'buffer_load_dword v{vTag}, v{vo3}, {sr(sDBG,4)}, 0 offen sc1')
    gemv_pairs(a, vm, [vW + 4 * k for k in range(14)], 14, 4, vX, [vacc + i for i in range(8)], [vtmp + i for i in range(8)], lw)
    xlane_reduce(a, [vacc + i for i in range(8)], [vtmp + i for i in range(8)], 'v_add_f32', ['r8', 'p16', 'p32'])
    stamp(a, cfg, 64)
    a(f'v_lshlrev_b32 v{vo1}, 4, v0')
    a(f's_lshl_b32 s{sT}, s{sHead}, 14')
    a(f's_lshl_b32 s{sT2}, s{sKq}, 12')
    a(f's_add_u32 s{sT2}, s{sT2}, s{sT}')
    a(f's_and_b32 s{sC}, s{sCb}, 0x380')
    a(f's_lshl_b32 s{sC}, s{sC}, 2')
    a(f's_add_u32 s{sT2}, s{sT2}, s{sC}')
    L = a.newlabel('ptag'); Dn = a.newlabel('ptag_done')
    a(f's_mov_b32 s{sCnt}, {POLL_MAX}')
    a.label(L)
    a('s_waitcnt vmcnt(0)')
    a(f'v_readfirstlane_b32 s{S_TA}, v{vTag}')
    a(f's_cmp_lg_u32 s{S_TA}, 0')
    a(f's_cbranch_scc1 {Dn}')
    a(f's_sub_u32 s{sCnt}, s{sCnt}, 1')
    a(f's_cbranch_scc1 {Dn}')
    a('s_sleep 1')
    a(f'buffer_load_dword v{vTag}, v{vo3}, {sr(sDBG,4)}, 0 offen sc1')
    a(f's_branch {L}')
    a.label(Dn)
    tagB(a)
    stamp(a, cfg, 66)
    mkchunks(a, vCh, [vacc + i for i in range(8)])
    a('s_mov_b64 exec, 0xff')
    for c in range(4):
        a(f'buffer_store_dwordx4 {vr(vCh+4*c,4)}, v{vo1}, {sr(S_WS,4)}, s{sT2} offen offset:{128*c} sc1')
    a('s_mov_b64 exec, -1')
    a(f'v_lshrrev_b32 v{vo2}, 5, v0')
    a(f'v_lshlrev_b32 v{vo2}, 7, v{vo2}')
    a(f'v_and_b32 v{vt}, 7, v0')
    a(f'v_lshl_add_u32 v{vo2}, v{vt}, 4, v{vo2}')
    a(f'v_bfe_u32 v{vt}, v0, 3, 2')
    a(f'v_lshl_add_u32 v{vo2}, v{vt}, 2, v{vo2}')
    for kq in range(1, 4):
        a(f's_add_u32 s{80+kq}, s{sT}, {4096*kq}')
    loads = []
    for kq in range(4):
        for i in range(4):
            so = sT if kq == 0 else 80 + kq
            loads.append(f'buffer_load_dwordx4 {vr(vW+4*(4*kq+i),4)}, v{vo1}, {sr(S_WS,4)}, s{so} offen offset:{i*1024} sc1')
    if cfg.get('qsleep'): a(f's_sleep {cfg["qsleep"]}')
    poll(a, loads, [vW + 4 * k for k in range(16)], vt, sCnt, name='pq')
    stamp(a, cfg, 68)
    for i in range(4):
        for e in (0, 2):
            a(f'v_add_f32 v{vW+4*i+e}, v{vW+4*i+e}, v{vW+4*(4+i)+e}')
            a(f'v_add_f32 v{vW+4*(8+i)+e}, v{vW+4*(8+i)+e}, v{vW+4*(12+i)+e}')
    for i in range(4):
        for e in (0, 2):
            a(f'v_add_f32 v{vW+4*i+e}, v{vW+4*i+e}, v{vW+4*(8+i)+e}')
    for i in range(4):
        a(f'v_cvt_pk_bf16_f32 v{vt+i}, v{vW+4*i}, v{vW+4*i+2}')
    for i in range(4):
        a(f'ds_write_b32 v{vo2}, v{vt+i} offset:{256*i}')
    a(f'ds_write_b32 v{vo3}, v{vTag} offset:{LDS_TAG}')
    a('s_waitcnt lgkmcnt(0)')
    a('s_barrier')
    stamp(a, cfg, 70)
    stamp_store(a, cfg, [(0, 62), (7, 64), (8, 66), (9, 68), (1, 70)], vt)
    a(f's_lshl_b32 s{sT}, s{sHead}, 9')
    a(f's_and_b32 s{sT2}, s{sJ}, 16')
    a(f's_lshl_b32 s{sT2}, s{sT2}, 3')
    a(f's_add_u32 s{sT}, s{sT}, s{sT2}')
    a(f's_and_b32 s{sT2}, s{sJ}, 7')
    a(f's_lshl_b32 s{sT2}, s{sT2}, 4')
    a(f's_add_u32 s{sT}, s{sT}, s{sT2}')
    a(f's_bfe_u32 s{sT2}, s{sJ}, 0x10003')
    a(f's_add_u32 s{sT}, s{sT}, s{sT2}')
    a(f's_mul_i32 s{sT}, s{sT}, 896')
    a(f'v_min_u32 v{vo2}, 55, v0')
    a(f'v_lshlrev_b32 v{vo2}, 4, v{vo2}')
    for hh in range(2):
        for e in range(8):
            a(f'buffer_load_dwordx4 {vr(vW+4*(8*hh+e),4)}, v{vo2}, {sr(sWO,4)}, s{sT} offen offset:{(e%2)*1792} nt')
            if e % 2 == 1:
                a(f's_add_u32 s{sT}, s{sT}, {3584 if e < 7 else 3584 + (256-16)*896}')
    a('s_waitcnt vmcnt(0)')
    stamp(a, cfg, 62)
    stamp_store(a, cfg, [(16, 62)], vt)
    for pr in range(8):
        r0 = vW + 4 * (2 * pr); r1 = vW + 4 * (2 * pr + 1)
        for d in range(4):
            a(f'v_perm_b32 v{vWp+8*pr+2*d}, v{r1+d}, v{r0+d}, s{S_SELLO}')
            a(f'v_perm_b32 v{vWp+8*pr+2*d+1}, v{r1+d}, v{r0+d}, s{S_SELHI}')
    a(f'v_lshlrev_b32 v{vo2}, 6, v0')
    a(f'v_lshrrev_b32 v{vo3}, 3, v0')
    a(f'v_lshlrev_b32 v{vo3}, 2, v{vo3}')
    a(f's_lshl_b32 s{sT}, s2, 13')
    a(f's_add_u32 s{sT}, s{sT}, {WS_O:#x}')
    a(f's_add_u32 s{sKq}, s{sT}, 4096')
    a(f's_lshl_b32 s{sT2}, s{sHead}, 12')
    a(f's_add_u32 s{sT2}, s{sT2}, {WS_ML:#x}')
    a(f's_mov_b32 s{sC}, {C_SCALE:#x}')
    a(f'v_lshrrev_b32 v{vTag}, 2, v0')
    a(f'v_lshlrev_b32 v{vTag}, 16, v{vTag}')
    a(f'v_and_b32 v{vt}, 3, v0')
    a(f'v_lshl_add_u32 v{vTag}, v{vt}, 4, v{vTag}')
    a(f's_lshl_b32 s72, s2, 6')
    a(f's_add_u32 s72, s72, {WS_Y:#x}')
    for c in range(1, 4):
        a(f's_add_u32 s{72+c}, s72, {c << 14}')
    for i in range(8):
        a(f'v_mov_b32 v{vCh+2*i+1}, s{S_TA if i % 2 == 0 else S_TB}')
    a('s_barrier')
    if cfg.get('s2delay'): a(f's_sleep {cfg["s2delay"]}')
    loads = [f'buffer_load_dwordx4 {vr(vML,4)}, v{vo2}, {sr(S_WS,4)}, s{sT2} offen sc1',
             f'buffer_load_dwordx4 {vr(vML+4,4)}, v{vo2}, {sr(S_WS,4)}, s{sT2} offen offset:16 sc1']
    for k in range(8):
        loads.append(f'buffer_load_dwordx4 {vr(vOq+4*k,4)}, v{vo1}, {sr(S_WS,4)}, s{[sT,sKq][k//4]} offen offset:{(k%4)*1024} sc1')
    poll(a, loads, [vML, vML + 4] + [vOq + 4 * k for k in range(8)], vt, sCnt, name='ps2', sleep=cfg.get('s2sleep', 1))
    stamp(a, cfg, 62)
    M = [vt, vt + 1]
    a(f'v_mov_b32 v{M[0]}, v{vML}')
    a(f'v_mov_b32 v{M[1]}, v{vML+2}')
    xlane_reduce(a, M, [vt + 2, vt + 3], 'v_max_f32', ['x1', 'x2', 'r4', 'r8', 'p16', 'p32'])
    for hh in range(2):
        a(f'v_sub_f32 v{vML+2*hh}, v{vML+2*hh}, v{M[hh]}')
        a(f'v_mul_f32 v{vML+2*hh}, s{sC}, v{vML+2*hh}')
    for hh in range(2):
        a(f'v_exp_f32 v{vML+2*hh}, v{vML+2*hh}')
    a('s_nop 0')
    for k in range(8):
        for hh in range(2):
            a(f'ds_bpermute_b32 v{vW+2*k+hh}, v{vo3}, v{vML+2*hh} offset:{32*k}')
    for hh in range(2):
        a(f'v_mul_f32 v{vacc+2+hh}, v{vML+2*hh}, v{vML+4+2*hh}')
    xlane_reduce(a, [vacc + 2, vacc + 3], [vt + 2, vt + 3], 'v_add_f32', ['x1', 'x2', 'r4'])
    a('s_waitcnt lgkmcnt(0)')
    for k in range(8):
        for hh in range(2):
            if k == 0: a(f'v_mul_f32 v{vacc+hh}, v{vW+2*k+hh}, v{vOq+4*k+2*hh}')
            else: a(f'v_fmac_f32 v{vacc+hh}, v{vW+2*k+hh}, v{vOq+4*k+2*hh}')
    a('s_nop 1')
    xlane_reduce(a, [vacc + i for i in range(4)], [vtmp + i for i in range(4)], 'v_add_f32', ['r8', 'p16', 'p32'])
    a(f'v_rcp_f32 v{vacc+2}, v{vacc+2}')
    a(f'v_rcp_f32 v{vacc+3}, v{vacc+3}')
    a('s_nop 0')
    for hh in range(2):
        a(f'v_mul_f32 v{vacc+hh}, v{vacc+hh}, v{vacc+2+hh}')
    a('s_nop 1')
    for hh in range(2):
        a(f'v_mov_b32_dpp v{vacc+2+hh}, v{vacc+hh} quad_perm:[1,0,3,2] row_mask:0xf bank_mask:0xf')
    for hh in range(2):
        a(f'v_cvt_pk_bf16_f32 v{vt+hh}, v{vacc+hh}, v{vacc+2+hh}')
    a('s_nop 0')
    for hh in range(2):
        for g in range(4):
            a(f'v_readlane_b32 s{sPk+4*hh+g}, v{vt+hh}, {2*g}')
    a('s_nop 1')
    for pr in range(8):
        for col in range(8):
            c0 = '0' if pr == 0 else f'v{vCh+2*col}'
            a(f'v_dot2_f32_bf16 v{vCh+2*col}, v{vWp+8*pr+col}, s{sPk+pr}, {c0}')
    a('s_mov_b32 exec_hi, 0x00ffffff')
    a('s_nop 1')
    for c in range(4):
        a(f'buffer_store_dwordx4 {vr(vCh+4*c,4)}, v{vTag}, {sr(S_WS,4)}, s{72+c} offen sc1')
    a('s_mov_b64 exec, -1')
    stamp(a, cfg, 64)
    if cfg.get('b4', 1): a('s_barrier')
    stamp_store(a, cfg, [(2, 62), (3, 64)], vt)
    a('s_endpgm')
    return V.n


def gen_auxB(a, cfg):
    V = Regs(1, 256)
    vt = V.alloc(8, 4)
    vX = V.alloc(8, 4)
    vacc = V.alloc(8, 4)
    vtmp = V.alloc(8, 4)
    vb = V.alloc(4, 4)
    vo1 = V.alloc(); vo2 = V.alloc(); vo3 = V.alloc(); vg = V.alloc()
    vCh = V.alloc(16, 4)
    vW = V.alloc(64, 4)
    vD = V.alloc(32, 4)
    vDp = V.alloc(32, 4)
    vY = vW
    sX = 4; sWF = 8; sWD = 48; sDBG = 64; sGW = 68; sOUT = 72
    sT = 52; sT2 = 53; sKq = 54; sJ = 55; sCnt = 56; sCb = 57; sG = 62; sG1 = 63
    sPk = 80
    vm = VM(a)
    srd(a, sDBG, P_DBG, 256)
    Lnt = a.newlabel('notag')
    a(f'v_mov_b32 v{vo3}, 0')
    a('s_cmp_lg_u32 s2, 0')
    a(f's_cbranch_scc1 {Lnt}')
    a(f's_memrealtime s[{sG}:{sG1}]')
    a('s_waitcnt lgkmcnt(0)')
    a(f's_or_b32 s{sG}, s{sG}, 1')
    a(f'v_mov_b32 v{vo2}, s{sG}')
    a('s_mov_b64 exec, 1')
    a(f'buffer_store_dword v{vo2}, v{vo3}, {sr(sDBG,4)}, 0 offen sc1')
    a('s_mov_b64 exec, -1')
    a.label(Lnt)
    a('s_barrier')
    srd(a, sX, P_X, 896)
    a(f's_bitcmp1_b32 s2, 0')
    a(f's_cselect_b32 s{sWF}, s{P_WU}, s{P_WG}')
    a(f's_cselect_b32 s{sWF+1}, s{P_WU+1}, s{P_WG+1}')
    a(f's_mov_b32 s{sWF+2}, {448*3584:#x}')
    a(f's_mov_b32 s{sWF+3}, 0x00020000')
    srd(a, sWD, P_WD, 1792 * 896)
    srd(a, sGW, P_GW, 896)
    srd(a, sOUT, P_OUT, 896)
    Lnoffn = a.newlabel('noffn'); Lnofin = a.newlabel('nofin')
    a('s_barrier')
    a(f'ds_read_b32 v{vo2}, v{vo3} offset:{LDS_TAG}')
    a('s_waitcnt lgkmcnt(0)')
    a(f'v_readfirstlane_b32 s{S_TA}, v{vo2}')
    tagB(a)
    for i in range(8):
        a(f'v_mov_b32 v{vCh+2*i+1}, s{S_TA if i % 2 == 0 else S_TB}')
    a(f's_cmp_ge_u32 s2, {0 if cfg.get("noffn") else 224}')
    a(f's_cbranch_scc1 {Lnoffn}')
    a(f's_lshr_b32 s{sKq}, s2, 1')
    a(f's_and_b32 s{sKq}, s{sKq}, 3')
    a(f's_lshr_b32 s{sCb}, s2, 3')
    a(f's_lshl_b32 s{sCb}, s{sCb}, 7')
    lw = ksplit_loads(a, vm, sX, sWF, 3584, sKq, sCb, vX, vW, vo1, vo2, vo3, sT, sT2)
    a(f'v_min_u32 v{vo2}, 55, v0')
    a(f'v_lshlrev_b32 v{vo2}, 4, v{vo2}')
    a(f's_lshr_b32 s{sT}, s2, 2')
    a(f's_lshl_b32 s{sT}, s{sT}, 5')
    a(f's_and_b32 s{sT2}, s2, 3')
    a(f's_lshl_b32 s{sT2}, s{sT2}, 1')
    a(f's_add_u32 s{sT}, s{sT}, s{sT2}')
    a(f's_mul_i32 s{sT}, s{sT}, 896')
    for e in range(8):
        vm.issue(f'buffer_load_dwordx4 {vr(vD+4*e,4)}, v{vo2}, {sr(sWD,4)}, s{sT} offen offset:{(e%2)*896} nt')
        if e % 2 == 1 and e < 7: a(f's_add_u32 s{sT}, s{sT}, {8*896}')
    gemv_pairs(a, vm, [vW + 4 * k for k in range(14)], 14, 4, vX, [vacc + i for i in range(8)], [vtmp + i for i in range(8)], lw)
    xlane_reduce(a, [vacc + i for i in range(8)], [vtmp + i for i in range(8)], 'v_add_f32', ['r8', 'p16', 'p32'])
    stamp(a, cfg, 90)
    for i in range(8):
        a(f'v_mov_b32 v{vCh+2*i}, v{vacc+i}')
    a(f's_and_b32 s{sT}, s2, 1')
    a(f's_lshl_b32 s{sT}, s{sT}, 2')
    a(f's_add_u32 s{sT}, s{sT}, s{sKq}')
    a(f's_lshl_b32 s{sT}, s{sT}, 6')
    a(f's_lshl_b32 s{sT2}, s{sCb}, 5')
    a(f's_add_u32 s{sT}, s{sT}, s{sT2}')
    a(f's_add_u32 s{sT}, s{sT}, {WS_GP:#x}')
    a(f'v_lshrrev_b32 v{vo1}, 2, v0')
    a(f'v_lshlrev_b32 v{vo1}, 11, v{vo1}')
    a(f'v_and_b32 v{vo2}, 3, v0')
    a(f'v_lshl_add_u32 v{vo1}, v{vo2}, 4, v{vo1}')
    a('s_mov_b64 exec, 0xff')
    for c in range(4):
        a(f'buffer_store_dwordx4 {vr(vCh+4*c,4)}, v{vo1}, {sr(S_WS,4)}, s{sT} offen offset:{512*c} sc1')
    a('s_mov_b64 exec, -1')
    a('s_waitcnt vmcnt(0)')
    for pr in range(4):
        r0 = vD + 4 * (2 * pr); r1 = vD + 4 * (2 * pr + 1)
        for d in range(4):
            a(f'v_perm_b32 v{vDp+8*pr+2*d}, v{r1+d}, v{r0+d}, s{S_SELLO}')
            a(f'v_perm_b32 v{vDp+8*pr+2*d+1}, v{r1+d}, v{r0+d}, s{S_SELHI}')
    a(f'v_lshlrev_b32 v{vo1}, 4, v0')
    a(f's_lshl_b32 s{sT}, s2, 9')
    a(f's_add_u32 s{sT}, s{sT}, {WS_GP:#x}')
    a('s_mov_b32 exec_hi, 0')
    poll(a, [f'buffer_load_dwordx4 {vr(vacc,4)}, v{vo1}, {sr(S_WS,4)}, s{sT} offen sc1'], [vacc], vt, sCnt, name='pgp', sleep=cfg.get('gpsleep', 8))
    stamp(a, cfg, 92)
    a(f'v_mov_b32 v{vacc+1}, v{vacc+2}')
    xlane_reduce(a, [vacc, vacc + 1], None, 'v_add_f32', ['r4', 'r8'])
    for i in range(2):
        rnd_bf16(a, vacc + i, vacc + i, vtmp + i)
    for i in range(2):
        a(f'v_mov_b32 v{vacc+4+i}, v{vacc+i}')
    a('s_nop 1')
    for i in range(2):
        a(f'v_permlane16_swap_b32 v{vacc+i}, v{vacc+4+i}')
    a(f's_mov_b32 s{sT}, {f2u(0.044715):#x}')
    a(f's_mov_b32 s{sT2}, {f2u(-2*0.7978845608028654*1.4426950408889634):#x}')
    for i in range(2):
        x = vacc + i; t = vtmp + i
        a(f'v_mul_f32 v{t}, v{x}, v{x}')
        a(f'v_mul_f32 v{t}, v{t}, v{x}')
        a(f'v_fma_f32 v{t}, v{t}, s{sT}, v{x}')
        a(f'v_mul_f32 v{t}, s{sT2}, v{t}')
    for i in range(2):
        a(f'v_exp_f32 v{vtmp+i}, v{vtmp+i}')
    a('s_nop 0')
    for i in range(2):
        a(f'v_add_f32 v{vtmp+i}, 1.0, v{vtmp+i}')
    for i in range(2):
        a(f'v_rcp_f32 v{vtmp+i}, v{vtmp+i}')
    a('s_nop 0')
    for i in range(2):
        a(f'v_mul_f32 v{vacc+i}, v{vacc+i}, v{vtmp+i}')
    for i in range(2):
        rnd_bf16(a, vacc + i, vacc + i, vtmp + i)
    for i in range(2):
        a(f'v_mul_f32 v{vacc+i}, v{vacc+i}, v{vacc+4+i}')
    a(f'v_cvt_pk_bf16_f32 v{vt}, v{vacc}, v{vacc+1}')
    a('s_nop 0')
    for pr in range(4):
        a(f'v_readlane_b32 s{sPk+pr}, v{vt}, {pr}')
    a(f'v_lshrrev_b32 v{vo1}, 2, v0')
    a(f'v_lshlrev_b32 v{vo1}, 16, v{vo1}')
    a(f'v_and_b32 v{vo2}, 3, v0')
    a(f'v_lshl_add_u32 v{vo1}, v{vo2}, 4, v{vo1}')
    a(f's_lshl_b32 s84, s2, 6')
    a(f's_add_u32 s84, s84, {WS_B:#x}')
    for c in range(1, 4):
        a(f's_add_u32 s{84+c}, s84, {c << 14}')
    for pr in range(4):
        for col in range(8):
            c0 = '0' if pr == 0 else f'v{vCh+2*col}'
            a(f'v_dot2_f32_bf16 v{vCh+2*col}, v{vDp+8*pr+col}, s{sPk+pr}, {c0}')
    a('s_mov_b32 exec_hi, 0x00ffffff')
    a('s_nop 1')
    for c in range(4):
        if cfg.get('nobst'): continue
        a(f'buffer_store_dwordx4 {vr(vCh+4*c,4)}, v{vo1}, {sr(S_WS,4)}, s{84+c} offen {cfg.get("bsflag", "sc1")}')
    a('s_mov_b64 exec, -1')
    stamp(a, cfg, 94)
    stamp_store(a, cfg, [(13, 90), (14, 92), (15, 94)], vt)
    a.label(Lnoffn)
    a(f's_cmp_lt_u32 s2, {FIN0}')
    a(f's_cbranch_scc1 {Lnofin}')
    a(f's_sub_u32 s{sJ}, s2, {FIN0}')
    a(f'v_lshlrev_b32 v{vo1}, 4, v0')
    a(f'buffer_load_dwordx4 {vr(vX,4)}, v{vo1}, {sr(sX,4)}, 0 offen')
    a(f'buffer_load_dwordx4 {vr(vX+4,4)}, v{vo1}, {sr(sGW,4)}, 0 offen')
    a('s_waitcnt vmcnt(0)')
    for d in range(4):
        a(f'v_lshlrev_b32 v{vt}, 16, v{vX+d}')
        a(f'v_lshlrev_b32 v{vt+1}, 16, v{vX+4+d}')
        a(f'v_and_b32 v{vt+2}, 0xffff0000, v{vX+d}')
        a(f'v_and_b32 v{vt+3}, 0xffff0000, v{vX+4+d}')
        a(f'v_mul_f32 v{vt}, v{vt}, v{vt+1}')
        a(f'v_mul_f32 v{vt+2}, v{vt+2}, v{vt+3}')
        a(f'v_cvt_pk_bf16_f32 v{vt}, v{vt}, v{vt+2}')
        a(f'v_lshlrev_b32 v{vt+1}, 16, v{vt}')
        a(f'v_and_b32 v{vt+2}, 0xffff0000, v{vt}')
        if d == 0:
            a(f'v_add_f32 v{vg}, v{vt+1}, v{vt+2}')
        else:
            a(f'v_add_f32 v{vg}, v{vg}, v{vt+1}')
            a(f'v_add_f32 v{vg}, v{vg}, v{vt+2}')
    xlane_reduce(a, [vg], [vt], 'v_add_f32', ['x1', 'x2', 'r4', 'r8', 'p16', 'p32'])
    rnd_bf16(a, vg, vg, vt)
    a(f'v_mul_f32 v{vg}, {f2u(-1.4426950408889634):#x}, v{vg}')
    a(f'v_exp_f32 v{vg}, v{vg}')
    a('s_nop 0')
    a(f'v_add_f32 v{vg}, 1.0, v{vg}')
    a(f'v_rcp_f32 v{vg}, v{vg}')
    a('s_nop 0')
    rnd_bf16(a, vg, vg, vt)
    a(f'v_sub_f32 v{vt+1}, 1.0, v{vg}')
    rnd_bf16(a, vt + 1, vt + 1, vt)
    a('s_nop 0')
    a(f'v_readfirstlane_b32 s{sG}, v{vg}')
    a(f'v_readfirstlane_b32 s{sG1}, v{vt+1}')
    def gather(base, n, name, sleep):
        a(f's_lshl_b32 s{sT}, s{sJ}, 14')
        a(f's_add_u32 s{sT}, s{sT}, {base:#x}')
        for q in range(1, 4):
            a(f's_add_u32 s{80+q}, s{sT}, {4096*q}')
        return [f'buffer_load_dwordx4 {vr(vY+4*k,4)}, v{vo1}, {sr(S_WS,4)}, s{sT if k < 4 else 80 + k//4} offen offset:{(k%4)*1024} {cfg.get("bflag", "sc1") if name == "pb" else cfg.get("yflag", "sc1")}' for k in range(n)]
    def sumup(dst, n):
        for e in range(2):
            a(f'v_add_f32 v{dst+e}, v{vY+2*e}, v{vY+4+2*e}')
            a(f'v_add_f32 v{dst+2+e}, v{vY+8+2*e}, v{vY+12+2*e}')
        for k in range(4, n):
            for e in range(2):
                d = dst + e + 2 * (k & 1)
                a(f'v_add_f32 v{d}, v{d}, v{vY+4*k+2*e}')
        for e in range(2):
            a(f'v_add_f32 v{dst+e}, v{dst+e}, v{dst+2+e}')
        xlane_reduce(a, [dst, dst + 1], [vtmp, vtmp + 1], 'v_add_f32', ['r4', 'r8', 'p16', 'p32'])
    LATE = cfg.get('pblate', 1)
    if LATE: a('s_barrier')
    loads = gather(WS_B, 14, 'pb', 8)
    if not (cfg.get('nobst') or cfg.get('noffn') or cfg.get('nopb')):
        poll(a, loads, [vY + 4 * k for k in range(14)], vt, sCnt, name='pb', sleep=cfg.get('bsleep', 16))
    sumup(vb, 14)
    for i in range(2):
        rnd_bf16(a, vb + i, vb + i, vtmp + i)
        a(f'v_mul_f32 v{vb+i}, s{sG1}, v{vb+i}')
        rnd_bf16(a, vb + i, vb + i, vtmp + i)
    stamp(a, cfg, 76)
    stamp_store(a, cfg, [(10, 76)], vt)
    loads = gather(WS_Y, 16, 'py', 1)
    a(f'v_lshlrev_b32 v{vo2}, 4, v0')
    a(f's_lshr_b32 s{sT2}, s{sJ}, 2')
    a(f's_lshl_b32 s{sT2}, s{sT2}, 6')
    a(f's_and_b32 s{sKq}, s{sJ}, 3')
    a(f's_lshl_b32 s{sKq}, s{sKq}, 2')
    a(f's_add_u32 s{sT2}, s{sT2}, s{sKq}')
    if not LATE: a('s_barrier')
    if cfg.get('b4', 1): a('s_barrier')
    poll(a, loads, [vY + 4 * k for k in range(16)], vt, sCnt, name='py', sleep=cfg.get('ysleep', 1))
    sumup(vacc, 16)
    for i in range(2):
        rnd_bf16(a, vacc + i, vacc + i, vtmp + i)
        a(f'v_mul_f32 v{vacc+i}, s{sG}, v{vacc+i}')
        rnd_bf16(a, vacc + i, vacc + i, vtmp + i)
        a(f'v_add_f32 v{vacc+i}, v{vacc+i}, v{vb+i}')
    a(f'v_cvt_pk_bf16_f32 v{vt}, v{vacc}, v{vacc+1}')
    a('s_mov_b64 exec, 15')
    a(f'buffer_store_dword v{vt}, v{vo2}, {sr(sOUT,4)}, s{sT2} offen')
    a('s_mov_b64 exec, -1')
    stamp(a, cfg, 76)
    stamp_store(a, cfg, [(6, 76)], vt + 2)
    a('s_endpgm')
    a.label(Lnofin)
    a('s_barrier')
    a('s_endpgm')
    return V.n


def gen(cfg):
    a = Asm()
    a.raw(kernel_header(NAME))
    a('s_cmp_ge_u32 s2, 256')
    a('s_cbranch_scc1 L_end')
    a('s_load_dwordx16 s[16:31], s[0:1], 0')
    a('s_load_dwordx8 s[32:39], s[0:1], 64')
    a('s_load_dwordx2 s[40:41], s[0:1], 96')
    a('v_lshrrev_b32 v1, 6, v0')
    a('v_and_b32 v0, 63, v0')
    a(f'v_readfirstlane_b32 s{S_WAVE}, v1')
    a(f's_mov_b32 s{S_SELLO}, 0x05040100')
    a(f's_mov_b32 s{S_SELHI}, 0x07060302')
    a('s_waitcnt lgkmcnt(0)')
    srd(a, S_WS, P_WS, WS_SIZE)
    a(f's_cmp_eq_u32 s{S_WAVE}, 2')
    a('s_cbranch_scc1 L_auxA')
    a(f's_cmp_eq_u32 s{S_WAVE}, 3')
    a('s_cbranch_scc1 L_auxB')
    n0 = gen_stream(a, cfg)
    a.label('L_auxA')
    n1 = gen_auxA(a, cfg)
    a.label('L_auxB')
    n2 = gen_auxB(a, cfg)
    a.label('L_end')
    a('s_endpgm')
    nv = max(n0, n1, n2)
    acc_off = (nv + 3) // 4 * 4
    npre = cfg.get('npre', 4)
    print('vgprs', n0, n1, n2, 'agprs', 64 * npre, file=sys.stderr)
    hdr = open('gated_mix__gqa_block_cached__geglu_ffn__decode.s.ref').read().split('; @launch')[0]
    lds = cfg.get('lds', 2048)
    hdr += f'; @launch grid=(256,1,1) block=(256,1,1) lds={lds}\n.amdgcn_target "amdgcn-amd-amdhsa--gfx950"\n'
    return hdr + a.text() + kernel_desc(NAME, acc_off + 64 * npre, 102, acc_off)


if __name__ == '__main__':
    cfg = json.loads(sys.argv[2]) if len(sys.argv) > 2 else {}
    open(sys.argv[1], 'w').write(gen(cfg))
```

```python
import sys, struct, json
from asmlib import *

def f2u(f): return struct.unpack('<I', struct.pack('<f', f))[0]
C_SCALE = f2u(1.4426950408889634 / 16.0)

WS_QP = 0x0
WS_TK = 0x4e0000
TK_STRIDE = 4352
WS_PROF = 0x24000
WS_GP = 0x40000
WS_IT = 0x80000
WS_ML = 0x60000
WS_O = 0x100000
WS_Y = 0x300000
WS_B = 0x400000
WS_SIZE = 0x500000

NAME = 'gated_mix__gqa_block_cached__geglu_ffn__decode_kernel'
P_X, P_K, P_V, P_WQ, P_WO, P_BX, P_WG, P_WU, P_WD, P_GW, P_OUT, P_DBG, P_WS = [16 + 2 * i for i in range(13)]
S_WS = 12
S_WAVE = 3
S_SELLO = 60; S_SELHI = 61
S_TA = 88; S_TB = 89
POLL_MAX = 1 << 14
FIN0 = 200
INVALID = 0x20000000
LDS_TAG = 1024


class VM:
    def __init__(self, a):
        self.a = a; self.n = 0
    def issue(self, s):
        self.a(s); self.n += 1
        return self.n - 1
    def wait(self, idx):
        k = self.n - idx - 1
        assert 0 <= k <= 63
        self.a(f's_waitcnt vmcnt({k})')


def srd(a, d, p, nbytes):
    a(f's_mov_b32 s{d}, s{p}')
    a(f's_mov_b32 s{d+1}, s{p+1}')
    a(f's_mov_b32 s{d+2}, {nbytes:#x}')
    a(f's_mov_b32 s{d+3}, 0x00020000')


def dpp(op, d, s0, s1, ctrl):
    return f'{op}_dpp v{d}, v{s0}, v{s1} {ctrl} row_mask:0xf bank_mask:0xf'


def xlane_reduce(a, regs, tmps, op, steps):
    n = len(regs)
    for st in steps:
        if st in ('x1', 'x2', 'r4', 'r8'):
            ctrl = {'x1': 'quad_perm:[1,0,3,2]', 'x2': 'quad_perm:[2,3,0,1]', 'r4': 'row_ror:4', 'r8': 'row_ror:8'}[st]
            if n < 3: a('s_nop 1')
            for r in regs:
                a(dpp(op, r, r, r, ctrl))
        else:
            ins = 'v_permlane16_swap_b32' if st == 'p16' else 'v_permlane32_swap_b32'
            for r, t in zip(regs, tmps):
                a(f'v_mov_b32 v{t}, v{r}')
            a('s_nop 1')
            for r, t in zip(regs, tmps):
                a(f'{ins} v{r}, v{t}')
            if n < 2: a('s_nop 0')
            for r, t in zip(regs, tmps):
                a(f'{op} v{r}, v{r}, v{t}')


def tagB(a):
    a(f's_mul_i32 s{S_TB}, s{S_TA}, 0x9e3779b1')
    a(f's_add_u32 s{S_TB}, s{S_TB}, 0x7f4a7c15')


def poll(a, loads, chunks, vt, scnt, name='poll', sleep=1):
    L = a.newlabel(name); D = a.newlabel(name + '_done')
    a(f's_mov_b32 s{scnt}, {POLL_MAX}')
    a.label(L)
    for l in loads: a(l)
    n = len(chunks)
    for i, c in enumerate(chunks):
        if i % 4 == 0:
            a(f's_waitcnt vmcnt({max(0, n - i - 4)})')
        a(f'v_xor_b32 v{vt+1}, s{S_TA}, v{c+1}')
        a(f'v_xor_b32 v{vt+2}, s{S_TB}, v{c+3}')
        if i == 0: a(f'v_or_b32 v{vt}, v{vt+1}, v{vt+2}')
        else: a(f'v_or3_b32 v{vt}, v{vt}, v{vt+1}, v{vt+2}')
    a(f'v_cmp_ne_u32 vcc, 0, v{vt}')
    a('s_mov_b64 exec, vcc')
    a(f's_cbranch_execz {D}')
    a(f's_sub_u32 s{scnt}, s{scnt}, 1')
    a(f's_cbranch_scc1 {D}')
    if sleep: a(f's_sleep {sleep}')
    a(f's_branch {L}')
    a.label(D)
    a('s_mov_b64 exec, -1')


def mkchunks(a, dst, vals):
    for i, v in enumerate(vals):
        a(f'v_mov_b32 v{dst+2*i}, v{v}')
        a(f'v_mov_b32 v{dst+2*i+1}, s{S_TA if i % 2 == 0 else S_TB}')


def stamp(a, cfg, sreg):
    if cfg.get('prof'): a(f's_memrealtime s[{sreg}:{sreg+1}]')

def stamp_store(a, cfg, pairs, vt):
    if not cfg.get('prof'): return
    a(f's_lshl_b32 s78, s2, 7')
    a(f's_add_u32 s78, s78, {WS_PROF:#x}')
    a('s_waitcnt lgkmcnt(0)')
    a(f'v_mov_b32 v{vt+1}, 0')
    for slot, sreg in pairs:
        a(f'v_mov_b32 v{vt}, s{sreg}')
        a(f'buffer_store_dword v{vt}, v{vt+1}, s[{S_WS}:{S_WS+3}], s78 offen offset:{slot*4}')


def gen_stream(a, cfg):
    D = 2
    NPRE = cfg.get('npre', 4)
    NSTAT = cfg.get('nstat', 56)
    DYN = NSTAT < 64
    flags = 'nt'
    V = Regs(1, 256)
    vKoff = V.alloc(); vVoff = V.alloc()
    vm = V.alloc(); vl = V.alloc(); vt0 = V.alloc(); vt1 = V.alloc(); valpha = V.alloc(); vmc = V.alloc()
    vc = V.alloc(); vg = V.alloc(); vAt = V.alloc()
    vTk = [V.alloc(), V.alloc()]
    vIt = V.alloc()
    vmask = V.alloc(4, 4)
    vS = V.alloc(4, 4)
    vP = V.alloc(4, 4)
    vacc = V.alloc(8, 4)
    vA = V.alloc(16, 4)
    vQ = V.alloc(32, 4)
    vKb = [V.alloc(32, 4) for _ in range(D)]
    vVb = [V.alloc(32, 4) for _ in range(D)]
    sK = 4; sVv = 8
    sOff = [44, 45]
    sEnd = 46; sC = 47; sTmp = 48; sBase = 49; sHead = 50; sSplit = 51; sT2 = 52
    sDyn = 53; sCtr = 54; sAt = 55; sTk = 56
    sNs = [42, 43]
    stride = 16384
    WGBYTES = NSTAT * 2 * 8192
    NDYN = (4096 - 64 * NSTAT) // 2
    srd(a, sK, P_K, 0x10000000)
    srd(a, sVv, P_V, 0x10000000)
    a(f's_lshr_b32 s{sHead}, s2, 5')
    a(f's_and_b32 s{sSplit}, s2, 31')
    BL = cfg.get('blk', 64)
    LB = BL.bit_length() - 1
    def kconst(k): return (k // BL) * BL * 524288 + (k % BL) * 16384
    a(f's_lshl_b32 s{sTmp}, s{S_WAVE}, 13')
    a(f's_lshl_b32 s{sDyn}, s{sHead}, 25')
    a(f's_add_u32 s{sDyn}, s{sDyn}, s{sTmp}')
    a(f's_lshl_b32 s{sCtr}, s{sHead}, 1')
    a(f's_add_u32 s{sCtr}, s{sCtr}, s{S_WAVE}')
    a(f's_mul_i32 s{sCtr}, s{sCtr}, {TK_STRIDE}')
    a(f's_add_u32 s{sCtr}, s{sCtr}, {WS_TK:#x}')
    assert BL == 64
    ROT = cfg.get('rot', 0); HROT = cfg.get('hrot', 0)
    sHrot = 46; sR0 = 57
    a(f's_lshl_b32 s{sBase}, s{sSplit}, {14 + LB}')
    a(f's_add_u32 s{sBase}, s{sBase}, s{sDyn}')
    a(f's_mul_i32 s{sHrot}, s{sHead}, {HROT}')
    a(f's_mul_i32 s{sR0}, s{sSplit}, {ROT}')
    a(f's_add_u32 s{sR0}, s{sR0}, s{sHrot}')
    def paddr(k):
        a(f's_add_u32 s{sTmp}, s{sR0}, {k}')
        a(f's_and_b32 s{sTmp}, s{sTmp}, 63')
        a(f's_lshl_b32 s{sTmp}, s{sTmp}, 14')
        a(f's_add_u32 s{sTmp}, s{sTmp}, s{sBase}')
    a(f's_mov_b32 s{sC}, {C_SCALE:#x}')
    for s_ in range(D):
        a(f's_mov_b32 s{sNs[s_]}, {NPRE + s_}')
    a(f'v_and_b32 v{vc}, 15, v0')
    a(f'v_lshrrev_b32 v{vg}, 4, v0')
    a(f'v_lshlrev_b32 v{vKoff}, 9, v{vc}')
    a(f'v_lshl_add_u32 v{vKoff}, v{vg}, 4, v{vKoff}')
    a(f'v_lshlrev_b32 v{vVoff}, 11, v{vg}')
    a(f'v_lshl_add_u32 v{vVoff}, v{vc}, 4, v{vVoff}')
    a(f'v_cmp_eq_u32 vcc, 0, v0')
    a(f'v_mov_b32 v{vt0}, 0x40000000')
    a(f's_mov_b32 s{sAt}, 0x40000000')
    a(f'v_cndmask_b32 v{vAt}, v{vt0}, 0, vcc')
    koffs = [j * 64 for j in range(8)]
    voffs = [i * 512 + hf * 256 for i in range(4) for hf in range(2)]
    def R(file, base, n): return f'{file}[{base}:{base+n-1}]'
    def issueK(file, base, so):
        for j in range(8):
            a(f'buffer_load_dwordx4 {R(file,base+4*j,4)}, v{vKoff}, {sr(sK,4)}, s{so} offen offset:{koffs[j]} {flags}')
    def issueV(file, base, so):
        for j in range(8):
            a(f'buffer_load_dwordx4 {R(file,base+4*j,4)}, v{vVoff}, {sr(sVv,4)}, s{so} offen offset:{voffs[j]} {flags}')
    FAKE = cfg.get('fakeat', 0)
    def issueAt(s):
        if DYN or FAKE:
            a(f'v_mov_b32 v{vTk[s]}, 1')
            a(f'buffer_atomic_add v{vTk[s]}, v{vAt}, {sr(S_WS,4)}, s{sAt} offen sc0')
    NA = 1 if (DYN or FAKE) else 0
    PST = [66 + 2 * i for i in range(11)] + [90 + 2 * i for i in range(6)]
    pst_n = [0]
    def pst():
        if cfg.get('prof'):
            r = PST[pst_n[0]]; pst_n[0] += 1
            a(f's_memrealtime s[{r}:{r+1}]')
    a('s_barrier')
    pst()
    seq = [('a', 64 * i, 64 * i + 32) for i in range(NPRE)] + [('v', vKb[s], vVb[s]) for s in range(D)]
    paddr(0)
    for i, (file, kb, vb) in enumerate(seq):
        ex1 = NA if (i - 1) >= NPRE else 0
        exi = NA if i >= NPRE else 0
        if i >= 2:
            a(f's_waitcnt vmcnt({8 + 16 + ex1})')
            pst()
        if file == 'v':
            s = i - NPRE
            a(f's_mov_b32 s{sOff[s]}, s{sTmp}')
            issueAt(s)
        issueK(file, kb, sTmp)
        if i >= 2:
            a(f's_waitcnt vmcnt({16 + ex1 + 8 + exi})')
            pst()
        issueV(file, vb, sTmp)
        paddr(i + 1)
        if i == 1:
            a(f'v_lshrrev_b32 v{vt1}, 2, v{vc}')
            a(f'v_and_b32 v{vt0}, 2, v0')
            a(f'v_lshlrev_b32 v{vt0}, 3, v{vt0}')
            a(f'v_mov_b32 v{vl}, 0xffff')
            a(f'v_lshlrev_b32 v{vt0}, v{vt0}, v{vl}')
            for j in range(4):
                a(f'v_cmp_eq_u32 vcc, {j}, v{vt1}')
                a('s_nop 1')
                a(f'v_cndmask_b32 v{vmask+j}, 0, v{vt0}, vcc')
            a(f'v_mov_b32 v{vm}, 0xf149f2ca')
            a(f'v_mov_b32 v{vl}, 0')
            for k in range(8):
                a(f'v_mov_b32 v{vacc+k}, 0')
    a(f'v_and_b32 v{vt0}, 1, v0')
    a(f'v_lshlrev_b32 v{vt0}, 9, v{vt0}')
    a(f'v_lshl_add_u32 v{vt0}, v{vg}, 4, v{vt0}')
    a(f'v_mov_b32 v{vt1}, 0')
    stamp(a, cfg, 62)
    a('s_barrier')
    for j in range(8):
        a(f'ds_read_b128 {vr(vQ+4*j,4)}, v{vt0} offset:{j*64}')
    a(f'ds_read_b32 v{vt1}, v{vt1} offset:{LDS_TAG}')
    a('s_waitcnt lgkmcnt(0)')
    a(f'v_readfirstlane_b32 s{S_TA}, v{vt1}')
    pst()

    def qk(file, kb):
        for j in range(8):
            cc = '0' if j == 0 else vr(vS, 4)
            a(f'v_mfma_f32_16x16x32_bf16 {vr(vS,4)}, {R(file,kb+4*j,4)}, {vr(vQ+4*j,4)}, {cc}')
    def softmax():
        a(f'v_cvt_pk_bf16_f32 v{vt0}, v{vS}, v{vS+1}')
        a(f'v_cvt_pk_bf16_f32 v{vt1}, v{vS+2}, v{vS+3}')
        a(f'v_lshlrev_b32 v{vS}, 16, v{vt0}')
        a(f'v_and_b32 v{vS+1}, 0xffff0000, v{vt0}')
        a(f'v_lshlrev_b32 v{vS+2}, 16, v{vt1}')
        a(f'v_and_b32 v{vS+3}, 0xffff0000, v{vt1}')
        a(f'v_max3_f32 v{vt0}, v{vS}, v{vS+1}, v{vm}')
        a(f'v_max3_f32 v{vt0}, v{vS+2}, v{vS+3}, v{vt0}')
        a(f'v_mov_b32 v{vt1}, v{vt0}')
        a('s_nop 1')
        a(f'v_permlane32_swap_b32 v{vt0}, v{vt1}')
        a(f'v_max_f32 v{vt0}, v{vt0}, v{vt1}')
        a(f'v_mov_b32 v{vt1}, v{vt0}')
        a('s_nop 1')
        a(f'v_permlane16_swap_b32 v{vt0}, v{vt1}')
        a(f'v_max_f32 v{vt0}, v{vt0}, v{vt1}')
        a(f'v_sub_f32 v{valpha}, v{vm}, v{vt0}')
        a(f'v_mul_f32 v{valpha}, s{sC}, v{valpha}')
        a(f'v_exp_f32 v{valpha}, v{valpha}')
        a(f'v_mov_b32 v{vm}, v{vt0}')
        a(f'v_mul_f32 v{vmc}, s{sC}, v{vt0}')
        for i in range(4):
            a(f'v_fma_f32 v{vP+i}, v{vS+i}, s{sC}, -v{vmc}')
        for i in range(4):
            a(f'v_exp_f32 v{vP+i}, v{vP+i}')
        a(f'v_mul_f32 v{vl}, v{vl}, v{valpha}')
        a(f'v_add_f32 v{vt0}, v{vP}, v{vP+1}')
        a(f'v_add_f32 v{vt1}, v{vP+2}, v{vP+3}')
        a(f'v_add_f32 v{vl}, v{vl}, v{vt0}')
        a(f'v_add_f32 v{vl}, v{vl}, v{vt1}')
        for i in range(8):
            qp = '[0,0,2,2]' if (i & 1) == 0 else '[1,1,3,3]'
            a(f'v_mul_f32_dpp v{vacc+i}, v{valpha}, v{vacc+i} quad_perm:{qp} row_mask:0xf bank_mask:0xf')
        for i in range(4):
            a(f'v_cvt_pk_bf16_f32 v{vP+i}, v{vP+i}, v{vP+i}')
        for i in range(4):
            for j in range(4):
                a(f'v_and_b32 v{vA+4*i+j}, v{vP+i}, v{vmask+j}')
    def pv(file, vb):
        for i in range(4):
            for hf in range(2):
                a(f'v_mfma_f32_16x16x32_bf16 {vr(vacc+4*hf,4)}, {vr(vA+4*i,4)}, {R(file,vb+4*(2*i+hf),4)}, {vr(vacc+4*hf,4)}')
    def body(s):
        a(f's_waitcnt vmcnt({24 + NA})')
        if DYN:
            a(f'v_readfirstlane_b32 s{sTk}, v{vTk[s]}')
        qk('v', vKb[s])
        a(f's_add_u32 s{sNs[s]}, s{sNs[s]}, 2')
        if DYN:
            a(f's_and_b32 s{sTmp}, s{sTk}, 31')
            a(f's_lshr_b32 s{sT2}, s{sTk}, 5')
            a(f's_add_u32 s{sT2}, s{sT2}, {NSTAT}')
            a(f's_cmp_ge_u32 s{sNs[s]}, {NSTAT}')
            a(f's_cselect_b32 s{sTmp}, s{sTmp}, s{sSplit}')
            a(f's_cselect_b32 s{sT2}, s{sT2}, s{sNs[s]}')
        else:
            a(f's_mov_b32 s{sTmp}, s{sSplit}')
            a(f's_mov_b32 s{sT2}, s{sNs[s]}')
        if ROT:
            a(f's_mul_i32 s{sOff[s]}, s{sTmp}, {ROT}')
            a(f's_add_u32 s{sOff[s]}, s{sOff[s]}, s{sT2}')
            a(f's_add_u32 s{sOff[s]}, s{sOff[s]}, s{sHrot}')
            a(f's_and_b32 s{sOff[s]}, s{sOff[s]}, 63')
        else:
            a(f's_and_b32 s{sOff[s]}, s{sT2}, 63')
        a(f's_lshl_b32 s{sOff[s]}, s{sOff[s]}, 14')
        a(f's_lshl_b32 s{sTmp}, s{sTmp}, 20')
        a(f's_add_u32 s{sOff[s]}, s{sOff[s]}, s{sTmp}')
        a(f's_add_u32 s{sOff[s]}, s{sOff[s]}, s{sDyn}')
        a(f's_cmp_ge_u32 s{sT2}, 64')
        a(f's_cselect_b32 s{sOff[s]}, {INVALID:#x}, s{sOff[s]}')
        if DYN:
            a(f's_cselect_b32 s{sAt}, 0x40000000, s{sCtr}')
            a(f's_cmp_lt_u32 s{sNs[s]}, {NSTAT - 2}')
            a(f's_cselect_b32 s{sAt}, 0x40000000, s{sAt}')
            issueAt(s)
        issueK('v', vKb[s], sOff[s])
        softmax()
        a(f's_waitcnt vmcnt({24 + 2*NA})')
        a('s_nop 0')
        pv('v', vVb[s])
        issueV('v', vVb[s], sOff[s])
    tagB(a)
    if NPRE > 0:
        for s in range(D):
            body(s); pst()
        for i in range(NPRE):
            qk('a', 64 * i)
            a('s_nop 7')
            softmax()
            a('s_nop 1')
            pv('a', 64 * i + 32)
            pst()
    Lloop = a.newlabel('st_loop'); Ldone = a.newlabel('st_done')
    if cfg.get('prof'):
        a('s_mov_b32 s57, 0')
        a(f'v_mov_b32 v{vIt}, 0')
        a('s_waitcnt lgkmcnt(0)')
        for k in range(pst_n[0]):
            a(f'v_writelane_b32 v{vIt}, s{PST[k]}, {40 + k}')
    a.label(Lloop)
    if cfg.get('prof'):
        a('s_memrealtime s[64:65]')
        a('s_mov_b32 m0, s57')
        a('s_waitcnt lgkmcnt(0)')
        a(f'v_writelane_b32 v{vIt}, s64, m0')
        a('s_add_u32 s57, s57, 1')
    for s in range(D):
        body(s)
        nx = (s + 1) % D
        a(f's_cmp_ge_u32 s{sOff[nx]}, {INVALID:#x}')
        if s == D - 1:
            a(f's_cbranch_scc0 {Lloop}')
        else:
            a(f's_cbranch_scc1 {Ldone}')
    a.label(Ldone)
    xlane_reduce(a, [vl], [vt0], 'v_add_f32', ['p32', 'p16'])
    a(f's_lshl_b32 s{sTmp}, s{sSplit}, 1')
    a(f's_add_u32 s{sTmp}, s{sTmp}, s{S_WAVE}')
    a(f's_lshl_b32 s{sT2}, s{sHead}, 6')
    a(f's_add_u32 s{sT2}, s{sT2}, s{sTmp}')
    a(f's_lshl_b32 s{sT2}, s{sT2}, 6')
    a(f's_add_u32 s{sT2}, s{sT2}, {WS_ML:#x}')
    a(f's_lshl_b32 s{sBase}, s{sHead}, 11')
    a(f's_add_u32 s{sBase}, s{sBase}, s{sTmp}')
    a(f's_lshl_b32 s{sBase}, s{sBase}, 7')
    a(f's_add_u32 s{sBase}, s{sBase}, {WS_O:#x}')
    a(f's_add_u32 s{sTmp}, s{sBase}, 0x10000')
    a(f's_add_u32 s{sDyn}, s{sBase}, 0x20000')
    a(f's_add_u32 s{sCtr}, s{sBase}, 0x30000')
    a(f'v_lshrrev_b32 v{vt1}, 1, v{vc}')
    a(f'v_lshlrev_b32 v{vt1}, 13, v{vt1}')
    a(f'v_lshl_add_u32 v{vt1}, v{vg}, 4, v{vt1}')
    a(f'v_and_b32 v{vt0}, 1, v{vc}')
    a(f'v_lshl_add_u32 v{vt1}, v{vt0}, 6, v{vt1}')
    a(f'v_cmp_eq_u32 vcc, 1, v{vt0}')
    a(f'v_mov_b32_dpp v{vP}, v{vm} quad_perm:[1,0,3,2] row_mask:0xf bank_mask:0xf')
    a(f'v_mov_b32_dpp v{vP+1}, v{vl} quad_perm:[1,0,3,2] row_mask:0xf bank_mask:0xf')
    a(f'v_mov_b32 v{vS+1}, s{S_TA}')
    a(f'v_mov_b32 v{vS+3}, s{S_TB}')
    a(f'v_cndmask_b32 v{vS}, v{vm}, v{vP+1}, vcc')
    a(f'v_cndmask_b32 v{vS+2}, v{vP}, v{vl}, vcc')
    mkchunks(a, vA, [vacc + i for i in range(8)])
    a(f'v_lshlrev_b32 v{vt0}, 4, v0')
    for i, so in enumerate([sBase, sTmp, sDyn, sCtr]):
        a(f'buffer_store_dwordx4 {vr(vA+4*i,4)}, v{vt1}, {sr(S_WS,4)}, s{so} offen sc1')
    a('s_mov_b64 exec, 15')
    a(f'buffer_store_dwordx4 {vr(vS,4)}, v{vt0}, {sr(S_WS,4)}, s{sT2} offen sc1')
    a('s_mov_b64 exec, -1')
    a(f'v_mov_b32 v{vt0}, 0')
    if cfg.get('prof'):
        a(f's_memrealtime s[58:59]')
    a('s_barrier')
    if cfg.get('prof'):
        a(f's_add_u32 s{sT2}, s{S_WAVE}, 4')
        a(f's_lshl_b32 s{sTmp}, s2, 5')
        a(f's_add_u32 s{sTmp}, s{sTmp}, s{sT2}')
        a(f's_lshl_b32 s{sTmp}, s{sTmp}, 2')
        a(f's_add_u32 s{sTmp}, s{sTmp}, {WS_PROF:#x}')
        a('s_waitcnt lgkmcnt(0)')
        a(f'v_mov_b32 v{vt1}, s58')
        a(f'buffer_store_dword v{vt1}, v{vt0}, {sr(S_WS,4)}, s{sTmp} offen')
        a(f'v_mov_b32 v{vt1}, s62')
        a(f'buffer_store_dword v{vt1}, v{vt0}, {sr(S_WS,4)}, s{sTmp} offen offset:28')
        a(f's_lshl_b32 s{sTmp}, s2, 1')
        a(f's_add_u32 s{sTmp}, s{sTmp}, s{S_WAVE}')
        a(f's_lshl_b32 s{sTmp}, s{sTmp}, 8')
        a(f's_add_u32 s{sTmp}, s{sTmp}, {WS_IT:#x}')
        a(f'v_lshlrev_b32 v{vt0}, 2, v0')
        a(f'buffer_store_dword v{vIt}, v{vt0}, {sr(S_WS,4)}, s{sTmp} offen')
    a('s_endpgm')
    return V.n


def gemv_pairs(a, vm, W, nrows, ndw, vX, acc, tmps, loads):
    for t in range(nrows // 2):
        if loads is not None:
            vm.wait(loads[2 * t + 1])
        for d in range(ndw):
            lo, hi = tmps[2 * d], tmps[2 * d + 1]
            a(f'v_perm_b32 v{lo}, v{W[2*t+1]+d}, v{W[2*t]+d}, s{S_SELLO}')
            a(f'v_perm_b32 v{hi}, v{W[2*t+1]+d}, v{W[2*t]+d}, s{S_SELHI}')
        for d in range(ndw):
            lo, hi = tmps[2 * d], tmps[2 * d + 1]
            c0 = '0' if t == 0 else f'v{acc[2*d]}'
            c1 = '0' if t == 0 else f'v{acc[2*d+1]}'
            a(f'v_dot2_f32_bf16 v{acc[2*d]}, v{lo}, v{vX+t}, {c0}')
            a(f'v_dot2_f32_bf16 v{acc[2*d+1]}, v{hi}, v{vX+t}, {c1}')
    a('s_nop 2')


def rnd_bf16(a, d, s, t):
    a(f'v_cvt_pk_bf16_f32 v{t}, v{s}, v{s}')
    a(f'v_lshlrev_b32 v{d}, 16, v{t}')


def ksplit_loads(a, vm, sX, sW, rowbytes, sKq, sColByte, vX, vW, vo1, vo2, vo3, sT, sT2):
    a(f'v_lshrrev_b32 v{vo1}, 3, v0')
    a(f'v_mul_u32_u24 v{vo2}, {14*rowbytes}, v{vo1}')
    a(f'v_and_b32 v{vo3}, 7, v0')
    a(f'v_lshl_add_u32 v{vo2}, v{vo3}, 4, v{vo2}')
    a(f's_mul_i32 s{sT2}, s{sKq}, {112*rowbytes}')
    a(f's_add_u32 s{sT2}, s{sT2}, s{sColByte}')
    lw = []
    for k in range(14):
        lw.append(vm.issue(f'buffer_load_dwordx4 {vr(vW+4*k,4)}, v{vo2}, {sr(sW,4)}, s{sT2} offen nt'))
        if k < 13: a(f's_add_u32 s{sT2}, s{sT2}, {rowbytes}')
        if k == 0:
            a(f'v_mul_u32_u24 v{vo3}, 28, v{vo1}')
            a(f's_mul_i32 s{sT}, s{sKq}, 224')
            vm.issue(f'buffer_load_dwordx4 {vr(vX,4)}, v{vo3}, {sr(sX,4)}, s{sT} offen')
            vm.issue(f'buffer_load_dwordx3 {vr(vX+4,3)}, v{vo3}, {sr(sX,4)}, s{sT} offen offset:16')
    return lw


def gen_auxA(a, cfg):
    V = Regs(1, 256)
    vt = V.alloc(8, 4)
    vX = V.alloc(8, 4)
    vacc = V.alloc(8, 4)
    vtmp = V.alloc(8, 4)
    vo1 = V.alloc(); vo2 = V.alloc(); vo3 = V.alloc(); vTag = V.alloc()
    vCh = V.alloc(16, 4)
    vW = V.alloc(64, 4)
    vWp = V.alloc(64, 4)
    vOq = V.alloc(32, 4)
    vML = V.alloc(8, 4)
    sX = 4; sWQ = 8; sDBG = 44; sWO = 48
    sT = 52; sT2 = 53; sHead = 54; sJ = 55; sCnt = 56; sC = 57; sKq = 58; sCb = 59
    sPk = 80
    vm = VM(a)
    stamp(a, cfg, 62)
    srd(a, sX, P_X, 896)
    srd(a, sWQ, P_WQ, 448 * 8192)
    a(f's_lshr_b32 s{sHead}, s2, 5')
    a(f's_and_b32 s{sJ}, s2, 31')
    a(f'v_mul_u32_u24 v{vo2}, {TK_STRIDE}, v0')
    a(f'v_mov_b32 v{vTag}, 0')
    a(f's_mul_i32 s{sT2}, s{sHead}, {2*TK_STRIDE}')
    a(f's_add_u32 s{sT2}, s{sT2}, {WS_TK:#x}')
    a(f's_cmp_lg_u32 s{sJ}, 0')
    a(f's_cselect_b32 s{sT2}, {WS_SIZE:#x}, s{sT2}')
    a('s_mov_b64 exec, 3')
    vm.issue(f'buffer_store_dword v{vTag}, v{vo2}, {sr(S_WS,4)}, s{sT2} offen sc1')
    a('s_mov_b64 exec, -1')
    a(f's_and_b32 s{sKq}, s2, 3')
    a(f's_lshr_b32 s{sCb}, s2, 2')
    a(f's_lshl_b32 s{sCb}, s{sCb}, 7')
    lw = ksplit_loads(a, vm, sX, sWQ, 8192, sKq, sCb, vX, vW, vo1, vo2, vo3, sT, sT2)
    a('s_barrier')
    srd(a, sDBG, P_DBG, 256)
    srd(a, sWO, P_WO, 4096 * 896)
    a(f'v_mov_b32 v{vo3}, 0')
    vm.issue(f'buffer_load_dword v{vTag}, v{vo3}, {sr(sDBG,4)}, 0 offen sc1')
    gemv_pairs(a, vm, [vW + 4 * k for k in range(14)], 14, 4, vX, [vacc + i for i in range(8)], [vtmp + i for i in range(8)], lw)
    xlane_reduce(a, [vacc + i for i in range(8)], [vtmp + i for i in range(8)], 'v_add_f32', ['r8', 'p16', 'p32'])
    stamp(a, cfg, 64)
    a(f'v_lshlrev_b32 v{vo1}, 4, v0')
    a(f's_lshl_b32 s{sT}, s{sHead}, 14')
    a(f's_lshl_b32 s{sT2}, s{sKq}, 12')
    a(f's_add_u32 s{sT2}, s{sT2}, s{sT}')
    a(f's_and_b32 s{sC}, s{sCb}, 0x380')
    a(f's_lshl_b32 s{sC}, s{sC}, 2')
    a(f's_add_u32 s{sT2}, s{sT2}, s{sC}')
    L = a.newlabel('ptag'); Dn = a.newlabel('ptag_done')
    a(f's_mov_b32 s{sCnt}, {POLL_MAX}')
    a.label(L)
    a('s_waitcnt vmcnt(0)')
    a(f'v_readfirstlane_b32 s{S_TA}, v{vTag}')
    a(f's_cmp_lg_u32 s{S_TA}, 0')
    a(f's_cbranch_scc1 {Dn}')
    a(f's_sub_u32 s{sCnt}, s{sCnt}, 1')
    a(f's_cbranch_scc1 {Dn}')
    a('s_sleep 1')
    a(f'buffer_load_dword v{vTag}, v{vo3}, {sr(sDBG,4)}, 0 offen sc1')
    a(f's_branch {L}')
    a.label(Dn)
    tagB(a)
    stamp(a, cfg, 66)
    mkchunks(a, vCh, [vacc + i for i in range(8)])
    a('s_mov_b64 exec, 0xff')
    for c in range(4):
        a(f'buffer_store_dwordx4 {vr(vCh+4*c,4)}, v{vo1}, {sr(S_WS,4)}, s{sT2} offen offset:{128*c} sc1')
    a('s_mov_b64 exec, -1')
    a(f'v_lshrrev_b32 v{vo2}, 5, v0')
    a(f'v_lshlrev_b32 v{vo2}, 7, v{vo2}')
    a(f'v_and_b32 v{vt}, 7, v0')
    a(f'v_lshl_add_u32 v{vo2}, v{vt}, 4, v{vo2}')
    a(f'v_bfe_u32 v{vt}, v0, 3, 2')
    a(f'v_lshl_add_u32 v{vo2}, v{vt}, 2, v{vo2}')
    for kq in range(1, 4):
        a(f's_add_u32 s{80+kq}, s{sT}, {4096*kq}')
    loads = []
    for kq in range(4):
        for i in range(4):
            so = sT if kq == 0 else 80 + kq
            loads.append(f'buffer_load_dwordx4 {vr(vW+4*(4*kq+i),4)}, v{vo1}, {sr(S_WS,4)}, s{so} offen offset:{i*1024} sc1')
    if cfg.get('qsleep'): a(f's_sleep {cfg["qsleep"]}')
    poll(a, loads, [vW + 4 * k for k in range(16)], vt, sCnt, name='pq')
    stamp(a, cfg, 68)
    for i in range(4):
        for e in (0, 2):
            a(f'v_add_f32 v{vW+4*i+e}, v{vW+4*i+e}, v{vW+4*(4+i)+e}')
            a(f'v_add_f32 v{vW+4*(8+i)+e}, v{vW+4*(8+i)+e}, v{vW+4*(12+i)+e}')
    for i in range(4):
        for e in (0, 2):
            a(f'v_add_f32 v{vW+4*i+e}, v{vW+4*i+e}, v{vW+4*(8+i)+e}')
    for i in range(4):
        a(f'v_cvt_pk_bf16_f32 v{vt+i}, v{vW+4*i}, v{vW+4*i+2}')
    for i in range(4):
        a(f'ds_write_b32 v{vo2}, v{vt+i} offset:{256*i}')
    a(f'ds_write_b32 v{vo3}, v{vTag} offset:{LDS_TAG}')
    a('s_waitcnt lgkmcnt(0)')
    a('s_barrier')
    stamp(a, cfg, 70)
    stamp_store(a, cfg, [(0, 62), (7, 64), (8, 66), (9, 68), (1, 70)], vt)
    a(f's_lshl_b32 s{sT}, s{sHead}, 9')
    a(f's_and_b32 s{sT2}, s{sJ}, 16')
    a(f's_lshl_b32 s{sT2}, s{sT2}, 3')
    a(f's_add_u32 s{sT}, s{sT}, s{sT2}')
    a(f's_and_b32 s{sT2}, s{sJ}, 7')
    a(f's_lshl_b32 s{sT2}, s{sT2}, 4')
    a(f's_add_u32 s{sT}, s{sT}, s{sT2}')
    a(f's_bfe_u32 s{sT2}, s{sJ}, 0x10003')
    a(f's_add_u32 s{sT}, s{sT}, s{sT2}')
    a(f's_mul_i32 s{sT}, s{sT}, 896')
    a(f'v_min_u32 v{vo2}, 55, v0')
    a(f'v_lshlrev_b32 v{vo2}, 4, v{vo2}')
    for hh in range(2):
        for e in range(8):
            a(f'buffer_load_dwordx4 {vr(vW+4*(8*hh+e),4)}, v{vo2}, {sr(sWO,4)}, s{sT} offen offset:{(e%2)*1792} nt')
            if e % 2 == 1:
                a(f's_add_u32 s{sT}, s{sT}, {3584 if e < 7 else 3584 + (256-16)*896}')
    a('s_waitcnt vmcnt(0)')
    stamp(a, cfg, 62)
    stamp_store(a, cfg, [(16, 62)], vt)
    for pr in range(8):
        r0 = vW + 4 * (2 * pr); r1 = vW + 4 * (2 * pr + 1)
        for d in range(4):
            a(f'v_perm_b32 v{vWp+8*pr+2*d}, v{r1+d}, v{r0+d}, s{S_SELLO}')
            a(f'v_perm_b32 v{vWp+8*pr+2*d+1}, v{r1+d}, v{r0+d}, s{S_SELHI}')
    a(f'v_lshlrev_b32 v{vo2}, 6, v0')
    a(f'v_lshrrev_b32 v{vo3}, 3, v0')
    a(f'v_lshlrev_b32 v{vo3}, 2, v{vo3}')
    a(f's_lshl_b32 s{sT}, s2, 13')
    a(f's_add_u32 s{sT}, s{sT}, {WS_O:#x}')
    a(f's_add_u32 s{sKq}, s{sT}, 4096')
    a(f's_lshl_b32 s{sT2}, s{sHead}, 12')
    a(f's_add_u32 s{sT2}, s{sT2}, {WS_ML:#x}')
    a(f's_mov_b32 s{sC}, {C_SCALE:#x}')
    a(f'v_lshrrev_b32 v{vTag}, 2, v0')
    a(f'v_lshlrev_b32 v{vTag}, 16, v{vTag}')
    a(f'v_and_b32 v{vt}, 3, v0')
    a(f'v_lshl_add_u32 v{vTag}, v{vt}, 4, v{vTag}')
    a(f's_lshl_b32 s72, s2, 6')
    a(f's_add_u32 s72, s72, {WS_Y:#x}')
    for c in range(1, 4):
        a(f's_add_u32 s{72+c}, s72, {c << 14}')
    for i in range(8):
        a(f'v_mov_b32 v{vCh+2*i+1}, s{S_TA if i % 2 == 0 else S_TB}')
    a('s_barrier')
    if cfg.get('s2delay'): a(f's_sleep {cfg["s2delay"]}')
    loads = [f'buffer_load_dwordx4 {vr(vML,4)}, v{vo2}, {sr(S_WS,4)}, s{sT2} offen sc1',
             f'buffer_load_dwordx4 {vr(vML+4,4)}, v{vo2}, {sr(S_WS,4)}, s{sT2} offen offset:16 sc1']
    for k in range(8):
        loads.append(f'buffer_load_dwordx4 {vr(vOq+4*k,4)}, v{vo1}, {sr(S_WS,4)}, s{[sT,sKq][k//4]} offen offset:{(k%4)*1024} sc1')
    poll(a, loads, [vML, vML + 4] + [vOq + 4 * k for k in range(8)], vt, sCnt, name='ps2', sleep=cfg.get('s2sleep', 1))
    stamp(a, cfg, 62)
    M = [vt, vt + 1]
    a(f'v_mov_b32 v{M[0]}, v{vML}')
    a(f'v_mov_b32 v{M[1]}, v{vML+2}')
    xlane_reduce(a, M, [vt + 2, vt + 3], 'v_max_f32', ['x1', 'x2', 'r4', 'r8', 'p16', 'p32'])
    for hh in range(2):
        a(f'v_sub_f32 v{vML+2*hh}, v{vML+2*hh}, v{M[hh]}')
        a(f'v_mul_f32 v{vML+2*hh}, s{sC}, v{vML+2*hh}')
    for hh in range(2):
        a(f'v_exp_f32 v{vML+2*hh}, v{vML+2*hh}')
    a('s_nop 0')
    for k in range(8):
        for hh in range(2):
            a(f'ds_bpermute_b32 v{vW+2*k+hh}, v{vo3}, v{vML+2*hh} offset:{32*k}')
    for hh in range(2):
        a(f'v_mul_f32 v{vacc+2+hh}, v{vML+2*hh}, v{vML+4+2*hh}')
    xlane_reduce(a, [vacc + 2, vacc + 3], [vt + 2, vt + 3], 'v_add_f32', ['x1', 'x2', 'r4'])
    a('s_waitcnt lgkmcnt(0)')
    for k in range(8):
        for hh in range(2):
            if k == 0: a(f'v_mul_f32 v{vacc+hh}, v{vW+2*k+hh}, v{vOq+4*k+2*hh}')
            else: a(f'v_fmac_f32 v{vacc+hh}, v{vW+2*k+hh}, v{vOq+4*k+2*hh}')
    a('s_nop 1')
    xlane_reduce(a, [vacc + i for i in range(4)], [vtmp + i for i in range(4)], 'v_add_f32', ['r8', 'p16', 'p32'])
    a(f'v_rcp_f32 v{vacc+2}, v{vacc+2}')
    a(f'v_rcp_f32 v{vacc+3}, v{vacc+3}')
    a('s_nop 0')
    for hh in range(2):
        a(f'v_mul_f32 v{vacc+hh}, v{vacc+hh}, v{vacc+2+hh}')
    a('s_nop 1')
    for hh in range(2):
        a(f'v_mov_b32_dpp v{vacc+2+hh}, v{vacc+hh} quad_perm:[1,0,3,2] row_mask:0xf bank_mask:0xf')
    for hh in range(2):
        a(f'v_cvt_pk_bf16_f32 v{vt+hh}, v{vacc+hh}, v{vacc+2+hh}')
    a('s_nop 0')
    for hh in range(2):
        for g in range(4):
            a(f'v_readlane_b32 s{sPk+4*hh+g}, v{vt+hh}, {2*g}')
    a('s_nop 1')
    for pr in range(8):
        for col in range(8):
            c0 = '0' if pr == 0 else f'v{vCh+2*col}'
            a(f'v_dot2_f32_bf16 v{vCh+2*col}, v{vWp+8*pr+col}, s{sPk+pr}, {c0}')
    a('s_mov_b32 exec_hi, 0x00ffffff')
    a('s_nop 1')
    for c in range(4):
        a(f'buffer_store_dwordx4 {vr(vCh+4*c,4)}, v{vTag}, {sr(S_WS,4)}, s{72+c} offen sc1')
    a('s_mov_b64 exec, -1')
    stamp(a, cfg, 64)
    if cfg.get('b4', 1): a('s_barrier')
    stamp_store(a, cfg, [(2, 62), (3, 64)], vt)
    a('s_endpgm')
    return V.n


def gen_auxB(a, cfg):
    V = Regs(1, 256)
    vt = V.alloc(8, 4)
    vX = V.alloc(8, 4)
    vacc = V.alloc(8, 4)
    vtmp = V.alloc(8, 4)
    vb = V.alloc(4, 4)
    vo1 = V.alloc(); vo2 = V.alloc(); vo3 = V.alloc(); vg = V.alloc()
    vCh = V.alloc(16, 4)
    vW = V.alloc(64, 4)
    vD = V.alloc(32, 4)
    vDp = V.alloc(32, 4)
    vY = vW
    sX = 4; sWF = 8; sWD = 48; sDBG = 64; sGW = 68; sOUT = 72
    sT = 52; sT2 = 53; sKq = 54; sJ = 55; sCnt = 56; sCb = 57; sG = 62; sG1 = 63
    sPk = 80
    vm = VM(a)
    srd(a, sDBG, P_DBG, 256)
    Lnt = a.newlabel('notag')
    a(f'v_mov_b32 v{vo3}, 0')
    a('s_cmp_lg_u32 s2, 0')
    a(f's_cbranch_scc1 {Lnt}')
    a(f's_memrealtime s[{sG}:{sG1}]')
    a('s_waitcnt lgkmcnt(0)')
    a(f's_or_b32 s{sG}, s{sG}, 1')
    a(f'v_mov_b32 v{vo2}, s{sG}')
    a('s_mov_b64 exec, 1')
    a(f'buffer_store_dword v{vo2}, v{vo3}, {sr(sDBG,4)}, 0 offen sc1')
    a('s_mov_b64 exec, -1')
    a.label(Lnt)
    a('s_barrier')
    srd(a, sX, P_X, 896)
    a(f's_bitcmp1_b32 s2, 0')
    a(f's_cselect_b32 s{sWF}, s{P_WU}, s{P_WG}')
    a(f's_cselect_b32 s{sWF+1}, s{P_WU+1}, s{P_WG+1}')
    a(f's_mov_b32 s{sWF+2}, {448*3584:#x}')
    a(f's_mov_b32 s{sWF+3}, 0x00020000')
    srd(a, sWD, P_WD, 1792 * 896)
    srd(a, sGW, P_GW, 896)
    srd(a, sOUT, P_OUT, 896)
    Lnoffn = a.newlabel('noffn'); Lnofin = a.newlabel('nofin')
    a('s_barrier')
    a(f'ds_read_b32 v{vo2}, v{vo3} offset:{LDS_TAG}')
    a('s_waitcnt lgkmcnt(0)')
    a(f'v_readfirstlane_b32 s{S_TA}, v{vo2}')
    tagB(a)
    for i in range(8):
        a(f'v_mov_b32 v{vCh+2*i+1}, s{S_TA if i % 2 == 0 else S_TB}')
    a(f's_cmp_ge_u32 s2, {0 if cfg.get("noffn") else 224}')
    a(f's_cbranch_scc1 {Lnoffn}')
    a(f's_lshr_b32 s{sKq}, s2, 1')
    a(f's_and_b32 s{sKq}, s{sKq}, 3')
    a(f's_lshr_b32 s{sCb}, s2, 3')
    a(f's_lshl_b32 s{sCb}, s{sCb}, 7')
    lw = ksplit_loads(a, vm, sX, sWF, 3584, sKq, sCb, vX, vW, vo1, vo2, vo3, sT, sT2)
    a(f'v_min_u32 v{vo2}, 55, v0')
    a(f'v_lshlrev_b32 v{vo2}, 4, v{vo2}')
    a(f's_lshr_b32 s{sT}, s2, 2')
    a(f's_lshl_b32 s{sT}, s{sT}, 5')
    a(f's_and_b32 s{sT2}, s2, 3')
    a(f's_lshl_b32 s{sT2}, s{sT2}, 1')
    a(f's_add_u32 s{sT}, s{sT}, s{sT2}')
    a(f's_mul_i32 s{sT}, s{sT}, 896')
    for e in range(8):
        vm.issue(f'buffer_load_dwordx4 {vr(vD+4*e,4)}, v{vo2}, {sr(sWD,4)}, s{sT} offen offset:{(e%2)*896} nt')
        if e % 2 == 1 and e < 7: a(f's_add_u32 s{sT}, s{sT}, {8*896}')
    gemv_pairs(a, vm, [vW + 4 * k for k in range(14)], 14, 4, vX, [vacc + i for i in range(8)], [vtmp + i for i in range(8)], lw)
    xlane_reduce(a, [vacc + i for i in range(8)], [vtmp + i for i in range(8)], 'v_add_f32', ['r8', 'p16', 'p32'])
    stamp(a, cfg, 90)
    for i in range(8):
        a(f'v_mov_b32 v{vCh+2*i}, v{vacc+i}')
    a(f's_and_b32 s{sT}, s2, 1')
    a(f's_lshl_b32 s{sT}, s{sT}, 2')
    a(f's_add_u32 s{sT}, s{sT}, s{sKq}')
    a(f's_lshl_b32 s{sT}, s{sT}, 6')
    a(f's_lshl_b32 s{sT2}, s{sCb}, 5')
    a(f's_add_u32 s{sT}, s{sT}, s{sT2}')
    a(f's_add_u32 s{sT}, s{sT}, {WS_GP:#x}')
    a(f'v_lshrrev_b32 v{vo1}, 2, v0')
    a(f'v_lshlrev_b32 v{vo1}, 11, v{vo1}')
    a(f'v_and_b32 v{vo2}, 3, v0')
    a(f'v_lshl_add_u32 v{vo1}, v{vo2}, 4, v{vo1}')
    a('s_mov_b64 exec, 0xff')
    for c in range(4):
        a(f'buffer_store_dwordx4 {vr(vCh+4*c,4)}, v{vo1}, {sr(S_WS,4)}, s{sT} offen offset:{512*c} sc1')
    a('s_mov_b64 exec, -1')
    a('s_waitcnt vmcnt(0)')
    for pr in range(4):
        r0 = vD + 4 * (2 * pr); r1 = vD + 4 * (2 * pr + 1)
        for d in range(4):
            a(f'v_perm_b32 v{vDp+8*pr+2*d}, v{r1+d}, v{r0+d}, s{S_SELLO}')
            a(f'v_perm_b32 v{vDp+8*pr+2*d+1}, v{r1+d}, v{r0+d}, s{S_SELHI}')
    a(f'v_lshlrev_b32 v{vo1}, 4, v0')
    a(f's_lshl_b32 s{sT}, s2, 9')
    a(f's_add_u32 s{sT}, s{sT}, {WS_GP:#x}')
    a('s_mov_b32 exec_hi, 0')
    poll(a, [f'buffer_load_dwordx4 {vr(vacc,4)}, v{vo1}, {sr(S_WS,4)}, s{sT} offen sc1'], [vacc], vt, sCnt, name='pgp', sleep=cfg.get('gpsleep', 8))
    stamp(a, cfg, 92)
    a(f'v_mov_b32 v{vacc+1}, v{vacc+2}')
    xlane_reduce(a, [vacc, vacc + 1], None, 'v_add_f32', ['r4', 'r8'])
    for i in range(2):
        rnd_bf16(a, vacc + i, vacc + i, vtmp + i)
    for i in range(2):
        a(f'v_mov_b32 v{vacc+4+i}, v{vacc+i}')
    a('s_nop 1')
    for i in range(2):
        a(f'v_permlane16_swap_b32 v{vacc+i}, v{vacc+4+i}')
    a(f's_mov_b32 s{sT}, {f2u(0.044715):#x}')
    a(f's_mov_b32 s{sT2}, {f2u(-2*0.7978845608028654*1.4426950408889634):#x}')
    for i in range(2):
        x = vacc + i; t = vtmp + i
        a(f'v_mul_f32 v{t}, v{x}, v{x}')
        a(f'v_mul_f32 v{t}, v{t}, v{x}')
        a(f'v_fma_f32 v{t}, v{t}, s{sT}, v{x}')
        a(f'v_mul_f32 v{t}, s{sT2}, v{t}')
    for i in range(2):
        a(f'v_exp_f32 v{vtmp+i}, v{vtmp+i}')
    a('s_nop 0')
    for i in range(2):
        a(f'v_add_f32 v{vtmp+i}, 1.0, v{vtmp+i}')
    for i in range(2):
        a(f'v_rcp_f32 v{vtmp+i}, v{vtmp+i}')
    a('s_nop 0')
    for i in range(2):
        a(f'v_mul_f32 v{vacc+i}, v{vacc+i}, v{vtmp+i}')
    for i in range(2):
        rnd_bf16(a, vacc + i, vacc + i, vtmp + i)
    for i in range(2):
        a(f'v_mul_f32 v{vacc+i}, v{vacc+i}, v{vacc+4+i}')
    a(f'v_cvt_pk_bf16_f32 v{vt}, v{vacc}, v{vacc+1}')
    a('s_nop 0')
    for pr in range(4):
        a(f'v_readlane_b32 s{sPk+pr}, v{vt}, {pr}')
    a(f'v_lshrrev_b32 v{vo1}, 2, v0')
    a(f'v_lshlrev_b32 v{vo1}, 16, v{vo1}')
    a(f'v_and_b32 v{vo2}, 3, v0')
    a(f'v_lshl_add_u32 v{vo1}, v{vo2}, 4, v{vo1}')
    a(f's_lshl_b32 s84, s2, 6')
    a(f's_add_u32 s84, s84, {WS_B:#x}')
    for c in range(1, 4):
        a(f's_add_u32 s{84+c}, s84, {c << 14}')
    for pr in range(4):
        for col in range(8):
            c0 = '0' if pr == 0 else f'v{vCh+2*col}'
            a(f'v_dot2_f32_bf16 v{vCh+2*col}, v{vDp+8*pr+col}, s{sPk+pr}, {c0}')
    a('s_mov_b32 exec_hi, 0x00ffffff')
    a('s_nop 1')
    for c in range(4):
        if cfg.get('nobst'): continue
        a(f'buffer_store_dwordx4 {vr(vCh+4*c,4)}, v{vo1}, {sr(S_WS,4)}, s{84+c} offen {cfg.get("bsflag", "sc1")}')
    a('s_mov_b64 exec, -1')
    stamp(a, cfg, 94)
    stamp_store(a, cfg, [(13, 90), (14, 92), (15, 94)], vt)
    a.label(Lnoffn)
    a(f's_cmp_lt_u32 s2, {FIN0}')
    a(f's_cbranch_scc1 {Lnofin}')
    a(f's_sub_u32 s{sJ}, s2, {FIN0}')
    a(f'v_lshlrev_b32 v{vo1}, 4, v0')
    a(f'buffer_load_dwordx4 {vr(vX,4)}, v{vo1}, {sr(sX,4)}, 0 offen')
    a(f'buffer_load_dwordx4 {vr(vX+4,4)}, v{vo1}, {sr(sGW,4)}, 0 offen')
    a('s_waitcnt vmcnt(0)')
    for d in range(4):
        a(f'v_lshlrev_b32 v{vt}, 16, v{vX+d}')
        a(f'v_lshlrev_b32 v{vt+1}, 16, v{vX+4+d}')
        a(f'v_and_b32 v{vt+2}, 0xffff0000, v{vX+d}')
        a(f'v_and_b32 v{vt+3}, 0xffff0000, v{vX+4+d}')
        a(f'v_mul_f32 v{vt}, v{vt}, v{vt+1}')
        a(f'v_mul_f32 v{vt+2}, v{vt+2}, v{vt+3}')
        a(f'v_cvt_pk_bf16_f32 v{vt}, v{vt}, v{vt+2}')
        a(f'v_lshlrev_b32 v{vt+1}, 16, v{vt}')
        a(f'v_and_b32 v{vt+2}, 0xffff0000, v{vt}')
        if d == 0:
            a(f'v_add_f32 v{vg}, v{vt+1}, v{vt+2}')
        else:
            a(f'v_add_f32 v{vg}, v{vg}, v{vt+1}')
            a(f'v_add_f32 v{vg}, v{vg}, v{vt+2}')
    xlane_reduce(a, [vg], [vt], 'v_add_f32', ['x1', 'x2', 'r4', 'r8', 'p16', 'p32'])
    rnd_bf16(a, vg, vg, vt)
    a(f'v_mul_f32 v{vg}, {f2u(-1.4426950408889634):#x}, v{vg}')
    a(f'v_exp_f32 v{vg}, v{vg}')
    a('s_nop 0')
    a(f'v_add_f32 v{vg}, 1.0, v{vg}')
    a(f'v_rcp_f32 v{vg}, v{vg}')
    a('s_nop 0')
    rnd_bf16(a, vg, vg, vt)
    a(f'v_sub_f32 v{vt+1}, 1.0, v{vg}')
    rnd_bf16(a, vt + 1, vt + 1, vt)
    a('s_nop 0')
    a(f'v_readfirstlane_b32 s{sG}, v{vg}')
    a(f'v_readfirstlane_b32 s{sG1}, v{vt+1}')
    def gather(base, n, name, sleep):
        a(f's_lshl_b32 s{sT}, s{sJ}, 14')
        a(f's_add_u32 s{sT}, s{sT}, {base:#x}')
        for q in range(1, 4):
            a(f's_add_u32 s{80+q}, s{sT}, {4096*q}')
        return [f'buffer_load_dwordx4 {vr(vY+4*k,4)}, v{vo1}, {sr(S_WS,4)}, s{sT if k < 4 else 80 + k//4} offen offset:{(k%4)*1024} {cfg.get("bflag", "sc1") if name == "pb" else cfg.get("yflag", "sc1")}' for k in range(n)]
    def sumup(dst, n):
        for e in range(2):
            a(f'v_add_f32 v{dst+e}, v{vY+2*e}, v{vY+4+2*e}')
            a(f'v_add_f32 v{dst+2+e}, v{vY+8+2*e}, v{vY+12+2*e}')
        for k in range(4, n):
            for e in range(2):
                d = dst + e + 2 * (k & 1)
                a(f'v_add_f32 v{d}, v{d}, v{vY+4*k+2*e}')
        for e in range(2):
            a(f'v_add_f32 v{dst+e}, v{dst+e}, v{dst+2+e}')
        xlane_reduce(a, [dst, dst + 1], [vtmp, vtmp + 1], 'v_add_f32', ['r4', 'r8', 'p16', 'p32'])
    LATE = cfg.get('pblate', 1)
    if LATE: a('s_barrier')
    loads = gather(WS_B, 14, 'pb', 8)
    if not (cfg.get('nobst') or cfg.get('noffn') or cfg.get('nopb')):
        poll(a, loads, [vY + 4 * k for k in range(14)], vt, sCnt, name='pb', sleep=cfg.get('bsleep', 16))
    sumup(vb, 14)
    for i in range(2):
        rnd_bf16(a, vb + i, vb + i, vtmp + i)
        a(f'v_mul_f32 v{vb+i}, s{sG1}, v{vb+i}')
        rnd_bf16(a, vb + i, vb + i, vtmp + i)
    stamp(a, cfg, 76)
    stamp_store(a, cfg, [(10, 76)], vt)
    loads = gather(WS_Y, 16, 'py', 1)
    a(f'v_lshlrev_b32 v{vo2}, 4, v0')
    a(f's_lshr_b32 s{sT2}, s{sJ}, 2')
    a(f's_lshl_b32 s{sT2}, s{sT2}, 6')
    a(f's_and_b32 s{sKq}, s{sJ}, 3')
    a(f's_lshl_b32 s{sKq}, s{sKq}, 2')
    a(f's_add_u32 s{sT2}, s{sT2}, s{sKq}')
    if not LATE: a('s_barrier')
    if cfg.get('b4', 1): a('s_barrier')
    poll(a, loads, [vY + 4 * k for k in range(16)], vt, sCnt, name='py', sleep=cfg.get('ysleep', 1))
    sumup(vacc, 16)
    for i in range(2):
        rnd_bf16(a, vacc + i, vacc + i, vtmp + i)
        a(f'v_mul_f32 v{vacc+i}, s{sG}, v{vacc+i}')
        rnd_bf16(a, vacc + i, vacc + i, vtmp + i)
        a(f'v_add_f32 v{vacc+i}, v{vacc+i}, v{vb+i}')
    a(f'v_cvt_pk_bf16_f32 v{vt}, v{vacc}, v{vacc+1}')
    a('s_mov_b64 exec, 15')
    a(f'buffer_store_dword v{vt}, v{vo2}, {sr(sOUT,4)}, s{sT2} offen')
    a('s_mov_b64 exec, -1')
    stamp(a, cfg, 76)
    stamp_store(a, cfg, [(6, 76)], vt + 2)
    if cfg.get('dbgt'):
        a('s_memrealtime s[76:77]')
        a('s_waitcnt lgkmcnt(0)')
        a(f's_sub_u32 s76, s76, s{S_TA}')
        a(f'v_mov_b32 v{vt+2}, s76')
        a(f'v_mov_b32 v{vt+3}, 0')
        a('s_mov_b64 exec, 1')
        a(f'buffer_atomic_umax v{vt+2}, v{vt+3}, {sr(sDBG,4)}, 0 offen offset:4')
        a(f'buffer_atomic_umin v{vt+2}, v{vt+3}, {sr(sDBG,4)}, 0 offen offset:8')
    a('s_endpgm')
    a.label(Lnofin)
    a('s_barrier')
    a('s_endpgm')
    return V.n


def gen(cfg):
    a = Asm()
    a.raw(kernel_header(NAME))
    a('s_cmp_ge_u32 s2, 256')
    a('s_cbranch_scc1 L_end')
    a('s_load_dwordx16 s[16:31], s[0:1], 0')
    a('s_load_dwordx8 s[32:39], s[0:1], 64')
    a('s_load_dwordx2 s[40:41], s[0:1], 96')
    a('v_lshrrev_b32 v1, 6, v0')
    a('v_and_b32 v0, 63, v0')
    a(f'v_readfirstlane_b32 s{S_WAVE}, v1')
    a(f's_mov_b32 s{S_SELLO}, 0x05040100')
    a(f's_mov_b32 s{S_SELHI}, 0x07060302')
    a('s_waitcnt lgkmcnt(0)')
    srd(a, S_WS, P_WS, WS_SIZE)
    a(f's_cmp_eq_u32 s{S_WAVE}, 2')
    a('s_cbranch_scc1 L_auxA')
    a(f's_cmp_eq_u32 s{S_WAVE}, 3')
    a('s_cbranch_scc1 L_auxB')
    n0 = gen_stream(a, cfg)
    a.label('L_auxA')
    n1 = gen_auxA(a, cfg)
    a.label('L_auxB')
    n2 = gen_auxB(a, cfg)
    a.label('L_end')
    a('s_endpgm')
    nv = max(n0, n1, n2)
    acc_off = (nv + 3) // 4 * 4
    npre = cfg.get('npre', 4)
    print('vgprs', n0, n1, n2, 'agprs', 64 * npre, file=sys.stderr)
    hdr = open('gated_mix__gqa_block_cached__geglu_ffn__decode.s.ref').read().split('; @launch')[0]
    lds = cfg.get('lds', 2048)
    hdr += f'; @launch grid=(256,1,1) block=(256,1,1) lds={lds}\n.amdgcn_target "amdgcn-amd-amdhsa--gfx950"\n'
    return hdr + a.text() + kernel_desc(NAME, acc_off + 64 * npre, 102, acc_off)


if __name__ == '__main__':
    cfg = json.loads(sys.argv[2]) if len(sys.argv) > 2 else {}
    open(sys.argv[1], 'w').write(gen(cfg))
```

```python
import sys, struct, json
from asmlib import *

def f2u(f): return struct.unpack('<I', struct.pack('<f', f))[0]
C_SCALE = f2u(1.4426950408889634 / 16.0)

WS_QP = 0x0
WS_TK = 0x4e0000
TK_STRIDE = 4352
WS_PROF = 0x24000
WS_GP = 0x40000
WS_PLAN = 0x40000
WS_IT = 0x80000
WS_ML = 0x60000
WS_O = 0x100000
WS_Y = 0x300000
WS_B = 0x400000
WS_SIZE = 0x500000

NAME = 'gated_mix__gqa_block_cached__geglu_ffn__decode_kernel'
P_X, P_K, P_V, P_WQ, P_WO, P_BX, P_WG, P_WU, P_WD, P_GW, P_OUT, P_DBG, P_WS = [16 + 2 * i for i in range(13)]
S_WS = 12
S_WAVE = 3
S_SELLO = 60; S_SELHI = 61
S_TA = 88; S_TB = 89
POLL_MAX = 1 << 14
FIN0 = 200
INVALID = 0x20000000
LDS_TAG = 1024
LDS_CTR = 1028
LDS_FLAG = 1032
LDS_REC = 2048
LDS_LIST = 3072
LDS_DONE = 1036
LDS_FLAG2 = 1040
LDS_CMB = 4096


class VM:
    def __init__(self, a):
        self.a = a; self.n = 0
    def issue(self, s):
        self.a(s); self.n += 1
        return self.n - 1
    def wait(self, idx):
        k = self.n - idx - 1
        assert 0 <= k <= 63
        self.a(f's_waitcnt vmcnt({k})')


def srd(a, d, p, nbytes):
    a(f's_mov_b32 s{d}, s{p}')
    a(f's_mov_b32 s{d+1}, s{p+1}')
    a(f's_mov_b32 s{d+2}, {nbytes:#x}')
    a(f's_mov_b32 s{d+3}, 0x00020000')


def dpp(op, d, s0, s1, ctrl):
    return f'{op}_dpp v{d}, v{s0}, v{s1} {ctrl} row_mask:0xf bank_mask:0xf'


def xlane_reduce(a, regs, tmps, op, steps):
    n = len(regs)
    for st in steps:
        if st in ('x1', 'x2', 'r4', 'r8'):
            ctrl = {'x1': 'quad_perm:[1,0,3,2]', 'x2': 'quad_perm:[2,3,0,1]', 'r4': 'row_ror:4', 'r8': 'row_ror:8'}[st]
            if n < 3: a('s_nop 1')
            for r in regs:
                a(dpp(op, r, r, r, ctrl))
        else:
            ins = 'v_permlane16_swap_b32' if st == 'p16' else 'v_permlane32_swap_b32'
            for r, t in zip(regs, tmps):
                a(f'v_mov_b32 v{t}, v{r}')
            a('s_nop 1')
            for r, t in zip(regs, tmps):
                a(f'{ins} v{r}, v{t}')
            if n < 2: a('s_nop 0')
            for r, t in zip(regs, tmps):
                a(f'{op} v{r}, v{r}, v{t}')


def tagB(a):
    a(f's_mul_i32 s{S_TB}, s{S_TA}, 0x9e3779b1')
    a(f's_add_u32 s{S_TB}, s{S_TB}, 0x7f4a7c15')


def poll(a, loads, chunks, vt, scnt, name='poll', sleep=1):
    L = a.newlabel(name); D = a.newlabel(name + '_done')
    a(f's_mov_b32 s{scnt}, {POLL_MAX}')
    a.label(L)
    for l in loads: a(l)
    n = len(chunks)
    for i, c in enumerate(chunks):
        if i % 4 == 0:
            a(f's_waitcnt vmcnt({max(0, n - i - 4)})')
        a(f'v_xor_b32 v{vt+1}, s{S_TA}, v{c+1}')
        a(f'v_xor_b32 v{vt+2}, s{S_TB}, v{c+3}')
        if i == 0: a(f'v_or_b32 v{vt}, v{vt+1}, v{vt+2}')
        else: a(f'v_or3_b32 v{vt}, v{vt}, v{vt+1}, v{vt+2}')
    a(f'v_cmp_ne_u32 vcc, 0, v{vt}')
    a('s_mov_b64 exec, vcc')
    a(f's_cbranch_execz {D}')
    a(f's_sub_u32 s{scnt}, s{scnt}, 1')
    a(f's_cbranch_scc1 {D}')
    if sleep: a(f's_sleep {sleep}')
    a(f's_branch {L}')
    a.label(D)
    a('s_mov_b64 exec, -1')


def mkchunks(a, dst, vals):
    for i, v in enumerate(vals):
        a(f'v_mov_b32 v{dst+2*i}, v{v}')
        a(f'v_mov_b32 v{dst+2*i+1}, s{S_TA if i % 2 == 0 else S_TB}')


def stamp(a, cfg, sreg):
    if cfg.get('prof'): a(f's_memrealtime s[{sreg}:{sreg+1}]')

PROFV = 227
class Prof:
    slots = 0
def stamp_store(a, cfg, pairs, vt):
    if not cfg.get('prof'): return
    a('s_waitcnt lgkmcnt(0)')
    for slot, sreg in pairs:
        a(f'v_writelane_b32 v{PROFV}, s{sreg}, {slot}')

def stamp_flush(a, cfg, slots, vt):
    if not cfg.get('prof'): return
    m = sum(1 << s for s in slots)
    a(f's_lshl_b32 s78, s2, 7')
    a(f's_add_u32 s78, s78, {WS_PROF:#x}')
    a(f'v_lshlrev_b32 v{vt}, 2, v0')
    a(f's_mov_b32 exec_lo, {m:#x}')
    a('s_mov_b32 exec_hi, 0')
    a(f'buffer_store_dword v{PROFV}, v{vt}, s[{S_WS}:{S_WS+3}], s78 offen')
    a('s_mov_b64 exec, -1')


def gen_stream(a, cfg):
    D = 2
    NPRE = cfg.get('npre', 4)
    SL = cfg.get('sl', 58)
    flags = 'nt'
    V = Regs(1, 256)
    vKoff = V.alloc(); vVoff = V.alloc()
    vm = V.alloc(); vl = V.alloc(); vt0 = V.alloc(); vt1 = V.alloc(); valpha = V.alloc(); vmc = V.alloc()
    vc = V.alloc(); vg = V.alloc(); vRa = V.alloc()
    vTk = V.alloc(); vOne = V.alloc(); vList = V.alloc()
    vIt = V.alloc()
    vRec = V.alloc(2, 2)
    vmask = V.alloc(4, 4)
    vS = V.alloc(4, 4)
    vP = V.alloc(4, 4)
    vacc = V.alloc(8, 4)
    vA = V.alloc(16, 4)
    vQ = V.alloc(32, 4)
    vKb = [V.alloc(32, 4) for _ in range(D)]
    vVb = [V.alloc(32, 4) for _ in range(D)]
    sK = 4; sVv = 8
    sOff = [44, 45]
    sC = 47; sTmp = 48; sBase = 49; sHead = 50; sSplit = 51; sT2 = 52
    sDyn = 53; sCtr = 54; sTk = 56
    sNs = [42, 43]
    srd(a, sK, P_K, 0x10000000)
    srd(a, sVv, P_V, 0x10000000)
    a(f's_lshr_b32 s{sHead}, s2, 5')
    a(f's_and_b32 s{sSplit}, s2, 31')
    a(f's_lshl_b32 s{sTmp}, s{S_WAVE}, 13')
    a(f's_lshl_b32 s{sBase}, s2, 20')
    a(f's_add_u32 s{sBase}, s{sBase}, s{sTmp}')
    def paddr(k):
        a(f's_add_u32 s{sTmp}, s{sBase}, {k << 14}')
    a(f's_mov_b32 s{sC}, {C_SCALE:#x}')
    for s_ in range(D):
        a(f's_mov_b32 s{sNs[s_]}, {NPRE + s_}')
    a(f'v_and_b32 v{vc}, 15, v0')
    a(f'v_lshrrev_b32 v{vg}, 4, v0')
    a(f'v_lshlrev_b32 v{vKoff}, 9, v{vc}')
    a(f'v_lshl_add_u32 v{vKoff}, v{vg}, 4, v{vKoff}')
    a(f'v_lshlrev_b32 v{vVoff}, 11, v{vg}')
    a(f'v_lshl_add_u32 v{vVoff}, v{vc}, 4, v{vVoff}')
    koffs = [j * 64 for j in range(8)]
    voffs = [i * 512 + hf * 256 for i in range(4) for hf in range(2)]
    def R(file, base, n): return f'{file}[{base}:{base+n-1}]'
    def issueK(file, base, so):
        for j in range(8):
            a(f'buffer_load_dwordx4 {R(file,base+4*j,4)}, v{vKoff}, {sr(sK,4)}, s{so} offen offset:{koffs[j]} {flags}')
    def issueV(file, base, so):
        for j in range(8):
            a(f'buffer_load_dwordx4 {R(file,base+4*j,4)}, v{vVoff}, {sr(sVv,4)}, s{so} offen offset:{voffs[j]} {flags}')
    PST = [66 + 2 * i for i in range(11)] + [90 + 2 * i for i in range(6)]
    pst_n = [0]
    def pst():
        if cfg.get('prof'):
            r = PST[pst_n[0]]; pst_n[0] += 1
            a(f's_memrealtime s[{r}:{r+1}]')
    a('s_barrier')
    pst()
    seq = [('a', 64 * i, 64 * i + 32) for i in range(NPRE)] + [('v', vKb[s], vVb[s]) for s in range(D)]
    paddr(0)
    for i, (file, kb, vb) in enumerate(seq):
        if i >= 2:
            a(f's_waitcnt vmcnt(24)')
            pst()
        if file == 'v':
            s = i - NPRE
            a(f's_mov_b32 s{sOff[s]}, s{sTmp}')
        issueK(file, kb, sTmp)
        if i >= 2:
            a(f's_waitcnt vmcnt(24)')
            pst()
        issueV(file, vb, sTmp)
        paddr(i + 1)
        if i == 1:
            a(f'v_lshrrev_b32 v{vt1}, 2, v{vc}')
            a(f'v_and_b32 v{vt0}, 2, v0')
            a(f'v_lshlrev_b32 v{vt0}, 3, v{vt0}')
            a(f'v_mov_b32 v{vl}, 0xffff')
            a(f'v_lshlrev_b32 v{vt0}, v{vt0}, v{vl}')
            for j in range(4):
                a(f'v_cmp_eq_u32 vcc, {j}, v{vt1}')
                a('s_nop 1')
                a(f'v_cndmask_b32 v{vmask+j}, 0, v{vt0}, vcc')
            a(f'v_mov_b32 v{vm}, 0xf149f2ca')
            a(f'v_mov_b32 v{vl}, 0')
            for k in range(8):
                a(f'v_mov_b32 v{vacc+k}, 0')
            a(f's_lshl_b32 s{sT2}, s{S_WAVE}, 9')
            a(f's_add_u32 s{sT2}, s{sT2}, {LDS_REC}')
            a(f'v_lshlrev_b32 v{vRa}, 3, v0')
            a(f'v_add_u32 v{vRa}, s{sT2}, v{vRa}')
            a(f'v_mov_b32 v{vOne}, 1')
    a(f'v_and_b32 v{vt0}, 1, v0')
    a(f'v_lshlrev_b32 v{vt0}, 9, v{vt0}')
    a(f'v_lshl_add_u32 v{vt0}, v{vg}, 4, v{vt0}')
    a(f'v_mov_b32 v{vt1}, 0')
    stamp(a, cfg, 62)
    a('s_barrier')
    for j in range(8):
        a(f'ds_read_b128 {vr(vQ+4*j,4)}, v{vt0} offset:{j*64}')
    a(f'ds_read_b32 v{vt1}, v{vt1} offset:{LDS_TAG}')
    a('s_waitcnt lgkmcnt(0)')
    a(f'v_readfirstlane_b32 s{S_TA}, v{vt1}')
    pst()

    def qk(file, kb):
        for j in range(8):
            cc = '0' if j == 0 else vr(vS, 4)
            a(f'v_mfma_f32_16x16x32_bf16 {vr(vS,4)}, {R(file,kb+4*j,4)}, {vr(vQ+4*j,4)}, {cc}')
    def softmax():
        a(f'v_cvt_pk_bf16_f32 v{vt0}, v{vS}, v{vS+1}')
        a(f'v_cvt_pk_bf16_f32 v{vt1}, v{vS+2}, v{vS+3}')
        a(f'v_lshlrev_b32 v{vS}, 16, v{vt0}')
        a(f'v_and_b32 v{vS+1}, 0xffff0000, v{vt0}')
        a(f'v_lshlrev_b32 v{vS+2}, 16, v{vt1}')
        a(f'v_and_b32 v{vS+3}, 0xffff0000, v{vt1}')
        a(f'v_max3_f32 v{vt0}, v{vS}, v{vS+1}, v{vm}')
        a(f'v_max3_f32 v{vt0}, v{vS+2}, v{vS+3}, v{vt0}')
        a(f'v_mov_b32 v{vt1}, v{vt0}')
        a('s_nop 1')
        a(f'v_permlane32_swap_b32 v{vt0}, v{vt1}')
        a(f'v_max_f32 v{vt0}, v{vt0}, v{vt1}')
        a(f'v_mov_b32 v{vt1}, v{vt0}')
        a('s_nop 1')
        a(f'v_permlane16_swap_b32 v{vt0}, v{vt1}')
        a(f'v_max_f32 v{vt0}, v{vt0}, v{vt1}')
        a(f'v_sub_f32 v{valpha}, v{vm}, v{vt0}')
        a(f'v_mul_f32 v{valpha}, s{sC}, v{valpha}')
        a(f'v_exp_f32 v{valpha}, v{valpha}')
        a(f'v_mov_b32 v{vm}, v{vt0}')
        a(f'v_mul_f32 v{vmc}, s{sC}, v{vt0}')
        for i in range(4):
            a(f'v_fma_f32 v{vP+i}, v{vS+i}, s{sC}, -v{vmc}')
        for i in range(4):
            a(f'v_exp_f32 v{vP+i}, v{vP+i}')
        a(f'v_mul_f32 v{vl}, v{vl}, v{valpha}')
        a(f'v_add_f32 v{vt0}, v{vP}, v{vP+1}')
        a(f'v_add_f32 v{vt1}, v{vP+2}, v{vP+3}')
        a(f'v_add_f32 v{vl}, v{vl}, v{vt0}')
        a(f'v_add_f32 v{vl}, v{vl}, v{vt1}')
        for i in range(8):
            qp = '[0,0,2,2]' if (i & 1) == 0 else '[1,1,3,3]'
            a(f'v_mul_f32_dpp v{vacc+i}, v{valpha}, v{vacc+i} quad_perm:{qp} row_mask:0xf bank_mask:0xf')
        for i in range(4):
            a(f'v_cvt_pk_bf16_f32 v{vP+i}, v{vP+i}, v{vP+i}')
        for i in range(4):
            for j in range(4):
                a(f'v_and_b32 v{vA+4*i+j}, v{vP+i}, v{vmask+j}')
    def pv(file, vb):
        for i in range(4):
            for hf in range(2):
                a(f'v_mfma_f32_16x16x32_bf16 {vr(vacc+4*hf,4)}, {vr(vA+4*i,4)}, {R(file,vb+4*(2*i+hf),4)}, {vr(vacc+4*hf,4)}')
    def body(s, mode):
        a(f's_waitcnt vmcnt(24)')
        if mode == 'A':
            a('s_memrealtime s[58:59]')
        else:
            a('s_mov_b64 exec, 1')
            a(f'ds_add_rtn_u32 v{vTk}, v{vRa}, v{vOne}')
            a('s_mov_b64 exec, -1')
        qk('v', vKb[s])
        if mode == 'A':
            a(f's_add_u32 s{sNs[s]}, s{sNs[s]}, 2')
            a(f's_lshl_b32 s{sOff[s]}, s{sNs[s]}, 14')
            a(f's_add_u32 s{sOff[s]}, s{sOff[s]}, s{sBase}')
        else:
            a('s_waitcnt lgkmcnt(0)')
            a(f'v_readfirstlane_b32 s{sTk}, v{vTk}')
            a('s_nop 3')
            a(f'v_readlane_b32 s{sOff[s]}, v{vList}, s{sTk}')
            a('s_nop 4')
        issueK('v', vKb[s], sOff[s])
        softmax()
        if mode == 'A':
            a('s_waitcnt lgkmcnt(0)')
            a(f'v_mov_b32 v{vRec}, s{sNs[s]}')
            a(f'v_mov_b32 v{vRec+1}, s58')
            a(f'ds_write_b64 v{vRa}, {vr(vRec,2)}')
        a(f's_waitcnt vmcnt(24)')
        a('s_nop 0')
        pv('v', vVb[s])
        issueV('v', vVb[s], sOff[s])
    tagB(a)
    for s in range(D):
        body(s, 'A'); pst()
    for i in range(NPRE):
        qk('a', 64 * i)
        a('s_nop 7')
        softmax()
        a('s_nop 1')
        pv('a', 64 * i + 32)
        pst()
    LA = a.newlabel('st_loopA'); LB = a.newlabel('st_loopB'); Ldone = a.newlabel('st_done')
    def itstamp():
        if cfg.get('prof'):
            a('s_memrealtime s[64:65]')
            a('s_mov_b32 m0, s57')
            a('s_waitcnt lgkmcnt(0)')
            a(f'v_writelane_b32 v{vIt}, s64, m0')
            a('s_add_u32 s57, s57, 1')
    if cfg.get('prof'):
        a('s_mov_b32 s57, 0')
        a(f'v_mov_b32 v{vIt}, 0')
        a('s_waitcnt lgkmcnt(0)')
        for k in range(pst_n[0]):
            a(f'v_writelane_b32 v{vIt}, s{PST[k]}, {40 + k}')
    a.label(LA)
    itstamp()
    for s in range(D): body(s, 'A')
    a(f's_cmp_lt_u32 s{sNs[1]}, {SL - 1}')
    a(f's_cbranch_scc1 {LA}')
    Lw = a.newlabel('st_pw'); Lg = a.newlabel('st_pg')
    a(f'v_mov_b32 v{vRa}, {LDS_CTR}')
    a(f'v_lshlrev_b32 v{vRec}, 2, v0')
    a(f's_mov_b32 s{sCtr}, {POLL_MAX}')
    if cfg.get('prof'): a('s_memrealtime s[66:67]')
    a.label(Lw)
    a(f'ds_read_b32 v{vTk}, v{vRa} offset:{LDS_FLAG - LDS_CTR}')
    a(f'ds_read_b32 v{vList}, v{vRec} offset:{LDS_LIST}')
    a('s_waitcnt lgkmcnt(0)')
    a(f'v_readfirstlane_b32 s{sTk}, v{vTk}')
    a(f's_cmp_eq_u32 s{sTk}, s{S_TA}')
    a(f's_cbranch_scc1 {Lg}')
    a(f's_sub_u32 s{sCtr}, s{sCtr}, 1')
    a(f's_cbranch_scc1 {Lg}')
    a('s_sleep 2')
    a(f's_branch {Lw}')
    a.label(Lg)
    if cfg.get('prof'):
        a('s_memrealtime s[68:69]')
        a('s_waitcnt lgkmcnt(0)')
        a(f'v_writelane_b32 v{vIt}, s66, 60')
        a(f'v_writelane_b32 v{vIt}, s68, 61')
    a.label(LB)
    itstamp()
    for s in range(D):
        body(s, 'B')
        nx = (s + 1) % D
        a(f's_cmp_ge_u32 s{sOff[nx]}, {INVALID:#x}')
        if s == D - 1:
            a(f's_cbranch_scc0 {LB}')
        else:
            a(f's_cbranch_scc1 {Ldone}')
    a.label(Ldone)
    a('s_mov_b64 exec, 1')
    a(f'ds_add_rtn_u32 v{vTk}, v{vRa}, v{vOne} offset:{LDS_DONE - LDS_CTR}')
    a('s_mov_b64 exec, -1')
    xlane_reduce(a, [vl], [vt0], 'v_add_f32', ['p32', 'p16'])
    a(f'v_lshlrev_b32 v{vt0}, 4, v0')
    a(f's_lshl_b32 s{sT2}, s2, 7')
    a(f's_add_u32 s{sT2}, s{sT2}, {WS_ML:#x}')
    a(f's_lshl_b32 s{sBase}, s2, 12')
    a(f's_add_u32 s{sBase}, s{sBase}, {WS_O:#x}')
    L2nd = a.newlabel('st_2nd'); LB3 = a.newlabel('st_b3')
    a('s_waitcnt lgkmcnt(0)')
    a(f'v_readfirstlane_b32 s{sTk}, v{vTk}')
    a(f's_cmp_lg_u32 s{sTk}, 0')
    a(f's_cbranch_scc1 {L2nd}')
    a(f'v_mov_b32 v{vS}, v{vm}')
    a(f'v_mov_b32 v{vS+1}, v{vl}')
    a(f'v_mov_b32 v{vTk}, s{S_TA}')
    a(f'ds_write_b128 v{vt0}, {vr(vacc,4)} offset:{LDS_CMB}')
    a(f'ds_write_b128 v{vt0}, {vr(vacc+4,4)} offset:{LDS_CMB+1024}')
    a(f'ds_write_b64 v{vt0}, {vr(vS,2)} offset:{LDS_CMB+2048}')
    a(f'ds_write_b32 v{vRa}, v{vTk} offset:{LDS_FLAG2 - LDS_CTR}')
    a(f's_branch {LB3}')
    a.label(L2nd)
    Lw2 = a.newlabel('st_w2'); Lg2 = a.newlabel('st_g2')
    a(f's_mov_b32 s{sCtr}, {POLL_MAX}')
    a.label(Lw2)
    a(f'ds_read_b32 v{vTk}, v{vRa} offset:{LDS_FLAG2 - LDS_CTR}')
    a(f'ds_read_b64 {vr(vS,2)}, v{vt0} offset:{LDS_CMB+2048}')
    a(f'ds_read_b128 {vr(vA,4)}, v{vt0} offset:{LDS_CMB}')
    a(f'ds_read_b128 {vr(vA+4,4)}, v{vt0} offset:{LDS_CMB+1024}')
    a('s_waitcnt lgkmcnt(3)')
    a(f'v_readfirstlane_b32 s{sTk}, v{vTk}')
    a(f's_cmp_eq_u32 s{sTk}, s{S_TA}')
    a(f's_cbranch_scc1 {Lg2}')
    a(f's_sub_u32 s{sCtr}, s{sCtr}, 1')
    a(f's_cbranch_scc1 {Lg2}')
    a('s_waitcnt lgkmcnt(0)')
    a(f's_branch {Lw2}')
    a.label(Lg2)
    a('s_waitcnt lgkmcnt(2)')
    a(f'v_max_f32 v{vt1}, v{vm}, v{vS}')
    a(f'v_sub_f32 v{valpha}, v{vm}, v{vt1}')
    a(f'v_sub_f32 v{vmc}, v{vS}, v{vt1}')
    a(f'v_mul_f32 v{valpha}, s{sC}, v{valpha}')
    a(f'v_mul_f32 v{vmc}, s{sC}, v{vmc}')
    a(f'v_exp_f32 v{valpha}, v{valpha}')
    a(f'v_exp_f32 v{vmc}, v{vmc}')
    a(f'v_mov_b32 v{vm}, v{vt1}')
    a(f'v_mul_f32 v{vl}, v{vl}, v{valpha}')
    a(f'v_fmac_f32 v{vl}, v{vS+1}, v{vmc}')
    for i in range(8):
        qp = '[0,0,2,2]' if (i & 1) == 0 else '[1,1,3,3]'
        a(f'v_mul_f32_dpp v{vacc+i}, v{valpha}, v{vacc+i} quad_perm:{qp} row_mask:0xf bank_mask:0xf')
    a('s_waitcnt lgkmcnt(0)')
    for i in range(8):
        qp = '[0,0,2,2]' if (i & 1) == 0 else '[1,1,3,3]'
        a(f'v_fmac_f32_dpp v{vacc+i}, v{vmc}, v{vA+i} quad_perm:{qp} row_mask:0xf bank_mask:0xf')
    a(f'v_lshlrev_b32 v{vt1}, 6, v{vc}')
    a(f'v_lshl_add_u32 v{vt1}, v{vg}, 4, v{vt1}')
    a(f'v_and_b32 v{vTk}, 1, v{vc}')
    a(f'v_cmp_eq_u32 vcc, 1, v{vTk}')
    a(f'v_mov_b32_dpp v{vP}, v{vm} quad_perm:[1,0,3,2] row_mask:0xf bank_mask:0xf')
    a(f'v_mov_b32_dpp v{vP+1}, v{vl} quad_perm:[1,0,3,2] row_mask:0xf bank_mask:0xf')
    a(f'v_mov_b32 v{vS+1}, s{S_TA}')
    a(f'v_mov_b32 v{vS+3}, s{S_TB}')
    a(f'v_cndmask_b32 v{vS}, v{vm}, v{vP+1}, vcc')
    a(f'v_cndmask_b32 v{vS+2}, v{vP}, v{vl}, vcc')
    mkchunks(a, vA, [vacc + i for i in range(8)])
    for i in range(4):
        a(f'buffer_store_dwordx4 {vr(vA+4*i,4)}, v{vt1}, {sr(S_WS,4)}, s{sBase} offen offset:{1024*i} sc1')
    a('s_mov_b64 exec, 0xff')
    a(f'buffer_store_dwordx4 {vr(vS,4)}, v{vt0}, {sr(S_WS,4)}, s{sT2} offen sc1')
    a('s_mov_b64 exec, -1')
    a.label(LB3)
    a(f'v_mov_b32 v{vt0}, 0')
    if cfg.get('prof'):
        a(f's_memrealtime s[58:59]')
    a('s_barrier')
    if cfg.get('prof'):
        a(f's_add_u32 s{sT2}, s{S_WAVE}, 4')
        a(f's_lshl_b32 s{sTmp}, s2, 5')
        a(f's_add_u32 s{sTmp}, s{sTmp}, s{sT2}')
        a(f's_lshl_b32 s{sTmp}, s{sTmp}, 2')
        a(f's_add_u32 s{sTmp}, s{sTmp}, {WS_PROF:#x}')
        a('s_waitcnt lgkmcnt(0)')
        a(f'v_mov_b32 v{vt1}, s58')
        a(f'buffer_store_dword v{vt1}, v{vt0}, {sr(S_WS,4)}, s{sTmp} offen')
        a(f'v_mov_b32 v{vt1}, s62')
        a(f'buffer_store_dword v{vt1}, v{vt0}, {sr(S_WS,4)}, s{sTmp} offen offset:28')
        a(f's_lshl_b32 s{sTmp}, s2, 1')
        a(f's_add_u32 s{sTmp}, s{sTmp}, s{S_WAVE}')
        a(f's_lshl_b32 s{sTmp}, s{sTmp}, 8')
        a(f's_add_u32 s{sTmp}, s{sTmp}, {WS_IT:#x}')
        a(f'v_lshlrev_b32 v{vt0}, 2, v0')
        a(f'buffer_store_dword v{vIt}, v{vt0}, {sr(S_WS,4)}, s{sTmp} offen')
    a('s_endpgm')
    return V.n


def gemv_pairs(a, vm, W, nrows, ndw, vX, acc, tmps, loads, first=True):
    for t in range(nrows // 2):
        if loads is not None:
            vm.wait(loads[2 * t + 1])
        for d in range(ndw):
            lo, hi = tmps[2 * d], tmps[2 * d + 1]
            a(f'v_perm_b32 v{lo}, v{W[2*t+1]+d}, v{W[2*t]+d}, s{S_SELLO}')
            a(f'v_perm_b32 v{hi}, v{W[2*t+1]+d}, v{W[2*t]+d}, s{S_SELHI}')
        for d in range(ndw):
            lo, hi = tmps[2 * d], tmps[2 * d + 1]
            c0 = '0' if (t == 0 and first) else f'v{acc[2*d]}'
            c1 = '0' if (t == 0 and first) else f'v{acc[2*d+1]}'
            a(f'v_dot2_f32_bf16 v{acc[2*d]}, v{lo}, v{vX+t}, {c0}')
            a(f'v_dot2_f32_bf16 v{acc[2*d+1]}, v{hi}, v{vX+t}, {c1}')
    a('s_nop 2')


def rnd_bf16(a, d, s, t):
    a(f'v_cvt_pk_bf16_f32 v{t}, v{s}, v{s}')
    a(f'v_lshlrev_b32 v{d}, 16, v{t}')


def ksplit_loads(a, vm, sX, sW, rowbytes, sKq, sColByte, vX, vW, vo1, vo2, vo3, sT, sT2):
    a(f'v_lshrrev_b32 v{vo1}, 3, v0')
    a(f'v_mul_u32_u24 v{vo2}, {14*rowbytes}, v{vo1}')
    a(f'v_and_b32 v{vo3}, 7, v0')
    a(f'v_lshl_add_u32 v{vo2}, v{vo3}, 4, v{vo2}')
    a(f's_mul_i32 s{sT2}, s{sKq}, {112*rowbytes}')
    a(f's_add_u32 s{sT2}, s{sT2}, s{sColByte}')
    lw = []
    for k in range(14):
        lw.append(vm.issue(f'buffer_load_dwordx4 {vr(vW+4*k,4)}, v{vo2}, {sr(sW,4)}, s{sT2} offen nt'))
        if k < 13: a(f's_add_u32 s{sT2}, s{sT2}, {rowbytes}')
        if k == 0:
            a(f'v_mul_u32_u24 v{vo3}, 28, v{vo1}')
            a(f's_mul_i32 s{sT}, s{sKq}, 224')
            vm.issue(f'buffer_load_dwordx4 {vr(vX,4)}, v{vo3}, {sr(sX,4)}, s{sT} offen')
            vm.issue(f'buffer_load_dwordx3 {vr(vX+4,3)}, v{vo3}, {sr(sX,4)}, s{sT} offen offset:16')
    return lw


def gen_auxA(a, cfg):
    V = Regs(1, 256)
    vt = V.alloc(8, 4)
    vX = V.alloc(8, 4)
    vacc = V.alloc(8, 4)
    vtmp = V.alloc(8, 4)
    vo1 = V.alloc(); vo2 = V.alloc(); vo3 = V.alloc(); vTag = V.alloc(); vOa = vTag
    vCh = V.alloc(16, 4)
    vW = V.alloc(64, 4)
    vWp = V.alloc(64, 4)
    vOq = V.alloc(16, 4)
    vML = V.alloc(8, 4)
    sX = 4; sWQ = 8; sDBG = 44; sWO = 48
    sT = 52; sT2 = 53; sHead = 54; sJ = 55; sCnt = 56; sC = 57; sKq = 58; sCb = 59
    sPk = 80
    vm = VM(a)
    stamp(a, cfg, 62)
    srd(a, sX, P_X, 896)
    srd(a, sWQ, P_WQ, 448 * 8192)
    a(f's_lshr_b32 s{sHead}, s2, 5')
    a(f's_and_b32 s{sJ}, s2, 31')
    a(f's_and_b32 s{sKq}, s2, 3')
    a(f's_lshr_b32 s{sCb}, s2, 2')
    a(f's_lshl_b32 s{sCb}, s{sCb}, 7')
    lw = ksplit_loads(a, vm, sX, sWQ, 8192, sKq, sCb, vX, vW, vo1, vo2, vo3, sT, sT2)
    a('s_barrier')
    srd(a, sDBG, P_DBG, 256)
    srd(a, sWO, P_WO, 4096 * 896)
    a(f'v_mov_b32 v{vo3}, 0')
    vm.issue(f'buffer_load_dword v{vTag}, v{vo3}, {sr(sDBG,4)}, 0 offen sc1')
    gemv_pairs(a, vm, [vW + 4 * k for k in range(14)], 14, 4, vX, [vacc + i for i in range(8)], [vtmp + i for i in range(8)], lw)
    xlane_reduce(a, [vacc + i for i in range(8)], [vtmp + i for i in range(8)], 'v_add_f32', ['r8', 'p16', 'p32'])
    stamp(a, cfg, 64)
    a(f'v_lshlrev_b32 v{vo1}, 4, v0')
    a(f's_lshl_b32 s{sT}, s{sHead}, 14')
    a(f's_lshl_b32 s{sT2}, s{sKq}, 12')
    a(f's_add_u32 s{sT2}, s{sT2}, s{sT}')
    a(f's_and_b32 s{sC}, s{sCb}, 0x380')
    a(f's_lshl_b32 s{sC}, s{sC}, 2')
    a(f's_add_u32 s{sT2}, s{sT2}, s{sC}')
    L = a.newlabel('ptag'); Dn = a.newlabel('ptag_done')
    a(f's_mov_b32 s{sCnt}, {POLL_MAX}')
    a.label(L)
    a('s_waitcnt vmcnt(0)')
    a(f'v_readfirstlane_b32 s{S_TA}, v{vTag}')
    a(f's_cmp_lg_u32 s{S_TA}, 0')
    a(f's_cbranch_scc1 {Dn}')
    a(f's_sub_u32 s{sCnt}, s{sCnt}, 1')
    a(f's_cbranch_scc1 {Dn}')
    a('s_sleep 1')
    a(f'buffer_load_dword v{vTag}, v{vo3}, {sr(sDBG,4)}, 0 offen sc1')
    a(f's_branch {L}')
    a.label(Dn)
    tagB(a)
    stamp(a, cfg, 66)
    mkchunks(a, vCh, [vacc + i for i in range(8)])
    a('s_mov_b64 exec, 0xff')
    for c in range(4):
        a(f'buffer_store_dwordx4 {vr(vCh+4*c,4)}, v{vo1}, {sr(S_WS,4)}, s{sT2} offen offset:{128*c} sc1')
    a('s_mov_b64 exec, -1')
    a(f'v_lshrrev_b32 v{vo2}, 5, v0')
    a(f'v_lshlrev_b32 v{vo2}, 7, v{vo2}')
    a(f'v_and_b32 v{vt}, 7, v0')
    a(f'v_lshl_add_u32 v{vo2}, v{vt}, 4, v{vo2}')
    a(f'v_bfe_u32 v{vt}, v0, 3, 2')
    a(f'v_lshl_add_u32 v{vo2}, v{vt}, 2, v{vo2}')
    for kq in range(1, 4):
        a(f's_add_u32 s{80+kq}, s{sT}, {4096*kq}')
    loads = []
    for kq in range(4):
        for i in range(4):
            so = sT if kq == 0 else 80 + kq
            loads.append(f'buffer_load_dwordx4 {vr(vW+4*(4*kq+i),4)}, v{vo1}, {sr(S_WS,4)}, s{so} offen offset:{i*1024} sc1')
    if cfg.get('qsleep'): a(f's_sleep {cfg["qsleep"]}')
    poll(a, loads, [vW + 4 * k for k in range(16)], vt, sCnt, name='pq')
    stamp(a, cfg, 68)
    for i in range(4):
        for e in (0, 2):
            a(f'v_add_f32 v{vW+4*i+e}, v{vW+4*i+e}, v{vW+4*(4+i)+e}')
            a(f'v_add_f32 v{vW+4*(8+i)+e}, v{vW+4*(8+i)+e}, v{vW+4*(12+i)+e}')
    for i in range(4):
        for e in (0, 2):
            a(f'v_add_f32 v{vW+4*i+e}, v{vW+4*i+e}, v{vW+4*(8+i)+e}')
    for i in range(4):
        a(f'v_cvt_pk_bf16_f32 v{vt+i}, v{vW+4*i}, v{vW+4*i+2}')
    for i in range(4):
        a(f'ds_write_b32 v{vo2}, v{vt+i} offset:{256*i}')
    a(f'ds_write_b32 v{vo3}, v{vTag} offset:{LDS_TAG}')
    a(f'ds_write_b32 v{vo3}, v{vo3} offset:{LDS_CTR}')
    a(f'ds_write_b32 v{vo3}, v{vo3} offset:{LDS_FLAG}')
    a(f'ds_write_b32 v{vo3}, v{vo3} offset:{LDS_DONE}')
    a('s_waitcnt lgkmcnt(0)')
    a('s_barrier')
    stamp(a, cfg, 70)
    stamp_store(a, cfg, [(0, 62), (7, 64), (8, 66), (9, 68), (1, 70)], vt)
    a(f's_lshl_b32 s{sT}, s{sHead}, 9')
    a(f's_and_b32 s{sT2}, s{sJ}, 16')
    a(f's_lshl_b32 s{sT2}, s{sT2}, 3')
    a(f's_add_u32 s{sT}, s{sT}, s{sT2}')
    a(f's_and_b32 s{sT2}, s{sJ}, 7')
    a(f's_lshl_b32 s{sT2}, s{sT2}, 4')
    a(f's_add_u32 s{sT}, s{sT}, s{sT2}')
    a(f's_bfe_u32 s{sT2}, s{sJ}, 0x10003')
    a(f's_add_u32 s{sT}, s{sT}, s{sT2}')
    a(f's_mul_i32 s{sT}, s{sT}, 896')
    a(f'v_min_u32 v{vo2}, 55, v0')
    a(f'v_lshlrev_b32 v{vo2}, 4, v{vo2}')
    for hh in range(2):
        for e in range(8):
            a(f'buffer_load_dwordx4 {vr(vW+4*(8*hh+e),4)}, v{vo2}, {sr(sWO,4)}, s{sT} offen offset:{(e%2)*1792} nt')
            if e % 2 == 1:
                a(f's_add_u32 s{sT}, s{sT}, {3584 if e < 7 else 3584 + (256-16)*896}')
    a('s_waitcnt vmcnt(0)')
    stamp(a, cfg, 62)
    stamp_store(a, cfg, [(16, 62)], vt)
    for pr in range(8):
        r0 = vW + 4 * (2 * pr); r1 = vW + 4 * (2 * pr + 1)
        for d in range(4):
            a(f'v_perm_b32 v{vWp+8*pr+2*d}, v{r1+d}, v{r0+d}, s{S_SELLO}')
            a(f'v_perm_b32 v{vWp+8*pr+2*d+1}, v{r1+d}, v{r0+d}, s{S_SELHI}')
    a(f'v_and_b32 v{vo2}, 31, v0')
    a(f'v_lshlrev_b32 v{vo2}, 7, v{vo2}')
    a(f'v_lshrrev_b32 v{vo3}, 3, v0')
    a(f'v_lshlrev_b32 v{vOa}, 12, v{vo3}')
    a(f'v_and_b32 v{vt}, 7, v0')
    a(f'v_lshl_add_u32 v{vOa}, v{vt}, 4, v{vOa}')
    a(f'v_lshlrev_b32 v{vo3}, 2, v{vo3}')
    a(f's_lshl_b32 s{sT}, s{sHead}, 17')
    a(f's_lshl_b32 s{sT2}, s{sJ}, 7')
    a(f's_add_u32 s{sT}, s{sT}, s{sT2}')
    a(f's_add_u32 s{sT}, s{sT}, {WS_O:#x}')
    for k in range(1, 4):
        a(f's_add_u32 s{72+k}, s{sT}, {k << 15}')
    a(f's_lshl_b32 s{sT2}, s{sHead}, 12')
    a(f's_add_u32 s{sT2}, s{sT2}, {WS_ML:#x}')
    a(f's_mov_b32 s{sC}, {C_SCALE:#x}')
    a(f's_mul_i32 s72, s2, 3584')
    a(f's_add_u32 s72, s72, {WS_Y:#x}')
    for i in range(8):
        a(f'v_mov_b32 v{vCh+2*i+1}, s{S_TA if i % 2 == 0 else S_TB}')
    SL = cfg.get('sl', 58); OWN = 2 * (64 - SL); T2 = cfg.get('t2', 5700); CL = cfg.get('cl', OWN - 2) * 128
    TMAX = 56 - OWN
    p0 = vW
    vR = p0; vPc = p0 + 4; vx = p0 + 8; vSx = p0 + 9; vU = p0 + 10; vUe = p0 + 11; vT = p0 + 12; vgv = p0 + 13; vtv = p0 + 14
    vGE = p0 + 15; vTP = p0 + 16; vL = p0 + 17; vAd = p0 + 18; vZ = p0 + 19
    sM = 76; sLo = 64
    def scan32(r):
        for sh in (1, 2, 4, 8):
            a('s_nop 1')
            a(f'v_add_u32_dpp v{r}, v{r}, v{r} row_shr:{sh} row_mask:0xf bank_mask:0xf bound_ctrl:0')
        a('s_nop 1')
        a(f'v_add_u32_dpp v{r}, v{r}, v{r} row_bcast:15 row_mask:0xa bank_mask:0xf')
        a('s_nop 0')
    Lw = a.newlabel('pl_w'); Lf = a.newlabel('pl_f'); Lg = a.newlabel('pl_g')
    a(f's_add_u32 s{sM}, s{S_TA}, {T2}')
    a(f'v_mov_b32 v{vAd}, {LDS_REC}')
    a(f'v_mov_b32 v{vPc+1}, s{S_TA}')
    a(f'v_mov_b32 v{vPc+3}, s{S_TB}')
    a(f's_lshl_b32 s77, s2, 7')
    a(f's_add_u32 s77, s77, {WS_PLAN:#x}')
    a(f's_lshl_b32 s79, s{sHead}, 12')
    a(f's_add_u32 s79, s79, {WS_PLAN:#x}')
    a.label(Lw)
    a('s_memrealtime s[64:65]')
    a('s_waitcnt lgkmcnt(0)')
    a(f's_sub_u32 s64, s64, s{S_TA}')
    a(f's_cmp_ge_u32 s64, {T2}')
    a(f's_cbranch_scc1 {Lg}')
    a(f's_cmp_ge_u32 s64, {T2 - 150}')
    a(f's_cbranch_scc1 {Lf}')
    a('s_sleep 40')
    a.label(Lf)
    a('s_sleep 2')
    a(f's_branch {Lw}')
    a.label(Lg)
    a(f'ds_read_b64 {vr(vR,2)}, v{vAd}')
    a(f'ds_read_b64 {vr(vR+2,2)}, v{vAd} offset:512')
    a('s_waitcnt lgkmcnt(0)')
    for i in (0, 2):
        a(f'v_sub_u32 v{vR+i+1}, s{sM}, v{vR+i+1}')
        a(f'v_max_i32 v{vR+i+1}, {(-220) & 0xffffffff:#x}, v{vR+i+1}')
        a(f'v_min_i32 v{vR+i+1}, 165, v{vR+i+1}')
        a(f'v_mul_i32_i24 v{vR+i+1}, 149, v{vR+i+1}')
        a(f'v_ashrrev_i32 v{vR+i+1}, 7, v{vR+i+1}')
        a(f'v_and_b32 v{vR+i}, 63, v{vR+i}')
        a(f'v_lshl_add_u32 v{vR+i}, v{vR+i}, 7, v{vR+i+1}')
    a(f'v_add_u32 v{vPc}, v{vR}, v{vR+2}')
    a(f'v_mov_b32 v{vPc+2}, v{vPc}')
    a('s_mov_b64 exec, 0xff')
    a(f'buffer_store_dwordx4 {vr(vPc,4)}, v{vo1}, {sr(S_WS,4)}, s77 offen sc1')
    a('s_mov_b64 exec, -1')
    stamp(a, cfg, 66)
    a(f's_sleep {cfg.get("plsleep", 40)}')
    a('s_mov_b32 exec_hi, 0')
    poll(a, [f'buffer_load_dwordx4 {vr(vR,4)}, v{vo2}, {sr(S_WS,4)}, s79 offen sc1'], [vR], vt, sCnt, name='ppl', sleep=cfg.get('plsleep2', 8))
    stamp(a, cfg, 68)
    a(f'v_cmp_gt_u32 s[64:65], 32, v0')
    a(f'v_mov_b32 v{vZ}, 0')
    a('s_nop 0')
    a(f'v_cndmask_b32 v{vSx}, v{vZ}, v{vR}, s[64:65]')
    scan32(vSx)
    a(f'v_readlane_b32 s78, v{vSx}, 31')
    a('s_ashr_i32 s78, s78, 5')
    a(f'v_subrev_u32 v{vx}, s78, v{vR}')
    a(f'v_max_i32 v{vx}, {(-CL) & 0xffffffff:#x}, v{vx}')
    a(f'v_min_i32 v{vx}, {CL:#x}, v{vx}')
    a(f'v_cndmask_b32 v{vx}, v{vZ}, v{vx}, s[64:65]')
    a(f'v_mov_b32 v{vSx}, v{vx}')
    scan32(vSx)
    a(f'v_readlane_b32 s78, v{vSx}, 31')
    a(f'v_add_u32 v{vT}, 1, v0')
    a(f'v_lshlrev_b32 v{vU}, 5, v{vSx}')
    a(f'v_mul_lo_u32 v{vT}, v{vT}, s78')
    a(f'v_sub_u32 v{vU}, v{vU}, v{vT}')
    a(f'v_lshlrev_b32 v{vT}, 5, v{vx}')
    a(f'v_sub_u32 v{vUe}, v{vU}, v{vT}')
    a(f'v_add_u32 v{vUe}, s78, v{vUe}')
    a(f'v_add_u32 v{vU}, 0x800, v{vU}')
    a(f'v_add_u32 v{vUe}, 0x800, v{vUe}')
    a(f'v_ashrrev_i32 v{vU}, 12, v{vU}')
    a(f'v_ashrrev_i32 v{vUe}, 12, v{vUe}')
    a(f'v_sub_u32 v{vtv}, v{vU}, v{vUe}')
    a(f'v_cndmask_b32 v{vtv}, v{vZ}, v{vtv}, s[64:65]')
    a(f'v_sub_u32 v{vgv}, 0, v{vtv}')
    a(f'v_max_i32 v{vgv}, 0, v{vgv}')
    a(f'v_max_i32 v{vtv}, 0, v{vtv}')
    Lok = a.newlabel('pl_ok')
    a(f'v_cmp_lt_u32 vcc, {OWN}, v{vgv}')
    a(f'v_cmp_lt_u32 s[70:71], {TMAX}, v{vtv}')
    a('s_or_b64 vcc, vcc, s[70:71]')
    if cfg.get('noplan'): a('s_mov_b64 vcc, 1')
    a('s_cmp_eq_u64 vcc, 0')
    a(f's_cbranch_scc1 {Lok}')
    a(f'v_mov_b32 v{vgv}, 0')
    a(f'v_mov_b32 v{vtv}, 0')
    a.label(Lok)
    a(f'v_lshl_or_b32 v{vSx}, v{vtv}, 16, v{vgv}')
    scan32(vSx)
    a(f'v_and_b32 v{vGE}, 0xffff, v{vSx}')
    a(f'v_mov_b32 v{vT}, 0x7fffffff')
    a(f'v_cndmask_b32 v{vGE}, v{vT}, v{vGE}, s[64:65]')
    a(f'v_lshrrev_b32 v{vTP}, 16, v{vSx}')
    a(f'v_sub_u32 v{vTP}, v{vTP}, v{vtv}')
    a(f'v_readlane_b32 s64, v{vgv}, s{sJ}')
    a(f'v_readlane_b32 s65, v{vtv}, s{sJ}')
    a(f'v_readlane_b32 s70, v{vTP}, s{sJ}')
    a(f's_sub_u32 s64, {OWN}, s64')
    a(f's_lshl_b32 s71, s2, 20')
    a(f's_add_u32 s71, s71, {(128 - OWN) << 13}')
    a(f'v_lshlrev_b32 v{vL}, 13, v0')
    a(f'v_add_u32 v{vL}, s71, v{vL}')
    a(f'v_mov_b32 v{vT}, {INVALID:#x}')
    a(f'v_cmp_gt_u32 vcc, s64, v0')
    a(f's_lshl_b32 s71, s{sHead}, 25')
    a(f's_add_u32 s71, s71, {128 << 13}')
    a(f'v_cndmask_b32 v{vL}, v{vT}, v{vL}, vcc')
    if cfg.get('prof'):
        a('s_lshl_b32 s79, s65, 8')
        a('s_add_u32 s79, s79, s64')
    Lk = a.newlabel('pl_k'); Lkd = a.newlabel('pl_kd')
    a.label(Lk)
    a('s_cmp_eq_u32 s65, 0')
    a(f's_cbranch_scc1 {Lkd}')
    a(f'v_cmp_ge_u32 vcc, s70, v{vGE}')
    a('s_bcnt1_i32_b64 s76, vcc')
    a('s_mov_b32 m0, s64')
    a(f'v_readlane_b32 s77, v{vGE}, s76')
    a('s_sub_u32 s77, s77, s70')
    a('s_lshl_b32 s77, s77, 13')
    a('s_lshl_b32 s76, s76, 20')
    a('s_add_u32 s76, s76, s71')
    a('s_sub_u32 s76, s76, s77')
    a(f'v_writelane_b32 v{vL}, s76, m0')
    a('s_add_u32 s64, s64, 1')
    a('s_add_u32 s70, s70, 1')
    a('s_sub_u32 s65, s65, 1')
    a(f's_branch {Lk}')
    a.label(Lkd)
    a(f'v_lshlrev_b32 v{vAd}, 2, v0')
    a(f'ds_write_b32 v{vAd}, v{vL} offset:{LDS_LIST}')
    a(f'ds_write_b32 v{vZ}, v{vPc+1} offset:{LDS_FLAG}')
    stamp(a, cfg, 70)
    stamp_store(a, cfg, [(17, 79), (18, 66), (19, 68), (20, 70)], vt)
    a('s_barrier')
    if cfg.get('s2delay'): a(f's_sleep {cfg["s2delay"]}')
    loads = [f'buffer_load_dwordx4 {vr(vML,4)}, v{vo2}, {sr(S_WS,4)}, s{sT2} offen sc1',
             f'buffer_load_dwordx4 {vr(vML+4,4)}, v{vo2}, {sr(S_WS,4)}, s{sT2} offen offset:16 sc1']
    for k in range(4):
        loads.append(f'buffer_load_dwordx4 {vr(vOq+4*k,4)}, v{vOa}, {sr(S_WS,4)}, s{sT if k == 0 else 72 + k} offen sc1')
    poll(a, loads, [vML, vML + 4] + [vOq + 4 * k for k in range(4)], vt, sCnt, name='ps2', sleep=cfg.get('s2sleep', 1))
    stamp(a, cfg, 62)
    M = [vt, vt + 1]
    a(f'v_mov_b32 v{M[0]}, v{vML}')
    a(f'v_mov_b32 v{M[1]}, v{vML+2}')
    xlane_reduce(a, M, [vt + 2, vt + 3], 'v_max_f32', ['x1', 'x2', 'r4', 'r8', 'p16'])
    for hh in range(2):
        a(f'v_sub_f32 v{vML+2*hh}, v{vML+2*hh}, v{M[hh]}')
        a(f'v_mul_f32 v{vML+2*hh}, s{sC}, v{vML+2*hh}')
    for hh in range(2):
        a(f'v_exp_f32 v{vML+2*hh}, v{vML+2*hh}')
    a('s_nop 0')
    for k in range(4):
        for hh in range(2):
            a(f'ds_bpermute_b32 v{vW+2*k+hh}, v{vo3}, v{vML+2*hh} offset:{32*k}')
    for hh in range(2):
        a(f'v_mul_f32 v{vacc+2+hh}, v{vML+2*hh}, v{vML+4+2*hh}')
    a('s_mov_b32 exec_lo, 0')
    for hh in range(2):
        a(f'v_mov_b32 v{vacc+2+hh}, 0')
    a('s_mov_b32 exec_lo, -1')
    xlane_reduce(a, [vacc + 2, vacc + 3], [vt + 2, vt + 3], 'v_add_f32', ['x1', 'x2', 'r4'])
    a('s_waitcnt lgkmcnt(0)')
    for k in range(4):
        for hh in range(2):
            if k == 0: a(f'v_mul_f32 v{vacc+hh}, v{vW+2*k+hh}, v{vOq+4*k+2*hh}')
            else: a(f'v_fmac_f32 v{vacc+hh}, v{vW+2*k+hh}, v{vOq+4*k+2*hh}')
    a('s_nop 1')
    xlane_reduce(a, [vacc + i for i in range(4)], [vtmp + i for i in range(4)], 'v_add_f32', ['r8', 'p16', 'p32'])
    a(f'v_rcp_f32 v{vacc+2}, v{vacc+2}')
    a(f'v_rcp_f32 v{vacc+3}, v{vacc+3}')
    a('s_nop 0')
    for hh in range(2):
        a(f'v_mul_f32 v{vacc+hh}, v{vacc+hh}, v{vacc+2+hh}')
    a('s_nop 1')
    for hh in range(2):
        a(f'v_mov_b32_dpp v{vacc+2+hh}, v{vacc+hh} quad_perm:[1,0,3,2] row_mask:0xf bank_mask:0xf')
    for hh in range(2):
        a(f'v_cvt_pk_bf16_f32 v{vt+hh}, v{vacc+hh}, v{vacc+2+hh}')
    a('s_nop 0')
    for hh in range(2):
        for g in range(4):
            a(f'v_readlane_b32 s{sPk+4*hh+g}, v{vt+hh}, {2*g}')
    a('s_nop 1')
    for pr in range(8):
        for col in range(8):
            c0 = '0' if pr == 0 else f'v{vCh+2*col}'
            a(f'v_dot2_f32_bf16 v{vCh+2*col}, v{vWp+8*pr+col}, s{sPk+pr}, {c0}')
    a('s_mov_b32 exec_hi, 0x00ffffff')
    a('s_nop 1')
    for c in range(4):
        a(f'buffer_store_dwordx4 {vr(vCh+4*c,4)}, v{vo1}, {sr(S_WS,4)}, s72 offen offset:{896*c} sc1')
    a('s_mov_b64 exec, -1')
    stamp(a, cfg, 64)
    if cfg.get('b4', 1): a('s_barrier')
    stamp_store(a, cfg, [(2, 62), (3, 64)], vt)
    stamp_flush(a, cfg, [0, 7, 8, 9, 1, 16, 17, 18, 19, 20, 2, 3], vt)
    a('s_endpgm')
    return V.n


def gen_auxB(a, cfg):
    V = Regs(1, 256)
    vt = V.alloc(8, 4)
    vX = V.alloc(16, 4)
    vacc = V.alloc(16, 4)
    vtmp = V.alloc(16, 4)
    vb = V.alloc(4, 4)
    vo1 = V.alloc(); vo2 = V.alloc(); vo3 = V.alloc(); vg = V.alloc(); vBa = V.alloc()
    vCh = V.alloc(16, 4)
    vW = V.alloc(64, 4)
    vD = V.alloc(64, 4)
    vY = vW
    sX = 4; sWG = 8; sWU = 44; sWD = 48; sDBG = 64; sGW = 68; sOUT = 72
    sT = 52; sT2 = 53; sKq = 54; sJ = 55; sCnt = 56; sF = 57; sG = 62; sG1 = 63
    sPk = 16
    vm = VM(a)
    srd(a, sDBG, P_DBG, 256)
    Lnt = a.newlabel('notag')
    a(f'v_mov_b32 v{vo3}, 0')
    a('s_cmp_lg_u32 s2, 0')
    a(f's_cbranch_scc1 {Lnt}')
    a(f's_memrealtime s[{sG}:{sG1}]')
    a('s_waitcnt lgkmcnt(0)')
    a(f's_or_b32 s{sG}, s{sG}, 1')
    a(f'v_mov_b32 v{vo2}, s{sG}')
    a('s_mov_b64 exec, 1')
    a(f'buffer_store_dword v{vo2}, v{vo3}, {sr(sDBG,4)}, 0 offen sc1')
    a('s_mov_b64 exec, -1')
    a.label(Lnt)
    a('s_barrier')
    srd(a, sX, P_X, 896)
    srd(a, sWG, P_WG, 448 * 3584)
    srd(a, sWU, P_WU, 448 * 3584)
    srd(a, sWD, P_WD, 1792 * 896)
    srd(a, sGW, P_GW, 896)
    srd(a, sOUT, P_OUT, 896)
    Lnoffn = a.newlabel('noffn'); Lnofin = a.newlabel('nofin')
    a('s_barrier')
    a(f'ds_read_b32 v{vo2}, v{vo3} offset:{LDS_TAG}')
    a('s_waitcnt lgkmcnt(0)')
    a(f'v_readfirstlane_b32 s{S_TA}, v{vo2}')
    tagB(a)
    for i in range(8):
        a(f'v_mov_b32 v{vCh+2*i+1}, s{S_TA if i % 2 == 0 else S_TB}')
    a(f'v_lshlrev_b32 v{vBa}, 4, v0')
    a(f's_mov_b32 s84, {WS_SIZE:#x}')
    a(f's_and_b32 s{sT}, s2, 31')
    a(f's_cmp_lt_u32 s{sT}, {32 if cfg.get("noffn") else 25}')
    a(f's_cbranch_scc1 {Lnoffn}')
    if cfg.get('fsleep'): a(f's_sleep {cfg["fsleep"]}')
    a(f's_sub_u32 s{sT}, s{sT}, 25')
    a(f's_lshr_b32 s{sT2}, s2, 6')
    a(f's_mul_i32 s{sT2}, s{sT2}, 7')
    a(f's_add_u32 s{sT}, s{sT}, s{sT2}')
    a(f's_lshl_b32 s{sF}, s{sT}, 1')
    a(f's_bfe_u32 s{sT2}, s2, 0x10005')
    a(f's_add_u32 s{sF}, s{sF}, s{sT2}')
    a(f'v_lshrrev_b32 v{vo1}, 2, v0')
    a(f'v_mul_u32_u24 v{vo2}, {28*3584}, v{vo1}')
    a(f'v_and_b32 v{vo3}, 3, v0')
    a(f'v_lshl_add_u32 v{vo2}, v{vo3}, 4, v{vo2}')
    a(f'v_mul_u32_u24 v{vo3}, 56, v{vo1}')
    for k in range(3):
        vm.issue(f'buffer_load_dwordx4 {vr(vX+4*k,4)}, v{vo3}, {sr(sX,4)}, 0 offen offset:{16*k}')
    vm.issue(f'buffer_load_dwordx2 {vr(vX+12,2)}, v{vo3}, {sr(sX,4)}, 0 offen offset:48')
    a(f'v_min_u32 v{vo1}, 55, v0')
    a(f'v_lshlrev_b32 v{vo1}, 4, v{vo1}')
    wflag = cfg.get('wflag', '')
    def unitW(sW, k0, buf):
        a(f's_lshl_b32 s{sT}, s{sF}, 6')
        if k0: a(f's_add_u32 s{sT}, s{sT}, {k0*3584}')
        lw = []
        for k in range(14):
            lw.append(vm.issue(f'buffer_load_dwordx4 {vr(buf+4*k,4)}, v{vo2}, {sr(sW,4)}, s{sT} offen offset:{(k%2)*3584} {wflag}'))
            if k % 2 == 1 and k < 13: a(f's_add_u32 s{sT}, s{sT}, {2*3584}')
        return lw
    def unitD(u, buf):
        a(f's_mul_i32 s{sT}, s{sF}, {32*896}')
        if u: a(f's_add_u32 s{sT}, s{sT}, {16*896}')
        lw = []
        for e in range(16):
            lw.append(vm.issue(f'buffer_load_dwordx4 {vr(buf+4*e,4)}, v{vo1}, {sr(sWD,4)}, s{sT} offen offset:{(e%4)*896} nt'))
            if e % 4 == 3 and e < 15: a(f's_add_u32 s{sT}, s{sT}, {4*896}')
        return lw
    def compW(buf, k0, m, lw):
        gemv_pairs(a, vm, [buf + 4 * k for k in range(14)], 14, 4, vX + k0 // 2, [vacc + 8 * m + i for i in range(8)], [vtmp + i for i in range(8)], lw, first=(k0 == 0))
    l0 = unitW(sWG, 0, vW); l1 = unitW(sWG, 14, vD)
    compW(vW, 0, 0, l0); l2 = unitW(sWU, 0, vW)
    compW(vD, 14, 0, l1); l3 = unitW(sWU, 14, vD)
    compW(vW, 0, 1, l2); l4 = unitD(0, vW)
    compW(vD, 14, 1, l3); l5 = unitD(1, vD)
    xlane_reduce(a, [vacc + i for i in range(16)], [vtmp + i for i in range(16)], 'v_add_f32', ['r4', 'r8', 'p16', 'p32'])
    stamp(a, cfg, 90)
    for i in range(16):
        rnd_bf16(a, vacc + i, vacc + i, vtmp + i)
    a(f's_mov_b32 s{sT}, {f2u(0.044715):#x}')
    a(f's_mov_b32 s{sT2}, {f2u(-2*0.7978845608028654*1.4426950408889634):#x}')
    for i in range(8):
        x = vacc + i; t = vtmp + i
        a(f'v_mul_f32 v{t}, v{x}, v{x}')
        a(f'v_mul_f32 v{t}, v{t}, v{x}')
        a(f'v_fma_f32 v{t}, v{t}, s{sT}, v{x}')
        a(f'v_mul_f32 v{t}, s{sT2}, v{t}')
    for i in range(8):
        a(f'v_exp_f32 v{vtmp+i}, v{vtmp+i}')
    for i in range(8):
        a(f'v_add_f32 v{vtmp+i}, 1.0, v{vtmp+i}')
    for i in range(8):
        a(f'v_rcp_f32 v{vtmp+i}, v{vtmp+i}')
    for i in range(8):
        a(f'v_mul_f32 v{vacc+i}, v{vacc+i}, v{vtmp+i}')
    for i in range(8):
        rnd_bf16(a, vacc + i, vacc + i, vtmp + i)
    for i in range(8):
        a(f'v_mul_f32 v{vacc+i}, v{vacc+i}, v{vacc+8+i}')
    for d in range(4):
        a(f'v_cvt_pk_bf16_f32 v{vt+d}, v{vacc+2*d}, v{vacc+2*d+1}')
    a('s_nop 0')
    for c4 in range(4):
        for d in range(4):
            a(f'v_readlane_b32 s{sPk+4*c4+d}, v{vt+d}, {c4}')
    a(f's_mul_i32 s84, s{sF}, 3584')
    a(f's_add_u32 s84, s84, {WS_B:#x}')
    stamp(a, cfg, 92)
    for u, (buf, lw) in enumerate([(vW, l4), (vD, l5)]):
        for pr in range(8):
            vm.wait(lw[2 * pr + 1])
            r0 = buf + 4 * (2 * pr); r1 = buf + 4 * (2 * pr + 1)
            for d in range(4):
                a(f'v_perm_b32 v{vtmp+2*d}, v{r1+d}, v{r0+d}, s{S_SELLO}')
                a(f'v_perm_b32 v{vtmp+2*d+1}, v{r1+d}, v{r0+d}, s{S_SELHI}')
            for col in range(8):
                c0 = '0' if (pr == 0 and u == 0) else f'v{vCh+2*col}'
                a(f'v_dot2_f32_bf16 v{vCh+2*col}, v{vtmp+col}, s{sPk+8*u+pr}, {c0}')
    def bstore():
        L = a.newlabel('nobst')
        a(f's_and_b32 s{sT}, s2, 31')
        a(f's_cmp_lt_u32 s{sT}, {32 if cfg.get("noffn") else 25}')
        a(f's_cbranch_scc1 {L}')
        a('s_mov_b32 exec_hi, 0x00ffffff')
        for c in range(4):
            a(f'buffer_store_dwordx4 {vr(vCh+4*c,4)}, v{vBa}, {sr(S_WS,4)}, s84 offen offset:{896*c} sc1')
        a('s_mov_b64 exec, -1')
        a.label(L)
    a('s_nop 2')
    if cfg.get('bearly'): bstore()
    stamp(a, cfg, 94)
    stamp_store(a, cfg, [(13, 90), (14, 92), (15, 94)], vt)
    a.label(Lnoffn)
    a(f's_cmp_lt_u32 s2, {FIN0}')
    a(f's_cbranch_scc1 {Lnofin}')
    a(f's_sub_u32 s{sJ}, s2, {FIN0}')
    a(f'v_lshlrev_b32 v{vo1}, 4, v0')
    a(f'buffer_load_dwordx4 {vr(vX,4)}, v{vo1}, {sr(sX,4)}, 0 offen')
    a(f'buffer_load_dwordx4 {vr(vX+4,4)}, v{vo1}, {sr(sGW,4)}, 0 offen')
    a('s_waitcnt vmcnt(0)')
    for d in range(4):
        a(f'v_lshlrev_b32 v{vt}, 16, v{vX+d}')
        a(f'v_lshlrev_b32 v{vt+1}, 16, v{vX+4+d}')
        a(f'v_and_b32 v{vt+2}, 0xffff0000, v{vX+d}')
        a(f'v_and_b32 v{vt+3}, 0xffff0000, v{vX+4+d}')
        a(f'v_mul_f32 v{vt}, v{vt}, v{vt+1}')
        a(f'v_mul_f32 v{vt+2}, v{vt+2}, v{vt+3}')
        a(f'v_cvt_pk_bf16_f32 v{vt}, v{vt}, v{vt+2}')
        a(f'v_lshlrev_b32 v{vt+1}, 16, v{vt}')
        a(f'v_and_b32 v{vt+2}, 0xffff0000, v{vt}')
        if d == 0:
            a(f'v_add_f32 v{vg}, v{vt+1}, v{vt+2}')
        else:
            a(f'v_add_f32 v{vg}, v{vg}, v{vt+1}')
            a(f'v_add_f32 v{vg}, v{vg}, v{vt+2}')
    xlane_reduce(a, [vg], [vt], 'v_add_f32', ['x1', 'x2', 'r4', 'r8', 'p16', 'p32'])
    rnd_bf16(a, vg, vg, vt)
    a(f'v_mul_f32 v{vg}, {f2u(-1.4426950408889634):#x}, v{vg}')
    a(f'v_exp_f32 v{vg}, v{vg}')
    a('s_nop 0')
    a(f'v_add_f32 v{vg}, 1.0, v{vg}')
    a(f'v_rcp_f32 v{vg}, v{vg}')
    a('s_nop 0')
    rnd_bf16(a, vg, vg, vt)
    a(f'v_sub_f32 v{vt+1}, 1.0, v{vg}')
    rnd_bf16(a, vt + 1, vt + 1, vt)
    a('s_nop 0')
    a(f'v_readfirstlane_b32 s{sG}, v{vg}')
    a(f'v_readfirstlane_b32 s{sG1}, v{vt+1}')
    a(f'v_lshrrev_b32 v{vo1}, 2, v0')
    a(f'v_mul_u32_u24 v{vo1}, 3584, v{vo1}')
    a(f'v_and_b32 v{vo2}, 3, v0')
    a(f'v_lshl_add_u32 v{vo1}, v{vo2}, 4, v{vo1}')
    a(f's_and_b32 s{sT}, s{sJ}, 3')
    a(f's_mul_i32 s{sT}, s{sT}, 14')
    a(f's_lshr_b32 s{sT2}, s{sJ}, 2')
    a(f's_add_u32 s{sT}, s{sT}, s{sT2}')
    a(f's_lshl_b32 s{sF}, s{sT}, 6')
    def gather(base, n, name, sleep):
        for k in range(n):
            a(f's_add_u32 s{16+k}, s{sF}, {base + k * 16 * 3584:#x}')
        return [f'buffer_load_dwordx4 {vr(vY+4*k,4)}, v{vo1}, {sr(S_WS,4)}, s{16+k} offen sc1' for k in range(n)]
    def sumup(dst, n):
        for e in range(2):
            a(f'v_add_f32 v{dst+e}, v{vY+2*e}, v{vY+4+2*e}')
            a(f'v_add_f32 v{dst+2+e}, v{vY+8+2*e}, v{vY+12+2*e}')
        for k in range(4, n):
            for e in range(2):
                d = dst + e + 2 * (k & 1)
                a(f'v_add_f32 v{d}, v{d}, v{vY+4*k+2*e}')
        for e in range(2):
            a(f'v_add_f32 v{dst+e}, v{dst+e}, v{dst+2+e}')
        xlane_reduce(a, [dst, dst + 1], [vtmp, vtmp + 1], 'v_add_f32', ['r4', 'r8', 'p16', 'p32'])
    LATE = cfg.get('pblate', 1)
    if LATE: a('s_barrier')
    if not cfg.get('bearly'): bstore()
    loads = gather(WS_B, 4, 'pb', 8)
    a(f'v_mov_b32 v{vo2}, v{vo1}')
    a('s_mov_b32 exec_lo, 0')
    a(f'v_subrev_u32 v{vo2}, {8*3584}, v{vo2}')
    a('s_mov_b32 exec_lo, -1')
    loads[3] = loads[3].replace(f'v{vo1},', f'v{vo2},')
    if not cfg.get('noffn'):
        poll(a, loads, [vY + 4 * k for k in range(4)], vt, sCnt, name='pb', sleep=cfg.get('bsleep', 16))
    a('s_mov_b32 exec_lo, 0')
    a(f'v_mov_b32 v{vY+12}, 0')
    a(f'v_mov_b32 v{vY+14}, 0')
    a('s_mov_b32 exec_lo, -1')
    sumup(vb, 4)
    for i in range(2):
        rnd_bf16(a, vb + i, vb + i, vtmp + i)
        a(f'v_mul_f32 v{vb+i}, s{sG1}, v{vb+i}')
        rnd_bf16(a, vb + i, vb + i, vtmp + i)
    stamp(a, cfg, 76)
    stamp_store(a, cfg, [(10, 76)], vt)
    loads = gather(WS_Y, 16, 'py', 1)
    a(f'v_lshlrev_b32 v{vo2}, 4, v0')
    a(f's_lshr_b32 s{sT2}, s{sJ}, 2')
    a(f's_lshl_b32 s{sT2}, s{sT2}, 6')
    a(f's_and_b32 s{sKq}, s{sJ}, 3')
    a(f's_lshl_b32 s{sKq}, s{sKq}, 2')
    a(f's_add_u32 s{sT2}, s{sT2}, s{sKq}')
    if not LATE: a('s_barrier')
    if cfg.get('b4', 1): a('s_barrier')
    poll(a, loads, [vY + 4 * k for k in range(16)], vt, sCnt, name='py', sleep=cfg.get('ysleep', 1))
    sumup(vacc, 16)
    for i in range(2):
        rnd_bf16(a, vacc + i, vacc + i, vtmp + i)
        a(f'v_mul_f32 v{vacc+i}, s{sG}, v{vacc+i}')
        rnd_bf16(a, vacc + i, vacc + i, vtmp + i)
        a(f'v_add_f32 v{vacc+i}, v{vacc+i}, v{vb+i}')
    a(f'v_cvt_pk_bf16_f32 v{vt}, v{vacc}, v{vacc+1}')
    a('s_mov_b64 exec, 15')
    a(f'buffer_store_dword v{vt}, v{vo2}, {sr(sOUT,4)}, s{sT2} offen')
    a('s_mov_b64 exec, -1')
    stamp(a, cfg, 76)
    stamp_store(a, cfg, [(6, 76)], vt + 2)
    stamp_flush(a, cfg, [13, 14, 15, 10, 6], vt + 2)
    if cfg.get('dbgt'):
        a('s_memrealtime s[76:77]')
        a('s_waitcnt lgkmcnt(0)')
        a(f's_sub_u32 s76, s76, s{S_TA}')
        a(f'v_mov_b32 v{vt+2}, s76')
        a(f'v_mov_b32 v{vt+3}, 0')
        a('s_mov_b64 exec, 1')
        a(f'buffer_atomic_umax v{vt+2}, v{vt+3}, {sr(sDBG,4)}, 0 offen offset:4')
        a(f'buffer_atomic_umin v{vt+2}, v{vt+3}, {sr(sDBG,4)}, 0 offen offset:8')
    a('s_endpgm')
    a.label(Lnofin)
    a('s_barrier')
    if not cfg.get('bearly'): bstore()
    stamp_flush(a, cfg, [13, 14, 15], vt)
    a('s_endpgm')
    return V.n


def gen(cfg):
    a = Asm()
    a.raw(kernel_header(NAME))
    a('s_cmp_ge_u32 s2, 256')
    a('s_cbranch_scc1 L_end')
    a('s_load_dwordx16 s[16:31], s[0:1], 0')
    a('s_load_dwordx8 s[32:39], s[0:1], 64')
    a('s_load_dwordx2 s[40:41], s[0:1], 96')
    a('v_lshrrev_b32 v1, 6, v0')
    a('v_and_b32 v0, 63, v0')
    a(f'v_readfirstlane_b32 s{S_WAVE}, v1')
    a(f's_mov_b32 s{S_SELLO}, 0x05040100')
    a(f's_mov_b32 s{S_SELHI}, 0x07060302')
    a('s_waitcnt lgkmcnt(0)')
    srd(a, S_WS, P_WS, WS_SIZE)
    a(f's_cmp_eq_u32 s{S_WAVE}, 2')
    a('s_cbranch_scc1 L_auxA')
    a(f's_cmp_eq_u32 s{S_WAVE}, 3')
    a('s_cbranch_scc1 L_auxB')
    n0 = gen_stream(a, cfg)
    a.label('L_auxA')
    n1 = gen_auxA(a, cfg)
    a.label('L_auxB')
    n2 = gen_auxB(a, cfg)
    a.label('L_end')
    a('s_endpgm')
    nv = max(n0, n1, n2)
    if cfg.get('prof'): nv = max(nv, PROFV + 1)
    acc_off = (nv + 3) // 4 * 4
    npre = cfg.get('npre', 4)
    print('vgprs', n0, n1, n2, 'agprs', 64 * npre, file=sys.stderr)
    hdr = open('gated_mix__gqa_block_cached__geglu_ffn__decode.s.ref').read().split('; @launch')[0]
    lds = cfg.get('lds', 8192)
    hdr += f'; @launch grid=(256,1,1) block=(256,1,1) lds={lds}\n.amdgcn_target "amdgcn-amd-amdhsa--gfx950"\n'
    return hdr + a.text() + kernel_desc(NAME, acc_off + 64 * npre, 102, acc_off)


if __name__ == '__main__':
    cfg = json.loads(sys.argv[2]) if len(sys.argv) > 2 else {}
    open(sys.argv[1], 'w').write(gen(cfg))
```

```python
import sys, struct, json
from asmlib import *

def f2u(f): return struct.unpack('<I', struct.pack('<f', f))[0]
C_SCALE = f2u(1.4426950408889634 / 16.0)

WS_QP = 0x0
WS_TK = 0x4e0000
TK_STRIDE = 4352
WS_PROF = 0x24000
WS_GP = 0x40000
WS_PLAN = 0x40000
WS_IT = 0x80000
WS_ML = 0x60000
WS_O = 0x100000
WS_Y = 0x300000
WS_B = 0x400000
WS_SIZE = 0x500000

NAME = 'gated_mix__gqa_block_cached__geglu_ffn__decode_kernel'
P_X, P_K, P_V, P_WQ, P_WO, P_BX, P_WG, P_WU, P_WD, P_GW, P_OUT, P_DBG, P_WS = [16 + 2 * i for i in range(13)]
S_WS = 12
S_WAVE = 3
S_SELLO = 60; S_SELHI = 61
S_TA = 88; S_TB = 89
POLL_MAX = 1 << 14
FIN0 = 200
INVALID = 0x20000000
LDS_TAG = 1024
LDS_CTR = 1028
LDS_FLAG = 1032
LDS_REC = 2048
LDS_LIST = 3072
LDS_DONE = 1036
LDS_FLAG2 = 1040
LDS_CMB = 4096


class VM:
    def __init__(self, a):
        self.a = a; self.n = 0
    def issue(self, s):
        self.a(s); self.n += 1
        return self.n - 1
    def wait(self, idx):
        k = self.n - idx - 1
        assert 0 <= k <= 63
        self.a(f's_waitcnt vmcnt({k})')


def srd(a, d, p, nbytes):
    a(f's_mov_b32 s{d}, s{p}')
    a(f's_mov_b32 s{d+1}, s{p+1}')
    a(f's_mov_b32 s{d+2}, {nbytes:#x}')
    a(f's_mov_b32 s{d+3}, 0x00020000')


def dpp(op, d, s0, s1, ctrl):
    return f'{op}_dpp v{d}, v{s0}, v{s1} {ctrl} row_mask:0xf bank_mask:0xf'


def xlane_reduce(a, regs, tmps, op, steps):
    n = len(regs)
    for st in steps:
        if st in ('x1', 'x2', 'r4', 'r8'):
            ctrl = {'x1': 'quad_perm:[1,0,3,2]', 'x2': 'quad_perm:[2,3,0,1]', 'r4': 'row_ror:4', 'r8': 'row_ror:8'}[st]
            if n < 3: a('s_nop 1')
            for r in regs:
                a(dpp(op, r, r, r, ctrl))
        else:
            ins = 'v_permlane16_swap_b32' if st == 'p16' else 'v_permlane32_swap_b32'
            for r, t in zip(regs, tmps):
                a(f'v_mov_b32 v{t}, v{r}')
            a('s_nop 1')
            for r, t in zip(regs, tmps):
                a(f'{ins} v{r}, v{t}')
            if n < 2: a('s_nop 0')
            for r, t in zip(regs, tmps):
                a(f'{op} v{r}, v{r}, v{t}')


def tagB(a):
    a(f's_mul_i32 s{S_TB}, s{S_TA}, 0x9e3779b1')
    a(f's_add_u32 s{S_TB}, s{S_TB}, 0x7f4a7c15')


def poll(a, loads, chunks, vt, scnt, name='poll', sleep=1):
    L = a.newlabel(name); D = a.newlabel(name + '_done')
    a(f's_mov_b32 s{scnt}, {POLL_MAX}')
    a.label(L)
    for l in loads: a(l)
    n = len(chunks)
    for i, c in enumerate(chunks):
        if i % 4 == 0:
            a(f's_waitcnt vmcnt({max(0, n - i - 4)})')
        a(f'v_xor_b32 v{vt+1}, s{S_TA}, v{c+1}')
        a(f'v_xor_b32 v{vt+2}, s{S_TB}, v{c+3}')
        if i == 0: a(f'v_or_b32 v{vt}, v{vt+1}, v{vt+2}')
        else: a(f'v_or3_b32 v{vt}, v{vt}, v{vt+1}, v{vt+2}')
    a(f'v_cmp_ne_u32 vcc, 0, v{vt}')
    a('s_mov_b64 exec, vcc')
    a(f's_cbranch_execz {D}')
    a(f's_sub_u32 s{scnt}, s{scnt}, 1')
    a(f's_cbranch_scc1 {D}')
    if sleep: a(f's_sleep {sleep}')
    a(f's_branch {L}')
    a.label(D)
    a('s_mov_b64 exec, -1')


def mkchunks(a, dst, vals):
    for i, v in enumerate(vals):
        a(f'v_mov_b32 v{dst+2*i}, v{v}')
        a(f'v_mov_b32 v{dst+2*i+1}, s{S_TA if i % 2 == 0 else S_TB}')


def stamp(a, cfg, sreg):
    if cfg.get('prof'): a(f's_memrealtime s[{sreg}:{sreg+1}]')

PROFV = 227
class Prof:
    slots = 0
def stamp_store(a, cfg, pairs, vt):
    if not cfg.get('prof'): return
    a('s_waitcnt lgkmcnt(0)')
    for slot, sreg in pairs:
        a(f'v_writelane_b32 v{PROFV}, s{sreg}, {slot}')

def stamp_flush(a, cfg, slots, vt):
    if not cfg.get('prof'): return
    m = sum(1 << s for s in slots)
    a(f's_lshl_b32 s78, s2, 7')
    a(f's_add_u32 s78, s78, {WS_PROF:#x}')
    a(f'v_lshlrev_b32 v{vt}, 2, v0')
    a(f's_mov_b32 exec_lo, {m:#x}')
    a('s_mov_b32 exec_hi, 0')
    a(f'buffer_store_dword v{PROFV}, v{vt}, s[{S_WS}:{S_WS+3}], s78 offen')
    a('s_mov_b64 exec, -1')


def gen_stream(a, cfg):
    D = 2
    NPRE = cfg.get('npre', 4)
    SL = cfg.get('sl', 58)
    flags = 'nt'
    V = Regs(1, 256)
    vKoff = V.alloc(); vVoff = V.alloc()
    vm = V.alloc(); vl = V.alloc(); vt0 = V.alloc(); vt1 = V.alloc(); valpha = V.alloc(); vmc = V.alloc()
    vc = V.alloc(); vg = V.alloc(); vRa = V.alloc()
    vTk = V.alloc(); vOne = V.alloc(); vList = V.alloc()
    vIt = V.alloc()
    vRec = V.alloc(2, 2)
    vmask = V.alloc(4, 4)
    vS = V.alloc(4, 4)
    vP = V.alloc(4, 4)
    vacc = V.alloc(8, 4)
    vA = V.alloc(16, 4)
    vQ = V.alloc(32, 4)
    vKb = [V.alloc(32, 4) for _ in range(D)]
    vVb = [V.alloc(32, 4) for _ in range(D)]
    sK = 4; sVv = 8
    sOff = [44, 45]
    sC = 47; sTmp = 48; sBase = 49; sHead = 50; sSplit = 51; sT2 = 52
    sDyn = 53; sCtr = 54; sTk = 56
    sNs = [42, 43]
    srd(a, sK, P_K, 0x10000000)
    srd(a, sVv, P_V, 0x10000000)
    a(f's_lshr_b32 s{sHead}, s2, 5')
    a(f's_and_b32 s{sSplit}, s2, 31')
    a(f's_lshl_b32 s{sTmp}, s{S_WAVE}, 13')
    a(f's_lshl_b32 s{sBase}, s2, 20')
    a(f's_add_u32 s{sBase}, s{sBase}, s{sTmp}')
    XB = cfg.get('xb', 0)
    sXs = 46
    assert SL % (1 << XB) == 0
    if XB:
        a(f's_lshr_b32 s{sXs}, s2, 3')
        a(f's_lshr_b32 s{sTmp}, s2, 6')
        a(f's_add_u32 s{sXs}, s{sXs}, s{sTmp}')
        if cfg.get('xmode', 0) == 0: a(f's_add_u32 s{sXs}, s{sXs}, s2')
        a(f's_and_b32 s{sXs}, s{sXs}, {(1 << XB) - 1}')
        a(f's_lshl_b32 s{sXs}, s{sXs}, 14')
    def paddr(k):
        if XB:
            a(f's_xor_b32 s{sTmp}, s{sXs}, {k << 14}')
            a(f's_add_u32 s{sTmp}, s{sTmp}, s{sBase}')
        else:
            a(f's_add_u32 s{sTmp}, s{sBase}, {k << 14}')
    a(f's_mov_b32 s{sC}, {C_SCALE:#x}')
    for s_ in range(D):
        a(f's_mov_b32 s{sNs[s_]}, {NPRE + s_}')
    a(f'v_and_b32 v{vc}, 15, v0')
    a(f'v_lshrrev_b32 v{vg}, 4, v0')
    a(f'v_lshlrev_b32 v{vKoff}, 9, v{vc}')
    a(f'v_lshl_add_u32 v{vKoff}, v{vg}, 4, v{vKoff}')
    a(f'v_lshlrev_b32 v{vVoff}, 11, v{vg}')
    a(f'v_lshl_add_u32 v{vVoff}, v{vc}, 4, v{vVoff}')
    koffs = [j * 64 for j in range(8)]
    voffs = [i * 512 + hf * 256 for i in range(4) for hf in range(2)]
    def R(file, base, n): return f'{file}[{base}:{base+n-1}]'
    def issueK(file, base, so):
        for j in range(8):
            a(f'buffer_load_dwordx4 {R(file,base+4*j,4)}, v{vKoff}, {sr(sK,4)}, s{so} offen offset:{koffs[j]} {flags}')
    def issueV(file, base, so):
        for j in range(8):
            a(f'buffer_load_dwordx4 {R(file,base+4*j,4)}, v{vVoff}, {sr(sVv,4)}, s{so} offen offset:{voffs[j]} {flags}')
    PST = [66 + 2 * i for i in range(11)] + [90 + 2 * i for i in range(6)]
    pst_n = [0]
    def pst():
        if cfg.get('prof') and pst_n[0] < len(PST):
            r = PST[pst_n[0]]; pst_n[0] += 1
            a(f's_memrealtime s[{r}:{r+1}]')
    a('s_barrier')
    pst()
    seq = [('a', 64 * i, 64 * i + 32) for i in range(NPRE)] + [('v', vKb[s], vVb[s]) for s in range(D)]
    paddr(0)
    for i, (file, kb, vb) in enumerate(seq):
        if i >= 2:
            a(f's_waitcnt vmcnt(24)')
            pst()
        if file == 'v':
            s = i - NPRE
            a(f's_mov_b32 s{sOff[s]}, s{sTmp}')
        issueK(file, kb, sTmp)
        if i >= 2:
            a(f's_waitcnt vmcnt(24)')
            pst()
        issueV(file, vb, sTmp)
        paddr(i + 1)
        if i == 1:
            a(f'v_lshrrev_b32 v{vt1}, 2, v{vc}')
            a(f'v_and_b32 v{vt0}, 2, v0')
            a(f'v_lshlrev_b32 v{vt0}, 3, v{vt0}')
            a(f'v_mov_b32 v{vl}, 0xffff')
            a(f'v_lshlrev_b32 v{vt0}, v{vt0}, v{vl}')
            for j in range(4):
                a(f'v_cmp_eq_u32 vcc, {j}, v{vt1}')
                a('s_nop 1')
                a(f'v_cndmask_b32 v{vmask+j}, 0, v{vt0}, vcc')
            a(f'v_mov_b32 v{vm}, 0xf149f2ca')
            a(f'v_mov_b32 v{vl}, 0')
            for k in range(8):
                a(f'v_mov_b32 v{vacc+k}, 0')
            a(f's_lshl_b32 s{sT2}, s{S_WAVE}, 9')
            a(f's_add_u32 s{sT2}, s{sT2}, {LDS_REC}')
            a(f'v_lshlrev_b32 v{vRa}, 3, v0')
            a(f'v_add_u32 v{vRa}, s{sT2}, v{vRa}')
            a(f'v_mov_b32 v{vOne}, 1')
    a(f'v_and_b32 v{vt0}, 1, v0')
    a(f'v_lshlrev_b32 v{vt0}, 9, v{vt0}')
    a(f'v_lshl_add_u32 v{vt0}, v{vg}, 4, v{vt0}')
    a(f'v_mov_b32 v{vt1}, 0')
    stamp(a, cfg, 62)
    a('s_barrier')
    for j in range(8):
        a(f'ds_read_b128 {vr(vQ+4*j,4)}, v{vt0} offset:{j*64}')
    a(f'ds_read_b32 v{vt1}, v{vt1} offset:{LDS_TAG}')
    a('s_waitcnt lgkmcnt(0)')
    a(f'v_readfirstlane_b32 s{S_TA}, v{vt1}')
    pst()

    def qk(file, kb):
        for j in range(8):
            cc = '0' if j == 0 else vr(vS, 4)
            a(f'v_mfma_f32_16x16x32_bf16 {vr(vS,4)}, {R(file,kb+4*j,4)}, {vr(vQ+4*j,4)}, {cc}')
    def softmax():
        a(f'v_cvt_pk_bf16_f32 v{vt0}, v{vS}, v{vS+1}')
        a(f'v_cvt_pk_bf16_f32 v{vt1}, v{vS+2}, v{vS+3}')
        a(f'v_lshlrev_b32 v{vS}, 16, v{vt0}')
        a(f'v_and_b32 v{vS+1}, 0xffff0000, v{vt0}')
        a(f'v_lshlrev_b32 v{vS+2}, 16, v{vt1}')
        a(f'v_and_b32 v{vS+3}, 0xffff0000, v{vt1}')
        a(f'v_max3_f32 v{vt0}, v{vS}, v{vS+1}, v{vm}')
        a(f'v_max3_f32 v{vt0}, v{vS+2}, v{vS+3}, v{vt0}')
        a(f'v_mov_b32 v{vt1}, v{vt0}')
        a('s_nop 1')
        a(f'v_permlane32_swap_b32 v{vt0}, v{vt1}')
        a(f'v_max_f32 v{vt0}, v{vt0}, v{vt1}')
        a(f'v_mov_b32 v{vt1}, v{vt0}')
        a('s_nop 1')
        a(f'v_permlane16_swap_b32 v{vt0}, v{vt1}')
        a(f'v_max_f32 v{vt0}, v{vt0}, v{vt1}')
        a(f'v_sub_f32 v{valpha}, v{vm}, v{vt0}')
        a(f'v_mul_f32 v{valpha}, s{sC}, v{valpha}')
        a(f'v_exp_f32 v{valpha}, v{valpha}')
        a(f'v_mov_b32 v{vm}, v{vt0}')
        a(f'v_mul_f32 v{vmc}, s{sC}, v{vt0}')
        for i in range(4):
            a(f'v_fma_f32 v{vP+i}, v{vS+i}, s{sC}, -v{vmc}')
        for i in range(4):
            a(f'v_exp_f32 v{vP+i}, v{vP+i}')
        a(f'v_mul_f32 v{vl}, v{vl}, v{valpha}')
        a(f'v_add_f32 v{vt0}, v{vP}, v{vP+1}')
        a(f'v_add_f32 v{vt1}, v{vP+2}, v{vP+3}')
        a(f'v_add_f32 v{vl}, v{vl}, v{vt0}')
        a(f'v_add_f32 v{vl}, v{vl}, v{vt1}')
        for i in range(8):
            qp = '[0,0,2,2]' if (i & 1) == 0 else '[1,1,3,3]'
            a(f'v_mul_f32_dpp v{vacc+i}, v{valpha}, v{vacc+i} quad_perm:{qp} row_mask:0xf bank_mask:0xf')
        for i in range(4):
            a(f'v_cvt_pk_bf16_f32 v{vP+i}, v{vP+i}, v{vP+i}')
        for i in range(4):
            for j in range(4):
                a(f'v_and_b32 v{vA+4*i+j}, v{vP+i}, v{vmask+j}')
    def pv(file, vb):
        for i in range(4):
            for hf in range(2):
                a(f'v_mfma_f32_16x16x32_bf16 {vr(vacc+4*hf,4)}, {vr(vA+4*i,4)}, {R(file,vb+4*(2*i+hf),4)}, {vr(vacc+4*hf,4)}')
    NX = cfg.get('deep', 0)
    bufs = [('v', vKb[0], vVb[0], sOff[0]), ('v', vKb[1], vVb[1], sOff[1])] + [('a', 64 * i, 64 * i + 32, 16 + i) for i in range(NX)]
    sThr = 20
    def body(s, mode, depth=2):
        file, kb, vb, so = bufs[s]
        a(f's_waitcnt vmcnt({16 * depth - 8})')
        if mode == 'A':
            a('s_memrealtime s[58:59]')
        else:
            a('s_mov_b64 exec, 1')
            a(f'ds_add_rtn_u32 v{vTk}, v{vRa}, v{vOne}')
            a('s_mov_b64 exec, -1')
        qk(file, kb)
        if mode == 'A':
            a(f's_add_u32 s{sNs[s]}, s{sNs[s]}, 2')
            a(f's_lshl_b32 s{so}, s{sNs[s]}, 14')
            if XB: a(f's_xor_b32 s{so}, s{so}, s{sXs}')
            a(f's_add_u32 s{so}, s{so}, s{sBase}')
        else:
            a('s_waitcnt lgkmcnt(0)')
            a(f'v_readfirstlane_b32 s{sTk}, v{vTk}')
            if NX:
                a('s_nop 0')
                a(f's_min_u32 s{sTk}, s{sTk}, 63')
                a('s_nop 1')
            else:
                a('s_nop 3')
            a(f'v_readlane_b32 s{so}, v{vList}, s{sTk}')
            a('s_nop 4')
        issueK(file, kb, so)
        softmax()
        if mode == 'A':
            a('s_waitcnt lgkmcnt(0)')
            a(f'v_mov_b32 v{vRec}, s{sNs[s]}')
            a(f'v_mov_b32 v{vRec+1}, s58')
            a(f'ds_write_b64 v{vRa}, {vr(vRec,2)}')
        a(f's_waitcnt vmcnt({16 * depth - 8})')
        a('s_nop 0')
        pv(file, vb)
        issueV(file, vb, so)
    tagB(a)
    def atile(i):
        qk('a', 64 * i)
        a('s_nop 7')
        softmax()
        a('s_nop 1')
        pv('a', 64 * i + 32)
    pat = {0: '01abcd', 1: '0a1b0c1d', 2: '01a0b1c0d1', 3: '01ab0c1d', 4: '01a0b1cd'}[cfg.get('ilv', 0)]
    for ch in pat:
        if ch in '01': body(int(ch), 'A')
        else: atile(ord(ch) - ord('a'))
        pst()
    LA = a.newlabel('st_loopA'); LB = a.newlabel('st_loopB'); Ldone = a.newlabel('st_done')
    def itstamp():
        if cfg.get('prof'):
            a('s_memrealtime s[64:65]')
            a('s_mov_b32 m0, s57')
            a('s_waitcnt lgkmcnt(0)')
            a(f'v_writelane_b32 v{vIt}, s64, m0')
            a('s_add_u32 s57, s57, 1')
    if cfg.get('prof'):
        a('s_mov_b32 s57, 0')
        a(f'v_mov_b32 v{vIt}, 0')
        a('s_waitcnt lgkmcnt(0)')
        for k in range(pst_n[0]):
            a(f'v_writelane_b32 v{vIt}, s{PST[k]}, {40 + k}')
    a.label(LA)
    itstamp()
    for s in range(D): body(s, 'A')
    a(f's_cmp_lt_u32 s{sNs[1]}, {SL - 1}')
    a(f's_cbranch_scc1 {LA}')
    Lw = a.newlabel('st_pw'); Lg = a.newlabel('st_pg')
    a(f'v_mov_b32 v{vRa}, {LDS_CTR}')
    a(f'v_lshlrev_b32 v{vRec}, 2, v0')
    a(f's_mov_b32 s{sCtr}, {POLL_MAX}')
    if cfg.get('prof'): a('s_memrealtime s[66:67]')
    a.label(Lw)
    a(f'ds_read_b32 v{vTk}, v{vRa} offset:{LDS_FLAG - LDS_CTR}')
    a(f'ds_read_b32 v{vList}, v{vRec} offset:{LDS_LIST}')
    a('s_waitcnt lgkmcnt(0)')
    a(f'v_readfirstlane_b32 s{sTk}, v{vTk}')
    a(f's_cmp_eq_u32 s{sTk}, s{S_TA}')
    a(f's_cbranch_scc1 {Lg}')
    a(f's_sub_u32 s{sCtr}, s{sCtr}, 1')
    a(f's_cbranch_scc1 {Lg}')
    a('s_sleep 2')
    a(f's_branch {Lw}')
    a.label(Lg)
    if cfg.get('prof'):
        a('s_memrealtime s[68:69]')
        a('s_waitcnt lgkmcnt(0)')
        a(f'v_writelane_b32 v{vIt}, s66, 60')
        a(f'v_writelane_b32 v{vIt}, s68, 61')
    if NX:
        a(f'v_cmp_gt_u32 vcc, {INVALID:#x}, v{vList}')
        a(f'v_mov_b32 v{vRec+1}, {NX}')
        a(f's_bcnt1_i32_b64 s{sThr}, vcc')
        a(f's_sub_u32 s{sThr}, s{sThr}, {cfg.get("deepr", 6)}')
    a.label(LB)
    itstamp()
    for s in range(D):
        body(s, 'B')
        nx = (s + 1) % D
        a(f's_cmp_ge_u32 s{sOff[nx]}, {INVALID:#x}')
        if s == D - 1 and not NX:
            a(f's_cbranch_scc0 {LB}')
        else:
            a(f's_cbranch_scc1 {Ldone}')
    if NX:
        a(f's_cmp_lt_i32 s{sTk}, s{sThr}')
        a(f's_cbranch_scc1 {LB}')
        a('s_mov_b64 exec, 1')
        a(f'ds_add_rtn_u32 v{vTk}, v{vRa}, v{vRec+1}')
        a('s_mov_b64 exec, -1')
        a('s_waitcnt lgkmcnt(0)')
        a(f'v_readfirstlane_b32 s{sTk}, v{vTk}')
        for i in range(NX):
            file, kb, vb, so = bufs[2 + i]
            a('s_nop 0')
            if i: a(f's_add_u32 s{sTk}, s{sTk}, 1')
            a(f's_min_u32 s{sTk}, s{sTk}, 63')
            a('s_nop 1')
            a(f'v_readlane_b32 s{so}, v{vList}, s{sTk}')
            a('s_nop 4')
            issueK(file, kb, so)
            issueV(file, vb, so)
        LB4 = a.newlabel('st_loopB4')
        a.label(LB4)
        itstamp()
        DT = 2 + NX
        for s in range(DT):
            body(s, 'B', DT)
            nx = (s + 1) % DT
            a(f's_cmp_ge_u32 s{bufs[nx][3]}, {INVALID:#x}')
            if s == DT - 1:
                a(f's_cbranch_scc0 {LB4}')
            else:
                a(f's_cbranch_scc1 {Ldone}')
    a.label(Ldone)
    a('s_mov_b64 exec, 1')
    a(f'ds_add_rtn_u32 v{vTk}, v{vRa}, v{vOne} offset:{LDS_DONE - LDS_CTR}')
    a('s_mov_b64 exec, -1')
    xlane_reduce(a, [vl], [vt0], 'v_add_f32', ['p32', 'p16'])
    a(f'v_lshlrev_b32 v{vt0}, 4, v0')
    a(f's_lshl_b32 s{sT2}, s2, 7')
    a(f's_add_u32 s{sT2}, s{sT2}, {WS_ML:#x}')
    a(f's_lshl_b32 s{sBase}, s2, 12')
    a(f's_add_u32 s{sBase}, s{sBase}, {WS_O:#x}')
    L2nd = a.newlabel('st_2nd'); LB3 = a.newlabel('st_b3')
    a('s_waitcnt lgkmcnt(0)')
    a(f'v_readfirstlane_b32 s{sTk}, v{vTk}')
    a(f's_cmp_lg_u32 s{sTk}, 0')
    a(f's_cbranch_scc1 {L2nd}')
    a(f'v_mov_b32 v{vS}, v{vm}')
    a(f'v_mov_b32 v{vS+1}, v{vl}')
    a(f'v_mov_b32 v{vTk}, s{S_TA}')
    a(f'ds_write_b128 v{vt0}, {vr(vacc,4)} offset:{LDS_CMB}')
    a(f'ds_write_b128 v{vt0}, {vr(vacc+4,4)} offset:{LDS_CMB+1024}')
    a(f'ds_write_b64 v{vt0}, {vr(vS,2)} offset:{LDS_CMB+2048}')
    a(f'ds_write_b32 v{vRa}, v{vTk} offset:{LDS_FLAG2 - LDS_CTR}')
    a(f's_branch {LB3}')
    a.label(L2nd)
    Lw2 = a.newlabel('st_w2'); Lg2 = a.newlabel('st_g2')
    a(f's_mov_b32 s{sCtr}, {POLL_MAX}')
    a.label(Lw2)
    a(f'ds_read_b32 v{vTk}, v{vRa} offset:{LDS_FLAG2 - LDS_CTR}')
    a(f'ds_read_b64 {vr(vS,2)}, v{vt0} offset:{LDS_CMB+2048}')
    a(f'ds_read_b128 {vr(vA,4)}, v{vt0} offset:{LDS_CMB}')
    a(f'ds_read_b128 {vr(vA+4,4)}, v{vt0} offset:{LDS_CMB+1024}')
    a('s_waitcnt lgkmcnt(3)')
    a(f'v_readfirstlane_b32 s{sTk}, v{vTk}')
    a(f's_cmp_eq_u32 s{sTk}, s{S_TA}')
    a(f's_cbranch_scc1 {Lg2}')
    a(f's_sub_u32 s{sCtr}, s{sCtr}, 1')
    a(f's_cbranch_scc1 {Lg2}')
    a('s_waitcnt lgkmcnt(0)')
    a(f's_branch {Lw2}')
    a.label(Lg2)
    a('s_waitcnt lgkmcnt(2)')
    a(f'v_max_f32 v{vt1}, v{vm}, v{vS}')
    a(f'v_sub_f32 v{valpha}, v{vm}, v{vt1}')
    a(f'v_sub_f32 v{vmc}, v{vS}, v{vt1}')
    a(f'v_mul_f32 v{valpha}, s{sC}, v{valpha}')
    a(f'v_mul_f32 v{vmc}, s{sC}, v{vmc}')
    a(f'v_exp_f32 v{valpha}, v{valpha}')
    a(f'v_exp_f32 v{vmc}, v{vmc}')
    a(f'v_mov_b32 v{vm}, v{vt1}')
    a(f'v_mul_f32 v{vl}, v{vl}, v{valpha}')
    a(f'v_fmac_f32 v{vl}, v{vS+1}, v{vmc}')
    for i in range(8):
        qp = '[0,0,2,2]' if (i & 1) == 0 else '[1,1,3,3]'
        a(f'v_mul_f32_dpp v{vacc+i}, v{valpha}, v{vacc+i} quad_perm:{qp} row_mask:0xf bank_mask:0xf')
    a('s_waitcnt lgkmcnt(0)')
    for i in range(8):
        qp = '[0,0,2,2]' if (i & 1) == 0 else '[1,1,3,3]'
        a(f'v_fmac_f32_dpp v{vacc+i}, v{vmc}, v{vA+i} quad_perm:{qp} row_mask:0xf bank_mask:0xf')
    a(f'v_lshlrev_b32 v{vt1}, 6, v{vc}')
    a(f'v_lshl_add_u32 v{vt1}, v{vg}, 4, v{vt1}')
    a(f'v_and_b32 v{vTk}, 1, v{vc}')
    a(f'v_cmp_eq_u32 vcc, 1, v{vTk}')
    a(f'v_mov_b32_dpp v{vP}, v{vm} quad_perm:[1,0,3,2] row_mask:0xf bank_mask:0xf')
    a(f'v_mov_b32_dpp v{vP+1}, v{vl} quad_perm:[1,0,3,2] row_mask:0xf bank_mask:0xf')
    a(f'v_mov_b32 v{vS+1}, s{S_TA}')
    a(f'v_mov_b32 v{vS+3}, s{S_TB}')
    a(f'v_cndmask_b32 v{vS}, v{vm}, v{vP+1}, vcc')
    a(f'v_cndmask_b32 v{vS+2}, v{vP}, v{vl}, vcc')
    mkchunks(a, vA, [vacc + i for i in range(8)])
    for i in range(4):
        a(f'buffer_store_dwordx4 {vr(vA+4*i,4)}, v{vt1}, {sr(S_WS,4)}, s{sBase} offen offset:{1024*i} sc1')
    a('s_mov_b64 exec, 0xff')
    a(f'buffer_store_dwordx4 {vr(vS,4)}, v{vt0}, {sr(S_WS,4)}, s{sT2} offen sc1')
    a('s_mov_b64 exec, -1')
    a.label(LB3)
    a(f'v_mov_b32 v{vt0}, 0')
    if cfg.get('prof'):
        a(f's_memrealtime s[58:59]')
    a('s_barrier')
    if cfg.get('prof'):
        a(f's_add_u32 s{sT2}, s{S_WAVE}, 4')
        a(f's_lshl_b32 s{sTmp}, s2, 5')
        a(f's_add_u32 s{sTmp}, s{sTmp}, s{sT2}')
        a(f's_lshl_b32 s{sTmp}, s{sTmp}, 2')
        a(f's_add_u32 s{sTmp}, s{sTmp}, {WS_PROF:#x}')
        a('s_waitcnt lgkmcnt(0)')
        a(f'v_mov_b32 v{vt1}, s58')
        a(f'buffer_store_dword v{vt1}, v{vt0}, {sr(S_WS,4)}, s{sTmp} offen')
        a(f'v_mov_b32 v{vt1}, s62')
        a(f'buffer_store_dword v{vt1}, v{vt0}, {sr(S_WS,4)}, s{sTmp} offen offset:28')
        a(f's_lshl_b32 s{sTmp}, s2, 1')
        a(f's_add_u32 s{sTmp}, s{sTmp}, s{S_WAVE}')
        a(f's_lshl_b32 s{sTmp}, s{sTmp}, 8')
        a(f's_add_u32 s{sTmp}, s{sTmp}, {WS_IT:#x}')
        a(f'v_lshlrev_b32 v{vt0}, 2, v0')
        a(f'buffer_store_dword v{vIt}, v{vt0}, {sr(S_WS,4)}, s{sTmp} offen')
    a('s_endpgm')
    return V.n


def gemv_pairs(a, vm, W, nrows, ndw, vX, acc, tmps, loads, first=True):
    for t in range(nrows // 2):
        if loads is not None:
            vm.wait(loads[2 * t + 1])
        for d in range(ndw):
            lo, hi = tmps[2 * d], tmps[2 * d + 1]
            a(f'v_perm_b32 v{lo}, v{W[2*t+1]+d}, v{W[2*t]+d}, s{S_SELLO}')
            a(f'v_perm_b32 v{hi}, v{W[2*t+1]+d}, v{W[2*t]+d}, s{S_SELHI}')
        for d in range(ndw):
            lo, hi = tmps[2 * d], tmps[2 * d + 1]
            c0 = '0' if (t == 0 and first) else f'v{acc[2*d]}'
            c1 = '0' if (t == 0 and first) else f'v{acc[2*d+1]}'
            a(f'v_dot2_f32_bf16 v{acc[2*d]}, v{lo}, v{vX+t}, {c0}')
            a(f'v_dot2_f32_bf16 v{acc[2*d+1]}, v{hi}, v{vX+t}, {c1}')
    a('s_nop 2')


def rnd_bf16(a, d, s, t):
    a(f'v_cvt_pk_bf16_f32 v{t}, v{s}, v{s}')
    a(f'v_lshlrev_b32 v{d}, 16, v{t}')


def ksplit_loads(a, vm, sX, sW, rowbytes, sKq, sColByte, vX, vW, vo1, vo2, vo3, sT, sT2):
    a(f'v_lshrrev_b32 v{vo1}, 3, v0')
    a(f'v_mul_u32_u24 v{vo2}, {14*rowbytes}, v{vo1}')
    a(f'v_and_b32 v{vo3}, 7, v0')
    a(f'v_lshl_add_u32 v{vo2}, v{vo3}, 4, v{vo2}')
    a(f's_mul_i32 s{sT2}, s{sKq}, {112*rowbytes}')
    a(f's_add_u32 s{sT2}, s{sT2}, s{sColByte}')
    lw = []
    for k in range(14):
        lw.append(vm.issue(f'buffer_load_dwordx4 {vr(vW+4*k,4)}, v{vo2}, {sr(sW,4)}, s{sT2} offen nt'))
        if k < 13: a(f's_add_u32 s{sT2}, s{sT2}, {rowbytes}')
        if k == 0:
            a(f'v_mul_u32_u24 v{vo3}, 28, v{vo1}')
            a(f's_mul_i32 s{sT}, s{sKq}, 224')
            vm.issue(f'buffer_load_dwordx4 {vr(vX,4)}, v{vo3}, {sr(sX,4)}, s{sT} offen')
            vm.issue(f'buffer_load_dwordx3 {vr(vX+4,3)}, v{vo3}, {sr(sX,4)}, s{sT} offen offset:16')
    return lw


def gen_auxA(a, cfg):
    V = Regs(1, 256)
    vt = V.alloc(8, 4)
    vX = V.alloc(8, 4)
    vacc = V.alloc(8, 4)
    vtmp = V.alloc(8, 4)
    vo1 = V.alloc(); vo2 = V.alloc(); vo3 = V.alloc(); vTag = V.alloc(); vOa = vTag
    vCh = V.alloc(16, 4)
    vW = V.alloc(64, 4)
    vWp = V.alloc(64, 4)
    vOq = V.alloc(16, 4)
    vML = V.alloc(8, 4)
    sX = 4; sWQ = 8; sDBG = 44; sWO = 48
    sT = 52; sT2 = 53; sHead = 54; sJ = 55; sCnt = 56; sC = 57; sKq = 58; sCb = 59
    sPk = 80
    vm = VM(a)
    stamp(a, cfg, 62)
    srd(a, sX, P_X, 896)
    srd(a, sWQ, P_WQ, 448 * 8192)
    a(f's_lshr_b32 s{sHead}, s2, 5')
    a(f's_and_b32 s{sJ}, s2, 31')
    a(f's_and_b32 s{sKq}, s2, 3')
    a(f's_lshr_b32 s{sCb}, s2, 2')
    a(f's_lshl_b32 s{sCb}, s{sCb}, 7')
    lw = ksplit_loads(a, vm, sX, sWQ, 8192, sKq, sCb, vX, vW, vo1, vo2, vo3, sT, sT2)
    a('s_barrier')
    srd(a, sDBG, P_DBG, 256)
    srd(a, sWO, P_WO, 4096 * 896)
    a(f'v_mov_b32 v{vo3}, 0')
    vm.issue(f'buffer_load_dword v{vTag}, v{vo3}, {sr(sDBG,4)}, 0 offen sc1')
    gemv_pairs(a, vm, [vW + 4 * k for k in range(14)], 14, 4, vX, [vacc + i for i in range(8)], [vtmp + i for i in range(8)], lw)
    xlane_reduce(a, [vacc + i for i in range(8)], [vtmp + i for i in range(8)], 'v_add_f32', ['r8', 'p16', 'p32'])
    stamp(a, cfg, 64)
    a(f'v_lshlrev_b32 v{vo1}, 4, v0')
    a(f's_lshl_b32 s{sT}, s{sHead}, 14')
    a(f's_lshl_b32 s{sT2}, s{sKq}, 12')
    a(f's_add_u32 s{sT2}, s{sT2}, s{sT}')
    a(f's_and_b32 s{sC}, s{sCb}, 0x380')
    a(f's_lshl_b32 s{sC}, s{sC}, 2')
    a(f's_add_u32 s{sT2}, s{sT2}, s{sC}')
    L = a.newlabel('ptag'); Dn = a.newlabel('ptag_done')
    a(f's_mov_b32 s{sCnt}, {POLL_MAX}')
    a.label(L)
    a('s_waitcnt vmcnt(0)')
    a(f'v_readfirstlane_b32 s{S_TA}, v{vTag}')
    a(f's_cmp_lg_u32 s{S_TA}, 0')
    a(f's_cbranch_scc1 {Dn}')
    a(f's_sub_u32 s{sCnt}, s{sCnt}, 1')
    a(f's_cbranch_scc1 {Dn}')
    a('s_sleep 1')
    a(f'buffer_load_dword v{vTag}, v{vo3}, {sr(sDBG,4)}, 0 offen sc1')
    a(f's_branch {L}')
    a.label(Dn)
    tagB(a)
    stamp(a, cfg, 66)
    mkchunks(a, vCh, [vacc + i for i in range(8)])
    a('s_mov_b64 exec, 0xff')
    for c in range(4):
        a(f'buffer_store_dwordx4 {vr(vCh+4*c,4)}, v{vo1}, {sr(S_WS,4)}, s{sT2} offen offset:{128*c} sc1')
    a('s_mov_b64 exec, -1')
    a(f'v_lshrrev_b32 v{vo2}, 5, v0')
    a(f'v_lshlrev_b32 v{vo2}, 7, v{vo2}')
    a(f'v_and_b32 v{vt}, 7, v0')
    a(f'v_lshl_add_u32 v{vo2}, v{vt}, 4, v{vo2}')
    a(f'v_bfe_u32 v{vt}, v0, 3, 2')
    a(f'v_lshl_add_u32 v{vo2}, v{vt}, 2, v{vo2}')
    for kq in range(1, 4):
        a(f's_add_u32 s{80+kq}, s{sT}, {4096*kq}')
    loads = []
    for kq in range(4):
        for i in range(4):
            so = sT if kq == 0 else 80 + kq
            loads.append(f'buffer_load_dwordx4 {vr(vW+4*(4*kq+i),4)}, v{vo1}, {sr(S_WS,4)}, s{so} offen offset:{i*1024} sc1')
    if cfg.get('qsleep'): a(f's_sleep {cfg["qsleep"]}')
    poll(a, loads, [vW + 4 * k for k in range(16)], vt, sCnt, name='pq')
    stamp(a, cfg, 68)
    for i in range(4):
        for e in (0, 2):
            a(f'v_add_f32 v{vW+4*i+e}, v{vW+4*i+e}, v{vW+4*(4+i)+e}')
            a(f'v_add_f32 v{vW+4*(8+i)+e}, v{vW+4*(8+i)+e}, v{vW+4*(12+i)+e}')
    for i in range(4):
        for e in (0, 2):
            a(f'v_add_f32 v{vW+4*i+e}, v{vW+4*i+e}, v{vW+4*(8+i)+e}')
    for i in range(4):
        a(f'v_cvt_pk_bf16_f32 v{vt+i}, v{vW+4*i}, v{vW+4*i+2}')
    for i in range(4):
        a(f'ds_write_b32 v{vo2}, v{vt+i} offset:{256*i}')
    a(f'ds_write_b32 v{vo3}, v{vTag} offset:{LDS_TAG}')
    a(f'ds_write_b32 v{vo3}, v{vo3} offset:{LDS_CTR}')
    a(f'ds_write_b32 v{vo3}, v{vo3} offset:{LDS_FLAG}')
    a(f'ds_write_b32 v{vo3}, v{vo3} offset:{LDS_DONE}')
    a('s_waitcnt lgkmcnt(0)')
    a('s_barrier')
    stamp(a, cfg, 70)
    stamp_store(a, cfg, [(0, 62), (7, 64), (8, 66), (9, 68), (1, 70)], vt)
    a(f's_lshl_b32 s{sT}, s{sHead}, 9')
    a(f's_and_b32 s{sT2}, s{sJ}, 16')
    a(f's_lshl_b32 s{sT2}, s{sT2}, 3')
    a(f's_add_u32 s{sT}, s{sT}, s{sT2}')
    a(f's_and_b32 s{sT2}, s{sJ}, 7')
    a(f's_lshl_b32 s{sT2}, s{sT2}, 4')
    a(f's_add_u32 s{sT}, s{sT}, s{sT2}')
    a(f's_bfe_u32 s{sT2}, s{sJ}, 0x10003')
    a(f's_add_u32 s{sT}, s{sT}, s{sT2}')
    a(f's_mul_i32 s{sT}, s{sT}, 896')
    a(f'v_min_u32 v{vo2}, 55, v0')
    a(f'v_lshlrev_b32 v{vo2}, 4, v{vo2}')
    for hh in range(2):
        for e in range(8):
            a(f'buffer_load_dwordx4 {vr(vW+4*(8*hh+e),4)}, v{vo2}, {sr(sWO,4)}, s{sT} offen offset:{(e%2)*1792} nt')
            if e % 2 == 1:
                a(f's_add_u32 s{sT}, s{sT}, {3584 if e < 7 else 3584 + (256-16)*896}')
    a('s_waitcnt vmcnt(0)')
    stamp(a, cfg, 62)
    stamp_store(a, cfg, [(16, 62)], vt)
    for pr in range(8):
        r0 = vW + 4 * (2 * pr); r1 = vW + 4 * (2 * pr + 1)
        for d in range(4):
            a(f'v_perm_b32 v{vWp+8*pr+2*d}, v{r1+d}, v{r0+d}, s{S_SELLO}')
            a(f'v_perm_b32 v{vWp+8*pr+2*d+1}, v{r1+d}, v{r0+d}, s{S_SELHI}')
    a(f'v_and_b32 v{vo2}, 31, v0')
    a(f'v_lshlrev_b32 v{vo2}, 7, v{vo2}')
    a(f'v_lshrrev_b32 v{vo3}, 3, v0')
    a(f'v_lshlrev_b32 v{vOa}, 12, v{vo3}')
    a(f'v_and_b32 v{vt}, 7, v0')
    a(f'v_lshl_add_u32 v{vOa}, v{vt}, 4, v{vOa}')
    a(f'v_lshlrev_b32 v{vo3}, 2, v{vo3}')
    a(f's_lshl_b32 s{sT}, s{sHead}, 17')
    a(f's_lshl_b32 s{sT2}, s{sJ}, 7')
    a(f's_add_u32 s{sT}, s{sT}, s{sT2}')
    a(f's_add_u32 s{sT}, s{sT}, {WS_O:#x}')
    for k in range(1, 4):
        a(f's_add_u32 s{72+k}, s{sT}, {k << 15}')
    a(f's_lshl_b32 s{sT2}, s{sHead}, 12')
    a(f's_add_u32 s{sT2}, s{sT2}, {WS_ML:#x}')
    a(f's_mov_b32 s{sC}, {C_SCALE:#x}')
    a(f's_mul_i32 s72, s2, 3584')
    a(f's_add_u32 s72, s72, {WS_Y:#x}')
    for i in range(8):
        a(f'v_mov_b32 v{vCh+2*i+1}, s{S_TA if i % 2 == 0 else S_TB}')
    SL = cfg.get('sl', 58); OWN = 2 * (64 - SL); T2 = cfg.get('t2', 5700); CL = cfg.get('cl', OWN - 2) * 128
    TMAX = 56 - OWN
    p0 = vW
    vR = p0; vPc = p0 + 4; vx = p0 + 8; vSx = p0 + 9; vU = p0 + 10; vUe = p0 + 11; vT = p0 + 12; vgv = p0 + 13; vtv = p0 + 14
    vGE = p0 + 15; vTP = p0 + 16; vL = p0 + 17; vAd = p0 + 18; vZ = p0 + 19
    sM = 76; sLo = 64
    def scan32(r):
        for sh in (1, 2, 4, 8):
            a('s_nop 1')
            a(f'v_add_u32_dpp v{r}, v{r}, v{r} row_shr:{sh} row_mask:0xf bank_mask:0xf bound_ctrl:0')
        a('s_nop 1')
        a(f'v_add_u32_dpp v{r}, v{r}, v{r} row_bcast:15 row_mask:0xa bank_mask:0xf')
        a('s_nop 0')
    Lw = a.newlabel('pl_w'); Lf = a.newlabel('pl_f'); Lg = a.newlabel('pl_g')
    a(f's_add_u32 s{sM}, s{S_TA}, {T2}')
    a(f'v_mov_b32 v{vAd}, {LDS_REC}')
    a(f'v_mov_b32 v{vPc+1}, s{S_TA}')
    a(f'v_mov_b32 v{vPc+3}, s{S_TB}')
    a(f's_lshl_b32 s77, s2, 7')
    a(f's_add_u32 s77, s77, {WS_PLAN:#x}')
    a(f's_lshl_b32 s79, s{sHead}, 12')
    a(f's_add_u32 s79, s79, {WS_PLAN:#x}')
    a.label(Lw)
    a('s_memrealtime s[64:65]')
    a('s_waitcnt lgkmcnt(0)')
    a(f's_sub_u32 s64, s64, s{S_TA}')
    a(f's_cmp_ge_u32 s64, {T2}')
    a(f's_cbranch_scc1 {Lg}')
    a(f's_cmp_ge_u32 s64, {T2 - 150}')
    a(f's_cbranch_scc1 {Lf}')
    a('s_sleep 40')
    a.label(Lf)
    a('s_sleep 2')
    a(f's_branch {Lw}')
    a.label(Lg)
    a(f'ds_read_b64 {vr(vR,2)}, v{vAd}')
    a(f'ds_read_b64 {vr(vR+2,2)}, v{vAd} offset:512')
    a('s_waitcnt lgkmcnt(0)')
    for i in (0, 2):
        a(f'v_sub_u32 v{vR+i+1}, s{sM}, v{vR+i+1}')
        a(f'v_max_i32 v{vR+i+1}, {(-220) & 0xffffffff:#x}, v{vR+i+1}')
        a(f'v_min_i32 v{vR+i+1}, 165, v{vR+i+1}')
        a(f'v_mul_i32_i24 v{vR+i+1}, 149, v{vR+i+1}')
        a(f'v_ashrrev_i32 v{vR+i+1}, 7, v{vR+i+1}')
        a(f'v_and_b32 v{vR+i}, 63, v{vR+i}')
        a(f'v_lshl_add_u32 v{vR+i}, v{vR+i}, 7, v{vR+i+1}')
    a(f'v_add_u32 v{vPc}, v{vR}, v{vR+2}')
    a(f'v_mov_b32 v{vPc+2}, v{vPc}')
    a('s_mov_b64 exec, 0xff')
    a(f'buffer_store_dwordx4 {vr(vPc,4)}, v{vo1}, {sr(S_WS,4)}, s77 offen sc1')
    a('s_mov_b64 exec, -1')
    stamp(a, cfg, 66)
    a(f's_sleep {cfg.get("plsleep", 40)}')
    a('s_mov_b32 exec_hi, 0')
    poll(a, [f'buffer_load_dwordx4 {vr(vR,4)}, v{vo2}, {sr(S_WS,4)}, s79 offen sc1'], [vR], vt, sCnt, name='ppl', sleep=cfg.get('plsleep2', 8))
    stamp(a, cfg, 68)
    a(f'v_cmp_gt_u32 s[64:65], 32, v0')
    a(f'v_mov_b32 v{vZ}, 0')
    a('s_nop 0')
    a(f'v_cndmask_b32 v{vSx}, v{vZ}, v{vR}, s[64:65]')
    scan32(vSx)
    a(f'v_readlane_b32 s78, v{vSx}, 31')
    a('s_ashr_i32 s78, s78, 5')
    a(f'v_subrev_u32 v{vx}, s78, v{vR}')
    a(f'v_max_i32 v{vx}, {(-CL) & 0xffffffff:#x}, v{vx}')
    a(f'v_min_i32 v{vx}, {CL:#x}, v{vx}')
    a(f'v_cndmask_b32 v{vx}, v{vZ}, v{vx}, s[64:65]')
    a(f'v_mov_b32 v{vSx}, v{vx}')
    scan32(vSx)
    a(f'v_readlane_b32 s78, v{vSx}, 31')
    a(f'v_add_u32 v{vT}, 1, v0')
    a(f'v_lshlrev_b32 v{vU}, 5, v{vSx}')
    a(f'v_mul_lo_u32 v{vT}, v{vT}, s78')
    a(f'v_sub_u32 v{vU}, v{vU}, v{vT}')
    a(f'v_lshlrev_b32 v{vT}, 5, v{vx}')
    a(f'v_sub_u32 v{vUe}, v{vU}, v{vT}')
    a(f'v_add_u32 v{vUe}, s78, v{vUe}')
    a(f'v_add_u32 v{vU}, 0x800, v{vU}')
    a(f'v_add_u32 v{vUe}, 0x800, v{vUe}')
    a(f'v_ashrrev_i32 v{vU}, 12, v{vU}')
    a(f'v_ashrrev_i32 v{vUe}, 12, v{vUe}')
    a(f'v_sub_u32 v{vtv}, v{vU}, v{vUe}')
    a(f'v_cndmask_b32 v{vtv}, v{vZ}, v{vtv}, s[64:65]')
    a(f'v_sub_u32 v{vgv}, 0, v{vtv}')
    a(f'v_max_i32 v{vgv}, 0, v{vgv}')
    a(f'v_max_i32 v{vtv}, 0, v{vtv}')
    Lok = a.newlabel('pl_ok')
    a(f'v_cmp_lt_u32 vcc, {OWN}, v{vgv}')
    a(f'v_cmp_lt_u32 s[70:71], {TMAX}, v{vtv}')
    a('s_or_b64 vcc, vcc, s[70:71]')
    if cfg.get('noplan'): a('s_mov_b64 vcc, 1')
    a('s_cmp_eq_u64 vcc, 0')
    a(f's_cbranch_scc1 {Lok}')
    a(f'v_mov_b32 v{vgv}, 0')
    a(f'v_mov_b32 v{vtv}, 0')
    a.label(Lok)
    a(f'v_lshl_or_b32 v{vSx}, v{vtv}, 16, v{vgv}')
    scan32(vSx)
    a(f'v_and_b32 v{vGE}, 0xffff, v{vSx}')
    a(f'v_mov_b32 v{vT}, 0x7fffffff')
    a(f'v_cndmask_b32 v{vGE}, v{vT}, v{vGE}, s[64:65]')
    a(f'v_lshrrev_b32 v{vTP}, 16, v{vSx}')
    a(f'v_sub_u32 v{vTP}, v{vTP}, v{vtv}')
    a(f'v_readlane_b32 s64, v{vgv}, s{sJ}')
    a(f'v_readlane_b32 s65, v{vtv}, s{sJ}')
    a(f'v_readlane_b32 s70, v{vTP}, s{sJ}')
    a(f's_sub_u32 s64, {OWN}, s64')
    a(f's_lshl_b32 s71, s2, 20')
    a(f's_add_u32 s71, s71, {(128 - OWN) << 13}')
    a(f'v_lshlrev_b32 v{vL}, 13, v0')
    a(f'v_add_u32 v{vL}, s71, v{vL}')
    a(f'v_mov_b32 v{vT}, {INVALID:#x}')
    a(f'v_cmp_gt_u32 vcc, s64, v0')
    a(f's_lshl_b32 s71, s{sHead}, 25')
    a(f's_add_u32 s71, s71, {128 << 13}')
    a(f'v_cndmask_b32 v{vL}, v{vT}, v{vL}, vcc')
    if cfg.get('prof'):
        a('s_lshl_b32 s79, s65, 8')
        a('s_add_u32 s79, s79, s64')
    Lk = a.newlabel('pl_k'); Lkd = a.newlabel('pl_kd')
    a.label(Lk)
    a('s_cmp_eq_u32 s65, 0')
    a(f's_cbranch_scc1 {Lkd}')
    a(f'v_cmp_ge_u32 vcc, s70, v{vGE}')
    a('s_bcnt1_i32_b64 s76, vcc')
    a('s_mov_b32 m0, s64')
    a(f'v_readlane_b32 s77, v{vGE}, s76')
    a('s_sub_u32 s77, s77, s70')
    a('s_lshl_b32 s77, s77, 13')
    a('s_lshl_b32 s76, s76, 20')
    a('s_add_u32 s76, s76, s71')
    a('s_sub_u32 s76, s76, s77')
    a(f'v_writelane_b32 v{vL}, s76, m0')
    a('s_add_u32 s64, s64, 1')
    a('s_add_u32 s70, s70, 1')
    a('s_sub_u32 s65, s65, 1')
    a(f's_branch {Lk}')
    a.label(Lkd)
    a(f'v_lshlrev_b32 v{vAd}, 2, v0')
    a(f'ds_write_b32 v{vAd}, v{vL} offset:{LDS_LIST}')
    a(f'ds_write_b32 v{vZ}, v{vPc+1} offset:{LDS_FLAG}')
    stamp(a, cfg, 70)
    stamp_store(a, cfg, [(17, 79), (18, 66), (19, 68), (20, 70)], vt)
    a('s_barrier')
    if cfg.get('s2delay'): a(f's_sleep {cfg["s2delay"]}')
    loads = [f'buffer_load_dwordx4 {vr(vML,4)}, v{vo2}, {sr(S_WS,4)}, s{sT2} offen sc1',
             f'buffer_load_dwordx4 {vr(vML+4,4)}, v{vo2}, {sr(S_WS,4)}, s{sT2} offen offset:16 sc1']
    for k in range(4):
        loads.append(f'buffer_load_dwordx4 {vr(vOq+4*k,4)}, v{vOa}, {sr(S_WS,4)}, s{sT if k == 0 else 72 + k} offen sc1')
    poll(a, loads, [vML, vML + 4] + [vOq + 4 * k for k in range(4)], vt, sCnt, name='ps2', sleep=cfg.get('s2sleep', 1))
    stamp(a, cfg, 62)
    M = [vt, vt + 1]
    a(f'v_mov_b32 v{M[0]}, v{vML}')
    a(f'v_mov_b32 v{M[1]}, v{vML+2}')
    xlane_reduce(a, M, [vt + 2, vt + 3], 'v_max_f32', ['x1', 'x2', 'r4', 'r8', 'p16'])
    for hh in range(2):
        a(f'v_sub_f32 v{vML+2*hh}, v{vML+2*hh}, v{M[hh]}')
        a(f'v_mul_f32 v{vML+2*hh}, s{sC}, v{vML+2*hh}')
    for hh in range(2):
        a(f'v_exp_f32 v{vML+2*hh}, v{vML+2*hh}')
    a('s_nop 0')
    for k in range(4):
        for hh in range(2):
            a(f'ds_bpermute_b32 v{vW+2*k+hh}, v{vo3}, v{vML+2*hh} offset:{32*k}')
    for hh in range(2):
        a(f'v_mul_f32 v{vacc+2+hh}, v{vML+2*hh}, v{vML+4+2*hh}')
    a('s_mov_b32 exec_lo, 0')
    for hh in range(2):
        a(f'v_mov_b32 v{vacc+2+hh}, 0')
    a('s_mov_b32 exec_lo, -1')
    xlane_reduce(a, [vacc + 2, vacc + 3], [vt + 2, vt + 3], 'v_add_f32', ['x1', 'x2', 'r4'])
    a('s_waitcnt lgkmcnt(0)')
    for k in range(4):
        for hh in range(2):
            if k == 0: a(f'v_mul_f32 v{vacc+hh}, v{vW+2*k+hh}, v{vOq+4*k+2*hh}')
            else: a(f'v_fmac_f32 v{vacc+hh}, v{vW+2*k+hh}, v{vOq+4*k+2*hh}')
    a('s_nop 1')
    xlane_reduce(a, [vacc + i for i in range(4)], [vtmp + i for i in range(4)], 'v_add_f32', ['r8', 'p16', 'p32'])
    a(f'v_rcp_f32 v{vacc+2}, v{vacc+2}')
    a(f'v_rcp_f32 v{vacc+3}, v{vacc+3}')
    a('s_nop 0')
    for hh in range(2):
        a(f'v_mul_f32 v{vacc+hh}, v{vacc+hh}, v{vacc+2+hh}')
    a('s_nop 1')
    for hh in range(2):
        a(f'v_mov_b32_dpp v{vacc+2+hh}, v{vacc+hh} quad_perm:[1,0,3,2] row_mask:0xf bank_mask:0xf')
    for hh in range(2):
        a(f'v_cvt_pk_bf16_f32 v{vt+hh}, v{vacc+hh}, v{vacc+2+hh}')
    a('s_nop 0')
    for hh in range(2):
        for g in range(4):
            a(f'v_readlane_b32 s{sPk+4*hh+g}, v{vt+hh}, {2*g}')
    a('s_nop 1')
    for pr in range(8):
        for col in range(8):
            c0 = '0' if pr == 0 else f'v{vCh+2*col}'
            a(f'v_dot2_f32_bf16 v{vCh+2*col}, v{vWp+8*pr+col}, s{sPk+pr}, {c0}')
    a('s_mov_b32 exec_hi, 0x00ffffff')
    a('s_nop 1')
    for c in range(4):
        a(f'buffer_store_dwordx4 {vr(vCh+4*c,4)}, v{vo1}, {sr(S_WS,4)}, s72 offen offset:{896*c} sc1')
    a('s_mov_b64 exec, -1')
    stamp(a, cfg, 64)
    if cfg.get('b4', 1): a('s_barrier')
    stamp_store(a, cfg, [(2, 62), (3, 64)], vt)
    stamp_flush(a, cfg, [0, 7, 8, 9, 1, 16, 17, 18, 19, 20, 2, 3], vt)
    a('s_endpgm')
    return V.n


def gen_auxB(a, cfg):
    V = Regs(1, 256)
    vt = V.alloc(8, 4)
    vX = V.alloc(16, 4)
    vacc = V.alloc(16, 4)
    vtmp = V.alloc(16, 4)
    vb = V.alloc(4, 4)
    vo1 = V.alloc(); vo2 = V.alloc(); vo3 = V.alloc(); vg = V.alloc(); vBa = V.alloc()
    vCh = V.alloc(16, 4)
    vW = V.alloc(64, 4)
    vD = V.alloc(64, 4)
    vY = vW
    sX = 4; sWG = 8; sWU = 44; sWD = 48; sDBG = 64; sGW = 68; sOUT = 72
    sT = 52; sT2 = 53; sKq = 54; sJ = 55; sCnt = 56; sF = 57; sG = 62; sG1 = 63
    sPk = 16
    vm = VM(a)
    srd(a, sDBG, P_DBG, 256)
    Lnt = a.newlabel('notag')
    a(f'v_mov_b32 v{vo3}, 0')
    a('s_cmp_lg_u32 s2, 0')
    a(f's_cbranch_scc1 {Lnt}')
    a(f's_memrealtime s[{sG}:{sG1}]')
    a('s_waitcnt lgkmcnt(0)')
    a(f's_or_b32 s{sG}, s{sG}, 1')
    a(f'v_mov_b32 v{vo2}, s{sG}')
    a('s_mov_b64 exec, 1')
    a(f'buffer_store_dword v{vo2}, v{vo3}, {sr(sDBG,4)}, 0 offen sc1')
    a('s_mov_b64 exec, -1')
    a.label(Lnt)
    a('s_barrier')
    srd(a, sX, P_X, 896)
    srd(a, sWG, P_WG, 448 * 3584)
    srd(a, sWU, P_WU, 448 * 3584)
    srd(a, sWD, P_WD, 1792 * 896)
    srd(a, sGW, P_GW, 896)
    srd(a, sOUT, P_OUT, 896)
    Lnoffn = a.newlabel('noffn'); Lnofin = a.newlabel('nofin')
    a('s_barrier')
    a(f'ds_read_b32 v{vo2}, v{vo3} offset:{LDS_TAG}')
    a('s_waitcnt lgkmcnt(0)')
    a(f'v_readfirstlane_b32 s{S_TA}, v{vo2}')
    tagB(a)
    for i in range(8):
        a(f'v_mov_b32 v{vCh+2*i+1}, s{S_TA if i % 2 == 0 else S_TB}')
    a(f'v_lshlrev_b32 v{vBa}, 4, v0')
    a(f's_mov_b32 s84, {WS_SIZE:#x}')
    a(f's_and_b32 s{sT}, s2, 31')
    a(f's_cmp_lt_u32 s{sT}, {32 if cfg.get("noffn") else 25}')
    a(f's_cbranch_scc1 {Lnoffn}')
    if cfg.get('fsleep'): a(f's_sleep {cfg["fsleep"]}')
    a(f's_sub_u32 s{sT}, s{sT}, 25')
    a(f's_lshr_b32 s{sT2}, s2, 6')
    a(f's_mul_i32 s{sT2}, s{sT2}, 7')
    a(f's_add_u32 s{sT}, s{sT}, s{sT2}')
    a(f's_lshl_b32 s{sF}, s{sT}, 1')
    a(f's_bfe_u32 s{sT2}, s2, 0x10005')
    a(f's_add_u32 s{sF}, s{sF}, s{sT2}')
    a(f'v_lshrrev_b32 v{vo1}, 2, v0')
    a(f'v_mul_u32_u24 v{vo2}, {28*3584}, v{vo1}')
    a(f'v_and_b32 v{vo3}, 3, v0')
    a(f'v_lshl_add_u32 v{vo2}, v{vo3}, 4, v{vo2}')
    a(f'v_mul_u32_u24 v{vo3}, 56, v{vo1}')
    for k in range(3):
        vm.issue(f'buffer_load_dwordx4 {vr(vX+4*k,4)}, v{vo3}, {sr(sX,4)}, 0 offen offset:{16*k}')
    vm.issue(f'buffer_load_dwordx2 {vr(vX+12,2)}, v{vo3}, {sr(sX,4)}, 0 offen offset:48')
    a(f'v_min_u32 v{vo1}, 55, v0')
    a(f'v_lshlrev_b32 v{vo1}, 4, v{vo1}')
    wflag = cfg.get('wflag', '')
    def unitW(sW, k0, buf):
        a(f's_lshl_b32 s{sT}, s{sF}, 6')
        if k0: a(f's_add_u32 s{sT}, s{sT}, {k0*3584}')
        lw = []
        for k in range(14):
            lw.append(vm.issue(f'buffer_load_dwordx4 {vr(buf+4*k,4)}, v{vo2}, {sr(sW,4)}, s{sT} offen offset:{(k%2)*3584} {wflag}'))
            if k % 2 == 1 and k < 13: a(f's_add_u32 s{sT}, s{sT}, {2*3584}')
        return lw
    def unitD(u, buf):
        a(f's_mul_i32 s{sT}, s{sF}, {32*896}')
        if u: a(f's_add_u32 s{sT}, s{sT}, {16*896}')
        lw = []
        for e in range(16):
            lw.append(vm.issue(f'buffer_load_dwordx4 {vr(buf+4*e,4)}, v{vo1}, {sr(sWD,4)}, s{sT} offen offset:{(e%4)*896} nt'))
            if e % 4 == 3 and e < 15: a(f's_add_u32 s{sT}, s{sT}, {4*896}')
        return lw
    def compW(buf, k0, m, lw):
        gemv_pairs(a, vm, [buf + 4 * k for k in range(14)], 14, 4, vX + k0 // 2, [vacc + 8 * m + i for i in range(8)], [vtmp + i for i in range(8)], lw, first=(k0 == 0))
    l0 = unitW(sWG, 0, vW); l1 = unitW(sWG, 14, vD)
    compW(vW, 0, 0, l0); l2 = unitW(sWU, 0, vW)
    compW(vD, 14, 0, l1); l3 = unitW(sWU, 14, vD)
    compW(vW, 0, 1, l2); l4 = unitD(0, vW)
    compW(vD, 14, 1, l3); l5 = unitD(1, vD)
    xlane_reduce(a, [vacc + i for i in range(16)], [vtmp + i for i in range(16)], 'v_add_f32', ['r4', 'r8', 'p16', 'p32'])
    stamp(a, cfg, 90)
    for i in range(16):
        rnd_bf16(a, vacc + i, vacc + i, vtmp + i)
    a(f's_mov_b32 s{sT}, {f2u(0.044715):#x}')
    a(f's_mov_b32 s{sT2}, {f2u(-2*0.7978845608028654*1.4426950408889634):#x}')
    for i in range(8):
        x = vacc + i; t = vtmp + i
        a(f'v_mul_f32 v{t}, v{x}, v{x}')
        a(f'v_mul_f32 v{t}, v{t}, v{x}')
        a(f'v_fma_f32 v{t}, v{t}, s{sT}, v{x}')
        a(f'v_mul_f32 v{t}, s{sT2}, v{t}')
    for i in range(8):
        a(f'v_exp_f32 v{vtmp+i}, v{vtmp+i}')
    for i in range(8):
        a(f'v_add_f32 v{vtmp+i}, 1.0, v{vtmp+i}')
    for i in range(8):
        a(f'v_rcp_f32 v{vtmp+i}, v{vtmp+i}')
    for i in range(8):
        a(f'v_mul_f32 v{vacc+i}, v{vacc+i}, v{vtmp+i}')
    for i in range(8):
        rnd_bf16(a, vacc + i, vacc + i, vtmp + i)
    for i in range(8):
        a(f'v_mul_f32 v{vacc+i}, v{vacc+i}, v{vacc+8+i}')
    for d in range(4):
        a(f'v_cvt_pk_bf16_f32 v{vt+d}, v{vacc+2*d}, v{vacc+2*d+1}')
    a('s_nop 0')
    for c4 in range(4):
        for d in range(4):
            a(f'v_readlane_b32 s{sPk+4*c4+d}, v{vt+d}, {c4}')
    a(f's_mul_i32 s84, s{sF}, 3584')
    a(f's_add_u32 s84, s84, {WS_B:#x}')
    stamp(a, cfg, 92)
    for u, (buf, lw) in enumerate([(vW, l4), (vD, l5)]):
        for pr in range(8):
            vm.wait(lw[2 * pr + 1])
            r0 = buf + 4 * (2 * pr); r1 = buf + 4 * (2 * pr + 1)
            for d in range(4):
                a(f'v_perm_b32 v{vtmp+2*d}, v{r1+d}, v{r0+d}, s{S_SELLO}')
                a(f'v_perm_b32 v{vtmp+2*d+1}, v{r1+d}, v{r0+d}, s{S_SELHI}')
            for col in range(8):
                c0 = '0' if (pr == 0 and u == 0) else f'v{vCh+2*col}'
                a(f'v_dot2_f32_bf16 v{vCh+2*col}, v{vtmp+col}, s{sPk+8*u+pr}, {c0}')
    def bstore():
        L = a.newlabel('nobst')
        a(f's_and_b32 s{sT}, s2, 31')
        a(f's_cmp_lt_u32 s{sT}, {32 if cfg.get("noffn") else 25}')
        a(f's_cbranch_scc1 {L}')
        a('s_mov_b32 exec_hi, 0x00ffffff')
        for c in range(4):
            a(f'buffer_store_dwordx4 {vr(vCh+4*c,4)}, v{vBa}, {sr(S_WS,4)}, s84 offen offset:{896*c} sc1')
        a('s_mov_b64 exec, -1')
        a.label(L)
    a('s_nop 2')
    if cfg.get('bearly'): bstore()
    stamp(a, cfg, 94)
    stamp_store(a, cfg, [(13, 90), (14, 92), (15, 94)], vt)
    a.label(Lnoffn)
    a(f's_cmp_lt_u32 s2, {FIN0}')
    a(f's_cbranch_scc1 {Lnofin}')
    a(f's_sub_u32 s{sJ}, s2, {FIN0}')
    a(f'v_lshlrev_b32 v{vo1}, 4, v0')
    a(f'buffer_load_dwordx4 {vr(vX,4)}, v{vo1}, {sr(sX,4)}, 0 offen')
    a(f'buffer_load_dwordx4 {vr(vX+4,4)}, v{vo1}, {sr(sGW,4)}, 0 offen')
    a('s_waitcnt vmcnt(0)')
    for d in range(4):
        a(f'v_lshlrev_b32 v{vt}, 16, v{vX+d}')
        a(f'v_lshlrev_b32 v{vt+1}, 16, v{vX+4+d}')
        a(f'v_and_b32 v{vt+2}, 0xffff0000, v{vX+d}')
        a(f'v_and_b32 v{vt+3}, 0xffff0000, v{vX+4+d}')
        a(f'v_mul_f32 v{vt}, v{vt}, v{vt+1}')
        a(f'v_mul_f32 v{vt+2}, v{vt+2}, v{vt+3}')
        a(f'v_cvt_pk_bf16_f32 v{vt}, v{vt}, v{vt+2}')
        a(f'v_lshlrev_b32 v{vt+1}, 16, v{vt}')
        a(f'v_and_b32 v{vt+2}, 0xffff0000, v{vt}')
        if d == 0:
            a(f'v_add_f32 v{vg}, v{vt+1}, v{vt+2}')
        else:
            a(f'v_add_f32 v{vg}, v{vg}, v{vt+1}')
            a(f'v_add_f32 v{vg}, v{vg}, v{vt+2}')
    xlane_reduce(a, [vg], [vt], 'v_add_f32', ['x1', 'x2', 'r4', 'r8', 'p16', 'p32'])
    rnd_bf16(a, vg, vg, vt)
    a(f'v_mul_f32 v{vg}, {f2u(-1.4426950408889634):#x}, v{vg}')
    a(f'v_exp_f32 v{vg}, v{vg}')
    a('s_nop 0')
    a(f'v_add_f32 v{vg}, 1.0, v{vg}')
    a(f'v_rcp_f32 v{vg}, v{vg}')
    a('s_nop 0')
    rnd_bf16(a, vg, vg, vt)
    a(f'v_sub_f32 v{vt+1}, 1.0, v{vg}')
    rnd_bf16(a, vt + 1, vt + 1, vt)
    a('s_nop 0')
    a(f'v_readfirstlane_b32 s{sG}, v{vg}')
    a(f'v_readfirstlane_b32 s{sG1}, v{vt+1}')
    a(f'v_lshrrev_b32 v{vo1}, 2, v0')
    a(f'v_mul_u32_u24 v{vo1}, 3584, v{vo1}')
    a(f'v_and_b32 v{vo2}, 3, v0')
    a(f'v_lshl_add_u32 v{vo1}, v{vo2}, 4, v{vo1}')
    a(f's_and_b32 s{sT}, s{sJ}, 3')
    a(f's_mul_i32 s{sT}, s{sT}, 14')
    a(f's_lshr_b32 s{sT2}, s{sJ}, 2')
    a(f's_add_u32 s{sT}, s{sT}, s{sT2}')
    a(f's_lshl_b32 s{sF}, s{sT}, 6')
    def gather(base, n, name, sleep):
        for k in range(n):
            a(f's_add_u32 s{16+k}, s{sF}, {base + k * 16 * 3584:#x}')
        return [f'buffer_load_dwordx4 {vr(vY+4*k,4)}, v{vo1}, {sr(S_WS,4)}, s{16+k} offen sc1' for k in range(n)]
    def sumup(dst, n):
        for e in range(2):
            a(f'v_add_f32 v{dst+e}, v{vY+2*e}, v{vY+4+2*e}')
            a(f'v_add_f32 v{dst+2+e}, v{vY+8+2*e}, v{vY+12+2*e}')
        for k in range(4, n):
            for e in range(2):
                d = dst + e + 2 * (k & 1)
                a(f'v_add_f32 v{d}, v{d}, v{vY+4*k+2*e}')
        for e in range(2):
            a(f'v_add_f32 v{dst+e}, v{dst+e}, v{dst+2+e}')
        xlane_reduce(a, [dst, dst + 1], [vtmp, vtmp + 1], 'v_add_f32', ['r4', 'r8', 'p16', 'p32'])
    LATE = cfg.get('pblate', 1)
    if LATE: a('s_barrier')
    if not cfg.get('bearly'): bstore()
    loads = gather(WS_B, 4, 'pb', 8)
    a(f'v_mov_b32 v{vo2}, v{vo1}')
    a('s_mov_b32 exec_lo, 0')
    a(f'v_subrev_u32 v{vo2}, {8*3584}, v{vo2}')
    a('s_mov_b32 exec_lo, -1')
    loads[3] = loads[3].replace(f'v{vo1},', f'v{vo2},')
    if not cfg.get('noffn'):
        poll(a, loads, [vY + 4 * k for k in range(4)], vt, sCnt, name='pb', sleep=cfg.get('bsleep', 16))
    a('s_mov_b32 exec_lo, 0')
    a(f'v_mov_b32 v{vY+12}, 0')
    a(f'v_mov_b32 v{vY+14}, 0')
    a('s_mov_b32 exec_lo, -1')
    sumup(vb, 4)
    for i in range(2):
        rnd_bf16(a, vb + i, vb + i, vtmp + i)
        a(f'v_mul_f32 v{vb+i}, s{sG1}, v{vb+i}')
        rnd_bf16(a, vb + i, vb + i, vtmp + i)
    stamp(a, cfg, 76)
    stamp_store(a, cfg, [(10, 76)], vt)
    loads = gather(WS_Y, 16, 'py', 1)
    a(f'v_lshlrev_b32 v{vo2}, 4, v0')
    a(f's_lshr_b32 s{sT2}, s{sJ}, 2')
    a(f's_lshl_b32 s{sT2}, s{sT2}, 6')
    a(f's_and_b32 s{sKq}, s{sJ}, 3')
    a(f's_lshl_b32 s{sKq}, s{sKq}, 2')
    a(f's_add_u32 s{sT2}, s{sT2}, s{sKq}')
    if not LATE: a('s_barrier')
    if cfg.get('b4', 1): a('s_barrier')
    poll(a, loads, [vY + 4 * k for k in range(16)], vt, sCnt, name='py', sleep=cfg.get('ysleep', 1))
    sumup(vacc, 16)
    for i in range(2):
        rnd_bf16(a, vacc + i, vacc + i, vtmp + i)
        a(f'v_mul_f32 v{vacc+i}, s{sG}, v{vacc+i}')
        rnd_bf16(a, vacc + i, vacc + i, vtmp + i)
        a(f'v_add_f32 v{vacc+i}, v{vacc+i}, v{vb+i}')
    a(f'v_cvt_pk_bf16_f32 v{vt}, v{vacc}, v{vacc+1}')
    a('s_mov_b64 exec, 15')
    a(f'buffer_store_dword v{vt}, v{vo2}, {sr(sOUT,4)}, s{sT2} offen')
    a('s_mov_b64 exec, -1')
    stamp(a, cfg, 76)
    stamp_store(a, cfg, [(6, 76)], vt + 2)
    stamp_flush(a, cfg, [13, 14, 15, 10, 6], vt + 2)
    if cfg.get('dbgt'):
        a('s_memrealtime s[76:77]')
        a('s_waitcnt lgkmcnt(0)')
        a(f's_sub_u32 s76, s76, s{S_TA}')
        a(f'v_mov_b32 v{vt+2}, s76')
        a(f'v_mov_b32 v{vt+3}, 0')
        a('s_mov_b64 exec, 1')
        a(f'buffer_atomic_umax v{vt+2}, v{vt+3}, {sr(sDBG,4)}, 0 offen offset:4')
        a(f'buffer_atomic_umin v{vt+2}, v{vt+3}, {sr(sDBG,4)}, 0 offen offset:8')
    a('s_endpgm')
    a.label(Lnofin)
    a('s_barrier')
    if not cfg.get('bearly'): bstore()
    stamp_flush(a, cfg, [13, 14, 15], vt)
    a('s_endpgm')
    return V.n


def gen(cfg):
    a = Asm()
    a.raw(kernel_header(NAME))
    a('s_cmp_ge_u32 s2, 256')
    a('s_cbranch_scc1 L_end')
    a('s_load_dwordx16 s[16:31], s[0:1], 0')
    a('s_load_dwordx8 s[32:39], s[0:1], 64')
    a('s_load_dwordx2 s[40:41], s[0:1], 96')
    a('v_lshrrev_b32 v1, 6, v0')
    a('v_and_b32 v0, 63, v0')
    a(f'v_readfirstlane_b32 s{S_WAVE}, v1')
    a(f's_mov_b32 s{S_SELLO}, 0x05040100')
    a(f's_mov_b32 s{S_SELHI}, 0x07060302')
    a('s_waitcnt lgkmcnt(0)')
    srd(a, S_WS, P_WS, WS_SIZE)
    a(f's_cmp_eq_u32 s{S_WAVE}, 2')
    a('s_cbranch_scc1 L_auxA')
    a(f's_cmp_eq_u32 s{S_WAVE}, 3')
    a('s_cbranch_scc1 L_auxB')
    n0 = gen_stream(a, cfg)
    a.label('L_auxA')
    n1 = gen_auxA(a, cfg)
    a.label('L_auxB')
    n2 = gen_auxB(a, cfg)
    a.label('L_end')
    a('s_endpgm')
    nv = max(n0, n1, n2)
    if cfg.get('prof'): nv = max(nv, PROFV + 1)
    acc_off = (nv + 3) // 4 * 4
    npre = cfg.get('npre', 4)
    print('vgprs', n0, n1, n2, 'agprs', 64 * npre, file=sys.stderr)
    hdr = open('gated_mix__gqa_block_cached__geglu_ffn__decode.s.ref').read().split('; @launch')[0]
    lds = cfg.get('lds', 8192)
    hdr += f'; @launch grid=(256,1,1) block=(256,1,1) lds={lds}\n.amdgcn_target "amdgcn-amd-amdhsa--gfx950"\n'
    return hdr + a.text() + kernel_desc(NAME, acc_off + 64 * npre, 102, acc_off)


if __name__ == '__main__':
    cfg = json.loads(sys.argv[2]) if len(sys.argv) > 2 else {}
    open(sys.argv[1], 'w').write(gen(cfg))
```

```python
import sys, struct, json
from asmlib import *

def f2u(f): return struct.unpack('<I', struct.pack('<f', f))[0]
C_SCALE = f2u(1.4426950408889634 / 16.0)

WS_QP = 0x0
WS_TK = 0x4e0000
TK_STRIDE = 4352
WS_PROF = 0x24000
WS_GP = 0x40000
WS_PLAN = 0x40000
WS_F1 = 0x50000
WS_F2 = 0x58000
WS_IT = 0x80000
WS_ML = 0x60000
WS_O = 0x100000
WS_Y = 0x300000
WS_B = 0x400000
WS_SIZE = 0x500000

NAME = 'gated_mix__gqa_block_cached__geglu_ffn__decode_kernel'
P_X, P_K, P_V, P_WQ, P_WO, P_BX, P_WG, P_WU, P_WD, P_GW, P_OUT, P_DBG, P_WS = [16 + 2 * i for i in range(13)]
S_WS = 12
S_WAVE = 3
S_SELLO = 60; S_SELHI = 61
S_TA = 88; S_TB = 89
POLL_MAX = 1 << 14
FIN0 = 200
INVALID = 0x20000000
LDS_TAG = 1024
LDS_CTR = 1028
LDS_FLAG = 1032
LDS_REC = 2048
LDS_LIST = 3072
LDS_DONE = 1036
LDS_FLAG2 = 1040
LDS_CMB = 4096


class VM:
    def __init__(self, a):
        self.a = a; self.n = 0
    def issue(self, s):
        self.a(s); self.n += 1
        return self.n - 1
    def wait(self, idx):
        k = self.n - idx - 1
        assert 0 <= k <= 63
        self.a(f's_waitcnt vmcnt({k})')


def srd(a, d, p, nbytes):
    a(f's_mov_b32 s{d}, s{p}')
    a(f's_mov_b32 s{d+1}, s{p+1}')
    a(f's_mov_b32 s{d+2}, {nbytes:#x}')
    a(f's_mov_b32 s{d+3}, 0x00020000')


def dpp(op, d, s0, s1, ctrl):
    return f'{op}_dpp v{d}, v{s0}, v{s1} {ctrl} row_mask:0xf bank_mask:0xf'


def xlane_reduce(a, regs, tmps, op, steps):
    n = len(regs)
    for st in steps:
        if st in ('x1', 'x2', 'r4', 'r8'):
            ctrl = {'x1': 'quad_perm:[1,0,3,2]', 'x2': 'quad_perm:[2,3,0,1]', 'r4': 'row_ror:4', 'r8': 'row_ror:8'}[st]
            if n < 3: a('s_nop 1')
            for r in regs:
                a(dpp(op, r, r, r, ctrl))
        else:
            ins = 'v_permlane16_swap_b32' if st == 'p16' else 'v_permlane32_swap_b32'
            for r, t in zip(regs, tmps):
                a(f'v_mov_b32 v{t}, v{r}')
            a('s_nop 1')
            for r, t in zip(regs, tmps):
                a(f'{ins} v{r}, v{t}')
            if n < 2: a('s_nop 0')
            for r, t in zip(regs, tmps):
                a(f'{op} v{r}, v{r}, v{t}')


def tagB(a):
    a(f's_mul_i32 s{S_TB}, s{S_TA}, 0x9e3779b1')
    a(f's_add_u32 s{S_TB}, s{S_TB}, 0x7f4a7c15')


def poll(a, loads, chunks, vt, scnt, name='poll', sleep=1):
    L = a.newlabel(name); D = a.newlabel(name + '_done')
    a(f's_mov_b32 s{scnt}, {POLL_MAX}')
    a.label(L)
    for l in loads: a(l)
    n = len(chunks)
    for i, c in enumerate(chunks):
        if i % 4 == 0:
            a(f's_waitcnt vmcnt({max(0, n - i - 4)})')
        a(f'v_xor_b32 v{vt+1}, s{S_TA}, v{c+1}')
        a(f'v_xor_b32 v{vt+2}, s{S_TB}, v{c+3}')
        if i == 0: a(f'v_or_b32 v{vt}, v{vt+1}, v{vt+2}')
        else: a(f'v_or3_b32 v{vt}, v{vt}, v{vt+1}, v{vt+2}')
    a(f'v_cmp_ne_u32 vcc, 0, v{vt}')
    a('s_mov_b64 exec, vcc')
    a(f's_cbranch_execz {D}')
    a(f's_sub_u32 s{scnt}, s{scnt}, 1')
    a(f's_cbranch_scc1 {D}')
    if sleep: a(f's_sleep {sleep}')
    a(f's_branch {L}')
    a.label(D)
    a('s_mov_b64 exec, -1')


def poll_pipe(a, nsets, loads, chunks, on_new, vt, scnt, sP, sQ, sEX, sDry, name='pp', gap=6, thr=0, slp=0, skipnew=False):
    L = a.newlabel(name); D = a.newlabel(name + '_done')
    n = len(loads(0))
    a(f's_mov_b64 s[{sP}:{sP+1}], s[{sEX}:{sEX+1}]')
    a(f's_mov_b64 exec, s[{sEX}:{sEX+1}]')
    a(f's_cmp_eq_u32 s{sDry}, 0')
    a(f's_cselect_b32 s{scnt}, {POLL_MAX}, 0')
    for s in range(nsets):
        for l in loads(s): a(l)
        if gap and s < nsets - 1: a(f's_sleep {gap}')
    a.label(L)
    for s in range(nsets):
        ch = chunks(s)
        for i, c in enumerate(ch):
            if i % 4 == 0:
                a(f's_waitcnt vmcnt({(nsets - 1) * n + max(0, n - i - 4)})')
            a(f'v_xor_b32 v{vt+1}, s{S_TA}, v{c+1}')
            a(f'v_xor_b32 v{vt+2}, s{S_TB}, v{c+3}')
            if i == 0: a(f'v_or_b32 v{vt}, v{vt+1}, v{vt+2}')
            else: a(f'v_or3_b32 v{vt}, v{vt}, v{vt+1}, v{vt+2}')
        a(f'v_cmp_ne_u32 vcc, 0, v{vt}')
        a(f's_andn2_b64 exec, s[{sP}:{sP+1}], vcc')
        a(f's_mov_b64 s[{sP}:{sP+1}], vcc')
        Ls = a.newlabel(name + '_sk')
        if skipnew:
            a(f's_or_b32 s{sQ}, exec_lo, exec_hi')
            a(f's_or_b32 s{sQ}, s{sQ}, s{sDry}')
            a(f's_cbranch_scc0 {Ls}')
        on_new(s)
        a.label(Ls)
        a(f's_mov_b64 exec, s[{sP}:{sP+1}]')
        a(f's_or_b32 s{sQ}, s{sP}, s{sP+1}')
        a(f's_or_b32 s{sQ}, s{sQ}, s{sDry}')
        a(f's_cbranch_scc0 {D}')
        if slp:
            Ln = a.newlabel(name + '_ns')
            a(f's_bcnt1_i32_b64 s{sQ}, s[{sP}:{sP+1}]')
            a(f's_cmp_le_u32 s{sQ}, {thr}')
            a(f's_cbranch_scc1 {Ln}')
            a(f's_sleep {slp}')
            a.label(Ln)
        for l in loads(s): a(l)
    a(f's_sub_u32 s{scnt}, s{scnt}, 1')
    a(f's_cbranch_scc0 {L}')
    a.label(D)
    a(f's_mov_b64 exec, s[{sEX}:{sEX+1}]')


def flagpoll(a, load, regs, vt, scnt, name, sleep=1, mask=None):
    L = a.newlabel(name); D = a.newlabel(name + '_done')
    a(f's_mov_b32 s{scnt}, {POLL_MAX}')
    if mask: a(f's_mov_b64 exec, {mask}')
    a.label(L)
    a(load)
    a('s_waitcnt vmcnt(0)')
    a(f'v_xor_b32 v{vt}, s{S_TA}, v{regs[0]}')
    for r in regs[1:]:
        a(f'v_xor_b32 v{vt+1}, s{S_TA}, v{r}')
        a(f'v_or_b32 v{vt}, v{vt}, v{vt+1}')
    a(f'v_cmp_ne_u32 vcc, 0, v{vt}')
    a('s_mov_b64 exec, vcc')
    a(f's_cbranch_execz {D}')
    a(f's_sub_u32 s{scnt}, s{scnt}, 1')
    a(f's_cbranch_scc1 {D}')
    if sleep: a(f's_sleep {sleep}')
    a(f's_branch {L}')
    a.label(D)
    a('s_mov_b64 exec, -1')


def mkchunks(a, dst, vals):
    for i, v in enumerate(vals):
        a(f'v_mov_b32 v{dst+2*i}, v{v}')
        a(f'v_mov_b32 v{dst+2*i+1}, s{S_TA if i % 2 == 0 else S_TB}')


def stamp(a, cfg, sreg):
    if cfg.get('prof'): a(f's_memrealtime s[{sreg}:{sreg+1}]')

PROFV = 227
class Prof:
    slots = 0
def stamp_store(a, cfg, pairs, vt):
    if not cfg.get('prof'): return
    a('s_waitcnt lgkmcnt(0)')
    for slot, sreg in pairs:
        a(f'v_writelane_b32 v{PROFV}, s{sreg}, {slot}')

def stamp_flush(a, cfg, slots, vt):
    if not cfg.get('prof'): return
    m = sum(1 << s for s in slots)
    a(f's_lshl_b32 s78, s2, 7')
    a(f's_add_u32 s78, s78, {WS_PROF:#x}')
    a(f'v_lshlrev_b32 v{vt}, 2, v0')
    a(f's_mov_b32 exec_lo, {m:#x}')
    a('s_mov_b32 exec_hi, 0')
    a(f'buffer_store_dword v{PROFV}, v{vt}, s[{S_WS}:{S_WS+3}], s78 offen')
    a('s_mov_b64 exec, -1')


def gen_stream(a, cfg):
    D = 2
    NPRE = cfg.get('npre', 4)
    SL = cfg.get('sl', 58)
    flags = 'nt'
    V = Regs(1, 256)
    vKoff = V.alloc(); vVoff = V.alloc()
    vm = V.alloc(); vl = V.alloc(); vt0 = V.alloc(); vt1 = V.alloc(); valpha = V.alloc(); vmc = V.alloc()
    vc = V.alloc(); vg = V.alloc(); vRa = V.alloc()
    vTk = V.alloc(); vOne = V.alloc(); vList = V.alloc()
    vIt = V.alloc(); vF1 = V.alloc(); vZero = V.alloc()
    sF1 = 55
    vRec = V.alloc(2, 2)
    vmask = V.alloc(4, 4)
    vS = V.alloc(4, 4)
    vP = V.alloc(4, 4)
    vacc = V.alloc(8, 4)
    vA = V.alloc(16, 4)
    vQ = V.alloc(32, 4)
    vKb = [V.alloc(32, 4) for _ in range(D)]
    vVb = [V.alloc(32, 4) for _ in range(D)]
    sK = 4; sVv = 8
    sOff = [44, 45]
    sC = 47; sTmp = 48; sBase = 49; sHead = 50; sSplit = 51; sT2 = 52
    sDyn = 53; sCtr = 54; sTk = 56
    sNs = [42, 43]
    srd(a, sK, P_K, 0x10000000)
    srd(a, sVv, P_V, 0x10000000)
    a(f's_lshr_b32 s{sHead}, s2, 5')
    a(f's_and_b32 s{sSplit}, s2, 31')
    a(f's_lshl_b32 s{sTmp}, s{S_WAVE}, 13')
    a(f's_lshl_b32 s{sBase}, s2, 20')
    a(f's_add_u32 s{sBase}, s{sBase}, s{sTmp}')
    def paddr(k):
        a(f's_add_u32 s{sTmp}, s{sBase}, {k << 14}')
    a(f's_mov_b32 s{sC}, {C_SCALE:#x}')
    for s_ in range(D):
        a(f's_mov_b32 s{sNs[s_]}, {NPRE + s_}')
    a(f'v_and_b32 v{vc}, 15, v0')
    a(f'v_lshrrev_b32 v{vg}, 4, v0')
    a(f'v_lshlrev_b32 v{vKoff}, 9, v{vc}')
    a(f'v_lshl_add_u32 v{vKoff}, v{vg}, 4, v{vKoff}')
    a(f'v_lshlrev_b32 v{vVoff}, 11, v{vg}')
    a(f'v_lshl_add_u32 v{vVoff}, v{vc}, 4, v{vVoff}')
    koffs = [j * 64 for j in range(8)]
    voffs = [i * 512 + hf * 256 for i in range(4) for hf in range(2)]
    def R(file, base, n): return f'{file}[{base}:{base+n-1}]'
    def issueK(file, base, so):
        for j in range(8):
            a(f'buffer_load_dwordx4 {R(file,base+4*j,4)}, v{vKoff}, {sr(sK,4)}, s{so} offen offset:{koffs[j]} {flags}')
    def issueV(file, base, so):
        for j in range(8):
            a(f'buffer_load_dwordx4 {R(file,base+4*j,4)}, v{vVoff}, {sr(sVv,4)}, s{so} offen offset:{voffs[j]} {flags}')
    PST = [66 + 2 * i for i in range(11)] + [90 + 2 * i for i in range(6)]
    pst_n = [0]
    def pst():
        if cfg.get('prof') and pst_n[0] < len(PST):
            r = PST[pst_n[0]]; pst_n[0] += 1
            a(f's_memrealtime s[{r}:{r+1}]')
    a('s_barrier')
    pst()
    seq = [('a', 64 * i, 64 * i + 32) for i in range(NPRE)] + [('v', vKb[s], vVb[s]) for s in range(D)]
    paddr(0)
    for i, (file, kb, vb) in enumerate(seq):
        if i >= 2:
            a(f's_waitcnt vmcnt(24)')
            pst()
        if file == 'v':
            s = i - NPRE
            a(f's_mov_b32 s{sOff[s]}, s{sTmp}')
        issueK(file, kb, sTmp)
        if i >= 2:
            a(f's_waitcnt vmcnt(24)')
            pst()
        issueV(file, vb, sTmp)
        paddr(i + 1)
        if i == 1:
            a(f'v_lshrrev_b32 v{vt1}, 2, v{vc}')
            a(f'v_and_b32 v{vt0}, 2, v0')
            a(f'v_lshlrev_b32 v{vt0}, 3, v{vt0}')
            a(f'v_mov_b32 v{vl}, 0xffff')
            a(f'v_lshlrev_b32 v{vt0}, v{vt0}, v{vl}')
            for j in range(4):
                a(f'v_cmp_eq_u32 vcc, {j}, v{vt1}')
                a('s_nop 1')
                a(f'v_cndmask_b32 v{vmask+j}, 0, v{vt0}, vcc')
            a(f'v_mov_b32 v{vm}, 0xf149f2ca')
            a(f'v_mov_b32 v{vl}, 0')
            for k in range(8):
                a(f'v_mov_b32 v{vacc+k}, 0')
            a(f's_lshl_b32 s{sT2}, s{S_WAVE}, 9')
            a(f's_add_u32 s{sT2}, s{sT2}, {LDS_REC}')
            a(f'v_lshlrev_b32 v{vRa}, 3, v0')
            a(f'v_add_u32 v{vRa}, s{sT2}, v{vRa}')
            a(f'v_mov_b32 v{vOne}, 1')
    a(f'v_and_b32 v{vt0}, 1, v0')
    a(f'v_lshlrev_b32 v{vt0}, 9, v{vt0}')
    a(f'v_lshl_add_u32 v{vt0}, v{vg}, 4, v{vt0}')
    a(f'v_mov_b32 v{vt1}, 0')
    stamp(a, cfg, 62)
    a('s_barrier')
    for j in range(8):
        a(f'ds_read_b128 {vr(vQ+4*j,4)}, v{vt0} offset:{j*64}')
    a(f'ds_read_b32 v{vt1}, v{vt1} offset:{LDS_TAG}')
    a('s_waitcnt lgkmcnt(0)')
    a(f'v_readfirstlane_b32 s{S_TA}, v{vt1}')
    pst()

    def qk(file, kb):
        for j in range(8):
            cc = '0' if j == 0 else vr(vS, 4)
            a(f'v_mfma_f32_16x16x32_bf16 {vr(vS,4)}, {R(file,kb+4*j,4)}, {vr(vQ+4*j,4)}, {cc}')
    def softmax():
        a(f'v_cvt_pk_bf16_f32 v{vt0}, v{vS}, v{vS+1}')
        a(f'v_cvt_pk_bf16_f32 v{vt1}, v{vS+2}, v{vS+3}')
        a(f'v_lshlrev_b32 v{vS}, 16, v{vt0}')
        a(f'v_and_b32 v{vS+1}, 0xffff0000, v{vt0}')
        a(f'v_lshlrev_b32 v{vS+2}, 16, v{vt1}')
        a(f'v_and_b32 v{vS+3}, 0xffff0000, v{vt1}')
        a(f'v_max3_f32 v{vt0}, v{vS}, v{vS+1}, v{vm}')
        a(f'v_max3_f32 v{vt0}, v{vS+2}, v{vS+3}, v{vt0}')
        a(f'v_mov_b32 v{vt1}, v{vt0}')
        a('s_nop 1')
        a(f'v_permlane32_swap_b32 v{vt0}, v{vt1}')
        a(f'v_max_f32 v{vt0}, v{vt0}, v{vt1}')
        a(f'v_mov_b32 v{vt1}, v{vt0}')
        a('s_nop 1')
        a(f'v_permlane16_swap_b32 v{vt0}, v{vt1}')
        a(f'v_max_f32 v{vt0}, v{vt0}, v{vt1}')
        a(f'v_sub_f32 v{valpha}, v{vm}, v{vt0}')
        a(f'v_mul_f32 v{valpha}, s{sC}, v{valpha}')
        a(f'v_exp_f32 v{valpha}, v{valpha}')
        a(f'v_mov_b32 v{vm}, v{vt0}')
        a(f'v_mul_f32 v{vmc}, s{sC}, v{vt0}')
        for i in range(4):
            a(f'v_fma_f32 v{vP+i}, v{vS+i}, s{sC}, -v{vmc}')
        for i in range(4):
            a(f'v_exp_f32 v{vP+i}, v{vP+i}')
        a(f'v_mul_f32 v{vl}, v{vl}, v{valpha}')
        a(f'v_add_f32 v{vt0}, v{vP}, v{vP+1}')
        a(f'v_add_f32 v{vt1}, v{vP+2}, v{vP+3}')
        a(f'v_add_f32 v{vl}, v{vl}, v{vt0}')
        a(f'v_add_f32 v{vl}, v{vl}, v{vt1}')
        for i in range(8):
            qp = '[0,0,2,2]' if (i & 1) == 0 else '[1,1,3,3]'
            a(f'v_mul_f32_dpp v{vacc+i}, v{valpha}, v{vacc+i} quad_perm:{qp} row_mask:0xf bank_mask:0xf')
        for i in range(4):
            a(f'v_cvt_pk_bf16_f32 v{vP+i}, v{vP+i}, v{vP+i}')
        for i in range(4):
            for j in range(4):
                a(f'v_and_b32 v{vA+4*i+j}, v{vP+i}, v{vmask+j}')
    def pv(file, vb):
        for i in range(4):
            for hf in range(2):
                a(f'v_mfma_f32_16x16x32_bf16 {vr(vacc+4*hf,4)}, {vr(vA+4*i,4)}, {R(file,vb+4*(2*i+hf),4)}, {vr(vacc+4*hf,4)}')
    F1POS = cfg.get('f1pos', 'exit')
    def f1store():
        if not cfg.get('f1', 1): return
        a('s_mov_b64 exec, 1')
        a(f'buffer_store_dword v{vF1}, v{vZero}, {sr(S_WS,4)}, s{sF1} offen sc1')
        a('s_mov_b64 exec, -1')
    def body(s, mode):
        if mode == 'B' and F1POS == 'top':
            Lnf = a.newlabel('st_nf')
            a(f's_cmp_lt_u32 s{sOff[1-s]}, {INVALID:#x}')
            a(f's_cbranch_scc1 {Lnf}')
            f1store()
            a(f's_waitcnt vmcnt(25)')
            Lnf2 = a.newlabel('st_nf2')
            a(f's_branch {Lnf2}')
            a.label(Lnf)
            a(f's_waitcnt vmcnt(24)')
            a.label(Lnf2)
        else:
            a(f's_waitcnt vmcnt(24)')
        if mode == 'A':
            a('s_memrealtime s[58:59]')
        else:
            a('s_mov_b64 exec, 1')
            a(f'ds_add_rtn_u32 v{vTk}, v{vRa}, v{vOne}')
            a('s_mov_b64 exec, -1')
        qk('v', vKb[s])
        if mode == 'A':
            a(f's_add_u32 s{sNs[s]}, s{sNs[s]}, 2')
            a(f's_lshl_b32 s{sOff[s]}, s{sNs[s]}, 14')
            a(f's_add_u32 s{sOff[s]}, s{sOff[s]}, s{sBase}')
        else:
            a('s_waitcnt lgkmcnt(0)')
            a(f'v_readfirstlane_b32 s{sTk}, v{vTk}')
            a('s_nop 3')
            a(f'v_readlane_b32 s{sOff[s]}, v{vList}, s{sTk}')
            if F1POS == 'last':
                Lnf = a.newlabel('st_nf')
                a(f's_cmp_lt_u32 s{sOff[1-s]}, {INVALID:#x}')
                a(f's_cbranch_scc1 {Lnf}')
                f1store()
                a.label(Lnf)
            a('s_nop 4')
        issueK('v', vKb[s], sOff[s])
        softmax()
        if mode == 'A':
            a('s_waitcnt lgkmcnt(0)')
            a(f'v_mov_b32 v{vRec}, s{sNs[s]}')
            a(f'v_mov_b32 v{vRec+1}, s58')
            a(f'ds_write_b64 v{vRa}, {vr(vRec,2)}')
        a(f's_waitcnt vmcnt(24)')
        a('s_nop 0')
        pv('v', vVb[s])
        issueV('v', vVb[s], sOff[s])
    tagB(a)
    a(f'v_mov_b32 v{vF1}, s{S_TA}')
    a(f'v_mov_b32 v{vZero}, 0')
    a(f's_lshl_b32 s{sF1}, s2, 5')
    a(f's_add_u32 s{sF1}, s{sF1}, s{S_WAVE}')
    a(f's_lshl_b32 s{sF1}, s{sF1}, 2')
    a(f's_add_u32 s{sF1}, s{sF1}, {WS_F1:#x}')
    SLF = cfg.get('slf', SL)
    sLim = 46
    a(f's_cmp_ge_u32 s{sSplit}, 25')
    a(f's_cselect_b32 s{sLim}, {SLF - 1}, {SL - 1}')
    def atile(i):
        qk('a', 64 * i)
        a('s_nop 7')
        softmax()
        a('s_nop 1')
        pv('a', 64 * i + 32)
    pat = {0: '01abcd', 1: '0a1b0c1d', 2: '01a0b1c0d1', 3: '01ab0c1d', 4: '01a0b1cd'}[cfg.get('ilv', 2)]
    for ch in pat:
        if ch in '01': body(int(ch), 'A')
        else: atile(ord(ch) - ord('a'))
        pst()
    LA = a.newlabel('st_loopA'); LB = a.newlabel('st_loopB'); Ldone = a.newlabel('st_done')
    def itstamp():
        if cfg.get('prof'):
            a('s_memrealtime s[64:65]')
            a('s_mov_b32 m0, s57')
            a('s_waitcnt lgkmcnt(0)')
            a(f'v_writelane_b32 v{vIt}, s64, m0')
            a('s_add_u32 s57, s57, 1')
    if cfg.get('prof'):
        a('s_mov_b32 s57, 0')
        a(f'v_mov_b32 v{vIt}, 0')
        a('s_waitcnt lgkmcnt(0)')
        for k in range(pst_n[0]):
            a(f'v_writelane_b32 v{vIt}, s{PST[k]}, {40 + k}')
    a.label(LA)
    itstamp()
    for s in range(D): body(s, 'A')
    a(f's_cmp_lt_u32 s{sNs[1]}, s{sLim}')
    a(f's_cbranch_scc1 {LA}')
    Lw = a.newlabel('st_pw'); Lg = a.newlabel('st_pg')
    a(f'v_mov_b32 v{vRa}, {LDS_CTR}')
    a(f'v_lshlrev_b32 v{vRec}, 2, v0')
    a(f's_mov_b32 s{sCtr}, {POLL_MAX}')
    if cfg.get('prof'): a('s_memrealtime s[66:67]')
    a.label(Lw)
    a(f'ds_read_b32 v{vTk}, v{vRa} offset:{LDS_FLAG - LDS_CTR}')
    a(f'ds_read_b32 v{vList}, v{vRec} offset:{LDS_LIST}')
    a('s_waitcnt lgkmcnt(0)')
    a(f'v_readfirstlane_b32 s{sTk}, v{vTk}')
    a(f's_cmp_eq_u32 s{sTk}, s{S_TA}')
    a(f's_cbranch_scc1 {Lg}')
    a(f's_sub_u32 s{sCtr}, s{sCtr}, 1')
    a(f's_cbranch_scc1 {Lg}')
    a('s_sleep 2')
    a(f's_branch {Lw}')
    a.label(Lg)
    if cfg.get('prof'):
        a('s_memrealtime s[68:69]')
        a('s_waitcnt lgkmcnt(0)')
        a(f'v_writelane_b32 v{vIt}, s66, 60')
        a(f'v_writelane_b32 v{vIt}, s68, 61')
    a.label(LB)
    itstamp()
    for s in range(D):
        body(s, 'B')
        nx = (s + 1) % D
        a(f's_cmp_ge_u32 s{sOff[nx]}, {INVALID:#x}')
        if s == D - 1:
            a(f's_cbranch_scc0 {LB}')
        else:
            a(f's_cbranch_scc1 {Ldone}')
    a.label(Ldone)
    if F1POS == 'exit': f1store()
    a('s_mov_b64 exec, 1')
    a(f'ds_add_rtn_u32 v{vTk}, v{vRa}, v{vOne} offset:{LDS_DONE - LDS_CTR}')
    a('s_mov_b64 exec, -1')
    xlane_reduce(a, [vl], [vt0], 'v_add_f32', ['p32', 'p16'])
    a(f'v_lshlrev_b32 v{vt0}, 4, v0')
    a(f's_lshl_b32 s{sT2}, s2, 7')
    a(f's_add_u32 s{sT2}, s{sT2}, {WS_ML:#x}')
    a(f's_lshl_b32 s{sBase}, s2, 12')
    a(f's_add_u32 s{sBase}, s{sBase}, {WS_O:#x}')
    L2nd = a.newlabel('st_2nd'); LB3 = a.newlabel('st_b3')
    a('s_waitcnt lgkmcnt(0)')
    a(f'v_readfirstlane_b32 s{sTk}, v{vTk}')
    a(f's_cmp_lg_u32 s{sTk}, 0')
    a(f's_cbranch_scc1 {L2nd}')
    a(f'v_mov_b32 v{vS}, v{vm}')
    a(f'v_mov_b32 v{vS+1}, v{vl}')
    a(f'v_mov_b32 v{vTk}, s{S_TA}')
    a(f'ds_write_b128 v{vt0}, {vr(vacc,4)} offset:{LDS_CMB}')
    a(f'ds_write_b128 v{vt0}, {vr(vacc+4,4)} offset:{LDS_CMB+1024}')
    a(f'ds_write_b64 v{vt0}, {vr(vS,2)} offset:{LDS_CMB+2048}')
    a(f'ds_write_b32 v{vRa}, v{vTk} offset:{LDS_FLAG2 - LDS_CTR}')
    a(f's_branch {LB3}')
    a.label(L2nd)
    Lw2 = a.newlabel('st_w2'); Lg2 = a.newlabel('st_g2')
    a(f's_mov_b32 s{sCtr}, {POLL_MAX}')
    a.label(Lw2)
    a(f'ds_read_b32 v{vTk}, v{vRa} offset:{LDS_FLAG2 - LDS_CTR}')
    a(f'ds_read_b64 {vr(vS,2)}, v{vt0} offset:{LDS_CMB+2048}')
    a(f'ds_read_b128 {vr(vA,4)}, v{vt0} offset:{LDS_CMB}')
    a(f'ds_read_b128 {vr(vA+4,4)}, v{vt0} offset:{LDS_CMB+1024}')
    a('s_waitcnt lgkmcnt(3)')
    a(f'v_readfirstlane_b32 s{sTk}, v{vTk}')
    a(f's_cmp_eq_u32 s{sTk}, s{S_TA}')
    a(f's_cbranch_scc1 {Lg2}')
    a(f's_sub_u32 s{sCtr}, s{sCtr}, 1')
    a(f's_cbranch_scc1 {Lg2}')
    a('s_waitcnt lgkmcnt(0)')
    a(f's_branch {Lw2}')
    a.label(Lg2)
    a('s_waitcnt lgkmcnt(2)')
    a(f'v_max_f32 v{vt1}, v{vm}, v{vS}')
    a(f'v_sub_f32 v{valpha}, v{vm}, v{vt1}')
    a(f'v_sub_f32 v{vmc}, v{vS}, v{vt1}')
    a(f'v_mul_f32 v{valpha}, s{sC}, v{valpha}')
    a(f'v_mul_f32 v{vmc}, s{sC}, v{vmc}')
    a(f'v_exp_f32 v{valpha}, v{valpha}')
    a(f'v_exp_f32 v{vmc}, v{vmc}')
    a(f'v_mov_b32 v{vm}, v{vt1}')
    a(f'v_mul_f32 v{vl}, v{vl}, v{valpha}')
    a(f'v_fmac_f32 v{vl}, v{vS+1}, v{vmc}')
    for i in range(8):
        qp = '[0,0,2,2]' if (i & 1) == 0 else '[1,1,3,3]'
        a(f'v_mul_f32_dpp v{vacc+i}, v{valpha}, v{vacc+i} quad_perm:{qp} row_mask:0xf bank_mask:0xf')
    a('s_waitcnt lgkmcnt(0)')
    for i in range(8):
        qp = '[0,0,2,2]' if (i & 1) == 0 else '[1,1,3,3]'
        a(f'v_fmac_f32_dpp v{vacc+i}, v{vmc}, v{vA+i} quad_perm:{qp} row_mask:0xf bank_mask:0xf')
    a(f'v_lshlrev_b32 v{vt1}, 6, v{vc}')
    a(f'v_lshl_add_u32 v{vt1}, v{vg}, 4, v{vt1}')
    a(f'v_and_b32 v{vTk}, 1, v{vc}')
    a(f'v_cmp_eq_u32 vcc, 1, v{vTk}')
    a(f'v_mov_b32_dpp v{vP}, v{vm} quad_perm:[1,0,3,2] row_mask:0xf bank_mask:0xf')
    a(f'v_mov_b32_dpp v{vP+1}, v{vl} quad_perm:[1,0,3,2] row_mask:0xf bank_mask:0xf')
    a(f'v_mov_b32 v{vS+1}, s{S_TA}')
    a(f'v_mov_b32 v{vS+3}, s{S_TB}')
    a(f'v_cndmask_b32 v{vS}, v{vm}, v{vP+1}, vcc')
    a(f'v_cndmask_b32 v{vS+2}, v{vP}, v{vl}, vcc')
    mkchunks(a, vA, [vacc + i for i in range(8)])
    for i in range(4):
        a(f'buffer_store_dwordx4 {vr(vA+4*i,4)}, v{vt1}, {sr(S_WS,4)}, s{sBase} offen offset:{1024*i} sc1')
    a('s_mov_b64 exec, 0xff')
    a(f'buffer_store_dwordx4 {vr(vS,4)}, v{vt0}, {sr(S_WS,4)}, s{sT2} offen sc1')
    a('s_mov_b64 exec, -1')
    a.label(LB3)
    a(f'v_mov_b32 v{vt0}, 0')
    if cfg.get('prof'):
        a(f's_memrealtime s[58:59]')
    a('s_barrier')
    if cfg.get('prof'):
        a(f's_add_u32 s{sT2}, s{S_WAVE}, 4')
        a(f's_lshl_b32 s{sTmp}, s2, 5')
        a(f's_add_u32 s{sTmp}, s{sTmp}, s{sT2}')
        a(f's_lshl_b32 s{sTmp}, s{sTmp}, 2')
        a(f's_add_u32 s{sTmp}, s{sTmp}, {WS_PROF:#x}')
        a('s_waitcnt lgkmcnt(0)')
        a(f'v_mov_b32 v{vt1}, s58')
        a(f'buffer_store_dword v{vt1}, v{vt0}, {sr(S_WS,4)}, s{sTmp} offen')
        a(f'v_mov_b32 v{vt1}, s62')
        a(f'buffer_store_dword v{vt1}, v{vt0}, {sr(S_WS,4)}, s{sTmp} offen offset:28')
        a(f's_lshl_b32 s{sTmp}, s2, 1')
        a(f's_add_u32 s{sTmp}, s{sTmp}, s{S_WAVE}')
        a(f's_lshl_b32 s{sTmp}, s{sTmp}, 8')
        a(f's_add_u32 s{sTmp}, s{sTmp}, {WS_IT:#x}')
        a(f'v_lshlrev_b32 v{vt0}, 2, v0')
        a(f'buffer_store_dword v{vIt}, v{vt0}, {sr(S_WS,4)}, s{sTmp} offen')
    a('s_endpgm')
    return V.n


def gemv_pairs(a, vm, W, nrows, ndw, vX, acc, tmps, loads, first=True):
    for t in range(nrows // 2):
        if loads is not None:
            vm.wait(loads[2 * t + 1])
        for d in range(ndw):
            lo, hi = tmps[2 * d], tmps[2 * d + 1]
            a(f'v_perm_b32 v{lo}, v{W[2*t+1]+d}, v{W[2*t]+d}, s{S_SELLO}')
            a(f'v_perm_b32 v{hi}, v{W[2*t+1]+d}, v{W[2*t]+d}, s{S_SELHI}')
        for d in range(ndw):
            lo, hi = tmps[2 * d], tmps[2 * d + 1]
            c0 = '0' if (t == 0 and first) else f'v{acc[2*d]}'
            c1 = '0' if (t == 0 and first) else f'v{acc[2*d+1]}'
            a(f'v_dot2_f32_bf16 v{acc[2*d]}, v{lo}, v{vX+t}, {c0}')
            a(f'v_dot2_f32_bf16 v{acc[2*d+1]}, v{hi}, v{vX+t}, {c1}')
    a('s_nop 2')


def rnd_bf16(a, d, s, t):
    a(f'v_cvt_pk_bf16_f32 v{t}, v{s}, v{s}')
    a(f'v_lshlrev_b32 v{d}, 16, v{t}')


def ksplit_loads(a, vm, sX, sW, rowbytes, sKq, sColByte, vX, vW, vo1, vo2, vo3, sT, sT2):
    a(f'v_lshrrev_b32 v{vo1}, 3, v0')
    a(f'v_mul_u32_u24 v{vo2}, {14*rowbytes}, v{vo1}')
    a(f'v_and_b32 v{vo3}, 7, v0')
    a(f'v_lshl_add_u32 v{vo2}, v{vo3}, 4, v{vo2}')
    a(f's_mul_i32 s{sT2}, s{sKq}, {112*rowbytes}')
    a(f's_add_u32 s{sT2}, s{sT2}, s{sColByte}')
    lw = []
    for k in range(14):
        lw.append(vm.issue(f'buffer_load_dwordx4 {vr(vW+4*k,4)}, v{vo2}, {sr(sW,4)}, s{sT2} offen nt'))
        if k < 13: a(f's_add_u32 s{sT2}, s{sT2}, {rowbytes}')
        if k == 0:
            a(f'v_mul_u32_u24 v{vo3}, 28, v{vo1}')
            a(f's_mul_i32 s{sT}, s{sKq}, 224')
            vm.issue(f'buffer_load_dwordx4 {vr(vX,4)}, v{vo3}, {sr(sX,4)}, s{sT} offen')
            vm.issue(f'buffer_load_dwordx3 {vr(vX+4,3)}, v{vo3}, {sr(sX,4)}, s{sT} offen offset:16')
    return lw


def gen_auxA(a, cfg):
    V = Regs(1, 256)
    vt = V.alloc(8, 4)
    vX = V.alloc(8, 4)
    vacc = V.alloc(8, 4)
    vtmp = V.alloc(8, 4)
    vo1 = V.alloc(); vo2 = V.alloc(); vo3 = V.alloc(); vTag = V.alloc(); vOa = vTag; vYs = V.alloc()
    vCh = V.alloc(16, 4)
    vW = V.alloc(72, 4); vSet = vW
    vWp = V.alloc(64, 4)
    vOq = V.alloc(16, 4)
    vML = V.alloc(8, 4)
    sX = 4; sWQ = 8; sDBG = 44; sWO = 48
    sT = 52; sT2 = 53; sHead = 54; sJ = 55; sCnt = 56; sC = 57; sKq = 58; sCb = 59
    sPk = 80
    vm = VM(a)
    stamp(a, cfg, 62)
    srd(a, sX, P_X, 896)
    srd(a, sWQ, P_WQ, 448 * 8192)
    a(f's_lshr_b32 s{sHead}, s2, 5')
    a(f's_and_b32 s{sJ}, s2, 31')
    a(f's_and_b32 s{sKq}, s2, 3')
    a(f's_lshr_b32 s{sCb}, s2, 2')
    a(f's_lshl_b32 s{sCb}, s{sCb}, 7')
    lw = ksplit_loads(a, vm, sX, sWQ, 8192, sKq, sCb, vX, vW, vo1, vo2, vo3, sT, sT2)
    a('s_barrier')
    srd(a, sDBG, P_DBG, 256)
    srd(a, sWO, P_WO, 4096 * 896)
    a(f'v_mov_b32 v{vo3}, 0')
    vm.issue(f'buffer_load_dword v{vTag}, v{vo3}, {sr(sDBG,4)}, 0 offen sc1')
    gemv_pairs(a, vm, [vW + 4 * k for k in range(14)], 14, 4, vX, [vacc + i for i in range(8)], [vtmp + i for i in range(8)], lw)
    xlane_reduce(a, [vacc + i for i in range(8)], [vtmp + i for i in range(8)], 'v_add_f32', ['r8', 'p16', 'p32'])
    stamp(a, cfg, 64)
    a(f'v_lshlrev_b32 v{vo1}, 4, v0')
    a(f's_lshl_b32 s{sT}, s{sHead}, 14')
    a(f's_lshl_b32 s{sT2}, s{sKq}, 12')
    a(f's_add_u32 s{sT2}, s{sT2}, s{sT}')
    a(f's_and_b32 s{sC}, s{sCb}, 0x380')
    a(f's_lshl_b32 s{sC}, s{sC}, 2')
    a(f's_add_u32 s{sT2}, s{sT2}, s{sC}')
    L = a.newlabel('ptag'); Dn = a.newlabel('ptag_done')
    a(f's_mov_b32 s{sCnt}, {POLL_MAX}')
    a.label(L)
    a('s_waitcnt vmcnt(0)')
    a(f'v_readfirstlane_b32 s{S_TA}, v{vTag}')
    a(f's_cmp_lg_u32 s{S_TA}, 0')
    a(f's_cbranch_scc1 {Dn}')
    a(f's_sub_u32 s{sCnt}, s{sCnt}, 1')
    a(f's_cbranch_scc1 {Dn}')
    a('s_sleep 1')
    a(f'buffer_load_dword v{vTag}, v{vo3}, {sr(sDBG,4)}, 0 offen sc1')
    a(f's_branch {L}')
    a.label(Dn)
    tagB(a)
    stamp(a, cfg, 66)
    mkchunks(a, vCh, [vacc + i for i in range(8)])
    a('s_mov_b64 exec, 0xff')
    for c in range(4):
        a(f'buffer_store_dwordx4 {vr(vCh+4*c,4)}, v{vo1}, {sr(S_WS,4)}, s{sT2} offen offset:{128*c} sc1')
    a('s_mov_b64 exec, -1')
    a(f'v_lshrrev_b32 v{vo2}, 5, v0')
    a(f'v_lshlrev_b32 v{vo2}, 7, v{vo2}')
    a(f'v_and_b32 v{vt}, 7, v0')
    a(f'v_lshl_add_u32 v{vo2}, v{vt}, 4, v{vo2}')
    a(f'v_bfe_u32 v{vt}, v0, 3, 2')
    a(f'v_lshl_add_u32 v{vo2}, v{vt}, 2, v{vo2}')
    for kq in range(1, 4):
        a(f's_add_u32 s{80+kq}, s{sT}, {4096*kq}')
    loads = []
    for kq in range(4):
        for i in range(4):
            so = sT if kq == 0 else 80 + kq
            loads.append(f'buffer_load_dwordx4 {vr(vW+4*(4*kq+i),4)}, v{vo1}, {sr(S_WS,4)}, s{so} offen offset:{i*1024} sc1')
    if cfg.get('qsleep'): a(f's_sleep {cfg["qsleep"]}')
    poll(a, loads, [vW + 4 * k for k in range(16)], vt, sCnt, name='pq')
    stamp(a, cfg, 68)
    for i in range(4):
        for e in (0, 2):
            a(f'v_add_f32 v{vW+4*i+e}, v{vW+4*i+e}, v{vW+4*(4+i)+e}')
            a(f'v_add_f32 v{vW+4*(8+i)+e}, v{vW+4*(8+i)+e}, v{vW+4*(12+i)+e}')
    for i in range(4):
        for e in (0, 2):
            a(f'v_add_f32 v{vW+4*i+e}, v{vW+4*i+e}, v{vW+4*(8+i)+e}')
    for i in range(4):
        a(f'v_cvt_pk_bf16_f32 v{vt+i}, v{vW+4*i}, v{vW+4*i+2}')
    for i in range(4):
        a(f'ds_write_b32 v{vo2}, v{vt+i} offset:{256*i}')
    a(f'ds_write_b32 v{vo3}, v{vTag} offset:{LDS_TAG}')
    a(f'ds_write_b32 v{vo3}, v{vo3} offset:{LDS_CTR}')
    a(f'ds_write_b32 v{vo3}, v{vo3} offset:{LDS_FLAG}')
    a(f'ds_write_b32 v{vo3}, v{vo3} offset:{LDS_DONE}')
    a(f'ds_write_b32 v{vo3}, v{vo3} offset:{LDS_REC}')
    a('s_waitcnt lgkmcnt(0)')
    a('s_barrier')
    stamp(a, cfg, 70)
    stamp_store(a, cfg, [(0, 62), (7, 64), (8, 66), (9, 68), (1, 70)], vt)
    a(f's_lshl_b32 s{sT}, s{sHead}, 9')
    a(f's_and_b32 s{sT2}, s{sJ}, 16')
    a(f's_lshl_b32 s{sT2}, s{sT2}, 3')
    a(f's_add_u32 s{sT}, s{sT}, s{sT2}')
    a(f's_and_b32 s{sT2}, s{sJ}, 7')
    a(f's_lshl_b32 s{sT2}, s{sT2}, 4')
    a(f's_add_u32 s{sT}, s{sT}, s{sT2}')
    a(f's_bfe_u32 s{sT2}, s{sJ}, 0x10003')
    a(f's_add_u32 s{sT}, s{sT}, s{sT2}')
    a(f's_mul_i32 s{sT}, s{sT}, 896')
    a(f'v_min_u32 v{vo2}, 55, v0')
    a(f'v_lshlrev_b32 v{vo2}, 4, v{vo2}')
    for hh in range(2):
        for e in range(8):
            a(f'buffer_load_dwordx4 {vr(vW+4*(8*hh+e),4)}, v{vo2}, {sr(sWO,4)}, s{sT} offen offset:{(e%2)*1792} nt')
            if e % 2 == 1:
                a(f's_add_u32 s{sT}, s{sT}, {3584 if e < 7 else 3584 + (256-16)*896}')
    a('s_waitcnt vmcnt(0)')
    stamp(a, cfg, 62)
    stamp_store(a, cfg, [(16, 62)], vt)
    for pr in range(8):
        r0 = vW + 4 * (2 * pr); r1 = vW + 4 * (2 * pr + 1)
        for d in range(4):
            a(f'v_perm_b32 v{vWp+8*pr+2*d}, v{r1+d}, v{r0+d}, s{S_SELLO}')
            a(f'v_perm_b32 v{vWp+8*pr+2*d+1}, v{r1+d}, v{r0+d}, s{S_SELHI}')
    a(f'v_and_b32 v{vo2}, 31, v0')
    a(f'v_lshlrev_b32 v{vo2}, 7, v{vo2}')
    a(f'v_lshrrev_b32 v{vo3}, 3, v0')
    a(f'v_lshlrev_b32 v{vOa}, 12, v{vo3}')
    a(f'v_and_b32 v{vt}, 7, v0')
    a(f'v_lshl_add_u32 v{vOa}, v{vt}, 4, v{vOa}')
    a(f'v_lshlrev_b32 v{vo3}, 2, v{vo3}')
    a(f's_lshl_b32 s{sT}, s{sHead}, 17')
    a(f's_lshl_b32 s{sT2}, s{sJ}, 7')
    a(f's_add_u32 s{sT}, s{sT}, s{sT2}')
    a(f's_add_u32 s{sT}, s{sT}, {WS_O:#x}')
    for k in range(1, 4):
        a(f's_add_u32 s{72+k}, s{sT}, {k << 15}')
    a(f's_lshl_b32 s{sT2}, s{sHead}, 12')
    a(f's_add_u32 s{sT2}, s{sT2}, {WS_ML:#x}')
    a(f's_mov_b32 s{sC}, {C_SCALE:#x}')
    a(f's_lshl_b32 s72, s2, 6')
    for c in range(4):
        a(f's_add_u32 s{24+c}, s72, {WS_Y + c * 14 * 16384:#x}')
    a(f'v_lshrrev_b32 v{vYs}, 2, v0')
    a(f'v_lshlrev_b32 v{vYs}, 14, v{vYs}')
    a(f'v_and_b32 v{vt}, 3, v0')
    a(f'v_lshl_add_u32 v{vYs}, v{vt}, 4, v{vYs}')
    for i in range(8):
        a(f'v_mov_b32 v{vCh+2*i+1}, s{S_TA if i % 2 == 0 else S_TB}')
    SL = cfg.get('sl', 58); OWN = 2 * (64 - SL); T2 = cfg.get('t2', 5700); CL = cfg.get('cl', OWN - 2) * 128
    SLF = cfg.get('slf', SL); OWNF = 2 * (64 - SLF); CLF = (OWNF - 2) * 128; CLP = cfg.get('clp', 14) * 128
    TMAX = 56 - max(OWN, OWNF)
    p0 = vW
    vR = p0; vPc = p0 + 4; vx = p0 + 8; vSx = p0 + 9; vU = p0 + 10; vUe = p0 + 11; vT = p0 + 12; vgv = p0 + 13; vtv = p0 + 14
    vGE = p0 + 15; vTP = p0 + 16; vL = p0 + 17; vAd = p0 + 18; vZ = p0 + 19; vOwn = p0 + 20; vCl = p0 + 21
    a(f'v_cmp_le_u32 vcc, 25, v0')
    a(f'v_mov_b32 v{vOwn}, {OWN}')
    a(f'v_mov_b32 v{vCl}, {OWNF}')
    a(f'v_cndmask_b32 v{vOwn}, v{vOwn}, v{vCl}, vcc')
    a(f'v_mov_b32 v{vCl}, {(-CL) & 0xffffffff:#x}')
    a(f'v_mov_b32 v{vZ}, {(-CLF) & 0xffffffff:#x}')
    a(f'v_cndmask_b32 v{vCl}, v{vCl}, v{vZ}, vcc')
    a(f'v_readlane_b32 s19, v{vOwn}, s{sJ}')
    sM = 76; sLo = 64
    def scan32(r):
        for sh in (1, 2, 4, 8):
            a('s_nop 1')
            a(f'v_add_u32_dpp v{r}, v{r}, v{r} row_shr:{sh} row_mask:0xf bank_mask:0xf bound_ctrl:0')
        a('s_nop 1')
        a(f'v_add_u32_dpp v{r}, v{r}, v{r} row_bcast:15 row_mask:0xa bank_mask:0xf')
        a('s_nop 0')
    Lw = a.newlabel('pl_w'); Lf = a.newlabel('pl_f'); Lg = a.newlabel('pl_g')
    a(f's_add_u32 s{sM}, s{S_TA}, {T2}')
    a(f'v_mov_b32 v{vAd}, {LDS_REC}')
    a(f'v_mov_b32 v{vPc+1}, s{S_TA}')
    a(f'v_mov_b32 v{vPc+3}, s{S_TB}')
    a(f's_lshl_b32 s77, s2, 7')
    a(f's_add_u32 s77, s77, {WS_PLAN:#x}')
    a(f's_lshl_b32 s79, s{sHead}, 12')
    a(f's_add_u32 s79, s79, {WS_PLAN:#x}')
    a.label(Lw)
    a('s_memrealtime s[64:65]')
    a('s_waitcnt lgkmcnt(0)')
    a(f's_sub_u32 s64, s64, s{S_TA}')
    a(f's_cmp_ge_u32 s64, {T2}')
    a(f's_cbranch_scc1 {Lg}')
    a(f's_cmp_ge_u32 s64, {T2 - 150}')
    a(f's_cbranch_scc1 {Lf}')
    a('s_sleep 40')
    a.label(Lf)
    a('s_sleep 2')
    a(f's_branch {Lw}')
    a.label(Lg)
    a(f'ds_read_b64 {vr(vR,2)}, v{vAd}')
    a(f'ds_read_b64 {vr(vR+2,2)}, v{vAd} offset:512')
    a('s_waitcnt lgkmcnt(0)')
    for i in (0, 2):
        a(f'v_sub_u32 v{vR+i+1}, s{sM}, v{vR+i+1}')
        a(f'v_max_i32 v{vR+i+1}, {(-220) & 0xffffffff:#x}, v{vR+i+1}')
        a(f'v_min_i32 v{vR+i+1}, 165, v{vR+i+1}')
        a(f'v_mul_i32_i24 v{vR+i+1}, 149, v{vR+i+1}')
        a(f'v_ashrrev_i32 v{vR+i+1}, 7, v{vR+i+1}')
        a(f'v_and_b32 v{vR+i}, 63, v{vR+i}')
        a(f'v_lshl_add_u32 v{vR+i}, v{vR+i}, 7, v{vR+i+1}')
    a(f'v_add_u32 v{vPc}, v{vR}, v{vR+2}')
    a(f'v_mov_b32 v{vPc+2}, v{vPc}')
    a('s_mov_b64 exec, 0xff')
    a(f'buffer_store_dwordx4 {vr(vPc,4)}, v{vo1}, {sr(S_WS,4)}, s77 offen sc1')
    a('s_mov_b64 exec, -1')
    stamp(a, cfg, 66)
    a(f's_sleep {cfg.get("plsleep", 40)}')
    a('s_mov_b32 exec_hi, 0')
    poll(a, [f'buffer_load_dwordx4 {vr(vR,4)}, v{vo2}, {sr(S_WS,4)}, s79 offen sc1'], [vR], vt, sCnt, name='ppl', sleep=cfg.get('plsleep2', 8))
    stamp(a, cfg, 68)
    a(f'v_cmp_gt_u32 s[64:65], 32, v0')
    a(f'v_mov_b32 v{vZ}, 0')
    a('s_nop 0')
    a(f'v_cndmask_b32 v{vSx}, v{vZ}, v{vR}, s[64:65]')
    scan32(vSx)
    a(f'v_readlane_b32 s78, v{vSx}, 31')
    a('s_ashr_i32 s78, s78, 5')
    a(f'v_subrev_u32 v{vx}, s78, v{vR}')
    a(f'v_max_i32 v{vx}, v{vCl}, v{vx}')
    a(f'v_min_i32 v{vx}, {CLP:#x}, v{vx}')
    a(f'v_cndmask_b32 v{vx}, v{vZ}, v{vx}, s[64:65]')
    a(f'v_mov_b32 v{vSx}, v{vx}')
    scan32(vSx)
    a(f'v_readlane_b32 s78, v{vSx}, 31')
    a(f'v_add_u32 v{vT}, 1, v0')
    a(f'v_lshlrev_b32 v{vU}, 5, v{vSx}')
    a(f'v_mul_lo_u32 v{vT}, v{vT}, s78')
    a(f'v_sub_u32 v{vU}, v{vU}, v{vT}')
    a(f'v_lshlrev_b32 v{vT}, 5, v{vx}')
    a(f'v_sub_u32 v{vUe}, v{vU}, v{vT}')
    a(f'v_add_u32 v{vUe}, s78, v{vUe}')
    a(f'v_add_u32 v{vU}, 0x800, v{vU}')
    a(f'v_add_u32 v{vUe}, 0x800, v{vUe}')
    a(f'v_ashrrev_i32 v{vU}, 12, v{vU}')
    a(f'v_ashrrev_i32 v{vUe}, 12, v{vUe}')
    a(f'v_sub_u32 v{vtv}, v{vU}, v{vUe}')
    a(f'v_cndmask_b32 v{vtv}, v{vZ}, v{vtv}, s[64:65]')
    a(f'v_sub_u32 v{vgv}, 0, v{vtv}')
    a(f'v_max_i32 v{vgv}, 0, v{vgv}')
    a(f'v_max_i32 v{vtv}, 0, v{vtv}')
    Lok = a.newlabel('pl_ok')
    a(f'v_cmp_lt_u32 vcc, v{vOwn}, v{vgv}')
    a(f'v_cmp_lt_u32 s[70:71], {TMAX}, v{vtv}')
    a('s_or_b64 vcc, vcc, s[70:71]')
    if cfg.get('noplan'): a('s_mov_b64 vcc, 1')
    a('s_cmp_eq_u64 vcc, 0')
    a(f's_cbranch_scc1 {Lok}')
    a(f'v_mov_b32 v{vgv}, 0')
    a(f'v_mov_b32 v{vtv}, 0')
    a.label(Lok)
    a(f'v_lshl_or_b32 v{vSx}, v{vtv}, 16, v{vgv}')
    scan32(vSx)
    a(f'v_and_b32 v{vGE}, 0xffff, v{vSx}')
    a(f'v_mov_b32 v{vT}, 0x7fffffff')
    a(f'v_cndmask_b32 v{vGE}, v{vT}, v{vGE}, s[64:65]')
    a(f'v_lshrrev_b32 v{vTP}, 16, v{vSx}')
    a(f'v_sub_u32 v{vTP}, v{vTP}, v{vtv}')
    a(f'v_readlane_b32 s64, v{vgv}, s{sJ}')
    a(f'v_readlane_b32 s65, v{vtv}, s{sJ}')
    a(f'v_readlane_b32 s70, v{vTP}, s{sJ}')
    a(f's_sub_u32 s64, s19, s64')
    a(f's_lshl_b32 s71, s2, 7')
    a(f's_sub_u32 s71, s71, s19')
    a(f's_add_u32 s71, s71, 128')
    a(f's_lshl_b32 s71, s71, 13')
    a(f'v_lshlrev_b32 v{vL}, 13, v0')
    a(f'v_add_u32 v{vL}, s71, v{vL}')
    a(f'v_mov_b32 v{vT}, {INVALID:#x}')
    a(f'v_cmp_gt_u32 vcc, s64, v0')
    a(f's_lshl_b32 s71, s{sHead}, 25')
    a(f's_add_u32 s71, s71, {128 << 13}')
    a(f'v_cndmask_b32 v{vL}, v{vT}, v{vL}, vcc')
    if cfg.get('prof'):
        a('s_lshl_b32 s79, s65, 8')
        a('s_add_u32 s79, s79, s64')
    Lk = a.newlabel('pl_k'); Lkd = a.newlabel('pl_kd')
    a.label(Lk)
    a('s_cmp_eq_u32 s65, 0')
    a(f's_cbranch_scc1 {Lkd}')
    a(f'v_cmp_ge_u32 vcc, s70, v{vGE}')
    a('s_bcnt1_i32_b64 s76, vcc')
    a('s_mov_b32 m0, s64')
    a(f'v_readlane_b32 s77, v{vGE}, s76')
    a('s_sub_u32 s77, s77, s70')
    a('s_lshl_b32 s77, s77, 13')
    a('s_lshl_b32 s76, s76, 20')
    a('s_add_u32 s76, s76, s71')
    a('s_sub_u32 s76, s76, s77')
    a(f'v_writelane_b32 v{vL}, s76, m0')
    a('s_add_u32 s64, s64, 1')
    a('s_add_u32 s70, s70, 1')
    a('s_sub_u32 s65, s65, 1')
    a(f's_branch {Lk}')
    a.label(Lkd)
    a(f'v_lshlrev_b32 v{vAd}, 2, v0')
    a(f'ds_write_b32 v{vAd}, v{vL} offset:{LDS_LIST}')
    a(f'ds_write_b32 v{vZ}, v{vPc+1} offset:{LDS_FLAG}')
    stamp(a, cfg, 70)
    stamp_store(a, cfg, [(17, 79), (18, 66), (19, 68), (20, 70)], vt)
    sEX = 16; sDry = 18
    WARM = 0
    a(f's_mov_b64 s[{sEX}:{sEX+1}], -1')
    a(f's_lshl_b32 s20, s{sHead}, 12')
    a(f's_add_u32 s20, s20, {WS_F1:#x}')
    a(f's_lshl_b32 s21, s2, 7')
    a(f's_add_u32 s21, s21, {WS_F2:#x}')
    a(f'v_mov_b32 v{vSet+4}, s{S_TA}')
    a(f'v_mov_b32 v{vSet+5}, 0')
    a('s_barrier')
    if cfg.get('f1', 1):
        flagpoll(a, f'buffer_load_dwordx2 {vr(vSet,2)}, v{vo2}, {sr(S_WS,4)}, s20 offen sc1', [vSet, vSet + 1], vt, sCnt, 'pf1',
                 sleep=cfg.get('f1sleep', 1))
    stamp(a, cfg, 66)
    R2 = cfg.get('r2', 4)
    def f2store():
        if not cfg.get('f2', 1): return
        Lnf = a.newlabel('nf2')
        a(f's_and_b32 s22, s{sJ}, {32 // R2 - 1}')
        a(f's_cmp_lg_u32 s22, {cfg.get("r2c", 3) % (32 // R2)}')
        a(f's_cbranch_scc1 {Lnf}')
        a('s_mov_b64 exec, 1')
        a(f'buffer_store_dword v{vSet+4}, v{vSet+5}, {sr(S_WS,4)}, s21 offen sc1')
        a('s_mov_b64 exec, -1')
        a.label(Lnf)
    if cfg.get('f2pos', 'gath') == 'f1': f2store()
    if cfg.get('d1'): a(f's_sleep {cfg["d1"]}')
    loads = [f'buffer_load_dwordx4 {vr(vML,4)}, v{vo2}, {sr(S_WS,4)}, s{sT2} offen sc1',
             f'buffer_load_dwordx4 {vr(vML+4,4)}, v{vo2}, {sr(S_WS,4)}, s{sT2} offen offset:16 sc1']
    for k in range(4):
        loads.append(f'buffer_load_dwordx4 {vr(vOq+4*k,4)}, v{vOa}, {sr(S_WS,4)}, s{sT if k == 0 else 72 + k} offen sc1')
    poll(a, loads, [vML, vML + 4] + [vOq + 4 * k for k in range(4)], vt, sCnt, name='ps2', sleep=cfg.get('s2sleep', 1))
    if cfg.get('f2pos', 'gath') == 'gath': f2store()
    if cfg.get('prof'): a(f's_sub_u32 s23, {POLL_MAX}, s{sCnt}')
    stamp(a, cfg, 62)
    vWt = vX
    M = [vt, vt + 1]
    a(f'v_mov_b32 v{M[0]}, v{vML}')
    a(f'v_mov_b32 v{M[1]}, v{vML+2}')
    xlane_reduce(a, M, [vt + 2, vt + 3], 'v_max_f32', ['x1', 'x2', 'r4', 'r8', 'p16'])
    for hh in range(2):
        a(f'v_sub_f32 v{vML+2*hh}, v{vML+2*hh}, v{M[hh]}')
        a(f'v_mul_f32 v{vML+2*hh}, s{sC}, v{vML+2*hh}')
    for hh in range(2):
        a(f'v_exp_f32 v{vML+2*hh}, v{vML+2*hh}')
    a('s_nop 0')
    for k in range(4):
        for hh in range(2):
            a(f'ds_bpermute_b32 v{vWt+2*k+hh}, v{vo3}, v{vML+2*hh} offset:{32*k}')
    for hh in range(2):
        a(f'v_mul_f32 v{vacc+2+hh}, v{vML+2*hh}, v{vML+4+2*hh}')
    a('s_mov_b32 exec_lo, 0')
    for hh in range(2):
        a(f'v_mov_b32 v{vacc+2+hh}, 0')
    a(f's_mov_b32 exec_lo, s{sEX}')
    xlane_reduce(a, [vacc + 2, vacc + 3], [vt + 2, vt + 3], 'v_add_f32', ['x1', 'x2', 'r4'])
    a('s_waitcnt lgkmcnt(0)')
    for k in range(4):
        for hh in range(2):
            if k == 0: a(f'v_mul_f32 v{vacc+hh}, v{vWt+2*k+hh}, v{vOq+4*k+2*hh}')
            else: a(f'v_fmac_f32 v{vacc+hh}, v{vWt+2*k+hh}, v{vOq+4*k+2*hh}')
    a('s_nop 1')
    xlane_reduce(a, [vacc + i for i in range(4)], [vtmp + i for i in range(4)], 'v_add_f32', ['r8', 'p16', 'p32'])
    a(f'v_rcp_f32 v{vacc+2}, v{vacc+2}')
    a(f'v_rcp_f32 v{vacc+3}, v{vacc+3}')
    a('s_nop 0')
    for hh in range(2):
        a(f'v_mul_f32 v{vacc+hh}, v{vacc+hh}, v{vacc+2+hh}')
    a('s_nop 1')
    for hh in range(2):
        a(f'v_mov_b32_dpp v{vacc+2+hh}, v{vacc+hh} quad_perm:[1,0,3,2] row_mask:0xf bank_mask:0xf')
    for hh in range(2):
        a(f'v_cvt_pk_bf16_f32 v{vt+hh}, v{vacc+hh}, v{vacc+2+hh}')
    a('s_nop 0')
    for hh in range(2):
        for g in range(4):
            a(f'v_readlane_b32 s{sPk+4*hh+g}, v{vt+hh}, {2*g}')
    a('s_nop 1')
    for pr in range(8):
        for col in range(8):
            c0 = '0' if pr == 0 else f'v{vCh+2*col}'
            a(f'v_dot2_f32_bf16 v{vCh+2*col}, v{vWp+8*pr+col}, s{sPk+pr}, {c0}')
    a(f's_and_b32 exec_hi, s{sEX+1}, 0x00ffffff')
    a('s_nop 1')
    for c in range(4):
        a(f'buffer_store_dwordx4 {vr(vCh+4*c,4)}, v{vYs}, {sr(S_WS,4)}, s{24+c} offen sc1')
    a('s_mov_b64 exec, -1')
    if WARM:
        a(f's_cmp_lg_u32 s{sDry}, 0')
        a(f's_cbranch_scc1 {Lreal}')
    stamp(a, cfg, 64)
    if cfg.get('b4', 1): a('s_barrier')
    stamp_store(a, cfg, [(2, 62), (3, 64), (21, 66), (22, 23)], vt)
    stamp_flush(a, cfg, [0, 7, 8, 9, 1, 16, 17, 18, 19, 20, 2, 3, 21, 22], vt)
    a('s_endpgm')
    return V.n


def gen_auxB(a, cfg):
    V = Regs(1, 256)
    vt = V.alloc(8, 4)
    vb = V.alloc(4, 4)
    vf = V.alloc(8, 4)
    vo1 = V.alloc(); vo2 = V.alloc(); vo3 = V.alloc(); vg = V.alloc(); vBa = V.alloc(); vYa = V.alloc()
    vX = V.alloc(16, 4)
    vacc = V.alloc(16, 4)
    vtmp = V.alloc(16, 4)
    vCh = V.alloc(16, 4)
    vW = V.alloc(64, 4)
    vD = V.alloc(64, 4)
    vY = vW
    vSets = [vW, vD, vX]
    sX = 4; sWG = 8; sWU = 44; sWD = 48; sDBG = 64; sGW = 68; sOUT = 72
    sT = 52; sT2 = 53; sKq = 54; sJ = 55; sCnt = 56; sF = 57; sG = 62; sG1 = 63
    sPk = 16
    vm = VM(a)
    srd(a, sDBG, P_DBG, 256)
    Lnt = a.newlabel('notag')
    a(f'v_mov_b32 v{vo3}, 0')
    a('s_cmp_lg_u32 s2, 0')
    a(f's_cbranch_scc1 {Lnt}')
    a(f's_memrealtime s[{sG}:{sG1}]')
    a('s_waitcnt lgkmcnt(0)')
    a(f's_or_b32 s{sG}, s{sG}, 1')
    a(f'v_mov_b32 v{vo2}, s{sG}')
    a('s_mov_b64 exec, 1')
    a(f'buffer_store_dword v{vo2}, v{vo3}, {sr(sDBG,4)}, 0 offen sc1')
    a('s_mov_b64 exec, -1')
    a.label(Lnt)
    a('s_barrier')
    srd(a, sX, P_X, 896)
    srd(a, sWG, P_WG, 448 * 3584)
    srd(a, sWU, P_WU, 448 * 3584)
    srd(a, sWD, P_WD, 1792 * 896)
    srd(a, sGW, P_GW, 896)
    srd(a, sOUT, P_OUT, 896)
    Lnoffn = a.newlabel('noffn'); Lnofin = a.newlabel('nofin')
    a('s_barrier')
    a(f'ds_read_b32 v{vo2}, v{vo3} offset:{LDS_TAG}')
    a('s_waitcnt lgkmcnt(0)')
    a(f'v_readfirstlane_b32 s{S_TA}, v{vo2}')
    tagB(a)
    for i in range(8):
        a(f'v_mov_b32 v{vCh+2*i+1}, s{S_TA if i % 2 == 0 else S_TB}')
    a(f'v_lshlrev_b32 v{vBa}, 4, v0')
    a(f's_mov_b32 s84, {WS_SIZE:#x}')
    a(f's_and_b32 s{sT}, s2, 31')
    a(f's_cmp_lt_u32 s{sT}, {32 if cfg.get("noffn") else 25}')
    a(f's_cbranch_scc1 {Lnoffn}')
    if cfg.get('fsleep'): a(f's_sleep {cfg["fsleep"]}')
    a(f's_sub_u32 s{sT}, s{sT}, 25')
    a(f's_lshr_b32 s{sT2}, s2, 6')
    a(f's_mul_i32 s{sT2}, s{sT2}, 7')
    a(f's_add_u32 s{sT}, s{sT}, s{sT2}')
    a(f's_lshl_b32 s{sF}, s{sT}, 1')
    a(f's_bfe_u32 s{sT2}, s2, 0x10005')
    a(f's_add_u32 s{sF}, s{sF}, s{sT2}')
    a(f'v_lshrrev_b32 v{vo1}, 2, v0')
    a(f'v_mul_u32_u24 v{vo2}, {28*3584}, v{vo1}')
    a(f'v_and_b32 v{vo3}, 3, v0')
    a(f'v_lshl_add_u32 v{vo2}, v{vo3}, 4, v{vo2}')
    a(f'v_mul_u32_u24 v{vo3}, 56, v{vo1}')
    for k in range(3):
        vm.issue(f'buffer_load_dwordx4 {vr(vX+4*k,4)}, v{vo3}, {sr(sX,4)}, 0 offen offset:{16*k}')
    vm.issue(f'buffer_load_dwordx2 {vr(vX+12,2)}, v{vo3}, {sr(sX,4)}, 0 offen offset:48')
    a(f'v_min_u32 v{vo1}, 55, v0')
    a(f'v_lshlrev_b32 v{vo1}, 4, v{vo1}')
    wflag = cfg.get('wflag', 'nt')
    def unitW(sW, k0, buf):
        a(f's_lshl_b32 s{sT}, s{sF}, 6')
        if k0: a(f's_add_u32 s{sT}, s{sT}, {k0*3584}')
        lw = []
        for k in range(14):
            lw.append(vm.issue(f'buffer_load_dwordx4 {vr(buf+4*k,4)}, v{vo2}, {sr(sW,4)}, s{sT} offen offset:{(k%2)*3584} {wflag}'))
            if k % 2 == 1 and k < 13: a(f's_add_u32 s{sT}, s{sT}, {2*3584}')
        return lw
    def unitD(u, buf):
        a(f's_mul_i32 s{sT}, s{sF}, {32*896}')
        if u: a(f's_add_u32 s{sT}, s{sT}, {16*896}')
        lw = []
        for e in range(16):
            lw.append(vm.issue(f'buffer_load_dwordx4 {vr(buf+4*e,4)}, v{vo1}, {sr(sWD,4)}, s{sT} offen offset:{(e%4)*896} nt'))
            if e % 4 == 3 and e < 15: a(f's_add_u32 s{sT}, s{sT}, {4*896}')
        return lw
    def compW(buf, k0, m, lw):
        gemv_pairs(a, vm, [buf + 4 * k for k in range(14)], 14, 4, vX + k0 // 2, [vacc + 8 * m + i for i in range(8)], [vtmp + i for i in range(8)], lw, first=(k0 == 0))
    l0 = unitW(sWG, 0, vW); l1 = unitW(sWG, 14, vD)
    compW(vW, 0, 0, l0); l2 = unitW(sWU, 0, vW)
    compW(vD, 14, 0, l1); l3 = unitW(sWU, 14, vD)
    compW(vW, 0, 1, l2); l4 = unitD(0, vW)
    compW(vD, 14, 1, l3); l5 = unitD(1, vD)
    xlane_reduce(a, [vacc + i for i in range(16)], [vtmp + i for i in range(16)], 'v_add_f32', ['r4', 'r8', 'p16', 'p32'])
    stamp(a, cfg, 90)
    for i in range(16):
        rnd_bf16(a, vacc + i, vacc + i, vtmp + i)
    a(f's_mov_b32 s{sT}, {f2u(0.044715):#x}')
    a(f's_mov_b32 s{sT2}, {f2u(-2*0.7978845608028654*1.4426950408889634):#x}')
    for i in range(8):
        x = vacc + i; t = vtmp + i
        a(f'v_mul_f32 v{t}, v{x}, v{x}')
        a(f'v_mul_f32 v{t}, v{t}, v{x}')
        a(f'v_fma_f32 v{t}, v{t}, s{sT}, v{x}')
        a(f'v_mul_f32 v{t}, s{sT2}, v{t}')
    for i in range(8):
        a(f'v_exp_f32 v{vtmp+i}, v{vtmp+i}')
    for i in range(8):
        a(f'v_add_f32 v{vtmp+i}, 1.0, v{vtmp+i}')
    for i in range(8):
        a(f'v_rcp_f32 v{vtmp+i}, v{vtmp+i}')
    for i in range(8):
        a(f'v_mul_f32 v{vacc+i}, v{vacc+i}, v{vtmp+i}')
    for i in range(8):
        rnd_bf16(a, vacc + i, vacc + i, vtmp + i)
    for i in range(8):
        a(f'v_mul_f32 v{vacc+i}, v{vacc+i}, v{vacc+8+i}')
    for d in range(4):
        a(f'v_cvt_pk_bf16_f32 v{vt+d}, v{vacc+2*d}, v{vacc+2*d+1}')
    a('s_nop 0')
    for c4 in range(4):
        for d in range(4):
            a(f'v_readlane_b32 s{sPk+4*c4+d}, v{vt+d}, {c4}')
    a(f's_mul_i32 s84, s{sF}, 3584')
    a(f's_add_u32 s84, s84, {WS_B:#x}')
    stamp(a, cfg, 92)
    for u, (buf, lw) in enumerate([(vW, l4), (vD, l5)]):
        for pr in range(8):
            vm.wait(lw[2 * pr + 1])
            r0 = buf + 4 * (2 * pr); r1 = buf + 4 * (2 * pr + 1)
            for d in range(4):
                a(f'v_perm_b32 v{vtmp+2*d}, v{r1+d}, v{r0+d}, s{S_SELLO}')
                a(f'v_perm_b32 v{vtmp+2*d+1}, v{r1+d}, v{r0+d}, s{S_SELHI}')
            for col in range(8):
                c0 = '0' if (pr == 0 and u == 0) else f'v{vCh+2*col}'
                a(f'v_dot2_f32_bf16 v{vCh+2*col}, v{vtmp+col}, s{sPk+8*u+pr}, {c0}')
    def bstore():
        L = a.newlabel('nobst')
        a(f's_and_b32 s{sT}, s2, 31')
        a(f's_cmp_lt_u32 s{sT}, {32 if cfg.get("noffn") else 25}')
        a(f's_cbranch_scc1 {L}')
        a('s_mov_b32 exec_hi, 0x00ffffff')
        for c in range(4):
            a(f'buffer_store_dwordx4 {vr(vCh+4*c,4)}, v{vBa}, {sr(S_WS,4)}, s84 offen offset:{896*c} sc1')
        a('s_mov_b64 exec, -1')
        a.label(L)
    a('s_nop 2')
    BMODE = cfg.get('bmode', 'late')
    def flagwait():
        Lw = a.newlabel('fl_w'); Lg = a.newlabel('fl_g')
        a(f'v_mov_b32 v{vf+4}, 0')
        a(f's_mov_b32 s{sCnt}, {POLL_MAX}')
        a.label(Lw)
        a(f'ds_read_b32 v{vf+5}, v{vf+4} offset:{LDS_REC}')
        a('s_waitcnt lgkmcnt(0)')
        a(f'v_readfirstlane_b32 s{sT}, v{vf+5}')
        a(f's_cmp_ge_u32 s{sT}, {cfg.get("bstep", 36)}')
        a(f's_cbranch_scc1 {Lg}')
        a(f's_sub_u32 s{sCnt}, s{sCnt}, 1')
        a(f's_cbranch_scc1 {Lg}')
        a('s_sleep 64')
        a(f's_branch {Lw}')
        a.label(Lg)
    if BMODE == 'flag': flagwait()
    if BMODE != 'late': bstore()
    stamp(a, cfg, 94)
    stamp_store(a, cfg, [(13, 90), (14, 92), (15, 94)], vt)
    a.label(Lnoffn)
    a(f's_cmp_lt_u32 s2, {FIN0}')
    a(f's_cbranch_scc1 {Lnofin}')
    a(f's_sub_u32 s{sJ}, s2, {FIN0}')
    a(f'v_lshlrev_b32 v{vo1}, 4, v0')
    a(f'buffer_load_dwordx4 {vr(vX,4)}, v{vo1}, {sr(sX,4)}, 0 offen')
    a(f'buffer_load_dwordx4 {vr(vX+4,4)}, v{vo1}, {sr(sGW,4)}, 0 offen')
    a('s_waitcnt vmcnt(0)')
    for d in range(4):
        a(f'v_lshlrev_b32 v{vt}, 16, v{vX+d}')
        a(f'v_lshlrev_b32 v{vt+1}, 16, v{vX+4+d}')
        a(f'v_and_b32 v{vt+2}, 0xffff0000, v{vX+d}')
        a(f'v_and_b32 v{vt+3}, 0xffff0000, v{vX+4+d}')
        a(f'v_mul_f32 v{vt}, v{vt}, v{vt+1}')
        a(f'v_mul_f32 v{vt+2}, v{vt+2}, v{vt+3}')
        a(f'v_cvt_pk_bf16_f32 v{vt}, v{vt}, v{vt+2}')
        a(f'v_lshlrev_b32 v{vt+1}, 16, v{vt}')
        a(f'v_and_b32 v{vt+2}, 0xffff0000, v{vt}')
        if d == 0:
            a(f'v_add_f32 v{vg}, v{vt+1}, v{vt+2}')
        else:
            a(f'v_add_f32 v{vg}, v{vg}, v{vt+1}')
            a(f'v_add_f32 v{vg}, v{vg}, v{vt+2}')
    xlane_reduce(a, [vg], [vt], 'v_add_f32', ['x1', 'x2', 'r4', 'r8', 'p16', 'p32'])
    rnd_bf16(a, vg, vg, vt)
    a(f'v_mul_f32 v{vg}, {f2u(-1.4426950408889634):#x}, v{vg}')
    a(f'v_exp_f32 v{vg}, v{vg}')
    a('s_nop 0')
    a(f'v_add_f32 v{vg}, 1.0, v{vg}')
    a(f'v_rcp_f32 v{vg}, v{vg}')
    a('s_nop 0')
    rnd_bf16(a, vg, vg, vt)
    a(f'v_sub_f32 v{vt+1}, 1.0, v{vg}')
    rnd_bf16(a, vt + 1, vt + 1, vt)
    a('s_nop 0')
    a(f'v_readfirstlane_b32 s{sG}, v{vg}')
    a(f'v_readfirstlane_b32 s{sG1}, v{vt+1}')
    a(f'v_lshrrev_b32 v{vo1}, 2, v0')
    a(f'v_mul_u32_u24 v{vo1}, 3584, v{vo1}')
    a(f'v_and_b32 v{vo2}, 3, v0')
    a(f'v_lshl_add_u32 v{vo1}, v{vo2}, 4, v{vo1}')
    a(f's_and_b32 s{sT}, s{sJ}, 3')
    a(f's_mul_i32 s{sT}, s{sT}, 14')
    a(f's_lshr_b32 s{sT2}, s{sJ}, 2')
    a(f's_add_u32 s{sT}, s{sT}, s{sT2}')
    a(f's_lshl_b32 s{sF}, s{sT}, 6')
    def gather(base, n, name, sleep):
        for k in range(n):
            a(f's_add_u32 s{16+k}, s{sF}, {base + k * 16 * 3584:#x}')
        return [f'buffer_load_dwordx4 {vr(vY+4*k,4)}, v{vo1}, {sr(S_WS,4)}, s{16+k} offen sc1' for k in range(n)]
    def sumup(dst, n, src):
        for e in range(2):
            a(f'v_add_f32 v{dst+e}, v{src+2*e}, v{src+4+2*e}')
            a(f'v_add_f32 v{dst+2+e}, v{src+8+2*e}, v{src+12+2*e}')
        for k in range(4, n):
            for e in range(2):
                d = dst + e + 2 * (k & 1)
                a(f'v_add_f32 v{d}, v{d}, v{src+4*k+2*e}')
        for e in range(2):
            a(f'v_add_f32 v{dst+e}, v{dst+e}, v{dst+2+e}')
    def xsum(dst):
        xlane_reduce(a, [dst, dst + 1], [vf + 4, vf + 5], 'v_add_f32', ['r4', 'r8', 'p16', 'p32'])
    a(f's_lshl_b32 s{sT}, s{sF}, 8')
    for k in range(4):
        a(f's_add_u32 s{24+k}, s{sT}, {WS_Y + k * 4096:#x}')
    a(f'v_lshlrev_b32 v{vYa}, 4, v0')
    a(f's_lshr_b32 s{sT2}, s{sJ}, 2')
    a(f's_lshl_b32 s{sT2}, s{sT2}, 6')
    a(f's_and_b32 s{sKq}, s{sJ}, 3')
    a(f's_lshl_b32 s{sKq}, s{sKq}, 2')
    a(f's_add_u32 s{sT2}, s{sT2}, s{sKq}')
    sEX = 32; sDry = 34
    WARM = 0
    R2 = cfg.get('r2', 4)
    a(f's_mov_b64 s[{sEX}:{sEX+1}], -1')
    a(f'v_lshrrev_b32 v{vf+6}, 3, v0')
    a(f'v_lshlrev_b32 v{vf+6}, 12, v{vf+6}')
    a(f'v_and_b32 v{vf+7}, {R2 - 1}, v0')
    a(f'v_mul_u32_u24 v{vf+7}, {(32 // R2) * 128}, v{vf+7}')
    a(f'v_add_u32 v{vf+6}, v{vf+6}, v{vf+7}')
    a(f's_mov_b32 s35, {WS_F2 + (cfg.get("r2c", 3) % (32 // R2)) * 128:#x}')
    loads = gather(WS_B, 4, 'pb', 8)
    a(f'v_mov_b32 v{vo2}, v{vo1}')
    a('s_mov_b32 exec_lo, 0')
    a(f'v_subrev_u32 v{vo2}, {8*3584}, v{vo2}')
    a('s_mov_b32 exec_lo, -1')
    loads[3] = loads[3].replace(f'v{vo1},', f'v{vo2},')
    if BMODE == 'late':
        a('s_barrier')
        bstore()
        if cfg.get('bdelay'): a(f's_sleep {cfg["bdelay"]}')
    else:
        flagwait()
    if not cfg.get('noffn'):
        poll(a, loads, [vY + 4 * k for k in range(4)], vt, sCnt, name='pb', sleep=cfg.get('bsleep', 16))
    a('s_mov_b32 exec_lo, 0')
    a(f'v_mov_b32 v{vY+12}, 0')
    a(f'v_mov_b32 v{vY+14}, 0')
    a('s_mov_b32 exec_lo, -1')
    sumup(vb, 4, vY)
    xsum(vb)
    for i in range(2):
        rnd_bf16(a, vb + i, vb + i, vf + 4 + i)
        a(f'v_mul_f32 v{vb+i}, s{sG1}, v{vb+i}')
        rnd_bf16(a, vb + i, vb + i, vf + 4 + i)
    stamp(a, cfg, 76)
    stamp_store(a, cfg, [(10, 76)], vt)
    if BMODE != 'late': a('s_barrier')
    if cfg.get('b4', 1): a('s_barrier')
    if cfg.get('f2', 1):
        flagpoll(a, f'buffer_load_dword v{vf+7}, v{vf+6}, {sr(S_WS,4)}, s35 offen sc1', [vf + 7], vt, sCnt, 'pf2', sleep=cfg.get('f2sleep', 1))
        if cfg.get('d2'): a(f's_sleep {cfg["d2"]}')
    stamp(a, cfg, 78)
    poll(a, [f'buffer_load_dwordx4 {vr(vY+4*k,4)}, v{vYa}, {sr(S_WS,4)}, s{24+k//4} offen offset:{(k%4)*1024} sc1' for k in range(16)],
         [vY + 4 * k for k in range(16)], vt, sCnt, name='py', sleep=cfg.get('ysleep', 1))
    if cfg.get('prof'): a(f's_sub_u32 s36, {POLL_MAX}, s{sCnt}')
    sumup(vf, 16, vY)
    xsum(vf)
    for i in range(2):
        rnd_bf16(a, vf + i, vf + i, vf + 4 + i)
        a(f'v_mul_f32 v{vf+i}, s{sG}, v{vf+i}')
        rnd_bf16(a, vf + i, vf + i, vf + 4 + i)
        a(f'v_add_f32 v{vf+i}, v{vf+i}, v{vb+i}')
    a(f'v_cvt_pk_bf16_f32 v{vt}, v{vf}, v{vf+1}')
    a(f's_and_b64 exec, s[{sEX}:{sEX+1}], 15')
    a(f'buffer_store_dword v{vt}, v{vYa}, {sr(sOUT,4)}, s{sT2} offen')
    a('s_mov_b64 exec, -1')
    if WARM:
        a(f's_cmp_lg_u32 s{sDry}, 0')
        a(f's_cbranch_scc1 {Lreal}')
    stamp(a, cfg, 76)
    stamp_store(a, cfg, [(6, 76), (23, 78), (24, 36)], vt + 2)
    stamp_flush(a, cfg, [13, 14, 15, 10, 6, 23, 24], vt + 2)
    a('s_endpgm')
    a.label(Lnofin)
    if cfg.get('prof') or BMODE == 'late':
        a('s_barrier')
        if BMODE == 'late': bstore()
        stamp_flush(a, cfg, [13, 14, 15], vt)
    a('s_endpgm')
    return V.n


def gen(cfg):
    a = Asm()
    a.raw(kernel_header(NAME))
    a('s_cmp_ge_u32 s2, 256')
    a('s_cbranch_scc1 L_end')
    a('s_load_dwordx16 s[16:31], s[0:1], 0')
    a('s_load_dwordx8 s[32:39], s[0:1], 64')
    a('s_load_dwordx2 s[40:41], s[0:1], 96')
    a('v_lshrrev_b32 v1, 6, v0')
    a('v_and_b32 v0, 63, v0')
    a(f'v_readfirstlane_b32 s{S_WAVE}, v1')
    a(f's_mov_b32 s{S_SELLO}, 0x05040100')
    a(f's_mov_b32 s{S_SELHI}, 0x07060302')
    a('s_waitcnt lgkmcnt(0)')
    srd(a, S_WS, P_WS, WS_SIZE)
    a(f's_cmp_eq_u32 s{S_WAVE}, 2')
    a('s_cbranch_scc1 L_auxA')
    a(f's_cmp_eq_u32 s{S_WAVE}, 3')
    a('s_cbranch_scc1 L_auxB')
    n0 = gen_stream(a, cfg)
    a.label('L_auxA')
    n1 = gen_auxA(a, cfg)
    a.label('L_auxB')
    n2 = gen_auxB(a, cfg)
    a.label('L_end')
    a('s_endpgm')
    nv = max(n0, n1, n2)
    if cfg.get('prof'): nv = max(nv, PROFV + 1)
    acc_off = (nv + 3) // 4 * 4
    npre = cfg.get('npre', 4)
    print('vgprs', n0, n1, n2, 'agprs', 64 * npre, file=sys.stderr)
    hdr = open('gated_mix__gqa_block_cached__geglu_ffn__decode.s.ref').read().split('; @launch')[0]
    lds = cfg.get('lds', 8192)
    hdr += f'; @launch grid=(256,1,1) block=(256,1,1) lds={lds}\n.amdgcn_target "amdgcn-amd-amdhsa--gfx950"\n'
    return hdr + a.text() + kernel_desc(NAME, acc_off + 64 * npre, 102, acc_off)


if __name__ == '__main__':
    cfg = json.loads(sys.argv[2]) if len(sys.argv) > 2 else {}
    open(sys.argv[1], 'w').write(gen(cfg))
```

```python
import sys, struct, json
from asmlib import *

def f2u(f): return struct.unpack('<I', struct.pack('<f', f))[0]
C_SCALE = f2u(1.4426950408889634 / 16.0)

WS_QP = 0x0
WS_TK = 0x4e0000
TK_STRIDE = 4352
WS_PROF = 0x24000
WS_GP = 0x40000
WS_PLAN = 0x40000
WS_F1 = 0x50000
WS_F2 = 0x58000
WS_CAL = 0x48000
WS_IT = 0x80000
WS_ML = 0x60000
WS_O = 0x100000
WS_Y = 0x300000
WS_B = 0x400000
WS_SIZE = 0x500000

NAME = 'gated_mix__gqa_block_cached__geglu_ffn__decode_kernel'
P_X, P_K, P_V, P_WQ, P_WO, P_BX, P_WG, P_WU, P_WD, P_GW, P_OUT, P_DBG, P_WS = [16 + 2 * i for i in range(13)]
S_WS = 12
S_WAVE = 3
S_SELLO = 60; S_SELHI = 61
S_TA = 88; S_TB = 89
POLL_MAX = 1 << 14
FIN0 = 200
INVALID = 0x20000000
LDS_TAG = 1024
LDS_CTR = 1028
LDS_FLAG = 1032
LDS_REC = 2048
LDS_LIST = 3072
LDS_DONE = 1036
LDS_FLAG2 = 1040
LDS_CMB = 4096
LDS_SC = 8192


class VM:
    def __init__(self, a):
        self.a = a; self.n = 0
    def issue(self, s):
        self.a(s); self.n += 1
        return self.n - 1
    def wait(self, idx):
        k = self.n - idx - 1
        assert 0 <= k <= 63
        self.a(f's_waitcnt vmcnt({k})')


def srd(a, d, p, nbytes):
    a(f's_mov_b32 s{d}, s{p}')
    a(f's_mov_b32 s{d+1}, s{p+1}')
    a(f's_mov_b32 s{d+2}, {nbytes:#x}')
    a(f's_mov_b32 s{d+3}, 0x00020000')


def dpp(op, d, s0, s1, ctrl):
    return f'{op}_dpp v{d}, v{s0}, v{s1} {ctrl} row_mask:0xf bank_mask:0xf'


def xlane_reduce(a, regs, tmps, op, steps):
    n = len(regs)
    for st in steps:
        if st in ('x1', 'x2', 'r4', 'r8'):
            ctrl = {'x1': 'quad_perm:[1,0,3,2]', 'x2': 'quad_perm:[2,3,0,1]', 'r4': 'row_ror:4', 'r8': 'row_ror:8'}[st]
            if n < 3: a('s_nop 1')
            for r in regs:
                a(dpp(op, r, r, r, ctrl))
        else:
            ins = 'v_permlane16_swap_b32' if st == 'p16' else 'v_permlane32_swap_b32'
            for r, t in zip(regs, tmps):
                a(f'v_mov_b32 v{t}, v{r}')
            a('s_nop 1')
            for r, t in zip(regs, tmps):
                a(f'{ins} v{r}, v{t}')
            if n < 2: a('s_nop 0')
            for r, t in zip(regs, tmps):
                a(f'{op} v{r}, v{r}, v{t}')


def tagB(a):
    a(f's_mul_i32 s{S_TB}, s{S_TA}, 0x9e3779b1')
    a(f's_add_u32 s{S_TB}, s{S_TB}, 0x7f4a7c15')


def poll(a, loads, chunks, vt, scnt, name='poll', sleep=1):
    L = a.newlabel(name); D = a.newlabel(name + '_done')
    a(f's_mov_b32 s{scnt}, {POLL_MAX}')
    a.label(L)
    for l in loads: a(l)
    n = len(chunks)
    for i, c in enumerate(chunks):
        if i % 4 == 0:
            a(f's_waitcnt vmcnt({max(0, n - i - 4)})')
        a(f'v_xor_b32 v{vt+1}, s{S_TA}, v{c+1}')
        a(f'v_xor_b32 v{vt+2}, s{S_TB}, v{c+3}')
        if i == 0: a(f'v_or_b32 v{vt}, v{vt+1}, v{vt+2}')
        else: a(f'v_or3_b32 v{vt}, v{vt}, v{vt+1}, v{vt+2}')
    a(f'v_cmp_ne_u32 vcc, 0, v{vt}')
    a('s_mov_b64 exec, vcc')
    a(f's_cbranch_execz {D}')
    a(f's_sub_u32 s{scnt}, s{scnt}, 1')
    a(f's_cbranch_scc1 {D}')
    if sleep: a(f's_sleep {sleep}')
    a(f's_branch {L}')
    a.label(D)
    a('s_mov_b64 exec, -1')


def poll_pipe(a, nsets, loads, chunks, on_new, vt, scnt, sP, sQ, sEX, sDry, name='pp', gap=6, thr=0, slp=0, skipnew=False):
    L = a.newlabel(name); D = a.newlabel(name + '_done')
    n = len(loads(0))
    a(f's_mov_b64 s[{sP}:{sP+1}], s[{sEX}:{sEX+1}]')
    a(f's_mov_b64 exec, s[{sEX}:{sEX+1}]')
    a(f's_cmp_eq_u32 s{sDry}, 0')
    a(f's_cselect_b32 s{scnt}, {POLL_MAX}, 0')
    for s in range(nsets):
        for l in loads(s): a(l)
        if gap and s < nsets - 1: a(f's_sleep {gap}')
    a.label(L)
    for s in range(nsets):
        ch = chunks(s)
        for i, c in enumerate(ch):
            if i % 4 == 0:
                a(f's_waitcnt vmcnt({(nsets - 1) * n + max(0, n - i - 4)})')
            a(f'v_xor_b32 v{vt+1}, s{S_TA}, v{c+1}')
            a(f'v_xor_b32 v{vt+2}, s{S_TB}, v{c+3}')
            if i == 0: a(f'v_or_b32 v{vt}, v{vt+1}, v{vt+2}')
            else: a(f'v_or3_b32 v{vt}, v{vt}, v{vt+1}, v{vt+2}')
        a(f'v_cmp_ne_u32 vcc, 0, v{vt}')
        a(f's_andn2_b64 exec, s[{sP}:{sP+1}], vcc')
        a(f's_mov_b64 s[{sP}:{sP+1}], vcc')
        Ls = a.newlabel(name + '_sk')
        if skipnew:
            a(f's_or_b32 s{sQ}, exec_lo, exec_hi')
            a(f's_or_b32 s{sQ}, s{sQ}, s{sDry}')
            a(f's_cbranch_scc0 {Ls}')
        on_new(s)
        a.label(Ls)
        a(f's_mov_b64 exec, s[{sP}:{sP+1}]')
        a(f's_or_b32 s{sQ}, s{sP}, s{sP+1}')
        a(f's_or_b32 s{sQ}, s{sQ}, s{sDry}')
        a(f's_cbranch_scc0 {D}')
        if slp:
            Ln = a.newlabel(name + '_ns')
            a(f's_bcnt1_i32_b64 s{sQ}, s[{sP}:{sP+1}]')
            a(f's_cmp_le_u32 s{sQ}, {thr}')
            a(f's_cbranch_scc1 {Ln}')
            a(f's_sleep {slp}')
            a.label(Ln)
        for l in loads(s): a(l)
    a(f's_sub_u32 s{scnt}, s{scnt}, 1')
    a(f's_cbranch_scc0 {L}')
    a.label(D)
    a(f's_mov_b64 exec, s[{sEX}:{sEX+1}]')


def flagpoll(a, load, regs, vt, scnt, name, sleep=1, mask=None):
    L = a.newlabel(name); D = a.newlabel(name + '_done')
    a(f's_mov_b32 s{scnt}, {POLL_MAX}')
    if mask: a(f's_mov_b64 exec, {mask}')
    a.label(L)
    a(load)
    a('s_waitcnt vmcnt(0)')
    a(f'v_xor_b32 v{vt}, s{S_TA}, v{regs[0]}')
    for r in regs[1:]:
        a(f'v_xor_b32 v{vt+1}, s{S_TA}, v{r}')
        a(f'v_or_b32 v{vt}, v{vt}, v{vt+1}')
    a(f'v_cmp_ne_u32 vcc, 0, v{vt}')
    a('s_mov_b64 exec, vcc')
    a(f's_cbranch_execz {D}')
    a(f's_sub_u32 s{scnt}, s{scnt}, 1')
    a(f's_cbranch_scc1 {D}')
    if sleep: a(f's_sleep {sleep}')
    a(f's_branch {L}')
    a.label(D)
    a('s_mov_b64 exec, -1')


def mkchunks(a, dst, vals):
    for i, v in enumerate(vals):
        a(f'v_mov_b32 v{dst+2*i}, v{v}')
        a(f'v_mov_b32 v{dst+2*i+1}, s{S_TA if i % 2 == 0 else S_TB}')


def stamp(a, cfg, sreg):
    if cfg.get('prof'): a(f's_memrealtime s[{sreg}:{sreg+1}]')

PROFV = 227
class Prof:
    slots = 0
def stamp_store(a, cfg, pairs, vt):
    if not cfg.get('prof'): return
    a('s_waitcnt lgkmcnt(0)')
    for slot, sreg in pairs:
        a(f'v_writelane_b32 v{PROFV}, s{sreg}, {slot}')

def stamp_flush(a, cfg, slots, vt):
    if not cfg.get('prof'): return
    m = sum(1 << s for s in slots)
    a(f's_lshl_b32 s78, s2, 7')
    a(f's_add_u32 s78, s78, {WS_PROF:#x}')
    a(f'v_lshlrev_b32 v{vt}, 2, v0')
    a(f's_mov_b32 exec_lo, {m:#x}')
    a('s_mov_b32 exec_hi, 0')
    a(f'buffer_store_dword v{PROFV}, v{vt}, s[{S_WS}:{S_WS+3}], s78 offen')
    a('s_mov_b64 exec, -1')


DEF_MAP = 'v t1 t0 w3 t2 t3 t4 t5 w0 w1 w2 w4 w5 w6 w7'
def map_cols(cfg):
    f = cfg.get('map', DEF_MAP).split()
    assert len(f) == 15 and f[12:] == ['w5', 'w6', 'w7']
    cols = {}
    for b, e in enumerate(f):
        for n in e.split('^'):
            cols[n] = cols.get(n, 0) ^ (1 << (13 + b))
    names = ['v'] + [f't{i}' for i in range(6)] + [f'w{i}' for i in range(8)]
    seen = set()
    for h in range(1 << 15):
        x = 0
        for i, n in enumerate(names):
            if h >> i & 1: x ^= cols[n]
        seen.add(x)
    assert len(seen) == 1 << 15
    return cols
def tconst(cols, t):
    x = 0
    for i in range(6):
        if t >> i & 1: x ^= cols[f't{i}']
    return x
def runs(cl):
    out = []; i = 0
    while i < len(cl):
        c = cl[i]
        if c & (c - 1):
            out.append((i, None, c)); i += 1; continue
        n = 1
        while i + n < len(cl) and cl[i + n] == c << n: n += 1
        out.append((i, n, c.bit_length() - 1)); i += n
    return out
def smap(a, dst, src, cl, tmp, first=True):
    for st, n, o in runs(cl):
        d = dst if first else tmp
        if n is None:
            a(f's_bitcmp1_b32 s{src}, {st}')
            a(f's_cselect_b32 s{d}, {o:#x}, 0')
        else:
            a(f's_bfe_u32 s{d}, s{src}, {(n << 16) | st:#x}')
            a(f's_lshl_b32 s{d}, s{d}, {o}')
        if not first: a(f's_xor_b32 s{dst}, s{dst}, s{tmp}')
        first = False
def vmap(a, dst, src, off, cl, tmp):
    for st, n, o in runs(cl):
        if n is None:
            a(f'v_bfe_i32 v{tmp}, v{src}, {off + st}, 1')
            a(f'v_and_b32 v{tmp}, {o:#x}, v{tmp}')
        else:
            a(f'v_bfe_u32 v{tmp}, v{src}, {off + st}, {n}')
            a(f'v_lshlrev_b32 v{tmp}, {o}, v{tmp}')
        a(f'v_xor_b32 v{dst}, v{dst}, v{tmp}')


def gen_stream(a, cfg):
    D = 2
    NA = 8
    SL = cfg.get('sl', 60)
    SLF = cfg.get('slf', SL)
    assert SL % 4 == 0 and SLF % 4 == 0
    cols = map_cols(cfg)
    flags = 'nt'
    V = Regs(1, 256)
    vKoff = [V.alloc(), V.alloc()]; vVoff = [V.alloc(), V.alloc()]; vOo = [V.alloc(), V.alloc()]
    vm = V.alloc(); vl = V.alloc(); vt0 = V.alloc(); vt1 = V.alloc(); valpha = V.alloc(); vmc = V.alloc()
    vc = V.alloc(); vg = V.alloc(); vRa = V.alloc()
    vTk = V.alloc(); vOne = V.alloc(); vList = V.alloc()
    vIt = V.alloc(); vF1 = V.alloc(); vZero = V.alloc()
    vTbl = V.alloc(); vSa = V.alloc(); vSb = V.alloc(); vSr = V.alloc()
    sF1 = 55
    vRec = V.alloc(2, 2)
    vSc = V.alloc(2, 2)
    vmask = V.alloc(4, 4)
    vS = V.alloc(4, 4)
    vP = V.alloc(4, 4)
    vacc = V.alloc(8, 4)
    vA = V.alloc(16, 4)
    vQ = V.alloc(16, 4)
    vB = [V.alloc(32, 4) for _ in range(4)]
    vKb = [vB[0], vB[2]]; vVb = [vB[1], vB[3]]
    sK = 4; sVv = 8
    sOff = [44, 45]
    sC = 47; sTmp = 48; sBase = 49; sHead = 50; sSplit = 51; sT2 = 52
    sCtr = 54; sTk = 56
    sN = 42; sHs = 43; sI = 53; sLim = 46; sMk = 44
    smap(a, sBase, 2, [cols[f'w{i}'] for i in range(8)], sTmp)
    smap(a, sBase, S_WAVE, [cols['v']], sTmp, first=False)
    srd(a, sK, P_K, 0x10000000)
    a(f'v_and_b32 v{vc}, 15, v0')
    a(f'v_lshrrev_b32 v{vg}, 4, v0')
    CM0 = {'m': [[0, 1, 2, 4], [3, 5, 6, 7]], 'x': [[0, 2, 4, 6], [1, 3, 5, 7]], 'n': [[0, 1, 2, 5], [3, 4, 6, 7]], 'f': [[0, 1, 2, 3], [4, 5, 6, 7]]}
    def chunkoff(dst, cm, qf, sf, rowf):
        def gather(d, fl, t):
            first = True
            for lb, ob, n in fl:
                r = d if first else t
                a(f'v_bfe_u32 v{r}, v0, {lb}, {n}')
                if first:
                    if ob: a(f'v_lshlrev_b32 v{d}, {ob}, v{d}')
                else:
                    a(f'v_lshl_or_b32 v{d}, v{t}, {ob}, v{d}')
                first = False
        gather(vt0, [(l, o + 2, n) for l, o, n in qf], vt1)
        gather(valpha, [(l, o + 4, n) for l, o, n in sf] + [(rowf, 11, 2)], vt1)
        for hf in range(2):
            tb = sum(cm[hf][i] << (4 * i) for i in range(4))
            a(f's_mov_b32 s{sTmp}, {tb:#x}')
            a(f'v_lshrrev_b32 v{dst[hf]}, v{vt0}, s{sTmp}')
            a(f'v_and_b32 v{dst[hf]}, 15, v{dst[hf]}')
            a(f'v_lshl_or_b32 v{dst[hf]}, v{dst[hf]}, 6, v{valpha}')
    KSC = {0: ([(4, 0, 2)], [(0, 0, 2)]), 1: ([(1, 0, 1), (4, 1, 1)], [(0, 0, 1), (5, 1, 1)]), 2: ([(0, 0, 2)], [(4, 0, 2)])}[cfg.get('ksc', 1)]
    VSC = {0: ([(2, 0, 2)], [(0, 0, 2)]), 1: ([(1, 0, 2)], [(0, 0, 1), (3, 1, 1)]), 2: ([(0, 0, 2)], [(2, 0, 2)])}[cfg.get('vsc', 1)]
    chunkoff(vKoff, CM0[cfg.get('kcm', 'm')], KSC[0], KSC[1], 2)
    def R(file, base, n): return f'{file}[{base}:{base+n-1}]'
    def issueK(file, base, so):
        for j in range(8):
            a(f'buffer_load_dwordx4 {R(file,base+4*j,4)}, v{vKoff[j&1]}, {sr(sK,4)}, s{so} offen offset:{(j>>1)*512} {flags}')
    def issueV(file, base, so):
        for j in range(8):
            a(f'buffer_load_dwordx4 {R(file,base+4*j,4)}, v{vVoff[j&1]}, {sr(sVv,4)}, s{so} offen offset:{(j>>1)*512} {flags}')
    PST = [66 + 2 * i for i in range(11)] + [90 + 2 * i for i in range(6)]
    pst_n = [0]
    def pst():
        if cfg.get('prof') and pst_n[0] < len(PST):
            r = PST[pst_n[0]]; pst_n[0] += 1
            a(f's_memrealtime s[{r}:{r+1}]')
    a('s_barrier')
    pst()
    PD = cfg.get('pd', 4)
    seq = [('a', 32 * i) for i in range(NA)] + [('v', vB[s]) for s in range(4)]
    for i, (file, kb) in enumerate(seq):
        a(f's_xor_b32 s{sTmp}, s{sBase}, {tconst(cols, i):#x}')
        if i >= PD:
            a(f's_waitcnt vmcnt({8 * PD - 8})')
            pst()
        issueK(file, kb, sTmp)
        if i == PD - 1:
            srd(a, sVv, P_V, 0x10000000)
            a(f's_lshr_b32 s{sHead}, s2, 5')
            a(f's_and_b32 s{sSplit}, s2, 31')
            a(f's_mov_b32 s{sC}, {C_SCALE:#x}')
            chunkoff(vVoff, CM0[cfg.get('vcm', 'm')], VSC[0], VSC[1], 4)
            for hf in range(2):
                a(f'v_bfe_u32 v{vOo[hf]}, v{vVoff[hf]}, 8, 1')
                a(f'v_lshlrev_b32 v{vOo[hf]}, 11, v{vOo[hf]}')
                a(f'v_bfe_u32 v{vt0}, v{vVoff[hf]}, 4, 4')
                a(f'v_lshl_or_b32 v{vOo[hf]}, v{vt0}, 6, v{vOo[hf]}')
                a(f'v_lshl_or_b32 v{vOo[hf]}, v{vg}, 4, v{vOo[hf]}')
            a(f'v_lshrrev_b32 v{vt1}, 2, v{vc}')
            a(f'v_and_b32 v{vt0}, 2, v0')
            a(f'v_lshlrev_b32 v{vt0}, 3, v{vt0}')
            a(f'v_mov_b32 v{vl}, 0xffff')
            a(f'v_lshlrev_b32 v{vt0}, v{vt0}, v{vl}')
            for j in range(4):
                a(f'v_cmp_eq_u32 vcc, {j}, v{vt1}')
                a('s_nop 1')
                a(f'v_cndmask_b32 v{vmask+j}, 0, v{vt0}, vcc')
            a(f'v_mov_b32 v{vm}, 0xf149f2ca')
            a(f'v_mov_b32 v{vl}, 0')
            for k in range(8):
                a(f'v_mov_b32 v{vacc+k}, 0')
            a(f's_lshl_b32 s{sT2}, s{S_WAVE}, 9')
            a(f's_add_u32 s{sT2}, s{sT2}, {LDS_REC}')
            a(f'v_lshlrev_b32 v{vRa}, 3, v0')
            a(f'v_add_u32 v{vRa}, s{sT2}, v{vRa}')
            a(f'v_mov_b32 v{vOne}, 1')
            a(f'v_mov_b32 v{vTbl}, s{sBase}')
            vmap(a, vTbl, 0, 0, [cols[f't{k}'] for k in range(6)], vt0)
            a(f's_lshl_b32 s{sT2}, s{S_WAVE}, 12')
            a(f's_add_u32 s{sT2}, s{sT2}, {LDS_SC}')
            a(f'v_and_b32 v{vSr}, 1, v0')
            a(f'v_lshlrev_b32 v{vSr}, 5, v{vSr}')
            a(f'v_lshl_add_u32 v{vSr}, v{vg}, 3, v{vSr}')
            a(f'v_add_u32 v{vSr}, s{sT2}, v{vSr}')
            a(f'v_bfe_u32 v{vSa}, v0, 2, 1')
            a(f'v_lshlrev_b32 v{vSa}, 5, v{vSa}')
            a(f'v_lshl_add_u32 v{vSa}, v{vg}, 3, v{vSa}')
            a(f'v_bfe_u32 v{vSb}, v0, 3, 1')
            a(f'v_lshl_add_u32 v{vSa}, v{vSb}, 2, v{vSa}')
            a(f'v_add_u32 v{vSa}, s{sT2}, v{vSa}')
            a(f'v_add_u32 v{vSb}, {20 * 64}, v{vSa}')
            for k in range(16):
                a(f'v_mov_b32 v{vQ+k}, 0')
            a(f's_mov_b32 s{sMk}, 0x00ff00ff')
            a(f's_mov_b32 s{sMk+1}, 0x00ff00ff')
            a(f'v_mov_b32 v{vZero}, 0')
            a(f's_lshl_b32 s{sF1}, s2, 5')
            a(f's_add_u32 s{sF1}, s{sF1}, s{S_WAVE}')
            a(f's_lshl_b32 s{sF1}, s{sF1}, 2')
            a(f's_add_u32 s{sF1}, s{sF1}, {WS_F1:#x}')
            a(f's_cmp_ge_u32 s{sSplit}, 25')
            a(f's_cselect_b32 s{sLim}, {SLF}, {SL}')
            a(f's_mov_b32 s{sN}, {NA + 4}')
    a(f'v_bfe_u32 v{vt1}, v0, 2, 1')
    a(f'v_lshlrev_b32 v{vt1}, 9, v{vt1}')
    a(f's_movk_i32 s{sTmp}, 0x1ff')
    a(f'v_and_or_b32 v{vt0}, v{vKoff[0]}, s{sTmp}, v{vt1}')
    a(f'v_and_or_b32 v{valpha}, v{vKoff[1]}, s{sTmp}, v{vt1}')
    a(f'v_mov_b32 v{vt1}, 0')
    stamp(a, cfg, 62)
    a(f's_mov_b64 exec, s[{sMk}:{sMk+1}]')
    a('s_barrier')
    a(f'ds_read_b128 {vr(vQ,4)}, v{vt0}')
    a(f'ds_read_b128 {vr(vQ+4,4)}, v{valpha}')
    a(f's_not_b64 exec, exec')
    a(f'ds_read_b128 {vr(vQ+8,4)}, v{vt0}')
    a(f'ds_read_b128 {vr(vQ+12,4)}, v{valpha}')
    a('s_mov_b64 exec, -1')
    a(f'ds_read_b32 v{vt1}, v{vt1} offset:{LDS_TAG}')
    a('s_waitcnt lgkmcnt(0)')
    a(f'v_readfirstlane_b32 s{S_TA}, v{vt1}')
    pst()

    def pmask():
        for i in range(4):
            a(f'v_cvt_pk_bf16_f32 v{vP+i}, v{vP+i}, v{vP+i}')
        for i in range(4):
            for j in range(4):
                a(f'v_and_b32 v{vA+4*i+j}, v{vP+i}, v{vmask+j}')
    def softmax():
        a('s_waitcnt lgkmcnt(0)')
        a(f'v_lshlrev_b32 v{vS}, 16, v{vSc}')
        a(f'v_and_b32 v{vS+1}, 0xffff0000, v{vSc}')
        a(f'v_lshlrev_b32 v{vS+2}, 16, v{vSc+1}')
        a(f'v_and_b32 v{vS+3}, 0xffff0000, v{vSc+1}')
        a(f'v_max3_f32 v{vt0}, v{vS}, v{vS+1}, v{vm}')
        a(f'v_max3_f32 v{vt0}, v{vS+2}, v{vS+3}, v{vt0}')
        a(f'v_mov_b32 v{vt1}, v{vt0}')
        a('s_nop 1')
        a(f'v_permlane32_swap_b32 v{vt0}, v{vt1}')
        a(f'v_max_f32 v{vt0}, v{vt0}, v{vt1}')
        a(f'v_mov_b32 v{vt1}, v{vt0}')
        a('s_nop 1')
        a(f'v_permlane16_swap_b32 v{vt0}, v{vt1}')
        a(f'v_max_f32 v{vt0}, v{vt0}, v{vt1}')
        a(f'v_sub_f32 v{valpha}, v{vm}, v{vt0}')
        a(f'v_mul_f32 v{valpha}, s{sC}, v{valpha}')
        a(f'v_exp_f32 v{valpha}, v{valpha}')
        a(f'v_mov_b32 v{vm}, v{vt0}')
        a(f'v_mul_f32 v{vmc}, s{sC}, v{vt0}')
        for i in range(4):
            a(f'v_fma_f32 v{vP+i}, v{vS+i}, s{sC}, -v{vmc}')
        for i in range(4):
            a(f'v_exp_f32 v{vP+i}, v{vP+i}')
        a(f'v_mul_f32 v{vl}, v{vl}, v{valpha}')
        a(f'v_add_f32 v{vt0}, v{vP}, v{vP+1}')
        a(f'v_add_f32 v{vt1}, v{vP+2}, v{vP+3}')
        a(f'v_add_f32 v{vl}, v{vl}, v{vt0}')
        a(f'v_add_f32 v{vl}, v{vl}, v{vt1}')
        for i in range(8):
            qp = '[0,0,2,2]' if (i & 1) == 0 else '[1,1,3,3]'
            a(f'v_mul_f32_dpp v{vacc+i}, v{valpha}, v{vacc+i} quad_perm:{qp} row_mask:0xf bank_mask:0xf')
        pmask()
    def pv(file, vb):
        for i in range(4):
            for hf in range(2):
                a(f'v_mfma_f32_16x16x32_bf16 {vr(vacc+4*hf,4)}, {vr(vA+4*i,4)}, {R(file,vb+4*(2*i+hf),4)}, {vr(vacc+4*hf,4)}')
    F1POS = 'last'
    def f1store():
        if not cfg.get('f1', 1): return
        a('s_mov_b64 exec, 1')
        a(f'buffer_store_dword v{vF1}, v{vZero}, {sr(S_WS,4)}, s{sF1} offen sc1')
        a('s_mov_b64 exec, -1')
    def qk1(file, kb):
        first = [True, True]
        for cg in range(2):
            for half in range(2):
                for aa in range(2):
                    j = cg * 4 + aa * 2 + half
                    d = vS if aa == 0 else vP
                    cc = '0' if first[aa] else vr(d, 4)
                    first[aa] = False
                    a(f'v_mfma_f32_16x16x32_bf16 {vr(d,4)}, {R(file,kb+4*j,4)}, {vr(vQ+8*cg+4*half,4)}, {cc}')
    def kpost(va, off, mx=True):
        for d, t in ((vS, vt0), (vP, vt1)):
            a(f'v_mov_b32_dpp v{t}, v{d} quad_perm:[0,0,0,0] row_mask:0xf bank_mask:0xf')
        for i in range(1, 4):
            for d, t in ((vS, vt0), (vP, vt1)):
                a(f'v_add_f32_dpp v{t}, v{d+i}, v{t} quad_perm:[{i},{i},{i},{i}] row_mask:0xf bank_mask:0xf')
        a(f'v_cvt_pk_bf16_f32 v{vSc}, v{vt0}, v{vt1}')
        if mx: a(f'v_max3_f32 v{vm}, v{vt0}, v{vt1}, v{vm}')
        a(f'ds_write_b32 v{va}, v{vSc} offset:{off}')
    def kbody(b, va, off, nxt='K'):
        a(f'v_readlane_b32 s{sI}, v{vTbl}, s{sN}')
        a(f's_waitcnt vmcnt(24)')
        qk1('v', vB[b])
        a(f's_add_u32 s{sN}, s{sN}, 1')
        (issueK if nxt == 'K' else issueV)('v', vB[b], sI)
        kpost(va, off)
    def atile(i):
        qk1('a', 32 * i)
        a('s_nop 7')
        kpost(vSa, 64 * i)
    def ticket_req():
        a('s_mov_b64 exec, 1')
        a(f'ds_add_rtn_u32 v{vTk}, v{vRa}, v{vOne}')
        a('s_mov_b64 exec, -1')
    def ticket_get(s):
        a('s_waitcnt lgkmcnt(0)')
        a(f'v_readfirstlane_b32 s{sTk}, v{vTk}')
        a('s_nop 3')
        a(f'v_readlane_b32 s{sOff[s]}, v{vList}, s{sTk}')
    def vbody(b, off, mode='V', rec=True):
        a('s_waitcnt lgkmcnt(0)')
        a(f'v_lshlrev_b32 v{vS}, 16, v{vSc}')
        a(f'v_and_b32 v{vS+1}, 0xffff0000, v{vSc}')
        a(f'v_lshlrev_b32 v{vS+2}, 16, v{vSc+1}')
        a(f'v_and_b32 v{vS+3}, 0xffff0000, v{vSc+1}')
        if rec:
            a(f'v_mov_b32 v{vRec}, s{sHs}')
            a(f'v_mov_b32 v{vRec+1}, s58')
            a(f'ds_write_b64 v{vRa}, {vr(vRec,2)}')
        if off is not None:
            a(f'ds_read_b64 {vr(vSc,2)}, v{vSb} offset:{off}')
        for i in range(4):
            a(f'v_fma_f32 v{vP+i}, v{vS+i}, s{sC}, -v{vmc}')
        for i in range(4):
            a(f'v_exp_f32 v{vP+i}, v{vP+i}')
        if mode == 'V':
            a(f'v_readlane_b32 s{sI}, v{vTbl}, s{sN}')
        else:
            a('s_nop 0')
        a(f'v_add_f32 v{vt0}, v{vP}, v{vP+1}')
        a(f'v_add_f32 v{vt1}, v{vP+2}, v{vP+3}')
        a(f'v_add_f32 v{vl}, v{vl}, v{vt0}')
        a(f'v_add_f32 v{vl}, v{vl}, v{vt1}')
        pmask()
        if mode == 'T' and b % 2 == 0: ticket_req()
        a(f's_waitcnt vmcnt(24)')
        if mode == 'V':
            a('s_memrealtime s[58:59]')
            a(f's_add_u32 s{sN}, s{sN}, 1')
        else:
            a('s_nop 1')
        pv('v', vB[b])
        if mode == 'V':
            a(f's_add_u32 s{sHs}, s{sHs}, 1')
            issueV('v', vB[b], sI)
        elif b % 2 == 0:
            ticket_get(b // 2)
            if b == 0:
                Lnf = a.newlabel('st_nf0')
                a(f's_cmp_lt_u32 s{sOff[0]}, {INVALID:#x}')
                a(f's_cbranch_scc1 {Lnf}')
                f1store()
                a.label(Lnf)
            a('s_nop 4')
            issueK('v', vB[b], sOff[b // 2])
        else:
            issueV('v', vB[b], sOff[b // 2])
    def body(s, mode):
        a(f's_waitcnt vmcnt(24)')
        ticket_req()
        qk1('v', vKb[s])
        ticket_get(s)
        Lnf = a.newlabel('st_nf')
        a(f's_cmp_lt_u32 s{sOff[1-s]}, {INVALID:#x}')
        a(f's_cbranch_scc1 {Lnf}')
        f1store()
        a.label(Lnf)
        a('s_nop 4')
        issueK('v', vKb[s], sOff[s])
        kpost(vSa, 0, mx=False)
        a(f'ds_read_b64 {vr(vSc,2)}, v{vSr}')
        softmax()
        a(f's_waitcnt vmcnt(24)')
        a('s_nop 0')
        pv('v', vVb[s])
        issueV('v', vVb[s], sOff[s])
    pat = cfg.get('pat', '0123ab0c1d2e3f0g1h23')
    kt = NA
    for ch in pat:
        if ch in '0123':
            kbody(int(ch), vSa, 64 * kt); kt += 1
        else: atile(ord(ch) - ord('a'))
        if ch in '13bdf': pst()
        if kt == NA + 1 and ch == '0':
            tagB(a)
            a(f'v_mov_b32 v{vF1}, s{S_TA}')
    assert kt == 20
    LK = a.newlabel('st_loopK'); LV = a.newlabel('st_loopV'); LB = a.newlabel('st_loopB'); Ldone = a.newlabel('st_done')
    def itstamp():
        if cfg.get('prof'):
            a('s_memrealtime s[64:65]')
            a('s_mov_b32 m0, s57')
            a('s_waitcnt lgkmcnt(0)')
            a(f'v_writelane_b32 v{vIt}, s64, m0')
            a('s_add_u32 s57, s57, 1')
    if cfg.get('prof'):
        a('s_mov_b32 s57, 0')
        a(f'v_mov_b32 v{vIt}, 0')
        a('s_waitcnt lgkmcnt(0)')
        for k in range(pst_n[0]):
            a(f'v_writelane_b32 v{vIt}, s{PST[k]}, {40 + k}')
    a.label(LK)
    itstamp()
    for b in range(4): kbody(b, vSb, 64 * b)
    a(f'v_add_u32 v{vSb}, 256, v{vSb}')
    a(f's_cmp_lt_u32 s{sN}, s{sLim}')
    a(f's_cbranch_scc1 {LK}')
    itstamp()
    a(f's_mov_b32 s{sN}, 0')
    for b in range(4): kbody(b, vSb, 64 * b, 'V')
    a(f'ds_read_b64 {vr(vSc,2)}, v{vSr}')
    a(f'v_mov_b32 v{vSb}, v{vSr}')
    xlane_reduce(a, [vm], [vt0], 'v_max_f32', ['r8', 'p32', 'p16'])
    a(f'v_cvt_pk_bf16_f32 v{vm}, v{vm}, v{vm}')
    a(f'v_lshlrev_b32 v{vm}, 16, v{vm}')
    a('s_mov_b32 vcc_lo, 0xaaaaaaaa')
    a('s_mov_b32 vcc_hi, 0xaaaaaaaa')
    a(f'v_readlane_b32 s{sMk}, v{vm}, 0')
    a(f'v_readlane_b32 s{sMk+1}, v{vm}, 4')
    a('s_nop 1')
    a(f'v_mov_b32 v{vm}, s{sMk}')
    a(f'v_mov_b32 v{vt0}, s{sMk+1}')
    a(f'v_cndmask_b32 v{vm}, v{vm}, v{vt0}, vcc')
    a(f'v_mul_f32 v{vmc}, s{sC}, v{vm}')
    a(f's_add_u32 s{sHs}, s{sLim}, 3')
    a('s_memrealtime s[58:59]')
    a.label(LV)
    itstamp()
    for b in range(4): vbody(b, 64 * (b + 1))
    a(f'v_add_u32 v{vSb}, 256, v{vSb}')
    a(f's_cmp_lt_u32 s{sN}, s{sLim}')
    a(f's_cbranch_scc1 {LV}')
    itstamp()
    Lw = a.newlabel('st_pw'); Lg = a.newlabel('st_pg')
    a(f'v_mov_b32 v{vRa}, {LDS_CTR}')
    a(f'v_lshlrev_b32 v{vRec}, 2, v0')
    a(f's_mov_b32 s{sCtr}, {POLL_MAX}')
    if cfg.get('prof'): a('s_memrealtime s[66:67]')
    a.label(Lw)
    a(f'ds_read_b32 v{vTk}, v{vRa} offset:{LDS_FLAG - LDS_CTR}')
    a(f'ds_read_b32 v{vList}, v{vRec} offset:{LDS_LIST}')
    a('s_waitcnt lgkmcnt(0)')
    a(f'v_readfirstlane_b32 s{sTk}, v{vTk}')
    a(f's_cmp_eq_u32 s{sTk}, s{S_TA}')
    a(f's_cbranch_scc1 {Lg}')
    a(f's_sub_u32 s{sCtr}, s{sCtr}, 1')
    a(f's_cbranch_scc1 {Lg}')
    a('s_sleep 2')
    a(f's_branch {Lw}')
    a.label(Lg)
    if cfg.get('prof'):
        a('s_memrealtime s[68:69]')
        a('s_waitcnt lgkmcnt(0)')
        a(f'v_writelane_b32 v{vIt}, s66, 60')
        a(f'v_writelane_b32 v{vIt}, s68, 61')
    for b in range(4): vbody(b, 64 * (b + 1) if b < 3 else None, 'T', rec=False)
    a(f's_cmp_ge_u32 s{sOff[0]}, {INVALID:#x}')
    a(f's_cbranch_scc1 {Ldone}')
    a.label(LB)
    itstamp()
    for s in range(D):
        body(s, 'B')
        nx = (s + 1) % D
        a(f's_cmp_ge_u32 s{sOff[nx]}, {INVALID:#x}')
        if s == D - 1:
            a(f's_cbranch_scc0 {LB}')
        else:
            a(f's_cbranch_scc1 {Ldone}')
    a.label(Ldone)
    a('s_mov_b64 exec, 1')
    a(f'ds_add_rtn_u32 v{vTk}, v{vRa}, v{vOne} offset:{LDS_DONE - LDS_CTR}')
    a('s_mov_b64 exec, -1')
    xlane_reduce(a, [vl], [vt0], 'v_add_f32', ['p32', 'p16'])
    a(f'v_lshlrev_b32 v{vt0}, 4, v0')
    a(f's_lshl_b32 s{sT2}, s2, 7')
    a(f's_add_u32 s{sT2}, s{sT2}, {WS_ML:#x}')
    a(f's_lshl_b32 s{sBase}, s2, 12')
    a(f's_add_u32 s{sBase}, s{sBase}, {WS_O:#x}')
    L2nd = a.newlabel('st_2nd'); LB3 = a.newlabel('st_b3')
    a('s_waitcnt lgkmcnt(0)')
    a(f'v_readfirstlane_b32 s{sTk}, v{vTk}')
    a(f's_cmp_lg_u32 s{sTk}, 0')
    a(f's_cbranch_scc1 {L2nd}')
    a(f'v_mov_b32 v{vS}, v{vm}')
    a(f'v_mov_b32 v{vS+1}, v{vl}')
    a(f'v_mov_b32 v{vTk}, s{S_TA}')
    a(f'ds_write_b128 v{vt0}, {vr(vacc,4)} offset:{LDS_CMB}')
    a(f'ds_write_b128 v{vt0}, {vr(vacc+4,4)} offset:{LDS_CMB+1024}')
    a(f'ds_write_b64 v{vt0}, {vr(vS,2)} offset:{LDS_CMB+2048}')
    a(f'ds_write_b32 v{vRa}, v{vTk} offset:{LDS_FLAG2 - LDS_CTR}')
    a(f's_branch {LB3}')
    a.label(L2nd)
    Lw2 = a.newlabel('st_w2'); Lg2 = a.newlabel('st_g2')
    a(f's_mov_b32 s{sCtr}, {POLL_MAX}')
    a.label(Lw2)
    a(f'ds_read_b32 v{vTk}, v{vRa} offset:{LDS_FLAG2 - LDS_CTR}')
    a(f'ds_read_b64 {vr(vS,2)}, v{vt0} offset:{LDS_CMB+2048}')
    a(f'ds_read_b128 {vr(vA,4)}, v{vt0} offset:{LDS_CMB}')
    a(f'ds_read_b128 {vr(vA+4,4)}, v{vt0} offset:{LDS_CMB+1024}')
    a('s_waitcnt lgkmcnt(3)')
    a(f'v_readfirstlane_b32 s{sTk}, v{vTk}')
    a(f's_cmp_eq_u32 s{sTk}, s{S_TA}')
    a(f's_cbranch_scc1 {Lg2}')
    a(f's_sub_u32 s{sCtr}, s{sCtr}, 1')
    a(f's_cbranch_scc1 {Lg2}')
    a('s_waitcnt lgkmcnt(0)')
    a(f's_branch {Lw2}')
    a.label(Lg2)
    a('s_waitcnt lgkmcnt(2)')
    a(f'v_max_f32 v{vt1}, v{vm}, v{vS}')
    a(f'v_sub_f32 v{valpha}, v{vm}, v{vt1}')
    a(f'v_sub_f32 v{vmc}, v{vS}, v{vt1}')
    a(f'v_mul_f32 v{valpha}, s{sC}, v{valpha}')
    a(f'v_mul_f32 v{vmc}, s{sC}, v{vmc}')
    a(f'v_exp_f32 v{valpha}, v{valpha}')
    a(f'v_exp_f32 v{vmc}, v{vmc}')
    a(f'v_mov_b32 v{vm}, v{vt1}')
    a(f'v_mul_f32 v{vl}, v{vl}, v{valpha}')
    a(f'v_fmac_f32 v{vl}, v{vS+1}, v{vmc}')
    for i in range(8):
        qp = '[0,0,2,2]' if (i & 1) == 0 else '[1,1,3,3]'
        a(f'v_mul_f32_dpp v{vacc+i}, v{valpha}, v{vacc+i} quad_perm:{qp} row_mask:0xf bank_mask:0xf')
    a('s_waitcnt lgkmcnt(0)')
    for i in range(8):
        qp = '[0,0,2,2]' if (i & 1) == 0 else '[1,1,3,3]'
        a(f'v_fmac_f32_dpp v{vacc+i}, v{vmc}, v{vA+i} quad_perm:{qp} row_mask:0xf bank_mask:0xf')
    a(f'v_and_b32 v{vTk}, 1, v{vc}')
    a(f'v_cmp_eq_u32 vcc, 1, v{vTk}')
    a(f'v_mov_b32_dpp v{vP}, v{vm} quad_perm:[1,0,3,2] row_mask:0xf bank_mask:0xf')
    a(f'v_mov_b32_dpp v{vP+1}, v{vl} quad_perm:[1,0,3,2] row_mask:0xf bank_mask:0xf')
    a(f'v_mov_b32 v{vS+1}, s{S_TA}')
    a(f'v_mov_b32 v{vS+3}, s{S_TB}')
    a(f'v_cndmask_b32 v{vS}, v{vm}, v{vP+1}, vcc')
    a(f'v_cndmask_b32 v{vS+2}, v{vP}, v{vl}, vcc')
    mkchunks(a, vA, [vacc + i for i in range(8)])
    for i in range(4):
        a(f'buffer_store_dwordx4 {vr(vA+4*i,4)}, v{vOo[i>>1]}, {sr(S_WS,4)}, s{sBase} offen offset:{1024*(i&1)} sc1')
    a('s_mov_b64 exec, 0xff')
    a(f'buffer_store_dwordx4 {vr(vS,4)}, v{vt0}, {sr(S_WS,4)}, s{sT2} offen sc1')
    a('s_mov_b64 exec, -1')
    a.label(LB3)
    a(f'v_mov_b32 v{vt0}, 0')
    if cfg.get('prof'):
        a(f's_memrealtime s[58:59]')
    a('s_barrier')
    if cfg.get('prof'):
        a(f's_add_u32 s{sT2}, s{S_WAVE}, 4')
        a(f's_lshl_b32 s{sTmp}, s2, 5')
        a(f's_add_u32 s{sTmp}, s{sTmp}, s{sT2}')
        a(f's_lshl_b32 s{sTmp}, s{sTmp}, 2')
        a(f's_add_u32 s{sTmp}, s{sTmp}, {WS_PROF:#x}')
        a('s_waitcnt lgkmcnt(0)')
        a(f'v_mov_b32 v{vt1}, s58')
        a(f'buffer_store_dword v{vt1}, v{vt0}, {sr(S_WS,4)}, s{sTmp} offen')
        a(f'v_mov_b32 v{vt1}, s62')
        a(f'buffer_store_dword v{vt1}, v{vt0}, {sr(S_WS,4)}, s{sTmp} offen offset:28')
        a(f's_lshl_b32 s{sTmp}, s2, 1')
        a(f's_add_u32 s{sTmp}, s{sTmp}, s{S_WAVE}')
        a(f's_lshl_b32 s{sTmp}, s{sTmp}, 8')
        a(f's_add_u32 s{sTmp}, s{sTmp}, {WS_IT:#x}')
        a(f'v_lshlrev_b32 v{vt0}, 2, v0')
        a(f'buffer_store_dword v{vIt}, v{vt0}, {sr(S_WS,4)}, s{sTmp} offen')
    a('s_endpgm')
    return V.n


def gemv_pairs(a, vm, W, nrows, ndw, vX, acc, tmps, loads, first=True):
    for t in range(nrows // 2):
        if loads is not None:
            vm.wait(loads[2 * t + 1])
        for d in range(ndw):
            lo, hi = tmps[2 * d], tmps[2 * d + 1]
            a(f'v_perm_b32 v{lo}, v{W[2*t+1]+d}, v{W[2*t]+d}, s{S_SELLO}')
            a(f'v_perm_b32 v{hi}, v{W[2*t+1]+d}, v{W[2*t]+d}, s{S_SELHI}')
        for d in range(ndw):
            lo, hi = tmps[2 * d], tmps[2 * d + 1]
            c0 = '0' if (t == 0 and first) else f'v{acc[2*d]}'
            c1 = '0' if (t == 0 and first) else f'v{acc[2*d+1]}'
            a(f'v_dot2_f32_bf16 v{acc[2*d]}, v{lo}, v{vX+t}, {c0}')
            a(f'v_dot2_f32_bf16 v{acc[2*d+1]}, v{hi}, v{vX+t}, {c1}')
    a('s_nop 2')


def rnd_bf16(a, d, s, t):
    a(f'v_cvt_pk_bf16_f32 v{t}, v{s}, v{s}')
    a(f'v_lshlrev_b32 v{d}, 16, v{t}')


def ksplit_loads(a, vm, sX, sW, rowbytes, sKq, sColByte, vX, vW, vo1, vo2, vo3, sT, sT2):
    a(f'v_lshrrev_b32 v{vo1}, 3, v0')
    a(f'v_mul_u32_u24 v{vo2}, {14*rowbytes}, v{vo1}')
    a(f'v_and_b32 v{vo3}, 7, v0')
    a(f'v_lshl_add_u32 v{vo2}, v{vo3}, 4, v{vo2}')
    a(f's_mul_i32 s{sT2}, s{sKq}, {112*rowbytes}')
    a(f's_add_u32 s{sT2}, s{sT2}, s{sColByte}')
    lw = []
    for k in range(14):
        lw.append(vm.issue(f'buffer_load_dwordx4 {vr(vW+4*k,4)}, v{vo2}, {sr(sW,4)}, s{sT2} offen nt'))
        if k < 13: a(f's_add_u32 s{sT2}, s{sT2}, {rowbytes}')
        if k == 0:
            a(f'v_mul_u32_u24 v{vo3}, 28, v{vo1}')
            a(f's_mul_i32 s{sT}, s{sKq}, 224')
            vm.issue(f'buffer_load_dwordx4 {vr(vX,4)}, v{vo3}, {sr(sX,4)}, s{sT} offen')
            vm.issue(f'buffer_load_dwordx3 {vr(vX+4,3)}, v{vo3}, {sr(sX,4)}, s{sT} offen offset:16')
    return lw


def gen_auxA(a, cfg):
    V = Regs(1, 256)
    vt = V.alloc(8, 4)
    vX = V.alloc(8, 4)
    vacc = V.alloc(8, 4)
    vtmp = V.alloc(8, 4)
    vo1 = V.alloc(); vo2 = V.alloc(); vo3 = V.alloc(); vTag = V.alloc(); vOa = vTag; vYs = V.alloc()
    vCh = V.alloc(16, 4)
    vW = V.alloc(72, 4); vSet = vW
    vWp = V.alloc(64, 4)
    vOq = V.alloc(16, 4)
    vML = V.alloc(8, 4)
    sX = 4; sWQ = 8; sDBG = 44; sWO = 48
    sT = 52; sT2 = 53; sHead = 54; sJ = 55; sCnt = 56; sC = 57; sKq = 58; sCb = 59
    sPk = 80
    vm = VM(a)
    stamp(a, cfg, 62)
    srd(a, sX, P_X, 896)
    srd(a, sWQ, P_WQ, 448 * 8192)
    a(f's_lshr_b32 s{sHead}, s2, 5')
    a(f's_and_b32 s{sJ}, s2, 31')
    a(f's_and_b32 s{sKq}, s2, 3')
    a(f's_lshr_b32 s{sCb}, s2, 2')
    a(f's_lshl_b32 s{sCb}, s{sCb}, 7')
    lw = ksplit_loads(a, vm, sX, sWQ, 8192, sKq, sCb, vX, vW, vo1, vo2, vo3, sT, sT2)
    a('s_barrier')
    srd(a, sDBG, P_DBG, 256)
    srd(a, sWO, P_WO, 4096 * 896)
    a(f'v_mov_b32 v{vo3}, 0')
    vm.issue(f'buffer_load_dword v{vTag}, v{vo3}, {sr(sDBG,4)}, 0 offen sc1')
    gemv_pairs(a, vm, [vW + 4 * k for k in range(14)], 14, 4, vX, [vacc + i for i in range(8)], [vtmp + i for i in range(8)], lw)
    xlane_reduce(a, [vacc + i for i in range(8)], [vtmp + i for i in range(8)], 'v_add_f32', ['r8', 'p16', 'p32'])
    stamp(a, cfg, 64)
    a(f'v_lshlrev_b32 v{vo1}, 4, v0')
    a(f's_lshl_b32 s{sT}, s{sHead}, 14')
    a(f's_lshl_b32 s{sT2}, s{sKq}, 12')
    a(f's_add_u32 s{sT2}, s{sT2}, s{sT}')
    a(f's_and_b32 s{sC}, s{sCb}, 0x380')
    a(f's_lshl_b32 s{sC}, s{sC}, 2')
    a(f's_add_u32 s{sT2}, s{sT2}, s{sC}')
    L = a.newlabel('ptag'); Dn = a.newlabel('ptag_done')
    a(f's_mov_b32 s{sCnt}, {POLL_MAX}')
    a.label(L)
    a('s_waitcnt vmcnt(0)')
    a(f'v_readfirstlane_b32 s{S_TA}, v{vTag}')
    a(f's_cmp_lg_u32 s{S_TA}, 0')
    a(f's_cbranch_scc1 {Dn}')
    a(f's_sub_u32 s{sCnt}, s{sCnt}, 1')
    a(f's_cbranch_scc1 {Dn}')
    a('s_sleep 1')
    a(f'buffer_load_dword v{vTag}, v{vo3}, {sr(sDBG,4)}, 0 offen sc1')
    a(f's_branch {L}')
    a.label(Dn)
    tagB(a)
    stamp(a, cfg, 66)
    mkchunks(a, vCh, [vacc + i for i in range(8)])
    a('s_mov_b64 exec, 0xff')
    for c in range(4):
        a(f'buffer_store_dwordx4 {vr(vCh+4*c,4)}, v{vo1}, {sr(S_WS,4)}, s{sT2} offen offset:{128*c} sc1')
    a('s_mov_b64 exec, -1')
    a(f'v_lshrrev_b32 v{vo2}, 5, v0')
    a(f'v_lshlrev_b32 v{vo2}, 7, v{vo2}')
    a(f'v_and_b32 v{vt}, 7, v0')
    a(f'v_lshl_add_u32 v{vo2}, v{vt}, 4, v{vo2}')
    a(f'v_bfe_u32 v{vt}, v0, 3, 2')
    a(f'v_lshl_add_u32 v{vo2}, v{vt}, 2, v{vo2}')
    for kq in range(1, 4):
        a(f's_add_u32 s{80+kq}, s{sT}, {4096*kq}')
    loads = []
    for kq in range(4):
        for i in range(4):
            so = sT if kq == 0 else 80 + kq
            loads.append(f'buffer_load_dwordx4 {vr(vW+4*(4*kq+i),4)}, v{vo1}, {sr(S_WS,4)}, s{so} offen offset:{i*1024} sc1')
    if cfg.get('qsleep'): a(f's_sleep {cfg["qsleep"]}')
    poll(a, loads, [vW + 4 * k for k in range(16)], vt, sCnt, name='pq')
    stamp(a, cfg, 68)
    for i in range(4):
        for e in (0, 2):
            a(f'v_add_f32 v{vW+4*i+e}, v{vW+4*i+e}, v{vW+4*(4+i)+e}')
            a(f'v_add_f32 v{vW+4*(8+i)+e}, v{vW+4*(8+i)+e}, v{vW+4*(12+i)+e}')
    for i in range(4):
        for e in (0, 2):
            a(f'v_add_f32 v{vW+4*i+e}, v{vW+4*i+e}, v{vW+4*(8+i)+e}')
    for i in range(4):
        a(f'v_cvt_pk_bf16_f32 v{vt+i}, v{vW+4*i}, v{vW+4*i+2}')
    for i in range(4):
        a(f'ds_write_b32 v{vo2}, v{vt+i} offset:{256*i}')
    a(f'ds_write_b32 v{vo3}, v{vTag} offset:{LDS_TAG}')
    a(f'ds_write_b32 v{vo3}, v{vo3} offset:{LDS_CTR}')
    a(f'ds_write_b32 v{vo3}, v{vo3} offset:{LDS_FLAG}')
    a(f'ds_write_b32 v{vo3}, v{vo3} offset:{LDS_DONE}')
    a(f'ds_write_b32 v{vo3}, v{vo3} offset:{LDS_REC}')
    a(f'ds_write_b32 v{vo3}, v{vo3} offset:{LDS_REC + 512}')
    a('s_waitcnt lgkmcnt(0)')
    a('s_barrier')
    stamp(a, cfg, 70)
    stamp_store(a, cfg, [(0, 62), (7, 64), (8, 66), (9, 68), (1, 70)], vt)
    a(f's_lshl_b32 s{sT}, s{sHead}, 9')
    a(f's_and_b32 s{sT2}, s{sJ}, 16')
    a(f's_lshl_b32 s{sT2}, s{sT2}, 3')
    a(f's_add_u32 s{sT}, s{sT}, s{sT2}')
    a(f's_and_b32 s{sT2}, s{sJ}, 7')
    a(f's_lshl_b32 s{sT2}, s{sT2}, 4')
    a(f's_add_u32 s{sT}, s{sT}, s{sT2}')
    a(f's_bfe_u32 s{sT2}, s{sJ}, 0x10003')
    a(f's_add_u32 s{sT}, s{sT}, s{sT2}')
    a(f's_mul_i32 s{sT}, s{sT}, 896')
    a(f'v_min_u32 v{vo2}, 55, v0')
    a(f'v_lshlrev_b32 v{vo2}, 4, v{vo2}')
    for hh in range(2):
        for e in range(8):
            a(f'buffer_load_dwordx4 {vr(vW+4*(8*hh+e),4)}, v{vo2}, {sr(sWO,4)}, s{sT} offen offset:{(e%2)*1792} nt')
            if e % 2 == 1:
                a(f's_add_u32 s{sT}, s{sT}, {3584 if e < 7 else 3584 + (256-16)*896}')
    a('s_waitcnt vmcnt(0)')
    stamp(a, cfg, 62)
    stamp_store(a, cfg, [(16, 62)], vt)
    for pr in range(8):
        r0 = vW + 4 * (2 * pr); r1 = vW + 4 * (2 * pr + 1)
        for d in range(4):
            a(f'v_perm_b32 v{vWp+8*pr+2*d}, v{r1+d}, v{r0+d}, s{S_SELLO}')
            a(f'v_perm_b32 v{vWp+8*pr+2*d+1}, v{r1+d}, v{r0+d}, s{S_SELHI}')
    a(f'v_and_b32 v{vo2}, 31, v0')
    a(f'v_lshlrev_b32 v{vo2}, 7, v{vo2}')
    a(f'v_lshrrev_b32 v{vo3}, 3, v0')
    a(f'v_lshlrev_b32 v{vOa}, 12, v{vo3}')
    a(f'v_and_b32 v{vt}, 7, v0')
    a(f'v_lshl_add_u32 v{vOa}, v{vt}, 4, v{vOa}')
    a(f'v_lshlrev_b32 v{vo3}, 2, v{vo3}')
    a(f's_lshl_b32 s{sT}, s{sHead}, 17')
    a(f's_lshl_b32 s{sT2}, s{sJ}, 7')
    a(f's_add_u32 s{sT}, s{sT}, s{sT2}')
    a(f's_add_u32 s{sT}, s{sT}, {WS_O:#x}')
    for k in range(1, 4):
        a(f's_add_u32 s{72+k}, s{sT}, {k << 15}')
    a(f's_lshl_b32 s{sT2}, s{sHead}, 12')
    a(f's_add_u32 s{sT2}, s{sT2}, {WS_ML:#x}')
    a(f's_mov_b32 s{sC}, {C_SCALE:#x}')
    a(f's_lshl_b32 s72, s2, 6')
    for c in range(4):
        a(f's_add_u32 s{24+c}, s72, {WS_Y + c * 14 * 16384:#x}')
    a(f'v_lshrrev_b32 v{vYs}, 2, v0')
    a(f'v_lshlrev_b32 v{vYs}, 14, v{vYs}')
    a(f'v_and_b32 v{vt}, 3, v0')
    a(f'v_lshl_add_u32 v{vYs}, v{vt}, 4, v{vYs}')
    for i in range(8):
        a(f'v_mov_b32 v{vCh+2*i+1}, s{S_TA if i % 2 == 0 else S_TB}')
    SL = cfg.get('sl', 60); OWN = 2 * (64 - SL); T2 = cfg.get('t2', 5700); CL = cfg.get('cl', OWN - 2) * 128
    SLF = cfg.get('slf', SL); OWNF = 2 * (64 - SLF); CLF = (OWNF - 2) * 128; CLP = cfg.get('clp', 14) * 128
    TMAX = 56 - max(OWN, OWNF)
    p0 = vW
    vR = p0; vPc = p0 + 4; vx = p0 + 8; vSx = p0 + 9; vU = p0 + 10; vUe = p0 + 11; vT = p0 + 12; vgv = p0 + 13; vtv = p0 + 14
    vGE = p0 + 15; vTP = p0 + 16; vL = p0 + 17; vAd = p0 + 18; vZ = p0 + 19; vOwn = p0 + 20; vCl = p0 + 21
    a(f'v_cmp_le_u32 vcc, 25, v0')
    a(f'v_mov_b32 v{vOwn}, {OWN}')
    a(f'v_mov_b32 v{vCl}, {OWNF}')
    a(f'v_cndmask_b32 v{vOwn}, v{vOwn}, v{vCl}, vcc')
    a(f'v_mov_b32 v{vCl}, {(-CL) & 0xffffffff:#x}')
    a(f'v_mov_b32 v{vZ}, {(-CLF) & 0xffffffff:#x}')
    a(f'v_cndmask_b32 v{vCl}, v{vCl}, v{vZ}, vcc')
    a(f'v_readlane_b32 s19, v{vOwn}, s{sJ}')
    sM = 76; sLo = 64
    def scan32(r):
        for sh in (1, 2, 4, 8):
            a('s_nop 1')
            a(f'v_add_u32_dpp v{r}, v{r}, v{r} row_shr:{sh} row_mask:0xf bank_mask:0xf bound_ctrl:0')
        a('s_nop 1')
        a(f'v_add_u32_dpp v{r}, v{r}, v{r} row_bcast:15 row_mask:0xa bank_mask:0xf')
        a('s_nop 0')
    CS = cfg.get('cs', 68); CG = cfg.get('cg', CS + 16); STG = cfg.get('stg', 2 * SL - 15); TOFF = cfg.get('toff', 250)
    a(f'v_mov_b32 v{vAd}, {LDS_REC}')
    a(f'v_mov_b32 v{vPc+1}, s{S_TA}')
    a(f'v_mov_b32 v{vPc+3}, s{S_TB}')
    a(f's_lshl_b32 s77, s2, 7')
    a(f's_add_u32 s77, s77, {WS_PLAN:#x}')
    a(f's_lshl_b32 s79, s{sHead}, 12')
    a(f's_add_u32 s79, s79, {WS_PLAN:#x}')
    def progwait(thr, thrf, slp):
        Lw = a.newlabel('pl_w'); Lg = a.newlabel('pl_g')
        a(f's_cmp_ge_u32 s{sJ}, 25')
        a(f's_cselect_b32 s{sM}, {2 * (thr - thrf)}, 0')
        a(f's_sub_u32 s{sM}, {2 * thr}, s{sM}')
        a(f's_mov_b32 s{sCnt}, {POLL_MAX}')
        a.label(Lw)
        a(f'ds_read_b64 {vr(vR,2)}, v{vAd}')
        a(f'ds_read_b64 {vr(vR+2,2)}, v{vAd} offset:512')
        a('s_waitcnt lgkmcnt(0)')
        a(f'v_add_u32 v{vPc}, v{vR}, v{vR+2}')
        a('s_nop 0')
        a(f'v_readfirstlane_b32 s64, v{vPc}')
        a(f's_cmp_ge_u32 s64, s{sM}')
        a(f's_cbranch_scc1 {Lg}')
        a(f's_sub_u32 s{sCnt}, s{sCnt}, 1')
        a(f's_cbranch_scc1 {Lg}')
        a(f's_sleep {slp}')
        a(f's_branch {Lw}')
        a.label(Lg)
    def publish(off):
        a(f'v_add_u32 v{vPc+2}, v{vR+1}, v{vR+3}')
        a(f's_lshl_b32 s64, s{S_TA}, 1')
        a(f'v_subrev_u32 v{vPc+2}, s64, v{vPc+2}')
        a(f'v_and_b32 v{vPc}, 0x1ff, v{vPc}')
        a(f'v_and_b32 v{vPc+2}, 0xfffff, v{vPc+2}')
        a('s_mov_b64 exec, 0xff')
        a(f's_add_u32 s64, s77, {off:#x}')
        a(f'buffer_store_dwordx4 {vr(vPc,4)}, v{vo1}, {sr(S_WS,4)}, s64 offen sc1')
        a('s_mov_b64 exec, -1')
    def gather_rate(off, name):
        a(f's_add_u32 s64, s79, {off:#x}')
        a('s_mov_b32 exec_hi, 0')
        poll(a, [f'buffer_load_dwordx4 {vr(vR,4)}, v{vo2}, {sr(S_WS,4)}, s64 offen sc1'], [vR], vt, sCnt, name=name, sleep=cfg.get('plsleep2', 8))
        a(f'v_mov_b32 v{vSx}, v{vR}')
        a(f'v_mov_b32 v{vU}, v{vR+2}')
        scan32(vSx)
        scan32(vU)
        a(f'v_readlane_b32 s78, v{vSx}, 31')
        a(f'v_readlane_b32 s64, v{vU}, 31')
        a(f's_sub_u32 s64, s64, {64 * TOFF}')
        a(f's_max_i32 s64, s64, 1')
        a(f's_max_i32 s78, s78, 1')
        a(f'v_cvt_f32_u32 v{vT}, s64')
        a(f'v_cvt_f32_u32 v{vx}, s78')
    progwait(CS, CS - 4, 32)
    publish(WS_CAL - WS_PLAN)
    a('s_waitcnt vmcnt(0)')
    progwait(CG, CG - 4, 32)
    gather_rate(WS_CAL - WS_PLAN, 'pcl')
    a(f'v_rcp_f32 v{vx}, v{vx}')
    a(f'v_mul_f32 v{vT}, {f2u(STG):#x}, v{vT}')
    a(f'v_mul_f32 v{vT}, v{vT}, v{vx}')
    a(f'v_min_f32 v{vT}, {f2u(100000.0):#x}, v{vT}')
    a(f'v_cvt_u32_f32 v{vT}, v{vT}')
    a('s_nop 0')
    a(f'v_readfirstlane_b32 s{sM}, v{vT}')
    a(f's_add_u32 s{sM}, s{sM}, {TOFF}')
    a(f's_sub_u32 s78, s{sM}, 150')
    Lw = a.newlabel('pl_tw'); Lf = a.newlabel('pl_tf'); Lg = a.newlabel('pl_tg')
    a.label(Lw)
    a('s_memrealtime s[64:65]')
    a('s_waitcnt lgkmcnt(0)')
    a(f's_sub_u32 s64, s64, s{S_TA}')
    a(f's_cmp_ge_u32 s64, s{sM}')
    a(f's_cbranch_scc1 {Lg}')
    a(f's_cmp_ge_u32 s64, s78')
    a(f's_cbranch_scc1 {Lf}')
    a('s_sleep 40')
    a.label(Lf)
    a('s_sleep 2')
    a(f's_branch {Lw}')
    a.label(Lg)
    a(f'ds_read_b64 {vr(vR,2)}, v{vAd}')
    a(f'ds_read_b64 {vr(vR+2,2)}, v{vAd} offset:512')
    a('s_waitcnt lgkmcnt(0)')
    a(f'v_add_u32 v{vPc}, v{vR}, v{vR+2}')
    publish(0)
    stamp(a, cfg, 66)
    a(f's_sleep {cfg.get("plsleep", 40)}')
    gather_rate(0, 'ppl')
    stamp(a, cfg, 68)
    a(f'v_rcp_f32 v{vT}, v{vT}')
    a(f'v_cvt_f32_u32 v{vSx}, v{vR}')
    a(f'v_cvt_f32_u32 v{vU}, v{vR+2}')
    a(f'v_mul_f32 v{vT}, v{vT}, v{vx}')
    a(f'v_fma_f32 v{vSx}, -v{vT}, v{vU}, v{vSx}')
    a(f'v_mul_f32 v{vSx}, {f2u(64.0 * cfg.get("gain", 1.0)):#x}, v{vSx}')
    a(f'v_max_f32 v{vSx}, 0xc9800000, v{vSx}')
    a(f'v_min_f32 v{vSx}, 0x49800000, v{vSx}')
    a(f'v_cvt_i32_f32 v{vR}, v{vSx}')
    a(f'v_cmp_gt_u32 s[64:65], 32, v0')
    a(f'v_mov_b32 v{vZ}, 0')
    a('s_nop 0')
    a(f'v_cndmask_b32 v{vSx}, v{vZ}, v{vR}, s[64:65]')
    scan32(vSx)
    a(f'v_readlane_b32 s78, v{vSx}, 31')
    a('s_ashr_i32 s78, s78, 5')
    a(f'v_subrev_u32 v{vx}, s78, v{vR}')
    a(f'v_max_i32 v{vx}, v{vCl}, v{vx}')
    a(f'v_min_i32 v{vx}, {CLP:#x}, v{vx}')
    a(f'v_cndmask_b32 v{vx}, v{vZ}, v{vx}, s[64:65]')
    a(f'v_mov_b32 v{vSx}, v{vx}')
    scan32(vSx)
    a(f'v_readlane_b32 s78, v{vSx}, 31')
    a(f'v_add_u32 v{vT}, 1, v0')
    a(f'v_lshlrev_b32 v{vU}, 5, v{vSx}')
    a(f'v_mul_lo_u32 v{vT}, v{vT}, s78')
    a(f'v_sub_u32 v{vU}, v{vU}, v{vT}')
    a(f'v_lshlrev_b32 v{vT}, 5, v{vx}')
    a(f'v_sub_u32 v{vUe}, v{vU}, v{vT}')
    a(f'v_add_u32 v{vUe}, s78, v{vUe}')
    a(f'v_add_u32 v{vU}, 0x800, v{vU}')
    a(f'v_add_u32 v{vUe}, 0x800, v{vUe}')
    a(f'v_ashrrev_i32 v{vU}, 12, v{vU}')
    a(f'v_ashrrev_i32 v{vUe}, 12, v{vUe}')
    a(f'v_sub_u32 v{vtv}, v{vU}, v{vUe}')
    a(f'v_cndmask_b32 v{vtv}, v{vZ}, v{vtv}, s[64:65]')
    a(f'v_sub_u32 v{vgv}, 0, v{vtv}')
    a(f'v_max_i32 v{vgv}, 0, v{vgv}')
    a(f'v_max_i32 v{vtv}, 0, v{vtv}')
    Lok = a.newlabel('pl_ok')
    a(f'v_cmp_lt_u32 vcc, v{vOwn}, v{vgv}')
    a(f'v_cmp_lt_u32 s[70:71], {TMAX}, v{vtv}')
    a('s_or_b64 vcc, vcc, s[70:71]')
    if cfg.get('noplan'): a('s_mov_b64 vcc, 1')
    a('s_cmp_eq_u64 vcc, 0')
    a(f's_cbranch_scc1 {Lok}')
    a(f'v_mov_b32 v{vgv}, 0')
    a(f'v_mov_b32 v{vtv}, 0')
    a.label(Lok)
    a(f'v_lshl_or_b32 v{vSx}, v{vtv}, 16, v{vgv}')
    scan32(vSx)
    a(f'v_and_b32 v{vGE}, 0xffff, v{vSx}')
    a(f'v_mov_b32 v{vT}, 0x7fffffff')
    a(f'v_cndmask_b32 v{vGE}, v{vT}, v{vGE}, s[64:65]')
    a(f'v_lshrrev_b32 v{vTP}, 16, v{vSx}')
    a(f'v_sub_u32 v{vTP}, v{vTP}, v{vtv}')
    a(f'v_readlane_b32 s64, v{vgv}, s{sJ}')
    a(f'v_readlane_b32 s65, v{vtv}, s{sJ}')
    a(f'v_readlane_b32 s70, v{vTP}, s{sJ}')
    a(f's_sub_u32 s64, s19, s64')
    a(f's_lshl_b32 s71, s2, 7')
    a(f's_sub_u32 s71, s71, s19')
    a(f's_add_u32 s71, s71, 128')
    a(f's_lshl_b32 s71, s71, 13')
    a(f'v_lshlrev_b32 v{vL}, 13, v0')
    a(f'v_add_u32 v{vL}, s71, v{vL}')
    a(f'v_mov_b32 v{vT}, {INVALID:#x}')
    a(f'v_cmp_gt_u32 vcc, s64, v0')
    a(f's_lshl_b32 s71, s{sHead}, 25')
    a(f's_add_u32 s71, s71, {128 << 13}')
    a(f'v_cndmask_b32 v{vL}, v{vT}, v{vL}, vcc')
    if cfg.get('prof'):
        a('s_lshl_b32 s79, s65, 8')
        a('s_add_u32 s79, s79, s64')
    Lk = a.newlabel('pl_k'); Lkd = a.newlabel('pl_kd')
    a.label(Lk)
    a('s_cmp_eq_u32 s65, 0')
    a(f's_cbranch_scc1 {Lkd}')
    a(f'v_cmp_ge_u32 vcc, s70, v{vGE}')
    a('s_bcnt1_i32_b64 s76, vcc')
    a('s_mov_b32 m0, s64')
    a(f'v_readlane_b32 s77, v{vGE}, s76')
    a('s_sub_u32 s77, s77, s70')
    a('s_lshl_b32 s77, s77, 13')
    a('s_lshl_b32 s76, s76, 20')
    a('s_add_u32 s76, s76, s71')
    a('s_sub_u32 s76, s76, s77')
    a(f'v_writelane_b32 v{vL}, s76, m0')
    a('s_add_u32 s64, s64, 1')
    a('s_add_u32 s70, s70, 1')
    a('s_sub_u32 s65, s65, 1')
    a(f's_branch {Lk}')
    a.label(Lkd)
    cols = map_cols(cfg)
    names = ['v'] + [f't{i}' for i in range(6)] + [f'w{i}' for i in range(8)]
    a(f'v_and_b32 v{vUe}, {INVALID:#x}, v{vL}')
    vmap(a, vUe, vL, 13, [cols[n] for n in names], vU)
    vL = vUe
    a(f'v_lshlrev_b32 v{vAd}, 2, v0')
    a(f'ds_write_b32 v{vAd}, v{vL} offset:{LDS_LIST}')
    a(f'ds_write_b32 v{vZ}, v{vPc+1} offset:{LDS_FLAG}')
    stamp(a, cfg, 70)
    stamp_store(a, cfg, [(17, 79), (18, 66), (19, 68), (20, 70)], vt)
    sEX = 16; sDry = 18
    WARM = 0
    a(f's_mov_b64 s[{sEX}:{sEX+1}], -1')
    a(f's_lshl_b32 s20, s{sHead}, 12')
    a(f's_add_u32 s20, s20, {WS_F1:#x}')
    a(f's_lshl_b32 s21, s2, 7')
    a(f's_add_u32 s21, s21, {WS_F2:#x}')
    a(f'v_mov_b32 v{vSet+4}, s{S_TA}')
    a(f'v_mov_b32 v{vSet+5}, 0')
    a('s_barrier')
    if cfg.get('f1', 1):
        flagpoll(a, f'buffer_load_dwordx2 {vr(vSet,2)}, v{vo2}, {sr(S_WS,4)}, s20 offen sc1', [vSet, vSet + 1], vt, sCnt, 'pf1',
                 sleep=cfg.get('f1sleep', 1))
    stamp(a, cfg, 66)
    R2 = cfg.get('r2', 4)
    def f2store():
        if not cfg.get('f2', 1): return
        Lnf = a.newlabel('nf2')
        a(f's_and_b32 s22, s{sJ}, {32 // R2 - 1}')
        a(f's_cmp_lg_u32 s22, {cfg.get("r2c", 3) % (32 // R2)}')
        a(f's_cbranch_scc1 {Lnf}')
        a('s_mov_b64 exec, 1')
        a(f'buffer_store_dword v{vSet+4}, v{vSet+5}, {sr(S_WS,4)}, s21 offen sc1')
        a('s_mov_b64 exec, -1')
        a.label(Lnf)
    if cfg.get('f2pos', 'gath') == 'f1': f2store()
    if cfg.get('d1'): a(f's_sleep {cfg["d1"]}')
    loads = [f'buffer_load_dwordx4 {vr(vML,4)}, v{vo2}, {sr(S_WS,4)}, s{sT2} offen sc1',
             f'buffer_load_dwordx4 {vr(vML+4,4)}, v{vo2}, {sr(S_WS,4)}, s{sT2} offen offset:16 sc1']
    for k in range(4):
        loads.append(f'buffer_load_dwordx4 {vr(vOq+4*k,4)}, v{vOa}, {sr(S_WS,4)}, s{sT if k == 0 else 72 + k} offen sc1')
    poll(a, loads, [vML, vML + 4] + [vOq + 4 * k for k in range(4)], vt, sCnt, name='ps2', sleep=cfg.get('s2sleep', 1))
    if cfg.get('f2pos', 'gath') == 'gath': f2store()
    if cfg.get('prof'): a(f's_sub_u32 s23, {POLL_MAX}, s{sCnt}')
    stamp(a, cfg, 62)
    vWt = vX
    M = [vt, vt + 1]
    a(f'v_mov_b32 v{M[0]}, v{vML}')
    a(f'v_mov_b32 v{M[1]}, v{vML+2}')
    xlane_reduce(a, M, [vt + 2, vt + 3], 'v_max_f32', ['x1', 'x2', 'r4', 'r8', 'p16'])
    for hh in range(2):
        a(f'v_sub_f32 v{vML+2*hh}, v{vML+2*hh}, v{M[hh]}')
        a(f'v_mul_f32 v{vML+2*hh}, s{sC}, v{vML+2*hh}')
    for hh in range(2):
        a(f'v_exp_f32 v{vML+2*hh}, v{vML+2*hh}')
    a('s_nop 0')
    for k in range(4):
        for hh in range(2):
            a(f'ds_bpermute_b32 v{vWt+2*k+hh}, v{vo3}, v{vML+2*hh} offset:{32*k}')
    for hh in range(2):
        a(f'v_mul_f32 v{vacc+2+hh}, v{vML+2*hh}, v{vML+4+2*hh}')
    a('s_mov_b32 exec_lo, 0')
    for hh in range(2):
        a(f'v_mov_b32 v{vacc+2+hh}, 0')
    a(f's_mov_b32 exec_lo, s{sEX}')
    xlane_reduce(a, [vacc + 2, vacc + 3], [vt + 2, vt + 3], 'v_add_f32', ['x1', 'x2', 'r4'])
    a('s_waitcnt lgkmcnt(0)')
    for k in range(4):
        for hh in range(2):
            if k == 0: a(f'v_mul_f32 v{vacc+hh}, v{vWt+2*k+hh}, v{vOq+4*k+2*hh}')
            else: a(f'v_fmac_f32 v{vacc+hh}, v{vWt+2*k+hh}, v{vOq+4*k+2*hh}')
    a('s_nop 1')
    xlane_reduce(a, [vacc + i for i in range(4)], [vtmp + i for i in range(4)], 'v_add_f32', ['r8', 'p16', 'p32'])
    a(f'v_rcp_f32 v{vacc+2}, v{vacc+2}')
    a(f'v_rcp_f32 v{vacc+3}, v{vacc+3}')
    a('s_nop 0')
    for hh in range(2):
        a(f'v_mul_f32 v{vacc+hh}, v{vacc+hh}, v{vacc+2+hh}')
    a('s_nop 1')
    for hh in range(2):
        a(f'v_mov_b32_dpp v{vacc+2+hh}, v{vacc+hh} quad_perm:[1,0,3,2] row_mask:0xf bank_mask:0xf')
    for hh in range(2):
        a(f'v_cvt_pk_bf16_f32 v{vt+hh}, v{vacc+hh}, v{vacc+2+hh}')
    a('s_nop 0')
    for hh in range(2):
        for g in range(4):
            a(f'v_readlane_b32 s{sPk+4*hh+g}, v{vt+hh}, {2*g}')
    a('s_nop 1')
    for pr in range(8):
        for col in range(8):
            c0 = '0' if pr == 0 else f'v{vCh+2*col}'
            a(f'v_dot2_f32_bf16 v{vCh+2*col}, v{vWp+8*pr+col}, s{sPk+pr}, {c0}')
    a(f's_and_b32 exec_hi, s{sEX+1}, 0x00ffffff')
    a('s_nop 1')
    for c in range(4):
        a(f'buffer_store_dwordx4 {vr(vCh+4*c,4)}, v{vYs}, {sr(S_WS,4)}, s{24+c} offen sc1')
    a('s_mov_b64 exec, -1')
    if WARM:
        a(f's_cmp_lg_u32 s{sDry}, 0')
        a(f's_cbranch_scc1 {Lreal}')
    stamp(a, cfg, 64)
    if cfg.get('b4', 1): a('s_barrier')
    if cfg.get('prof'): a('s_getpc_b64 s[68:69]')
    stamp_store(a, cfg, [(2, 62), (3, 64), (21, 66), (22, 23), (25, 68), (26, 69)], vt)
    stamp_flush(a, cfg, [0, 7, 8, 9, 1, 16, 17, 18, 19, 20, 2, 3, 21, 22, 25, 26], vt)
    a('s_endpgm')
    return V.n


def gen_auxB(a, cfg):
    V = Regs(1, 256)
    vt = V.alloc(8, 4)
    vb = V.alloc(4, 4)
    vf = V.alloc(8, 4)
    vo1 = V.alloc(); vo2 = V.alloc(); vo3 = V.alloc(); vg = V.alloc(); vBa = V.alloc(); vYa = V.alloc()
    vX = V.alloc(16, 4)
    vacc = V.alloc(16, 4)
    vtmp = V.alloc(16, 4)
    vCh = V.alloc(16, 4)
    vW = V.alloc(64, 4)
    vD = V.alloc(64, 4)
    vY = vW
    vSets = [vW, vD, vX]
    sX = 4; sWG = 8; sWU = 44; sWD = 48; sDBG = 64; sGW = 68; sOUT = 72
    sT = 52; sT2 = 53; sKq = 54; sJ = 55; sCnt = 56; sF = 57; sG = 62; sG1 = 63
    sPk = 16
    vm = VM(a)
    srd(a, sDBG, P_DBG, 256)
    Lnt = a.newlabel('notag')
    a(f'v_mov_b32 v{vo3}, 0')
    a('s_cmp_lg_u32 s2, 0')
    a(f's_cbranch_scc1 {Lnt}')
    a(f's_memrealtime s[{sG}:{sG1}]')
    a('s_waitcnt lgkmcnt(0)')
    a(f's_or_b32 s{sG}, s{sG}, 1')
    a(f'v_mov_b32 v{vo2}, s{sG}')
    a('s_mov_b64 exec, 1')
    a(f'buffer_store_dword v{vo2}, v{vo3}, {sr(sDBG,4)}, 0 offen sc1')
    a('s_mov_b64 exec, -1')
    a.label(Lnt)
    a('s_barrier')
    srd(a, sX, P_X, 896)
    srd(a, sWG, P_WG, 448 * 3584)
    srd(a, sWU, P_WU, 448 * 3584)
    srd(a, sWD, P_WD, 1792 * 896)
    srd(a, sGW, P_GW, 896)
    srd(a, sOUT, P_OUT, 896)
    Lnoffn = a.newlabel('noffn'); Lnofin = a.newlabel('nofin')
    a('s_barrier')
    a(f'ds_read_b32 v{vo2}, v{vo3} offset:{LDS_TAG}')
    a('s_waitcnt lgkmcnt(0)')
    a(f'v_readfirstlane_b32 s{S_TA}, v{vo2}')
    tagB(a)
    for i in range(8):
        a(f'v_mov_b32 v{vCh+2*i+1}, s{S_TA if i % 2 == 0 else S_TB}')
    a(f'v_lshlrev_b32 v{vBa}, 4, v0')
    a(f's_mov_b32 s84, {WS_SIZE:#x}')
    a(f's_and_b32 s{sT}, s2, 31')
    a(f's_cmp_lt_u32 s{sT}, {32 if cfg.get("noffn") else 25}')
    a(f's_cbranch_scc1 {Lnoffn}')
    if cfg.get('fsleep'): a(f's_sleep {cfg["fsleep"]}')
    a(f's_sub_u32 s{sT}, s{sT}, 25')
    a(f's_lshr_b32 s{sT2}, s2, 6')
    a(f's_mul_i32 s{sT2}, s{sT2}, 7')
    a(f's_add_u32 s{sT}, s{sT}, s{sT2}')
    a(f's_lshl_b32 s{sF}, s{sT}, 1')
    a(f's_bfe_u32 s{sT2}, s2, 0x10005')
    a(f's_add_u32 s{sF}, s{sF}, s{sT2}')
    a(f'v_lshrrev_b32 v{vo1}, 2, v0')
    a(f'v_mul_u32_u24 v{vo2}, {28*3584}, v{vo1}')
    a(f'v_and_b32 v{vo3}, 3, v0')
    a(f'v_lshl_add_u32 v{vo2}, v{vo3}, 4, v{vo2}')
    a(f'v_mul_u32_u24 v{vo3}, 56, v{vo1}')
    for k in range(3):
        vm.issue(f'buffer_load_dwordx4 {vr(vX+4*k,4)}, v{vo3}, {sr(sX,4)}, 0 offen offset:{16*k}')
    vm.issue(f'buffer_load_dwordx2 {vr(vX+12,2)}, v{vo3}, {sr(sX,4)}, 0 offen offset:48')
    a(f'v_min_u32 v{vo1}, 55, v0')
    a(f'v_lshlrev_b32 v{vo1}, 4, v{vo1}')
    wflag = cfg.get('wflag', 'nt')
    def unitW(sW, k0, buf):
        a(f's_lshl_b32 s{sT}, s{sF}, 6')
        if k0: a(f's_add_u32 s{sT}, s{sT}, {k0*3584}')
        lw = []
        for k in range(14):
            lw.append(vm.issue(f'buffer_load_dwordx4 {vr(buf+4*k,4)}, v{vo2}, {sr(sW,4)}, s{sT} offen offset:{(k%2)*3584} {wflag}'))
            if k % 2 == 1 and k < 13: a(f's_add_u32 s{sT}, s{sT}, {2*3584}')
        return lw
    def unitD(u, buf):
        a(f's_mul_i32 s{sT}, s{sF}, {32*896}')
        if u: a(f's_add_u32 s{sT}, s{sT}, {16*896}')
        lw = []
        for e in range(16):
            lw.append(vm.issue(f'buffer_load_dwordx4 {vr(buf+4*e,4)}, v{vo1}, {sr(sWD,4)}, s{sT} offen offset:{(e%4)*896} nt'))
            if e % 4 == 3 and e < 15: a(f's_add_u32 s{sT}, s{sT}, {4*896}')
        return lw
    def compW(buf, k0, m, lw):
        gemv_pairs(a, vm, [buf + 4 * k for k in range(14)], 14, 4, vX + k0 // 2, [vacc + 8 * m + i for i in range(8)], [vtmp + i for i in range(8)], lw, first=(k0 == 0))
    l0 = unitW(sWG, 0, vW); l1 = unitW(sWG, 14, vD)
    compW(vW, 0, 0, l0); l2 = unitW(sWU, 0, vW)
    compW(vD, 14, 0, l1); l3 = unitW(sWU, 14, vD)
    compW(vW, 0, 1, l2); l4 = unitD(0, vW)
    compW(vD, 14, 1, l3); l5 = unitD(1, vD)
    xlane_reduce(a, [vacc + i for i in range(16)], [vtmp + i for i in range(16)], 'v_add_f32', ['r4', 'r8', 'p16', 'p32'])
    stamp(a, cfg, 90)
    for i in range(16):
        rnd_bf16(a, vacc + i, vacc + i, vtmp + i)
    a(f's_mov_b32 s{sT}, {f2u(0.044715):#x}')
    a(f's_mov_b32 s{sT2}, {f2u(-2*0.7978845608028654*1.4426950408889634):#x}')
    for i in range(8):
        x = vacc + i; t = vtmp + i
        a(f'v_mul_f32 v{t}, v{x}, v{x}')
        a(f'v_mul_f32 v{t}, v{t}, v{x}')
        a(f'v_fma_f32 v{t}, v{t}, s{sT}, v{x}')
        a(f'v_mul_f32 v{t}, s{sT2}, v{t}')
    for i in range(8):
        a(f'v_exp_f32 v{vtmp+i}, v{vtmp+i}')
    for i in range(8):
        a(f'v_add_f32 v{vtmp+i}, 1.0, v{vtmp+i}')
    for i in range(8):
        a(f'v_rcp_f32 v{vtmp+i}, v{vtmp+i}')
    for i in range(8):
        a(f'v_mul_f32 v{vacc+i}, v{vacc+i}, v{vtmp+i}')
    for i in range(8):
        rnd_bf16(a, vacc + i, vacc + i, vtmp + i)
    for i in range(8):
        a(f'v_mul_f32 v{vacc+i}, v{vacc+i}, v{vacc+8+i}')
    for d in range(4):
        a(f'v_cvt_pk_bf16_f32 v{vt+d}, v{vacc+2*d}, v{vacc+2*d+1}')
    a('s_nop 0')
    for c4 in range(4):
        for d in range(4):
            a(f'v_readlane_b32 s{sPk+4*c4+d}, v{vt+d}, {c4}')
    a(f's_mul_i32 s84, s{sF}, 3584')
    a(f's_add_u32 s84, s84, {WS_B:#x}')
    stamp(a, cfg, 92)
    for u, (buf, lw) in enumerate([(vW, l4), (vD, l5)]):
        for pr in range(8):
            vm.wait(lw[2 * pr + 1])
            r0 = buf + 4 * (2 * pr); r1 = buf + 4 * (2 * pr + 1)
            for d in range(4):
                a(f'v_perm_b32 v{vtmp+2*d}, v{r1+d}, v{r0+d}, s{S_SELLO}')
                a(f'v_perm_b32 v{vtmp+2*d+1}, v{r1+d}, v{r0+d}, s{S_SELHI}')
            for col in range(8):
                c0 = '0' if (pr == 0 and u == 0) else f'v{vCh+2*col}'
                a(f'v_dot2_f32_bf16 v{vCh+2*col}, v{vtmp+col}, s{sPk+8*u+pr}, {c0}')
    def bstore():
        L = a.newlabel('nobst')
        a(f's_and_b32 s{sT}, s2, 31')
        a(f's_cmp_lt_u32 s{sT}, {32 if cfg.get("noffn") else 25}')
        a(f's_cbranch_scc1 {L}')
        a('s_mov_b32 exec_hi, 0x00ffffff')
        for c in range(4):
            a(f'buffer_store_dwordx4 {vr(vCh+4*c,4)}, v{vBa}, {sr(S_WS,4)}, s84 offen offset:{896*c} sc1')
        a('s_mov_b64 exec, -1')
        a.label(L)
    a('s_nop 2')
    BMODE = cfg.get('bmode', 'late')
    def flagwait():
        Lw = a.newlabel('fl_w'); Lg = a.newlabel('fl_g')
        a(f'v_mov_b32 v{vf+4}, 0')
        a(f's_mov_b32 s{sCnt}, {POLL_MAX}')
        a.label(Lw)
        a(f'ds_read_b32 v{vf+5}, v{vf+4} offset:{LDS_REC}')
        a('s_waitcnt lgkmcnt(0)')
        a(f'v_readfirstlane_b32 s{sT}, v{vf+5}')
        a(f's_cmp_ge_u32 s{sT}, {cfg.get("bstep", 36)}')
        a(f's_cbranch_scc1 {Lg}')
        a(f's_sub_u32 s{sCnt}, s{sCnt}, 1')
        a(f's_cbranch_scc1 {Lg}')
        a('s_sleep 64')
        a(f's_branch {Lw}')
        a.label(Lg)
    if BMODE == 'flag': flagwait()
    if BMODE != 'late': bstore()
    stamp(a, cfg, 94)
    stamp_store(a, cfg, [(13, 90), (14, 92), (15, 94)], vt)
    a.label(Lnoffn)
    a(f's_cmp_lt_u32 s2, {FIN0}')
    a(f's_cbranch_scc1 {Lnofin}')
    a(f's_sub_u32 s{sJ}, s2, {FIN0}')
    a(f'v_lshlrev_b32 v{vo1}, 4, v0')
    a(f'buffer_load_dwordx4 {vr(vX,4)}, v{vo1}, {sr(sX,4)}, 0 offen')
    a(f'buffer_load_dwordx4 {vr(vX+4,4)}, v{vo1}, {sr(sGW,4)}, 0 offen')
    a('s_waitcnt vmcnt(0)')
    for d in range(4):
        a(f'v_lshlrev_b32 v{vt}, 16, v{vX+d}')
        a(f'v_lshlrev_b32 v{vt+1}, 16, v{vX+4+d}')
        a(f'v_and_b32 v{vt+2}, 0xffff0000, v{vX+d}')
        a(f'v_and_b32 v{vt+3}, 0xffff0000, v{vX+4+d}')
        a(f'v_mul_f32 v{vt}, v{vt}, v{vt+1}')
        a(f'v_mul_f32 v{vt+2}, v{vt+2}, v{vt+3}')
        a(f'v_cvt_pk_bf16_f32 v{vt}, v{vt}, v{vt+2}')
        a(f'v_lshlrev_b32 v{vt+1}, 16, v{vt}')
        a(f'v_and_b32 v{vt+2}, 0xffff0000, v{vt}')
        if d == 0:
            a(f'v_add_f32 v{vg}, v{vt+1}, v{vt+2}')
        else:
            a(f'v_add_f32 v{vg}, v{vg}, v{vt+1}')
            a(f'v_add_f32 v{vg}, v{vg}, v{vt+2}')
    xlane_reduce(a, [vg], [vt], 'v_add_f32', ['x1', 'x2', 'r4', 'r8', 'p16', 'p32'])
    rnd_bf16(a, vg, vg, vt)
    a(f'v_mul_f32 v{vg}, {f2u(-1.4426950408889634):#x}, v{vg}')
    a(f'v_exp_f32 v{vg}, v{vg}')
    a('s_nop 0')
    a(f'v_add_f32 v{vg}, 1.0, v{vg}')
    a(f'v_rcp_f32 v{vg}, v{vg}')
    a('s_nop 0')
    rnd_bf16(a, vg, vg, vt)
    a(f'v_sub_f32 v{vt+1}, 1.0, v{vg}')
    rnd_bf16(a, vt + 1, vt + 1, vt)
    a('s_nop 0')
    a(f'v_readfirstlane_b32 s{sG}, v{vg}')
    a(f'v_readfirstlane_b32 s{sG1}, v{vt+1}')
    a(f'v_lshrrev_b32 v{vo1}, 2, v0')
    a(f'v_mul_u32_u24 v{vo1}, 3584, v{vo1}')
    a(f'v_and_b32 v{vo2}, 3, v0')
    a(f'v_lshl_add_u32 v{vo1}, v{vo2}, 4, v{vo1}')
    a(f's_and_b32 s{sT}, s{sJ}, 3')
    a(f's_mul_i32 s{sT}, s{sT}, 14')
    a(f's_lshr_b32 s{sT2}, s{sJ}, 2')
    a(f's_add_u32 s{sT}, s{sT}, s{sT2}')
    a(f's_lshl_b32 s{sF}, s{sT}, 6')
    def gather(base, n, name, sleep):
        for k in range(n):
            a(f's_add_u32 s{16+k}, s{sF}, {base + k * 16 * 3584:#x}')
        return [f'buffer_load_dwordx4 {vr(vY+4*k,4)}, v{vo1}, {sr(S_WS,4)}, s{16+k} offen sc1' for k in range(n)]
    def sumup(dst, n, src):
        for e in range(2):
            a(f'v_add_f32 v{dst+e}, v{src+2*e}, v{src+4+2*e}')
            a(f'v_add_f32 v{dst+2+e}, v{src+8+2*e}, v{src+12+2*e}')
        for k in range(4, n):
            for e in range(2):
                d = dst + e + 2 * (k & 1)
                a(f'v_add_f32 v{d}, v{d}, v{src+4*k+2*e}')
        for e in range(2):
            a(f'v_add_f32 v{dst+e}, v{dst+e}, v{dst+2+e}')
    def xsum(dst):
        xlane_reduce(a, [dst, dst + 1], [vf + 4, vf + 5], 'v_add_f32', ['r4', 'r8', 'p16', 'p32'])
    a(f's_lshl_b32 s{sT}, s{sF}, 8')
    for k in range(4):
        a(f's_add_u32 s{24+k}, s{sT}, {WS_Y + k * 4096:#x}')
    a(f'v_lshlrev_b32 v{vYa}, 4, v0')
    a(f's_lshr_b32 s{sT2}, s{sJ}, 2')
    a(f's_lshl_b32 s{sT2}, s{sT2}, 6')
    a(f's_and_b32 s{sKq}, s{sJ}, 3')
    a(f's_lshl_b32 s{sKq}, s{sKq}, 2')
    a(f's_add_u32 s{sT2}, s{sT2}, s{sKq}')
    sEX = 32; sDry = 34
    WARM = 0
    R2 = cfg.get('r2', 4)
    a(f's_mov_b64 s[{sEX}:{sEX+1}], -1')
    a(f'v_lshrrev_b32 v{vf+6}, 3, v0')
    a(f'v_lshlrev_b32 v{vf+6}, 12, v{vf+6}')
    a(f'v_and_b32 v{vf+7}, {R2 - 1}, v0')
    a(f'v_mul_u32_u24 v{vf+7}, {(32 // R2) * 128}, v{vf+7}')
    a(f'v_add_u32 v{vf+6}, v{vf+6}, v{vf+7}')
    a(f's_mov_b32 s35, {WS_F2 + (cfg.get("r2c", 3) % (32 // R2)) * 128:#x}')
    loads = gather(WS_B, 4, 'pb', 8)
    a(f'v_mov_b32 v{vo2}, v{vo1}')
    a('s_mov_b32 exec_lo, 0')
    a(f'v_subrev_u32 v{vo2}, {8*3584}, v{vo2}')
    a('s_mov_b32 exec_lo, -1')
    loads[3] = loads[3].replace(f'v{vo1},', f'v{vo2},')
    if BMODE == 'late':
        a('s_barrier')
        bstore()
        if cfg.get('bdelay'): a(f's_sleep {cfg["bdelay"]}')
    else:
        flagwait()
    if not cfg.get('noffn'):
        poll(a, loads, [vY + 4 * k for k in range(4)], vt, sCnt, name='pb', sleep=cfg.get('bsleep', 16))
    a('s_mov_b32 exec_lo, 0')
    a(f'v_mov_b32 v{vY+12}, 0')
    a(f'v_mov_b32 v{vY+14}, 0')
    a('s_mov_b32 exec_lo, -1')
    sumup(vb, 4, vY)
    xsum(vb)
    for i in range(2):
        rnd_bf16(a, vb + i, vb + i, vf + 4 + i)
        a(f'v_mul_f32 v{vb+i}, s{sG1}, v{vb+i}')
        rnd_bf16(a, vb + i, vb + i, vf + 4 + i)
    stamp(a, cfg, 76)
    stamp_store(a, cfg, [(10, 76)], vt)
    if BMODE != 'late': a('s_barrier')
    if cfg.get('b4', 1): a('s_barrier')
    if cfg.get('f2', 1):
        flagpoll(a, f'buffer_load_dword v{vf+7}, v{vf+6}, {sr(S_WS,4)}, s35 offen sc1', [vf + 7], vt, sCnt, 'pf2', sleep=cfg.get('f2sleep', 1))
        if cfg.get('d2'): a(f's_sleep {cfg["d2"]}')
    stamp(a, cfg, 78)
    poll(a, [f'buffer_load_dwordx4 {vr(vY+4*k,4)}, v{vYa}, {sr(S_WS,4)}, s{24+k//4} offen offset:{(k%4)*1024} sc1' for k in range(16)],
         [vY + 4 * k for k in range(16)], vt, sCnt, name='py', sleep=cfg.get('ysleep', 1))
    if cfg.get('prof'): a(f's_sub_u32 s36, {POLL_MAX}, s{sCnt}')
    sumup(vf, 16, vY)
    xsum(vf)
    for i in range(2):
        rnd_bf16(a, vf + i, vf + i, vf + 4 + i)
        a(f'v_mul_f32 v{vf+i}, s{sG}, v{vf+i}')
        rnd_bf16(a, vf + i, vf + i, vf + 4 + i)
        a(f'v_add_f32 v{vf+i}, v{vf+i}, v{vb+i}')
    a(f'v_cvt_pk_bf16_f32 v{vt}, v{vf}, v{vf+1}')
    a(f's_and_b64 exec, s[{sEX}:{sEX+1}], 15')
    a(f'buffer_store_dword v{vt}, v{vYa}, {sr(sOUT,4)}, s{sT2} offen')
    a('s_mov_b64 exec, -1')
    if WARM:
        a(f's_cmp_lg_u32 s{sDry}, 0')
        a(f's_cbranch_scc1 {Lreal}')
    stamp(a, cfg, 76)
    stamp_store(a, cfg, [(6, 76), (23, 78), (24, 36)], vt + 2)
    stamp_flush(a, cfg, [13, 14, 15, 10, 6, 23, 24], vt + 2)
    a('s_endpgm')
    a.label(Lnofin)
    if cfg.get('prof') or BMODE == 'late':
        a('s_barrier')
        if BMODE == 'late': bstore()
        stamp_flush(a, cfg, [13, 14, 15], vt)
    a('s_endpgm')
    return V.n


def gen(cfg):
    a = Asm()
    a.raw(kernel_header(NAME))
    a('s_cmp_ge_u32 s2, 256')
    a('s_cbranch_scc1 L_end')
    a('s_load_dwordx16 s[16:31], s[0:1], 0')
    a('s_load_dwordx8 s[32:39], s[0:1], 64')
    a('s_load_dwordx2 s[40:41], s[0:1], 96')
    a('v_lshrrev_b32 v1, 6, v0')
    a('v_and_b32 v0, 63, v0')
    a(f'v_readfirstlane_b32 s{S_WAVE}, v1')
    a(f's_mov_b32 s{S_SELLO}, 0x05040100')
    a(f's_mov_b32 s{S_SELHI}, 0x07060302')
    a('s_waitcnt lgkmcnt(0)')
    srd(a, S_WS, P_WS, WS_SIZE)
    a(f's_cmp_eq_u32 s{S_WAVE}, 2')
    a('s_cbranch_scc1 L_auxA')
    a(f's_cmp_eq_u32 s{S_WAVE}, 3')
    a('s_cbranch_scc1 L_auxB')
    n0 = gen_stream(a, cfg)
    a.label('L_auxA')
    n1 = gen_auxA(a, cfg)
    a.label('L_auxB')
    n2 = gen_auxB(a, cfg)
    a.label('L_end')
    a('s_endpgm')
    nv = max(n0, n1, n2)
    if cfg.get('prof'): nv = max(nv, PROFV + 1)
    acc_off = (nv + 3) // 4 * 4
    npre = cfg.get('npre', 4)
    print('vgprs', n0, n1, n2, 'agprs', 64 * npre, file=sys.stderr)
    hdr = open('gated_mix__gqa_block_cached__geglu_ffn__decode.s.ref').read().split('; @launch')[0]
    lds = cfg.get('lds', 16384)
    hdr += f'; @launch grid=(256,1,1) block=(256,1,1) lds={lds}\n.amdgcn_target "amdgcn-amd-amdhsa--gfx950"\n'
    return hdr + a.text() + kernel_desc(NAME, acc_off + 64 * npre, 102, acc_off)


if __name__ == '__main__':
    cfg = json.loads(sys.argv[2]) if len(sys.argv) > 2 else {}
    open(sys.argv[1], 'w').write(gen(cfg))
```

```python
import struct
from asmlib import *
def f2u(f): return struct.unpack('<I', struct.pack('<f', f))[0]

def dpp(op, d, s0, s1, ctrl):
    return f'{op}_dpp v{d}, v{s0}, v{s1} {ctrl} row_mask:0xf bank_mask:0xf'

def xsum(a, regs, tmps, op='v_add_f32'):
    n = len(regs)
    for st in ['x1', 'x2', 'r4', 'r8', 'p16', 'p32']:
        if st in ('x1', 'x2', 'r4', 'r8'):
            ctrl = {'x1': 'quad_perm:[1,0,3,2]', 'x2': 'quad_perm:[2,3,0,1]', 'r4': 'row_ror:4', 'r8': 'row_ror:8'}[st]
            if n < 3: a('s_nop 1')
            for r in regs: a(dpp(op, r, r, r, ctrl))
        else:
            ins = 'v_permlane16_swap_b32' if st == 'p16' else 'v_permlane32_swap_b32'
            for r, t in zip(regs, tmps): a(f'v_mov_b32 v{t}, v{r}')
            a('s_nop 1')
            for r, t in zip(regs, tmps): a(f'{ins} v{r}, v{t}')
            if n < 2: a('s_nop 0')
            for r, t in zip(regs, tmps): a(f'{op} v{r}, v{r}, v{t}')

def aux_rounds(a, cfg, P, hook=None):
    v = P['v']; s = P['s']; WS = P['S_WS']; TA = P['S_TA']; TB = P['S_TB']
    vR = v; vC = v + 4; vA = v + 8; vS = v + 9; vNp = v + 10; vAd = v + 11; vL = v + 12; vt = v + 13; vO = v + 16; vZ = v + 20; vtm = v + 21
    sK = s; sThr = s + 1; sCnt = s + 2; sT = s + 3; sBlk = s + 4; sTry = s + 5; sE = s + 6
    N0 = cfg.get('n0', 24); DN = cfg.get('dn', 12); GAP = cfg.get('gap', 7); NR = cfg.get('nr', 8)
    KI = cfg.get('ki', 0.4); KP = cfg.get('kp', 1.0); S0 = cfg.get('s0', 0.0); MINV = cfg.get('minv', 56)
    a(f'v_mov_b32 v{vAd}, {P["LDS_REC"]}')
    a(f'v_lshlrev_b32 v{vL}, 4, v0')
    a(f'v_mov_b32 v{vZ}, 0')
    a(f'v_mov_b32 v{vC+1}, s{TA}')
    a(f'v_mov_b32 v{vC+3}, s{TB}')
    a(f'v_mov_b32 v{vS}, {f2u(S0 * 25.0):#x}')
    a(f'v_mov_b32 v{vO+2}, {cfg.get("thf", 50) & 0xffffffff:#x}')
    a(f'v_mov_b32 v{vO+3}, {cfg.get("thx", -5) & 0xffffffff:#x}')
    a(f's_mov_b32 s{sK}, 0')
    a(f's_mov_b32 s{sThr}, {2 * N0}')
    a(f's_mov_b32 s{sBlk}, {P["WS_R"]:#x}')
    def progwait(slp):
        Lw = a.newlabel('pl_w'); Lg = a.newlabel('pl_g')
        a(f's_mov_b32 s{sCnt}, {1 << 14}')
        a.label(Lw)
        a(f'ds_read_b64 {vr(vR,2)}, v{vAd}')
        a(f'ds_read_b64 {vr(vR+2,2)}, v{vAd} offset:512')
        a('s_waitcnt lgkmcnt(0)')
        a(f'v_add_u32 v{vC+2}, v{vR}, v{vR+2}')
        a(f'v_add_u32 v{vC}, v{vR+1}, v{vR+3}')
        a(f'v_readfirstlane_b32 s{sT}, v{vC+2}')
        a(f's_cmp_ge_u32 s{sT}, s{sThr}')
        a(f's_cbranch_scc1 {Lg}')
        a(f's_sub_u32 s{sCnt}, s{sCnt}, 1')
        a(f's_cbranch_scc1 {Lg}')
        a(f's_sleep {slp}')
        a(f's_branch {Lw}')
        a.label(Lg)
    Ltop = a.newlabel('rd_top'); Lnext = a.newlabel('rd_next'); Lre = a.newlabel('rd_re'); Lgo = a.newlabel('rd_go'); Lfirst = a.newlabel('rd_first'); Lw = a.newlabel('rd_w')
    a.label(Ltop)
    progwait(cfg.get('psl', 8))
    a(f's_add_u32 s{sT}, s{sBlk}, s{P["sPub"]}')
    a('s_mov_b64 exec, 1')
    a(f'buffer_store_dwordx4 {vr(vC,4)}, v{vZ}, {sr(WS,4)}, s{sT} offen sc1')
    a('s_mov_b64 exec, -1')
    if hook: hook(sK)
    a(f's_add_u32 s{sThr}, s{sThr}, {2 * GAP}')
    progwait(cfg.get('psl', 8))
    a(f's_add_u32 s{sThr}, s{sThr}, {2 * (DN - GAP)}')
    a(f's_mov_b32 s{sTry}, {cfg.get("ntry", 3)}')
    a(f'buffer_load_dwordx4 {vr(vR,4)}, v{vL}, {sr(WS,4)}, s{sBlk} offen {cfg.get("rflag", "")}')
    a.label(Lre)
    a('s_waitcnt vmcnt(0)')
    a(f'v_xor_b32 v{vt}, s{TA}, v{vR+1}')
    a(f'v_xor_b32 v{vt+1}, s{TB}, v{vR+3}')
    a(f'v_or_b32 v{vt}, v{vt}, v{vt+1}')
    a(f'v_cmp_eq_u32 vcc, 0, v{vt}')
    a(f's_bcnt1_i32_b64 s{sT}, vcc')
    a(f's_cmp_ge_u32 s{sT}, {MINV}')
    a(f's_cbranch_scc1 {Lgo}')
    a(f's_sub_u32 s{sTry}, s{sTry}, 1')
    a(f's_cbranch_scc1 {Lnext}')
    a(f's_sleep 16')
    a(f'buffer_load_dwordx4 {vr(vR,4)}, v{vL}, {sr(WS,4)}, s{sBlk} offen sc1')
    a(f's_branch {Lre}')
    a.label(Lgo)
    a(f'v_cvt_f32_i32 v{vR}, v{vR}')
    a(f'v_cvt_f32_u32 v{vR+2}, v{vR+2}')
    a(f's_lshl_b32 s{sT}, s{sT}, 1')
    a(f'v_cvt_f32_u32 v{vt}, s{sT}')
    a(f'v_cndmask_b32 v{vR}, 0, v{vR}, vcc')
    a(f'v_cndmask_b32 v{vR+2}, 0, v{vR+2}, vcc')
    a(f'v_rcp_f32 v{vt}, v{vt}')
    xsum(a, [vR, vR + 2], [vtm, vtm + 1])
    a(f'v_mul_f32 v{vR}, v{vR}, v{vt}')
    a(f'v_mul_f32 v{vR+2}, v{vR+2}, v{vt}')
    a(f's_cmp_eq_u32 s{sK}, 0')
    a(f's_cbranch_scc1 {Lfirst}')
    a(f'v_fma_f32 v{vt}, v{vS}, v{vR+2}, v{vA}')
    a(f'v_sub_f32 v{vt+1}, v{vR}, v{vt}')
    a(f'v_sub_f32 v{vt+2}, v{vR+2}, v{vNp}')
    a(f'v_rcp_f32 v{vt+2}, v{vt+2}')
    a(f'v_mov_b32 v{vR+1}, {f2u(KP):#x}')
    a(f'v_fma_f32 v{vR}, v{vt+1}, v{vR+1}, v{vt}')
    a(f'v_mul_f32 v{vt+1}, {f2u(KI):#x}, v{vt+1}')
    a(f'v_fma_f32 v{vS}, v{vt+1}, v{vt+2}, v{vS}')
    a(f'v_max_f32 v{vS}, {f2u(-cfg.get("smax", 3.0)):#x}, v{vS}')
    a(f'v_min_f32 v{vS}, {f2u(cfg.get("smax", 3.0) * 3):#x}, v{vS}')
    a.label(Lfirst)
    a(f'v_fma_f32 v{vA}, -v{vS}, v{vR+2}, v{vR}')
    a(f'v_mov_b32 v{vNp}, v{vR+2}')
    a(f'v_mul_f32 v{vO}, {f2u(256.0):#x}, v{vA}')
    a(f'v_mul_f32 v{vO+1}, {f2u(256.0):#x}, v{vS}')
    a(f'v_cvt_i32_f32 v{vO}, v{vO}')
    a(f'v_cvt_i32_f32 v{vO+1}, v{vO+1}')
    a(f's_add_u32 s{sK}, s{sK}, 1')
    a(f'ds_write_b128 v{vZ}, {vr(vO,4)} offset:{P["LDS_REF"]}')
    if P.get('log'): P['log'](vO, sBlk)
    a.label(Lnext)
    a(f's_add_u32 s{sBlk}, s{sBlk}, 1024')
    a(f's_cmp_lt_u32 s{sBlk}, {P["WS_R"] + NR * 1024:#x}')
    a(f's_cbranch_scc1 {Ltop}')
```

```python
import sys, struct, json
from asmlib import *
from ctl import aux_rounds

def f2u(f): return struct.unpack('<I', struct.pack('<f', f))[0]
C_SCALE = f2u(1.4426950408889634 / 16.0)

WS_QP = 0x0
WS_TK = 0x4e0000
TK_STRIDE = 4352
WS_PROF = 0x24000
WS_GP = 0x40000
WS_PLAN = 0x40000
WS_F1 = 0x50000
WS_F2 = 0x58000
WS_CAL = 0x48000
WS_IT = 0x80000
WS_ML = 0x60000
WS_O = 0x100000
WS_Y = 0x300000
WS_B = 0x400000
WS_SIZE = 0x500000

NAME = 'gated_mix__gqa_block_cached__geglu_ffn__decode_kernel'
P_X, P_K, P_V, P_WQ, P_WO, P_BX, P_WG, P_WU, P_WD, P_GW, P_OUT, P_DBG, P_WS = [16 + 2 * i for i in range(13)]
S_WS = 12
S_WAVE = 3
S_SELLO = 60; S_SELHI = 61
S_TA = 88; S_TB = 89
POLL_MAX = 1 << 14
FIN0 = 200
INVALID = 0x20000000
LDS_TAG = 1024
LDS_CTR = 1028
LDS_FLAG = 1032
LDS_REC = 2048
LDS_LIST = 3072
LDS_DONE = 1036
LDS_FLAG2 = 1040
LDS_REF = 1088
LDS_CMB = 4096
LDS_SC = 8192


class VM:
    def __init__(self, a):
        self.a = a; self.n = 0
    def issue(self, s):
        self.a(s); self.n += 1
        return self.n - 1
    def wait(self, idx):
        k = self.n - idx - 1
        assert 0 <= k <= 63
        self.a(f's_waitcnt vmcnt({k})')


def srd(a, d, p, nbytes):
    a(f's_mov_b32 s{d}, s{p}')
    a(f's_mov_b32 s{d+1}, s{p+1}')
    a(f's_mov_b32 s{d+2}, {nbytes:#x}')
    a(f's_mov_b32 s{d+3}, 0x00020000')


def dpp(op, d, s0, s1, ctrl):
    return f'{op}_dpp v{d}, v{s0}, v{s1} {ctrl} row_mask:0xf bank_mask:0xf'


def xlane_reduce(a, regs, tmps, op, steps):
    n = len(regs)
    for st in steps:
        if st in ('x1', 'x2', 'r4', 'r8'):
            ctrl = {'x1': 'quad_perm:[1,0,3,2]', 'x2': 'quad_perm:[2,3,0,1]', 'r4': 'row_ror:4', 'r8': 'row_ror:8'}[st]
            if n < 3: a('s_nop 1')
            for r in regs:
                a(dpp(op, r, r, r, ctrl))
        else:
            ins = 'v_permlane16_swap_b32' if st == 'p16' else 'v_permlane32_swap_b32'
            for r, t in zip(regs, tmps):
                a(f'v_mov_b32 v{t}, v{r}')
            a('s_nop 1')
            for r, t in zip(regs, tmps):
                a(f'{ins} v{r}, v{t}')
            if n < 2: a('s_nop 0')
            for r, t in zip(regs, tmps):
                a(f'{op} v{r}, v{r}, v{t}')


def tagB(a):
    a(f's_mul_i32 s{S_TB}, s{S_TA}, 0x9e3779b1')
    a(f's_add_u32 s{S_TB}, s{S_TB}, 0x7f4a7c15')


def poll(a, loads, chunks, vt, scnt, name='poll', sleep=1):
    L = a.newlabel(name); D = a.newlabel(name + '_done')
    a(f's_mov_b32 s{scnt}, {POLL_MAX}')
    a.label(L)
    for l in loads: a(l)
    n = len(chunks)
    for i, c in enumerate(chunks):
        if i % 4 == 0:
            a(f's_waitcnt vmcnt({max(0, n - i - 4)})')
        a(f'v_xor_b32 v{vt+1}, s{S_TA}, v{c+1}')
        a(f'v_xor_b32 v{vt+2}, s{S_TB}, v{c+3}')
        if i == 0: a(f'v_or_b32 v{vt}, v{vt+1}, v{vt+2}')
        else: a(f'v_or3_b32 v{vt}, v{vt}, v{vt+1}, v{vt+2}')
    a(f'v_cmp_ne_u32 vcc, 0, v{vt}')
    a('s_mov_b64 exec, vcc')
    a(f's_cbranch_execz {D}')
    a(f's_sub_u32 s{scnt}, s{scnt}, 1')
    a(f's_cbranch_scc1 {D}')
    if sleep: a(f's_sleep {sleep}')
    a(f's_branch {L}')
    a.label(D)
    a('s_mov_b64 exec, -1')


def poll_pipe(a, nsets, loads, chunks, on_new, vt, scnt, sP, sQ, sEX, sDry, name='pp', gap=6, thr=0, slp=0, skipnew=False):
    L = a.newlabel(name); D = a.newlabel(name + '_done')
    n = len(loads(0))
    a(f's_mov_b64 s[{sP}:{sP+1}], s[{sEX}:{sEX+1}]')
    a(f's_mov_b64 exec, s[{sEX}:{sEX+1}]')
    a(f's_cmp_eq_u32 s{sDry}, 0')
    a(f's_cselect_b32 s{scnt}, {POLL_MAX}, 0')
    for s in range(nsets):
        for l in loads(s): a(l)
        if gap and s < nsets - 1: a(f's_sleep {gap}')
    a.label(L)
    for s in range(nsets):
        ch = chunks(s)
        for i, c in enumerate(ch):
            if i % 4 == 0:
                a(f's_waitcnt vmcnt({(nsets - 1) * n + max(0, n - i - 4)})')
            a(f'v_xor_b32 v{vt+1}, s{S_TA}, v{c+1}')
            a(f'v_xor_b32 v{vt+2}, s{S_TB}, v{c+3}')
            if i == 0: a(f'v_or_b32 v{vt}, v{vt+1}, v{vt+2}')
            else: a(f'v_or3_b32 v{vt}, v{vt}, v{vt+1}, v{vt+2}')
        a(f'v_cmp_ne_u32 vcc, 0, v{vt}')
        a(f's_andn2_b64 exec, s[{sP}:{sP+1}], vcc')
        a(f's_mov_b64 s[{sP}:{sP+1}], vcc')
        Ls = a.newlabel(name + '_sk')
        if skipnew:
            a(f's_or_b32 s{sQ}, exec_lo, exec_hi')
            a(f's_or_b32 s{sQ}, s{sQ}, s{sDry}')
            a(f's_cbranch_scc0 {Ls}')
        on_new(s)
        a.label(Ls)
        a(f's_mov_b64 exec, s[{sP}:{sP+1}]')
        a(f's_or_b32 s{sQ}, s{sP}, s{sP+1}')
        a(f's_or_b32 s{sQ}, s{sQ}, s{sDry}')
        a(f's_cbranch_scc0 {D}')
        if slp:
            Ln = a.newlabel(name + '_ns')
            a(f's_bcnt1_i32_b64 s{sQ}, s[{sP}:{sP+1}]')
            a(f's_cmp_le_u32 s{sQ}, {thr}')
            a(f's_cbranch_scc1 {Ln}')
            a(f's_sleep {slp}')
            a.label(Ln)
        for l in loads(s): a(l)
    a(f's_sub_u32 s{scnt}, s{scnt}, 1')
    a(f's_cbranch_scc0 {L}')
    a.label(D)
    a(f's_mov_b64 exec, s[{sEX}:{sEX+1}]')


def flagpoll(a, load, regs, vt, scnt, name, sleep=1, mask=None):
    L = a.newlabel(name); D = a.newlabel(name + '_done')
    a(f's_mov_b32 s{scnt}, {POLL_MAX}')
    if mask: a(f's_mov_b64 exec, {mask}')
    a.label(L)
    a(load)
    a('s_waitcnt vmcnt(0)')
    a(f'v_xor_b32 v{vt}, s{S_TA}, v{regs[0]}')
    for r in regs[1:]:
        a(f'v_xor_b32 v{vt+1}, s{S_TA}, v{r}')
        a(f'v_or_b32 v{vt}, v{vt}, v{vt+1}')
    a(f'v_cmp_ne_u32 vcc, 0, v{vt}')
    a('s_mov_b64 exec, vcc')
    a(f's_cbranch_execz {D}')
    a(f's_sub_u32 s{scnt}, s{scnt}, 1')
    a(f's_cbranch_scc1 {D}')
    if sleep: a(f's_sleep {sleep}')
    a(f's_branch {L}')
    a.label(D)
    a('s_mov_b64 exec, -1')


def mkchunks(a, dst, vals):
    for i, v in enumerate(vals):
        a(f'v_mov_b32 v{dst+2*i}, v{v}')
        a(f'v_mov_b32 v{dst+2*i+1}, s{S_TA if i % 2 == 0 else S_TB}')


def stamp(a, cfg, sreg):
    if cfg.get('prof'): a(f's_memrealtime s[{sreg}:{sreg+1}]')

PROFV = 227
class Prof:
    slots = 0
def stamp_store(a, cfg, pairs, vt):
    if not cfg.get('prof'): return
    a('s_waitcnt lgkmcnt(0)')
    for slot, sreg in pairs:
        a(f'v_writelane_b32 v{PROFV}, s{sreg}, {slot}')

def stamp_flush(a, cfg, slots, vt):
    if not cfg.get('prof'): return
    m = sum(1 << s for s in slots)
    a(f's_lshl_b32 s78, s2, 7')
    a(f's_add_u32 s78, s78, {WS_PROF:#x}')
    a(f'v_lshlrev_b32 v{vt}, 2, v0')
    a(f's_mov_b32 exec_lo, {m:#x}')
    a('s_mov_b32 exec_hi, 0')
    a(f'buffer_store_dword v{PROFV}, v{vt}, s[{S_WS}:{S_WS+3}], s78 offen')
    a('s_mov_b64 exec, -1')


DEF_MAP = 'v t1 t0 w3 t2 t3 t4 t5 w0 w1 w2 w4 w5 w6 w7'
def map_cols(cfg):
    f = cfg.get('map', DEF_MAP).split()
    assert len(f) == 15 and f[12:] == ['w5', 'w6', 'w7']
    cols = {}
    for b, e in enumerate(f):
        for n in e.split('^'):
            cols[n] = cols.get(n, 0) ^ (1 << (13 + b))
    names = ['v'] + [f't{i}' for i in range(6)] + [f'w{i}' for i in range(8)]
    seen = set()
    for h in range(1 << 15):
        x = 0
        for i, n in enumerate(names):
            if h >> i & 1: x ^= cols[n]
        seen.add(x)
    assert len(seen) == 1 << 15
    return cols
def tconst(cols, t):
    x = 0
    for i in range(6):
        if t >> i & 1: x ^= cols[f't{i}']
    return x
def runs(cl):
    out = []; i = 0
    while i < len(cl):
        c = cl[i]
        if c & (c - 1):
            out.append((i, None, c)); i += 1; continue
        n = 1
        while i + n < len(cl) and cl[i + n] == c << n: n += 1
        out.append((i, n, c.bit_length() - 1)); i += n
    return out
def smap(a, dst, src, cl, tmp, first=True):
    for st, n, o in runs(cl):
        d = dst if first else tmp
        if n is None:
            a(f's_bitcmp1_b32 s{src}, {st}')
            a(f's_cselect_b32 s{d}, {o:#x}, 0')
        else:
            a(f's_bfe_u32 s{d}, s{src}, {(n << 16) | st:#x}')
            a(f's_lshl_b32 s{d}, s{d}, {o}')
        if not first: a(f's_xor_b32 s{dst}, s{dst}, s{tmp}')
        first = False
def vmap(a, dst, src, off, cl, tmp):
    for st, n, o in runs(cl):
        if n is None:
            a(f'v_bfe_i32 v{tmp}, v{src}, {off + st}, 1')
            a(f'v_and_b32 v{tmp}, {o:#x}, v{tmp}')
        else:
            a(f'v_bfe_u32 v{tmp}, v{src}, {off + st}, {n}')
            a(f'v_lshlrev_b32 v{tmp}, {o}, v{tmp}')
        a(f'v_xor_b32 v{dst}, v{dst}, v{tmp}')


def gen_stream(a, cfg):
    NA = 8
    cols = map_cols(cfg)
    flags = 'nt'
    V = Regs(1, 256)
    vKoff = [V.alloc(), V.alloc()]; vVoff = [V.alloc(), V.alloc()]; vOo = [V.alloc(), V.alloc()]
    vm = V.alloc(); vl = V.alloc(); vt0 = V.alloc(); vt1 = V.alloc(); valpha = V.alloc(); vmc = V.alloc()
    vc = V.alloc(); vg = V.alloc(); vRa = V.alloc()
    vTk = V.alloc(); vOne = V.alloc()
    vIt = V.alloc(); vF1 = V.alloc(); vZero = V.alloc()
    vTbl = V.alloc(); vSa = V.alloc(); vSb = V.alloc(); vSr = V.alloc()
    vAd = V.alloc(2, 2)
    vRec = V.alloc(2, 2)
    vSc = V.alloc(2, 2)
    vRef = V.alloc(4, 4)
    vmask = V.alloc(4, 4)
    vS = V.alloc(4, 4)
    vP = V.alloc(4, 4)
    vacc = V.alloc(8, 4)
    vA = V.alloc(16, 4)
    vQ = V.alloc(16, 4)
    vB = [V.alloc(32, 4) for _ in range(4)]
    sK = 4; sVv = 8
    sY, sSl, sThf, sThx = 16, 17, 18, 19
    sNom = 20; sPend = 21; sE = 22; sD = 23; sG = [24, 25, 26, 27]; sNg = 28; sL = 29
    sMode = [30, 32, 34, 36]; sCur = 38; sMf = 40; sMx = 60
    sN = 42; sCf = 43; sMk = 44; sCx = 46
    sC = 47; sTmp = 48; sBase = 49; sT2 = 52; sI = 53
    sCtr = 54; sF1 = 55; sTk = 56
    FS = cfg.get('fs', 2); B0q = int(cfg.get('b0', 2.14) / 4 * 25600)
    GF = cfg.get('gf', -14); GX = cfg.get('gx', 25)
    smap(a, sBase, 2, [cols[f'w{i}'] for i in range(8)], sTmp)
    smap(a, sBase, S_WAVE, [cols['v']], sTmp, first=False)
    srd(a, sK, P_K, 0x10000000)
    a(f'v_and_b32 v{vc}, 15, v0')
    a(f'v_lshrrev_b32 v{vg}, 4, v0')
    CM = [[0, 1, 2, 4], [5, 6, 7, 3]]
    def chunkoff(dst, cm, qf, sf, rowf):
        def gather(d, fl, t):
            first = True
            for lb, ob, n in fl:
                r = d if first else t
                a(f'v_bfe_u32 v{r}, v0, {lb}, {n}')
                if first:
                    if ob: a(f'v_lshlrev_b32 v{d}, {ob}, v{d}')
                else:
                    a(f'v_lshl_or_b32 v{d}, v{t}, {ob}, v{d}')
                first = False
        gather(vt0, [(l, o + 2, n) for l, o, n in qf], vt1)
        gather(valpha, [(l, o + 4, n) for l, o, n in sf] + [(rowf, 11, 2)], vt1)
        for hf in range(2):
            tb = sum(cm[hf][i] << (4 * i) for i in range(4))
            a(f's_mov_b32 s{sTmp}, {tb:#x}')
            a(f'v_lshrrev_b32 v{dst[hf]}, v{vt0}, s{sTmp}')
            a(f'v_and_b32 v{dst[hf]}, 15, v{dst[hf]}')
            a(f'v_lshl_or_b32 v{dst[hf]}, v{dst[hf]}, 6, v{valpha}')
    KSC = ([(1, 0, 1), (4, 1, 1)], [(0, 0, 1), (5, 1, 1)])
    VSC = ([(1, 0, 2)], [(0, 0, 1), (3, 1, 1)])
    KMF, KMX, VMF, VMX = 0xcccc0000, 0x0000cccc, 0xc0c0c0c0, 0x0c0c0c0c
    def setmasks(mf, mx):
        for k in range(2):
            a(f's_mov_b32 s{sMf+k}, {mf:#x}')
            a(f's_mov_b32 s{sMx+k}, {mx:#x}')
    chunkoff(vKoff, CM, KSC[0], KSC[1], 2)
    def R(file, base, n): return f'{file}[{base}:{base+n-1}]'
    def issue(file, base, so, ad, srdn):
        for j in range(8):
            a(f'buffer_load_dwordx4 {R(file,base+4*j,4)}, v{ad[j&1]}, {sr(srdn,4)}, s{so} offen offset:{(j>>1)*512} {flags}')
    PST = [66 + 2 * i for i in range(11)] + [90 + 2 * i for i in range(6)]
    pst_n = [0]
    def pst():
        if cfg.get('prof') and pst_n[0] < len(PST):
            r = PST[pst_n[0]]; pst_n[0] += 1
            a(f's_memrealtime s[{r}:{r+1}]')
    a('s_barrier')
    pst()
    PD = cfg.get('pd', 4)
    seq = [('a', 32 * i) for i in range(NA)] + [('v', vB[s]) for s in range(4)]
    for i, (file, kb) in enumerate(seq):
        a(f's_xor_b32 s{sTmp}, s{sBase}, {tconst(cols, i):#x}')
        if i >= PD:
            a(f's_waitcnt vmcnt({8 * PD - 8})')
            pst()
        issue(file, kb, sTmp, vKoff, sK)
        if i == PD - 1:
            srd(a, sVv, P_V, 0x10000000)
            a(f's_mov_b32 s{sC}, {C_SCALE:#x}')
            chunkoff(vVoff, CM, VSC[0], VSC[1], 4)
            for hf in range(2):
                a(f'v_bfe_u32 v{vOo[hf]}, v{vVoff[hf]}, 8, 1')
                a(f'v_lshlrev_b32 v{vOo[hf]}, 11, v{vOo[hf]}')
                a(f'v_bfe_u32 v{vt0}, v{vVoff[hf]}, 4, 4')
                a(f'v_lshl_or_b32 v{vOo[hf]}, v{vt0}, 6, v{vOo[hf]}')
                a(f'v_lshl_or_b32 v{vOo[hf]}, v{vg}, 4, v{vOo[hf]}')
            a(f'v_lshrrev_b32 v{vt1}, 2, v{vc}')
            a(f'v_and_b32 v{vt0}, 2, v0')
            a(f'v_lshlrev_b32 v{vt0}, 3, v{vt0}')
            a(f'v_mov_b32 v{vl}, 0xffff')
            a(f'v_lshlrev_b32 v{vt0}, v{vt0}, v{vl}')
            for j in range(4):
                a(f'v_cmp_eq_u32 vcc, {j}, v{vt1}')
                a('s_nop 1')
                a(f'v_cndmask_b32 v{vmask+j}, 0, v{vt0}, vcc')
            a(f'v_mov_b32 v{vm}, 0xf149f2ca')
            a(f'v_mov_b32 v{vl}, 0')
            for k in range(8):
                a(f'v_mov_b32 v{vacc+k}, 0')
            a(f's_lshl_b32 s{sT2}, s{S_WAVE}, 9')
            a(f's_add_u32 s{sT2}, s{sT2}, {LDS_REC}')
            a(f'v_lshlrev_b32 v{vRa}, 3, v0')
            a(f'v_add_u32 v{vRa}, s{sT2}, v{vRa}')
            a(f'v_mov_b32 v{vOne}, 1')
            a(f'v_mov_b32 v{vTbl}, s{sBase}')
            vmap(a, vTbl, 0, 0, [cols[f't{k}'] for k in range(6)], vt0)
            a(f's_lshl_b32 s{sT2}, s{S_WAVE}, 12')
            a(f's_add_u32 s{sT2}, s{sT2}, {LDS_SC}')
            a(f'v_and_b32 v{vSr}, 1, v0')
            a(f'v_lshlrev_b32 v{vSr}, 5, v{vSr}')
            a(f'v_lshl_add_u32 v{vSr}, v{vg}, 3, v{vSr}')
            a(f'v_add_u32 v{vSr}, s{sT2}, v{vSr}')
            a(f'v_bfe_u32 v{vSa}, v0, 2, 1')
            a(f'v_lshlrev_b32 v{vSa}, 5, v{vSa}')
            a(f'v_lshl_add_u32 v{vSa}, v{vg}, 3, v{vSa}')
            a(f'v_bfe_u32 v{vSb}, v0, 3, 1')
            a(f'v_lshl_add_u32 v{vSa}, v{vSb}, 2, v{vSa}')
            a(f'v_add_u32 v{vSa}, s{sT2}, v{vSa}')
            a(f'v_add_u32 v{vSb}, {20 * 64}, v{vSa}')
            for k in range(16):
                a(f'v_mov_b32 v{vQ+k}, 0')
            a(f's_mov_b32 s{sMk}, 0x00ff00ff')
            a(f's_mov_b32 s{sMk+1}, 0x00ff00ff')
            a(f'v_mov_b32 v{vZero}, 0')
            a(f's_lshl_b32 s{sF1}, s2, 5')
            a(f's_add_u32 s{sF1}, s{sF1}, s{S_WAVE}')
            a(f's_lshl_b32 s{sF1}, s{sF1}, 2')
            a(f's_add_u32 s{sF1}, s{sF1}, {WS_F1:#x}')
            a(f's_mov_b32 s{sN}, {NA + 4}')
            for r in [sY, sSl, sPend, sD, sCf, sCx] + sG + list(range(sMode[0], sCur + 2)): a(f's_mov_b32 s{r}, 0')
            a(f's_mov_b32 s{sThf}, 0x7fffffff')
            a(f's_mov_b32 s{sThx}, 0x80000000')
            a(f's_mov_b32 s{sNom}, {NA * B0q}')
            a(f's_mov_b32 s{sNg}, {NA}')
            setmasks(KMF, KMX)
    a(f'v_bfe_u32 v{vt1}, v0, 2, 1')
    a(f'v_lshlrev_b32 v{vt1}, 9, v{vt1}')
    a(f's_movk_i32 s{sTmp}, 0x1ff')
    a(f'v_and_or_b32 v{vt0}, v{vKoff[0]}, s{sTmp}, v{vt1}')
    a(f'v_and_or_b32 v{valpha}, v{vKoff[1]}, s{sTmp}, v{vt1}')
    a(f'v_mov_b32 v{vt1}, 0')
    stamp(a, cfg, 62)
    a(f's_mov_b64 exec, s[{sMk}:{sMk+1}]')
    a('s_barrier')
    a(f'ds_read_b128 {vr(vQ,4)}, v{vt0}')
    a(f'ds_read_b128 {vr(vQ+4,4)}, v{valpha}')
    a(f's_not_b64 exec, exec')
    a(f'ds_read_b128 {vr(vQ+8,4)}, v{vt0}')
    a(f'ds_read_b128 {vr(vQ+12,4)}, v{valpha}')
    a('s_mov_b64 exec, -1')
    a(f'ds_read_b32 v{vt1}, v{vt1} offset:{LDS_TAG}')
    a('s_waitcnt lgkmcnt(0)')
    a(f'v_readfirstlane_b32 s{S_TA}, v{vt1}')
    pst()

    def relayout(b, pairs):
        a(f's_xor_b64 exec, s[{sCur}:{sCur+1}], s[{sMode[b]}:{sMode[b]+1}]')
        for x, y in pairs: a(f'v_swap_b32 v{x}, v{y}')
        a(f's_mov_b64 s[{sCur}:{sCur+1}], s[{sMode[b]}:{sMode[b]+1}]')
        a('s_mov_b64 exec, -1')
    QP = [(vQ + k, vQ + 4 + k) for k in range(4)] + [(vQ + 8 + k, vQ + 12 + k) for k in range(4)]
    AP = [(vacc + k, vacc + 4 + k) for k in range(4)]
    def ctl_pre(b):
        gb = sG[b]
        a(f's_lshr_b32 s{sE}, s{sNom}, 8')
        a(f's_add_u32 s{sE}, s{sE}, s{S_TA}')
        a(f's_add_u32 s{sNom}, s{sNom}, {B0q}')
        a(f's_sub_u32 s{sPend}, s{sPend}, s{gb}')
        a(f's_add_u32 s{sD}, s{sD}, s{gb}')
        a(f's_add_u32 s{sE}, s{sE}, s{sD}')
        a(f's_ashr_i32 s{sL}, s{sY}, 8')
        a(f's_add_u32 s{sY}, s{sY}, s{sSl}')
        a(f's_sub_u32 s{sL}, s{sPend}, s{sL}')
    def ctl_post(b, off):
        gb = sG[b]; mk = sMode[b]
        a('s_waitcnt lgkmcnt(0)')
        a(f's_sub_u32 s{sE}, s58, s{sE}')
        a(f's_ashr_i32 s{sE}, s{sE}, {FS}')
        a(f's_add_u32 s{sD}, s{sD}, s{sE}')
        a(f's_add_u32 s{sE}, s{sD}, s{sL}')
        a(f's_cmp_gt_i32 s{sE}, s{sThf}')
        a(f's_cselect_b64 s[{mk}:{mk+1}], s[{sMf}:{sMf+1}], 0')
        a(f's_cselect_b32 s{gb}, {GF}, 0')
        if cfg.get('prof'): a(f's_addc_u32 s{sCf}, s{sCf}, 0')
        a(f's_cmp_lt_i32 s{sE}, s{sThx}')
        a(f's_cselect_b64 s[{mk}:{mk+1}], s[{sMx}:{sMx+1}], s[{mk}:{mk+1}]')
        a(f's_cselect_b32 s{gb}, {GX}, s{gb}')
        if cfg.get('prof'): a(f's_addc_u32 s{sCx}, s{sCx}, 0')
        if cfg.get('rndmode'):
            a(f's_lshr_b32 s{sE}, s58, 1')
            a(f's_bitcmp1_b32 s{sE}, 0')
            a(f's_cselect_b64 s[{mk}:{mk+1}], s[{sMf}:{sMf+1}], 0')
            a(f's_bitcmp1_b32 s{sE}, 1')
            a(f's_cselect_b64 s[{mk}:{mk+1}], s[{sMx}:{sMx+1}], s[{mk}:{mk+1}]')
        a(f'v_cndmask_b32 v{vAd}, v{off[0]}, v{off[1]}, s[{mk}:{mk+1}]')
        a(f'v_cndmask_b32 v{vAd+1}, v{off[1]}, v{off[0]}, s[{mk}:{mk+1}]')
        a(f's_add_u32 s{sPend}, s{sPend}, s{gb}')
    def rec():
        a(f'v_mov_b32 v{vRec}, s{sNg}')
        a(f'v_mov_b32 v{vRec+1}, s{sD}')
        a(f'ds_write_b64 v{vRa}, {vr(vRec,2)}')
        a(f's_add_u32 s{sNg}, s{sNg}, 1')
    def refread():
        a(f'ds_read_b128 {vr(vRef,4)}, v{vZero} offset:{LDS_REF}')
    def reftake():
        a('s_waitcnt lgkmcnt(0)')
        for k in range(4): a(f'v_readfirstlane_b32 s{sY+k}, v{vRef+k}')
        a(f's_mul_i32 s{sL}, s{sSl}, s{sNg}')
        a(f's_add_u32 s{sY}, s{sY}, s{sL}')

    def pmask():
        for i in range(4):
            a(f'v_cvt_pk_bf16_f32 v{vP+i}, v{vP+i}, v{vP+i}')
        for i in range(4):
            for j in range(4):
                a(f'v_and_b32 v{vA+4*i+j}, v{vP+i}, v{vmask+j}')
    def pv(file, vb):
        for i in range(4):
            for hf in range(2):
                a(f'v_mfma_f32_16x16x32_bf16 {vr(vacc+4*hf,4)}, {vr(vA+4*i,4)}, {R(file,vb+4*(2*i+hf),4)}, {vr(vacc+4*hf,4)}')
    def f1store():
        if not cfg.get('f1', 1): return
        a('s_mov_b64 exec, 1')
        a(f'buffer_store_dword v{vF1}, v{vZero}, {sr(S_WS,4)}, s{sF1} offen sc1')
        a('s_mov_b64 exec, -1')
    def qk1(file, kb):
        first = [True, True]
        for cg in range(2):
            for half in range(2):
                for aa in range(2):
                    j = cg * 4 + aa * 2 + half
                    d = vS if aa == 0 else vP
                    cc = '0' if first[aa] else vr(d, 4)
                    first[aa] = False
                    a(f'v_mfma_f32_16x16x32_bf16 {vr(d,4)}, {R(file,kb+4*j,4)}, {vr(vQ+8*cg+4*half,4)}, {cc}')
    def kpost(va, off):
        for d, t in ((vS, vt0), (vP, vt1)):
            a(f'v_mov_b32_dpp v{t}, v{d} quad_perm:[0,0,0,0] row_mask:0xf bank_mask:0xf')
        for i in range(1, 4):
            for d, t in ((vS, vt0), (vP, vt1)):
                a(f'v_add_f32_dpp v{t}, v{d+i}, v{t} quad_perm:[{i},{i},{i},{i}] row_mask:0xf bank_mask:0xf')
        a(f'v_cvt_pk_bf16_f32 v{vSc}, v{vt0}, v{vt1}')
        a(f'v_max3_f32 v{vm}, v{vt0}, v{vt1}, v{vm}')
        a(f'ds_write_b32 v{va}, v{vSc} offset:{off}')
    def kbody(b, va, off, nxt='K', pro=False, ref=False):
        a(f'v_readlane_b32 s{sI}, v{vTbl}, s{sN}')
        if not pro: relayout(b, QP)
        ctl_pre(b)
        a(f's_waitcnt vmcnt(24)')
        a('s_memrealtime s[58:59]')
        qk1('v', vB[b])
        a(f's_add_u32 s{sN}, s{sN}, 1')
        if pro and cfg.get('rndmode'):
            a('s_waitcnt lgkmcnt(0)')
            issue('v', vB[b], sI, vKoff, sK)
        else:
            ctl_post(b, vKoff if nxt == 'K' else vVoff)
            issue('v', vB[b], sI, [vAd, vAd + 1], sK if nxt == 'K' else sVv)
        kpost(va, off)
        rec()
        if ref: refread()
    def atile(i):
        qk1('a', 32 * i)
        a('s_nop 7')
        kpost(vSa, 64 * i)
    def vbody(b, off, last=False, ref=False):
        a('s_waitcnt lgkmcnt(0)')
        a(f'v_lshlrev_b32 v{vS}, 16, v{vSc}')
        a(f'v_and_b32 v{vS+1}, 0xffff0000, v{vSc}')
        a(f'v_lshlrev_b32 v{vS+2}, 16, v{vSc+1}')
        a(f'v_and_b32 v{vS+3}, 0xffff0000, v{vSc+1}')
        if off is not None:
            a(f'ds_read_b64 {vr(vSc,2)}, v{vSb} offset:{off}')
        if ref: refread()
        for i in range(4):
            a(f'v_fma_f32 v{vP+i}, v{vS+i}, s{sC}, -v{vmc}')
        for i in range(4):
            a(f'v_exp_f32 v{vP+i}, v{vP+i}')
        if not last:
            a(f'v_readlane_b32 s{sI}, v{vTbl}, s{sN}')
        else:
            a('s_nop 0')
        a(f'v_add_f32 v{vt0}, v{vP}, v{vP+1}')
        a(f'v_add_f32 v{vt1}, v{vP+2}, v{vP+3}')
        a(f'v_add_f32 v{vl}, v{vl}, v{vt0}')
        a(f'v_add_f32 v{vl}, v{vl}, v{vt1}')
        pmask()
        relayout(b, AP)
        if not last:
            ctl_pre(b)
            a(f's_waitcnt vmcnt(24)')
            a('s_memrealtime s[58:59]')
            a(f's_add_u32 s{sN}, s{sN}, 1')
            pv('v', vB[b])
            ctl_post(b, vVoff)
            issue('v', vB[b], sI, [vAd, vAd + 1], sVv)
            rec()
        else:
            if b == cfg.get('f1b', 1): f1store()
            if b == 3:
                xlane_reduce(a, [vl], [vt0], 'v_add_f32', ['p32', 'p16'])
                a(f'v_lshlrev_b32 v{vt0}, 4, v0')
                a(f's_lshl_b32 s{sT2}, s2, 7')
                a(f's_add_u32 s{sT2}, s{sT2}, {WS_ML:#x}')
                a(f's_lshl_b32 s{sBase}, s2, 12')
                a(f's_add_u32 s{sBase}, s{sBase}, {WS_O:#x}')
                a(f'v_mov_b32 v{vRa}, {LDS_CTR}')
            a(f's_waitcnt vmcnt({24 - 8 * b})')
            pv('v', vB[b])
    pat = cfg.get('pat', '0123ab0c1d2e3f0g1h23')
    kt = NA
    for ci, ch in enumerate(pat):
        if ch in '0123':
            kbody(int(ch), vSa, 64 * kt, pro=True, ref=(ci == len(pat) - 1)); kt += 1
        else: atile(ord(ch) - ord('a'))
        if ch in '13bdf': pst()
        if kt == NA + 1 and ch == '0':
            tagB(a)
            a(f'v_mov_b32 v{vF1}, s{S_TA}')
    assert kt == 20 and pat[-1] == '3'
    LK = a.newlabel('st_loopK'); LV = a.newlabel('st_loopV')
    def itstamp():
        if cfg.get('prof'):
            a('s_mov_b32 m0, s57')
            a('s_add_u32 s57, s57, 1')
            a(f'v_writelane_b32 v{vIt}, s58, m0')
    if cfg.get('prof'):
        a('s_mov_b32 s57, 0')
        a(f'v_mov_b32 v{vIt}, 0')
        a('s_waitcnt lgkmcnt(0)')
        for k in range(pst_n[0]):
            a(f'v_writelane_b32 v{vIt}, s{PST[k]}, {40 + k}')
    a.label(LK)
    itstamp()
    reftake()
    for b in range(4): kbody(b, vSb, 64 * b, ref=(b == 3))
    a(f'v_add_u32 v{vSb}, 256, v{vSb}')
    a(f's_cmp_lt_u32 s{sN}, 64')
    a(f's_cbranch_scc1 {LK}')
    itstamp()
    reftake()
    a(f's_mov_b32 s{sN}, 0')
    setmasks(VMF, VMX)
    for b in range(4): kbody(b, vSb, 64 * b, 'V', ref=(b == 3))
    a(f's_mov_b64 s[{sCur}:{sCur+1}], 0')
    a(f'ds_read_b64 {vr(vSc,2)}, v{vSr}')
    a(f'v_mov_b32 v{vSb}, v{vSr}')
    xlane_reduce(a, [vm], [vt0], 'v_max_f32', ['r8', 'p32', 'p16'])
    a(f'v_cvt_pk_bf16_f32 v{vm}, v{vm}, v{vm}')
    a(f'v_lshlrev_b32 v{vm}, 16, v{vm}')
    a('s_mov_b32 vcc_lo, 0xaaaaaaaa')
    a('s_mov_b32 vcc_hi, 0xaaaaaaaa')
    a(f'v_readlane_b32 s{sMk}, v{vm}, 0')
    a(f'v_readlane_b32 s{sMk+1}, v{vm}, 4')
    a('s_nop 1')
    a(f'v_mov_b32 v{vm}, s{sMk}')
    a(f'v_mov_b32 v{vt0}, s{sMk+1}')
    a(f'v_cndmask_b32 v{vm}, v{vm}, v{vt0}, vcc')
    a(f'v_mul_f32 v{vmc}, s{sC}, v{vm}')
    a.label(LV)
    itstamp()
    reftake()
    for b in range(4): vbody(b, 64 * (b + 1), ref=(b == 3))
    a(f'v_add_u32 v{vSb}, 256, v{vSb}')
    a(f's_cmp_lt_u32 s{sN}, 64')
    a(f's_cbranch_scc1 {LV}')
    itstamp()
    for b in range(4): vbody(b, 64 * (b + 1) if b < 3 else None, last=True)
    a('s_mov_b64 exec, 1')
    a(f'ds_add_rtn_u32 v{vTk}, v{vRa}, v{vOne} offset:{LDS_DONE - LDS_CTR}')
    a(f's_mov_b64 exec, s[{sCur}:{sCur+1}]')
    a(f's_nop 4')
    for x, y in AP: a(f'v_swap_b32 v{x}, v{y}')
    a('s_mov_b64 exec, -1')
    L2nd = a.newlabel('st_2nd'); LB3 = a.newlabel('st_b3')
    a('s_waitcnt lgkmcnt(0)')
    a(f'v_readfirstlane_b32 s{sTk}, v{vTk}')
    a(f's_cmp_lg_u32 s{sTk}, 0')
    a(f's_cbranch_scc1 {L2nd}')
    a(f'v_mov_b32 v{vS}, v{vm}')
    a(f'v_mov_b32 v{vS+1}, v{vl}')
    a(f'v_mov_b32 v{vTk}, s{S_TA}')
    a(f'ds_write_b128 v{vt0}, {vr(vacc,4)} offset:{LDS_CMB}')
    a(f'ds_write_b128 v{vt0}, {vr(vacc+4,4)} offset:{LDS_CMB+1024}')
    a(f'ds_write_b64 v{vt0}, {vr(vS,2)} offset:{LDS_CMB+2048}')
    a(f'ds_write_b32 v{vRa}, v{vTk} offset:{LDS_FLAG2 - LDS_CTR}')
    a(f's_branch {LB3}')
    a.label(L2nd)
    Lw2 = a.newlabel('st_w2'); Lg2 = a.newlabel('st_g2')
    a(f's_mov_b32 s{sCtr}, {POLL_MAX}')
    a.label(Lw2)
    a(f'ds_read_b32 v{vTk}, v{vRa} offset:{LDS_FLAG2 - LDS_CTR}')
    a(f'ds_read_b64 {vr(vS,2)}, v{vt0} offset:{LDS_CMB+2048}')
    a(f'ds_read_b128 {vr(vA,4)}, v{vt0} offset:{LDS_CMB}')
    a(f'ds_read_b128 {vr(vA+4,4)}, v{vt0} offset:{LDS_CMB+1024}')
    a('s_waitcnt lgkmcnt(3)')
    a(f'v_readfirstlane_b32 s{sTk}, v{vTk}')
    a(f's_cmp_eq_u32 s{sTk}, s{S_TA}')
    a(f's_cbranch_scc1 {Lg2}')
    a(f's_sub_u32 s{sCtr}, s{sCtr}, 1')
    a(f's_cbranch_scc1 {Lg2}')
    a('s_waitcnt lgkmcnt(0)')
    a(f's_branch {Lw2}')
    a.label(Lg2)
    a('s_waitcnt lgkmcnt(2)')
    a(f'v_max_f32 v{vt1}, v{vm}, v{vS}')
    a(f'v_sub_f32 v{valpha}, v{vm}, v{vt1}')
    a(f'v_sub_f32 v{vmc}, v{vS}, v{vt1}')
    a(f'v_mul_f32 v{valpha}, s{sC}, v{valpha}')
    a(f'v_mul_f32 v{vmc}, s{sC}, v{vmc}')
    a(f'v_exp_f32 v{valpha}, v{valpha}')
    a(f'v_exp_f32 v{vmc}, v{vmc}')
    a(f'v_mov_b32 v{vm}, v{vt1}')
    a(f'v_mul_f32 v{vl}, v{vl}, v{valpha}')
    a(f'v_fmac_f32 v{vl}, v{vS+1}, v{vmc}')
    for i in range(8):
        qp = '[0,0,2,2]' if (i & 1) == 0 else '[1,1,3,3]'
        a(f'v_mul_f32_dpp v{vacc+i}, v{valpha}, v{vacc+i} quad_perm:{qp} row_mask:0xf bank_mask:0xf')
    a('s_waitcnt lgkmcnt(0)')
    for i in range(8):
        qp = '[0,0,2,2]' if (i & 1) == 0 else '[1,1,3,3]'
        a(f'v_fmac_f32_dpp v{vacc+i}, v{vmc}, v{vA+i} quad_perm:{qp} row_mask:0xf bank_mask:0xf')
    a(f'v_and_b32 v{vTk}, 1, v{vc}')
    a(f'v_cmp_eq_u32 vcc, 1, v{vTk}')
    a(f'v_mov_b32_dpp v{vP}, v{vm} quad_perm:[1,0,3,2] row_mask:0xf bank_mask:0xf')
    a(f'v_mov_b32_dpp v{vP+1}, v{vl} quad_perm:[1,0,3,2] row_mask:0xf bank_mask:0xf')
    a(f'v_mov_b32 v{vS+1}, s{S_TA}')
    a(f'v_mov_b32 v{vS+3}, s{S_TB}')
    a(f'v_cndmask_b32 v{vS}, v{vm}, v{vP+1}, vcc')
    a(f'v_cndmask_b32 v{vS+2}, v{vP}, v{vl}, vcc')
    mkchunks(a, vA, [vacc + i for i in range(8)])
    for i in range(4):
        a(f'buffer_store_dwordx4 {vr(vA+4*i,4)}, v{vOo[i>>1]}, {sr(S_WS,4)}, s{sBase} offen offset:{1024*(i&1)} sc1')
    a('s_mov_b64 exec, 0xff')
    a(f'buffer_store_dwordx4 {vr(vS,4)}, v{vt0}, {sr(S_WS,4)}, s{sT2} offen sc1')
    a('s_mov_b64 exec, -1')
    a.label(LB3)
    a(f'v_mov_b32 v{vt0}, 0')
    if cfg.get('prof'):
        a(f's_memrealtime s[58:59]')
    a('s_barrier')
    if cfg.get('prof'):
        a(f's_add_u32 s{sT2}, s{S_WAVE}, 4')
        a(f's_lshl_b32 s{sTmp}, s2, 5')
        a(f's_add_u32 s{sTmp}, s{sTmp}, s{sT2}')
        a(f's_lshl_b32 s{sTmp}, s{sTmp}, 2')
        a(f's_add_u32 s{sTmp}, s{sTmp}, {WS_PROF:#x}')
        a('s_waitcnt lgkmcnt(0)')
        a(f'v_mov_b32 v{vt1}, s58')
        a(f'buffer_store_dword v{vt1}, v{vt0}, {sr(S_WS,4)}, s{sTmp} offen')
        a(f'v_mov_b32 v{vt1}, s62')
        a(f'buffer_store_dword v{vt1}, v{vt0}, {sr(S_WS,4)}, s{sTmp} offen offset:28')
        a(f'v_writelane_b32 v{vIt}, s{sCf}, 62')
        a(f'v_writelane_b32 v{vIt}, s{sCx}, 63')
        a(f's_lshl_b32 s{sTmp}, s2, 1')
        a(f's_add_u32 s{sTmp}, s{sTmp}, s{S_WAVE}')
        a(f's_lshl_b32 s{sTmp}, s{sTmp}, 8')
        a(f's_add_u32 s{sTmp}, s{sTmp}, {WS_IT:#x}')
        a(f'v_lshlrev_b32 v{vt0}, 2, v0')
        a(f'buffer_store_dword v{vIt}, v{vt0}, {sr(S_WS,4)}, s{sTmp} offen')
    a('s_endpgm')
    return V.n


def gemv_pairs(a, vm, W, nrows, ndw, vX, acc, tmps, loads, first=True):
    for t in range(nrows // 2):
        if loads is not None:
            vm.wait(loads[2 * t + 1])
        for d in range(ndw):
            lo, hi = tmps[2 * d], tmps[2 * d + 1]
            a(f'v_perm_b32 v{lo}, v{W[2*t+1]+d}, v{W[2*t]+d}, s{S_SELLO}')
            a(f'v_perm_b32 v{hi}, v{W[2*t+1]+d}, v{W[2*t]+d}, s{S_SELHI}')
        for d in range(ndw):
            lo, hi = tmps[2 * d], tmps[2 * d + 1]
            c0 = '0' if (t == 0 and first) else f'v{acc[2*d]}'
            c1 = '0' if (t == 0 and first) else f'v{acc[2*d+1]}'
            a(f'v_dot2_f32_bf16 v{acc[2*d]}, v{lo}, v{vX+t}, {c0}')
            a(f'v_dot2_f32_bf16 v{acc[2*d+1]}, v{hi}, v{vX+t}, {c1}')
    a('s_nop 2')


def rnd_bf16(a, d, s, t):
    a(f'v_cvt_pk_bf16_f32 v{t}, v{s}, v{s}')
    a(f'v_lshlrev_b32 v{d}, 16, v{t}')


def ksplit_loads(a, vm, sX, sW, rowbytes, sKq, sColByte, vX, vW, vo1, vo2, vo3, sT, sT2):
    a(f'v_lshrrev_b32 v{vo1}, 3, v0')
    a(f'v_mul_u32_u24 v{vo2}, {14*rowbytes}, v{vo1}')
    a(f'v_and_b32 v{vo3}, 7, v0')
    a(f'v_lshl_add_u32 v{vo2}, v{vo3}, 4, v{vo2}')
    a(f's_mul_i32 s{sT2}, s{sKq}, {112*rowbytes}')
    a(f's_add_u32 s{sT2}, s{sT2}, s{sColByte}')
    lw = []
    for k in range(14):
        lw.append(vm.issue(f'buffer_load_dwordx4 {vr(vW+4*k,4)}, v{vo2}, {sr(sW,4)}, s{sT2} offen nt'))
        if k < 13: a(f's_add_u32 s{sT2}, s{sT2}, {rowbytes}')
        if k == 0:
            a(f'v_mul_u32_u24 v{vo3}, 28, v{vo1}')
            a(f's_mul_i32 s{sT}, s{sKq}, 224')
            vm.issue(f'buffer_load_dwordx4 {vr(vX,4)}, v{vo3}, {sr(sX,4)}, s{sT} offen')
            vm.issue(f'buffer_load_dwordx3 {vr(vX+4,3)}, v{vo3}, {sr(sX,4)}, s{sT} offen offset:16')
    return lw


def gen_auxA(a, cfg):
    V = Regs(1, 256)
    vt = V.alloc(8, 4)
    vX = V.alloc(8, 4)
    vacc = V.alloc(8, 4)
    vtmp = V.alloc(8, 4)
    vo1 = V.alloc(); vo2 = V.alloc(); vo3 = V.alloc(); vTag = V.alloc(); vOa = vTag; vYs = V.alloc()
    vCh = V.alloc(16, 4)
    vW = V.alloc(72, 4); vSet = vW
    vWp = V.alloc(64, 4)
    vOq = V.alloc(16, 4)
    vML = V.alloc(8, 4)
    sX = 4; sWQ = 8; sDBG = 44; sWO = 48
    sT = 52; sT2 = 53; sHead = 54; sJ = 55; sCnt = 56; sC = 57; sKq = 58; sCb = 59
    sPk = 80
    vm = VM(a)
    stamp(a, cfg, 62)
    srd(a, sX, P_X, 896)
    srd(a, sWQ, P_WQ, 448 * 8192)
    a(f's_lshr_b32 s{sHead}, s2, 5')
    a(f's_and_b32 s{sJ}, s2, 31')
    a(f's_and_b32 s{sKq}, s2, 3')
    a(f's_lshr_b32 s{sCb}, s2, 2')
    a(f's_lshl_b32 s{sCb}, s{sCb}, 7')
    lw = ksplit_loads(a, vm, sX, sWQ, 8192, sKq, sCb, vX, vW, vo1, vo2, vo3, sT, sT2)
    a('s_barrier')
    srd(a, sDBG, P_DBG, 256)
    srd(a, sWO, P_WO, 4096 * 896)
    a(f'v_mov_b32 v{vo3}, 0')
    vm.issue(f'buffer_load_dword v{vTag}, v{vo3}, {sr(sDBG,4)}, 0 offen sc1')
    gemv_pairs(a, vm, [vW + 4 * k for k in range(14)], 14, 4, vX, [vacc + i for i in range(8)], [vtmp + i for i in range(8)], lw)
    xlane_reduce(a, [vacc + i for i in range(8)], [vtmp + i for i in range(8)], 'v_add_f32', ['r8', 'p16', 'p32'])
    stamp(a, cfg, 64)
    a(f'v_lshlrev_b32 v{vo1}, 4, v0')
    a(f's_lshl_b32 s{sT}, s{sHead}, 14')
    a(f's_lshl_b32 s{sT2}, s{sKq}, 12')
    a(f's_add_u32 s{sT2}, s{sT2}, s{sT}')
    a(f's_and_b32 s{sC}, s{sCb}, 0x380')
    a(f's_lshl_b32 s{sC}, s{sC}, 2')
    a(f's_add_u32 s{sT2}, s{sT2}, s{sC}')
    L = a.newlabel('ptag'); Dn = a.newlabel('ptag_done')
    a(f's_mov_b32 s{sCnt}, {POLL_MAX}')
    a.label(L)
    a('s_waitcnt vmcnt(0)')
    a(f'v_readfirstlane_b32 s{S_TA}, v{vTag}')
    a(f's_cmp_lg_u32 s{S_TA}, 0')
    a(f's_cbranch_scc1 {Dn}')
    a(f's_sub_u32 s{sCnt}, s{sCnt}, 1')
    a(f's_cbranch_scc1 {Dn}')
    a('s_sleep 1')
    a(f'buffer_load_dword v{vTag}, v{vo3}, {sr(sDBG,4)}, 0 offen sc1')
    a(f's_branch {L}')
    a.label(Dn)
    tagB(a)
    stamp(a, cfg, 66)
    mkchunks(a, vCh, [vacc + i for i in range(8)])
    a('s_mov_b64 exec, 0xff')
    for c in range(4):
        a(f'buffer_store_dwordx4 {vr(vCh+4*c,4)}, v{vo1}, {sr(S_WS,4)}, s{sT2} offen offset:{128*c} sc1')
    a('s_mov_b64 exec, -1')
    a(f'v_lshrrev_b32 v{vo2}, 5, v0')
    a(f'v_lshlrev_b32 v{vo2}, 7, v{vo2}')
    a(f'v_and_b32 v{vt}, 7, v0')
    a(f'v_lshl_add_u32 v{vo2}, v{vt}, 4, v{vo2}')
    a(f'v_bfe_u32 v{vt}, v0, 3, 2')
    a(f'v_lshl_add_u32 v{vo2}, v{vt}, 2, v{vo2}')
    for kq in range(1, 4):
        a(f's_add_u32 s{80+kq}, s{sT}, {4096*kq}')
    loads = []
    for kq in range(4):
        for i in range(4):
            so = sT if kq == 0 else 80 + kq
            loads.append(f'buffer_load_dwordx4 {vr(vW+4*(4*kq+i),4)}, v{vo1}, {sr(S_WS,4)}, s{so} offen offset:{i*1024} sc1')
    a(f'v_mov_b32 v{vML}, 0')
    a(f'v_mov_b32 v{vML+1}, 0')
    a(f'v_mov_b32 v{vML+2}, 0x7fffffff')
    a(f'v_mov_b32 v{vML+3}, 0x80000000')
    if cfg.get('qsleep'): a(f's_sleep {cfg["qsleep"]}')
    poll(a, loads, [vW + 4 * k for k in range(16)], vt, sCnt, name='pq')
    stamp(a, cfg, 68)
    for i in range(4):
        for e in (0, 2):
            a(f'v_add_f32 v{vW+4*i+e}, v{vW+4*i+e}, v{vW+4*(4+i)+e}')
            a(f'v_add_f32 v{vW+4*(8+i)+e}, v{vW+4*(8+i)+e}, v{vW+4*(12+i)+e}')
    for i in range(4):
        for e in (0, 2):
            a(f'v_add_f32 v{vW+4*i+e}, v{vW+4*i+e}, v{vW+4*(8+i)+e}')
    for i in range(4):
        a(f'v_cvt_pk_bf16_f32 v{vt+i}, v{vW+4*i}, v{vW+4*i+2}')
    for i in range(4):
        a(f'ds_write_b32 v{vo2}, v{vt+i} offset:{256*i}')
    a(f'ds_write_b32 v{vo3}, v{vTag} offset:{LDS_TAG}')
    a(f'ds_write_b128 v{vo3}, {vr(vML,4)} offset:{LDS_REF}')
    a(f'ds_write_b32 v{vo3}, v{vo3} offset:{LDS_DONE}')
    a(f'ds_write_b64 v{vo3}, {vr(vML,2)} offset:{LDS_REC}')
    a(f'ds_write_b64 v{vo3}, {vr(vML,2)} offset:{LDS_REC + 512}')
    a('s_waitcnt lgkmcnt(0)')
    a('s_barrier')
    stamp(a, cfg, 70)
    stamp_store(a, cfg, [(0, 62), (7, 64), (8, 66), (9, 68), (1, 70)], vt)
    a(f's_lshl_b32 s{sT}, s{sHead}, 9')
    a(f's_and_b32 s{sT2}, s{sJ}, 16')
    a(f's_lshl_b32 s{sT2}, s{sT2}, 3')
    a(f's_add_u32 s{sT}, s{sT}, s{sT2}')
    a(f's_and_b32 s{sT2}, s{sJ}, 7')
    a(f's_lshl_b32 s{sT2}, s{sT2}, 4')
    a(f's_add_u32 s{sT}, s{sT}, s{sT2}')
    a(f's_bfe_u32 s{sT2}, s{sJ}, 0x10003')
    a(f's_add_u32 s{sT}, s{sT}, s{sT2}')
    a(f's_mul_i32 s{sT}, s{sT}, 896')
    a(f'v_min_u32 v{vo2}, 55, v0')
    a(f'v_lshlrev_b32 v{vo2}, 4, v{vo2}')
    for hh in range(2):
        for e in range(8):
            a(f'buffer_load_dwordx4 {vr(vW+4*(8*hh+e),4)}, v{vo2}, {sr(sWO,4)}, s{sT} offen offset:{(e%2)*1792} nt')
            if e % 2 == 1:
                a(f's_add_u32 s{sT}, s{sT}, {3584 if e < 7 else 3584 + (256-16)*896}')
    a('s_waitcnt vmcnt(0)')
    stamp(a, cfg, 62)
    stamp_store(a, cfg, [(16, 62)], vt)
    for pr in range(8):
        r0 = vW + 4 * (2 * pr); r1 = vW + 4 * (2 * pr + 1)
        for d in range(4):
            a(f'v_perm_b32 v{vWp+8*pr+2*d}, v{r1+d}, v{r0+d}, s{S_SELLO}')
            a(f'v_perm_b32 v{vWp+8*pr+2*d+1}, v{r1+d}, v{r0+d}, s{S_SELHI}')
    a(f'v_and_b32 v{vo2}, 31, v0')
    a(f'v_lshlrev_b32 v{vo2}, 7, v{vo2}')
    a(f'v_lshrrev_b32 v{vo3}, 3, v0')
    a(f'v_lshlrev_b32 v{vOa}, 12, v{vo3}')
    a(f'v_and_b32 v{vt}, 7, v0')
    a(f'v_lshl_add_u32 v{vOa}, v{vt}, 4, v{vOa}')
    a(f'v_lshlrev_b32 v{vo3}, 2, v{vo3}')
    a(f's_lshl_b32 s{sT}, s{sHead}, 17')
    a(f's_lshl_b32 s{sT2}, s{sJ}, 7')
    a(f's_add_u32 s{sT}, s{sT}, s{sT2}')
    a(f's_add_u32 s{sT}, s{sT}, {WS_O:#x}')
    for k in range(1, 4):
        a(f's_add_u32 s{72+k}, s{sT}, {k << 15}')
    a(f's_lshl_b32 s{sT2}, s{sHead}, 12')
    a(f's_add_u32 s{sT2}, s{sT2}, {WS_ML:#x}')
    a(f's_mov_b32 s{sC}, {C_SCALE:#x}')
    a(f's_lshl_b32 s72, s2, 6')
    for c in range(4):
        a(f's_add_u32 s{24+c}, s72, {WS_Y + c * 14 * 16384:#x}')
    a(f'v_lshrrev_b32 v{vYs}, 2, v0')
    a(f'v_lshlrev_b32 v{vYs}, 14, v{vYs}')
    a(f'v_and_b32 v{vt}, 3, v0')
    a(f'v_lshl_add_u32 v{vYs}, v{vt}, 4, v{vYs}')
    for i in range(8):
        a(f'v_mov_b32 v{vCh+2*i+1}, s{S_TA if i % 2 == 0 else S_TB}')
    a(f's_mul_i32 s37, s{sHead}, 11')
    a('s_lshr_b32 s37, s37, 5')
    a('s_mul_i32 s37, s37, 3')
    a(f's_sub_u32 s37, s{sHead}, s37')
    a('s_bfe_u32 s38, s2, 0x20003')
    a(f's_lshl_b32 s36, s{sHead}, 3')
    a('s_and_b32 s39, s2, 7')
    a('s_add_u32 s36, s36, s39')
    a('s_lshl_b32 s36, s36, 4')
    a('s_cmp_eq_u32 s37, s38')
    a('s_cselect_b32 s36, s36, 0x40000000')
    if not cfg.get('noctl'):
        aux_rounds(a, cfg, dict(v=vW, s=28, S_WS=S_WS, S_TA=S_TA, S_TB=S_TB, LDS_REC=LDS_REC, LDS_REF=LDS_REF, WS_R=WS_PLAN, sPub=36))
    stamp(a, cfg, 70)
    stamp_store(a, cfg, [(20, 70)], vt)
    sEX = 16; sDry = 18
    WARM = 0
    a(f's_mov_b64 s[{sEX}:{sEX+1}], -1')
    a(f's_lshl_b32 s20, s{sHead}, 12')
    a(f's_add_u32 s20, s20, {WS_F1:#x}')
    a(f's_lshl_b32 s21, s2, 7')
    a(f's_add_u32 s21, s21, {WS_F2:#x}')
    a(f'v_mov_b32 v{vSet+4}, s{S_TA}')
    a(f'v_mov_b32 v{vSet+5}, 0')
    a('s_barrier')
    if cfg.get('f1', 1):
        flagpoll(a, f'buffer_load_dwordx2 {vr(vSet,2)}, v{vo2}, {sr(S_WS,4)}, s20 offen sc1', [vSet, vSet + 1], vt, sCnt, 'pf1',
                 sleep=cfg.get('f1sleep', 1))
    stamp(a, cfg, 66)
    R2 = cfg.get('r2', 4)
    def f2store():
        if not cfg.get('f2', 1): return
        Lnf = a.newlabel('nf2')
        a(f's_and_b32 s22, s{sJ}, {32 // R2 - 1}')
        a(f's_cmp_lg_u32 s22, {cfg.get("r2c", 3) % (32 // R2)}')
        a(f's_cbranch_scc1 {Lnf}')
        a('s_mov_b64 exec, 1')
        a(f'buffer_store_dword v{vSet+4}, v{vSet+5}, {sr(S_WS,4)}, s21 offen sc1')
        a('s_mov_b64 exec, -1')
        a.label(Lnf)
    if cfg.get('f2pos', 'gath') == 'f1': f2store()
    if cfg.get('d1'): a(f's_sleep {cfg["d1"]}')
    loads = [f'buffer_load_dwordx4 {vr(vML,4)}, v{vo2}, {sr(S_WS,4)}, s{sT2} offen sc1',
             f'buffer_load_dwordx4 {vr(vML+4,4)}, v{vo2}, {sr(S_WS,4)}, s{sT2} offen offset:16 sc1']
    for k in range(4):
        loads.append(f'buffer_load_dwordx4 {vr(vOq+4*k,4)}, v{vOa}, {sr(S_WS,4)}, s{sT if k == 0 else 72 + k} offen sc1')
    poll(a, loads, [vML, vML + 4] + [vOq + 4 * k for k in range(4)], vt, sCnt, name='ps2', sleep=cfg.get('s2sleep', 1))
    if cfg.get('f2pos', 'gath') == 'gath': f2store()
    if cfg.get('prof'): a(f's_sub_u32 s23, {POLL_MAX}, s{sCnt}')
    stamp(a, cfg, 62)
    vWt = vX
    M = [vt, vt + 1]
    a(f'v_mov_b32 v{M[0]}, v{vML}')
    a(f'v_mov_b32 v{M[1]}, v{vML+2}')
    xlane_reduce(a, M, [vt + 2, vt + 3], 'v_max_f32', ['x1', 'x2', 'r4', 'r8', 'p16'])
    for hh in range(2):
        a(f'v_sub_f32 v{vML+2*hh}, v{vML+2*hh}, v{M[hh]}')
        a(f'v_mul_f32 v{vML+2*hh}, s{sC}, v{vML+2*hh}')
    for hh in range(2):
        a(f'v_exp_f32 v{vML+2*hh}, v{vML+2*hh}')
    a('s_nop 0')
    for k in range(4):
        for hh in range(2):
            a(f'ds_bpermute_b32 v{vWt+2*k+hh}, v{vo3}, v{vML+2*hh} offset:{32*k}')
    for hh in range(2):
        a(f'v_mul_f32 v{vacc+2+hh}, v{vML+2*hh}, v{vML+4+2*hh}')
    a('s_mov_b32 exec_lo, 0')
    for hh in range(2):
        a(f'v_mov_b32 v{vacc+2+hh}, 0')
    a(f's_mov_b32 exec_lo, s{sEX}')
    xlane_reduce(a, [vacc + 2, vacc + 3], [vt + 2, vt + 3], 'v_add_f32', ['x1', 'x2', 'r4'])
    a('s_waitcnt lgkmcnt(0)')
    for k in range(4):
        for hh in range(2):
            if k == 0: a(f'v_mul_f32 v{vacc+hh}, v{vWt+2*k+hh}, v{vOq+4*k+2*hh}')
            else: a(f'v_fmac_f32 v{vacc+hh}, v{vWt+2*k+hh}, v{vOq+4*k+2*hh}')
    a('s_nop 1')
    xlane_reduce(a, [vacc + i for i in range(4)], [vtmp + i for i in range(4)], 'v_add_f32', ['r8', 'p16', 'p32'])
    a(f'v_rcp_f32 v{vacc+2}, v{vacc+2}')
    a(f'v_rcp_f32 v{vacc+3}, v{vacc+3}')
    a('s_nop 0')
    for hh in range(2):
        a(f'v_mul_f32 v{vacc+hh}, v{vacc+hh}, v{vacc+2+hh}')
    a('s_nop 1')
    for hh in range(2):
        a(f'v_mov_b32_dpp v{vacc+2+hh}, v{vacc+hh} quad_perm:[1,0,3,2] row_mask:0xf bank_mask:0xf')
    for hh in range(2):
        a(f'v_cvt_pk_bf16_f32 v{vt+hh}, v{vacc+hh}, v{vacc+2+hh}')
    a('s_nop 0')
    for hh in range(2):
        for g in range(4):
            a(f'v_readlane_b32 s{sPk+4*hh+g}, v{vt+hh}, {2*g}')
    a('s_nop 1')
    for pr in range(8):
        for col in range(8):
            c0 = '0' if pr == 0 else f'v{vCh+2*col}'
            a(f'v_dot2_f32_bf16 v{vCh+2*col}, v{vWp+8*pr+col}, s{sPk+pr}, {c0}')
    a(f's_and_b32 exec_hi, s{sEX+1}, 0x00ffffff')
    a('s_nop 1')
    for c in range(4):
        a(f'buffer_store_dwordx4 {vr(vCh+4*c,4)}, v{vYs}, {sr(S_WS,4)}, s{24+c} offen sc1')
    a('s_mov_b64 exec, -1')
    if WARM:
        a(f's_cmp_lg_u32 s{sDry}, 0')
        a(f's_cbranch_scc1 {Lreal}')
    stamp(a, cfg, 64)
    if cfg.get('b4', 1): a('s_barrier')
    if cfg.get('prof'): a('s_getpc_b64 s[68:69]')
    stamp_store(a, cfg, [(2, 62), (3, 64), (21, 66), (22, 23), (25, 68), (26, 69)], vt)
    stamp_flush(a, cfg, [0, 7, 8, 9, 1, 16, 20, 2, 3, 21, 22, 25, 26], vt)
    a('s_endpgm')
    return V.n


def gen_auxB(a, cfg):
    V = Regs(1, 256)
    vt = V.alloc(8, 4)
    vb = V.alloc(4, 4)
    vf = V.alloc(8, 4)
    vo1 = V.alloc(); vo2 = V.alloc(); vo3 = V.alloc(); vg = V.alloc(); vBa = V.alloc(); vYa = V.alloc()
    vX = V.alloc(16, 4)
    vacc = V.alloc(16, 4)
    vtmp = V.alloc(16, 4)
    vCh = V.alloc(16, 4)
    vW = V.alloc(64, 4)
    vD = V.alloc(64, 4)
    vY = vW
    vSets = [vW, vD, vX]
    sX = 4; sWG = 8; sWU = 44; sWD = 48; sDBG = 64; sGW = 68; sOUT = 72
    sT = 52; sT2 = 53; sKq = 54; sJ = 55; sCnt = 56; sF = 57; sG = 62; sG1 = 63
    sPk = 16
    vm = VM(a)
    srd(a, sDBG, P_DBG, 256)
    Lnt = a.newlabel('notag')
    a(f'v_mov_b32 v{vo3}, 0')
    a('s_cmp_lg_u32 s2, 0')
    a(f's_cbranch_scc1 {Lnt}')
    a(f's_memrealtime s[{sG}:{sG1}]')
    a('s_waitcnt lgkmcnt(0)')
    a(f's_or_b32 s{sG}, s{sG}, 1')
    a(f'v_mov_b32 v{vo2}, s{sG}')
    a('s_mov_b64 exec, 1')
    a(f'buffer_store_dword v{vo2}, v{vo3}, {sr(sDBG,4)}, 0 offen sc1')
    a('s_mov_b64 exec, -1')
    a.label(Lnt)
    a('s_barrier')
    srd(a, sX, P_X, 896)
    srd(a, sWG, P_WG, 448 * 3584)
    srd(a, sWU, P_WU, 448 * 3584)
    srd(a, sWD, P_WD, 1792 * 896)
    srd(a, sGW, P_GW, 896)
    srd(a, sOUT, P_OUT, 896)
    Lnoffn = a.newlabel('noffn'); Lnofin = a.newlabel('nofin')
    a('s_barrier')
    a(f'ds_read_b32 v{vo2}, v{vo3} offset:{LDS_TAG}')
    a('s_waitcnt lgkmcnt(0)')
    a(f'v_readfirstlane_b32 s{S_TA}, v{vo2}')
    tagB(a)
    for i in range(8):
        a(f'v_mov_b32 v{vCh+2*i+1}, s{S_TA if i % 2 == 0 else S_TB}')
    a(f'v_lshlrev_b32 v{vBa}, 4, v0')
    a(f's_mov_b32 s84, {WS_SIZE:#x}')
    a(f's_and_b32 s{sT}, s2, 31')
    a(f's_cmp_lt_u32 s{sT}, {32 if cfg.get("noffn") else 25}')
    a(f's_cbranch_scc1 {Lnoffn}')
    if cfg.get('fsleep'): a(f's_sleep {cfg["fsleep"]}')
    a(f's_sub_u32 s{sT}, s{sT}, 25')
    a(f's_lshr_b32 s{sT2}, s2, 6')
    a(f's_mul_i32 s{sT2}, s{sT2}, 7')
    a(f's_add_u32 s{sT}, s{sT}, s{sT2}')
    a(f's_lshl_b32 s{sF}, s{sT}, 1')
    a(f's_bfe_u32 s{sT2}, s2, 0x10005')
    a(f's_add_u32 s{sF}, s{sF}, s{sT2}')
    a(f'v_lshrrev_b32 v{vo1}, 2, v0')
    a(f'v_mul_u32_u24 v{vo2}, {28*3584}, v{vo1}')
    a(f'v_and_b32 v{vo3}, 3, v0')
    a(f'v_lshl_add_u32 v{vo2}, v{vo3}, 4, v{vo2}')
    a(f'v_mul_u32_u24 v{vo3}, 56, v{vo1}')
    for k in range(3):
        vm.issue(f'buffer_load_dwordx4 {vr(vX+4*k,4)}, v{vo3}, {sr(sX,4)}, 0 offen offset:{16*k}')
    vm.issue(f'buffer_load_dwordx2 {vr(vX+12,2)}, v{vo3}, {sr(sX,4)}, 0 offen offset:48')
    a(f'v_min_u32 v{vo1}, 55, v0')
    a(f'v_lshlrev_b32 v{vo1}, 4, v{vo1}')
    wflag = cfg.get('wflag', 'nt')
    def unitW(sW, k0, buf):
        a(f's_lshl_b32 s{sT}, s{sF}, 6')
        if k0: a(f's_add_u32 s{sT}, s{sT}, {k0*3584}')
        lw = []
        for k in range(14):
            lw.append(vm.issue(f'buffer_load_dwordx4 {vr(buf+4*k,4)}, v{vo2}, {sr(sW,4)}, s{sT} offen offset:{(k%2)*3584} {wflag}'))
            if k % 2 == 1 and k < 13: a(f's_add_u32 s{sT}, s{sT}, {2*3584}')
        return lw
    def unitD(u, buf):
        a(f's_mul_i32 s{sT}, s{sF}, {32*896}')
        if u: a(f's_add_u32 s{sT}, s{sT}, {16*896}')
        lw = []
        for e in range(16):
            lw.append(vm.issue(f'buffer_load_dwordx4 {vr(buf+4*e,4)}, v{vo1}, {sr(sWD,4)}, s{sT} offen offset:{(e%4)*896} nt'))
            if e % 4 == 3 and e < 15: a(f's_add_u32 s{sT}, s{sT}, {4*896}')
        return lw
    def compW(buf, k0, m, lw):
        gemv_pairs(a, vm, [buf + 4 * k for k in range(14)], 14, 4, vX + k0 // 2, [vacc + 8 * m + i for i in range(8)], [vtmp + i for i in range(8)], lw, first=(k0 == 0))
    l0 = unitW(sWG, 0, vW); l1 = unitW(sWG, 14, vD)
    compW(vW, 0, 0, l0); l2 = unitW(sWU, 0, vW)
    compW(vD, 14, 0, l1); l3 = unitW(sWU, 14, vD)
    compW(vW, 0, 1, l2); l4 = unitD(0, vW)
    compW(vD, 14, 1, l3); l5 = unitD(1, vD)
    xlane_reduce(a, [vacc + i for i in range(16)], [vtmp + i for i in range(16)], 'v_add_f32', ['r4', 'r8', 'p16', 'p32'])
    stamp(a, cfg, 90)
    for i in range(16):
        rnd_bf16(a, vacc + i, vacc + i, vtmp + i)
    a(f's_mov_b32 s{sT}, {f2u(0.044715):#x}')
    a(f's_mov_b32 s{sT2}, {f2u(-2*0.7978845608028654*1.4426950408889634):#x}')
    for i in range(8):
        x = vacc + i; t = vtmp + i
        a(f'v_mul_f32 v{t}, v{x}, v{x}')
        a(f'v_mul_f32 v{t}, v{t}, v{x}')
        a(f'v_fma_f32 v{t}, v{t}, s{sT}, v{x}')
        a(f'v_mul_f32 v{t}, s{sT2}, v{t}')
    for i in range(8):
        a(f'v_exp_f32 v{vtmp+i}, v{vtmp+i}')
    for i in range(8):
        a(f'v_add_f32 v{vtmp+i}, 1.0, v{vtmp+i}')
    for i in range(8):
        a(f'v_rcp_f32 v{vtmp+i}, v{vtmp+i}')
    for i in range(8):
        a(f'v_mul_f32 v{vacc+i}, v{vacc+i}, v{vtmp+i}')
    for i in range(8):
        rnd_bf16(a, vacc + i, vacc + i, vtmp + i)
    for i in range(8):
        a(f'v_mul_f32 v{vacc+i}, v{vacc+i}, v{vacc+8+i}')
    for d in range(4):
        a(f'v_cvt_pk_bf16_f32 v{vt+d}, v{vacc+2*d}, v{vacc+2*d+1}')
    a('s_nop 0')
    for c4 in range(4):
        for d in range(4):
            a(f'v_readlane_b32 s{sPk+4*c4+d}, v{vt+d}, {c4}')
    a(f's_mul_i32 s84, s{sF}, 3584')
    a(f's_add_u32 s84, s84, {WS_B:#x}')
    stamp(a, cfg, 92)
    for u, (buf, lw) in enumerate([(vW, l4), (vD, l5)]):
        for pr in range(8):
            vm.wait(lw[2 * pr + 1])
            r0 = buf + 4 * (2 * pr); r1 = buf + 4 * (2 * pr + 1)
            for d in range(4):
                a(f'v_perm_b32 v{vtmp+2*d}, v{r1+d}, v{r0+d}, s{S_SELLO}')
                a(f'v_perm_b32 v{vtmp+2*d+1}, v{r1+d}, v{r0+d}, s{S_SELHI}')
            for col in range(8):
                c0 = '0' if (pr == 0 and u == 0) else f'v{vCh+2*col}'
                a(f'v_dot2_f32_bf16 v{vCh+2*col}, v{vtmp+col}, s{sPk+8*u+pr}, {c0}')
    def bstore():
        L = a.newlabel('nobst')
        a(f's_and_b32 s{sT}, s2, 31')
        a(f's_cmp_lt_u32 s{sT}, {32 if cfg.get("noffn") else 25}')
        a(f's_cbranch_scc1 {L}')
        a('s_mov_b32 exec_hi, 0x00ffffff')
        for c in range(4):
            a(f'buffer_store_dwordx4 {vr(vCh+4*c,4)}, v{vBa}, {sr(S_WS,4)}, s84 offen offset:{896*c} sc1')
        a('s_mov_b64 exec, -1')
        a.label(L)
    a('s_nop 2')
    BMODE = cfg.get('bmode', 'late')
    def flagwait():
        Lw = a.newlabel('fl_w'); Lg = a.newlabel('fl_g')
        a(f'v_mov_b32 v{vf+4}, 0')
        a(f's_mov_b32 s{sCnt}, {POLL_MAX}')
        a.label(Lw)
        a(f'ds_read_b32 v{vf+5}, v{vf+4} offset:{LDS_REC}')
        a('s_waitcnt lgkmcnt(0)')
        a(f'v_readfirstlane_b32 s{sT}, v{vf+5}')
        a(f's_cmp_ge_u32 s{sT}, {cfg.get("bstep", 36)}')
        a(f's_cbranch_scc1 {Lg}')
        a(f's_sub_u32 s{sCnt}, s{sCnt}, 1')
        a(f's_cbranch_scc1 {Lg}')
        a('s_sleep 64')
        a(f's_branch {Lw}')
        a.label(Lg)
    if BMODE == 'flag': flagwait()
    if BMODE != 'late': bstore()
    stamp(a, cfg, 94)
    stamp_store(a, cfg, [(13, 90), (14, 92), (15, 94)], vt)
    a.label(Lnoffn)
    a(f's_cmp_lt_u32 s2, {FIN0}')
    a(f's_cbranch_scc1 {Lnofin}')
    a(f's_sub_u32 s{sJ}, s2, {FIN0}')
    a(f'v_lshlrev_b32 v{vo1}, 4, v0')
    a(f'buffer_load_dwordx4 {vr(vX,4)}, v{vo1}, {sr(sX,4)}, 0 offen')
    a(f'buffer_load_dwordx4 {vr(vX+4,4)}, v{vo1}, {sr(sGW,4)}, 0 offen')
    a('s_waitcnt vmcnt(0)')
    for d in range(4):
        a(f'v_lshlrev_b32 v{vt}, 16, v{vX+d}')
        a(f'v_lshlrev_b32 v{vt+1}, 16, v{vX+4+d}')
        a(f'v_and_b32 v{vt+2}, 0xffff0000, v{vX+d}')
        a(f'v_and_b32 v{vt+3}, 0xffff0000, v{vX+4+d}')
        a(f'v_mul_f32 v{vt}, v{vt}, v{vt+1}')
        a(f'v_mul_f32 v{vt+2}, v{vt+2}, v{vt+3}')
        a(f'v_cvt_pk_bf16_f32 v{vt}, v{vt}, v{vt+2}')
        a(f'v_lshlrev_b32 v{vt+1}, 16, v{vt}')
        a(f'v_and_b32 v{vt+2}, 0xffff0000, v{vt}')
        if d == 0:
            a(f'v_add_f32 v{vg}, v{vt+1}, v{vt+2}')
        else:
            a(f'v_add_f32 v{vg}, v{vg}, v{vt+1}')
            a(f'v_add_f32 v{vg}, v{vg}, v{vt+2}')
    xlane_reduce(a, [vg], [vt], 'v_add_f32', ['x1', 'x2', 'r4', 'r8', 'p16', 'p32'])
    rnd_bf16(a, vg, vg, vt)
    a(f'v_mul_f32 v{vg}, {f2u(-1.4426950408889634):#x}, v{vg}')
    a(f'v_exp_f32 v{vg}, v{vg}')
    a('s_nop 0')
    a(f'v_add_f32 v{vg}, 1.0, v{vg}')
    a(f'v_rcp_f32 v{vg}, v{vg}')
    a('s_nop 0')
    rnd_bf16(a, vg, vg, vt)
    a(f'v_sub_f32 v{vt+1}, 1.0, v{vg}')
    rnd_bf16(a, vt + 1, vt + 1, vt)
    a('s_nop 0')
    a(f'v_readfirstlane_b32 s{sG}, v{vg}')
    a(f'v_readfirstlane_b32 s{sG1}, v{vt+1}')
    a(f'v_lshrrev_b32 v{vo1}, 2, v0')
    a(f'v_mul_u32_u24 v{vo1}, 3584, v{vo1}')
    a(f'v_and_b32 v{vo2}, 3, v0')
    a(f'v_lshl_add_u32 v{vo1}, v{vo2}, 4, v{vo1}')
    a(f's_and_b32 s{sT}, s{sJ}, 3')
    a(f's_mul_i32 s{sT}, s{sT}, 14')
    a(f's_lshr_b32 s{sT2}, s{sJ}, 2')
    a(f's_add_u32 s{sT}, s{sT}, s{sT2}')
    a(f's_lshl_b32 s{sF}, s{sT}, 6')
    def gather(base, n, name, sleep):
        for k in range(n):
            a(f's_add_u32 s{16+k}, s{sF}, {base + k * 16 * 3584:#x}')
        return [f'buffer_load_dwordx4 {vr(vY+4*k,4)}, v{vo1}, {sr(S_WS,4)}, s{16+k} offen sc1' for k in range(n)]
    def sumup(dst, n, src):
        for e in range(2):
            a(f'v_add_f32 v{dst+e}, v{src+2*e}, v{src+4+2*e}')
            a(f'v_add_f32 v{dst+2+e}, v{src+8+2*e}, v{src+12+2*e}')
        for k in range(4, n):
            for e in range(2):
                d = dst + e + 2 * (k & 1)
                a(f'v_add_f32 v{d}, v{d}, v{src+4*k+2*e}')
        for e in range(2):
            a(f'v_add_f32 v{dst+e}, v{dst+e}, v{dst+2+e}')
    def xsum(dst):
        xlane_reduce(a, [dst, dst + 1], [vf + 4, vf + 5], 'v_add_f32', ['r4', 'r8', 'p16', 'p32'])
    a(f's_lshl_b32 s{sT}, s{sF}, 8')
    for k in range(4):
        a(f's_add_u32 s{24+k}, s{sT}, {WS_Y + k * 4096:#x}')
    a(f'v_lshlrev_b32 v{vYa}, 4, v0')
    a(f's_lshr_b32 s{sT2}, s{sJ}, 2')
    a(f's_lshl_b32 s{sT2}, s{sT2}, 6')
    a(f's_and_b32 s{sKq}, s{sJ}, 3')
    a(f's_lshl_b32 s{sKq}, s{sKq}, 2')
    a(f's_add_u32 s{sT2}, s{sT2}, s{sKq}')
    sEX = 32; sDry = 34
    WARM = 0
    R2 = cfg.get('r2', 4)
    a(f's_mov_b64 s[{sEX}:{sEX+1}], -1')
    a(f'v_lshrrev_b32 v{vf+6}, 3, v0')
    a(f'v_lshlrev_b32 v{vf+6}, 12, v{vf+6}')
    a(f'v_and_b32 v{vf+7}, {R2 - 1}, v0')
    a(f'v_mul_u32_u24 v{vf+7}, {(32 // R2) * 128}, v{vf+7}')
    a(f'v_add_u32 v{vf+6}, v{vf+6}, v{vf+7}')
    a(f's_mov_b32 s35, {WS_F2 + (cfg.get("r2c", 3) % (32 // R2)) * 128:#x}')
    loads = gather(WS_B, 4, 'pb', 8)
    a(f'v_mov_b32 v{vo2}, v{vo1}')
    a('s_mov_b32 exec_lo, 0')
    a(f'v_subrev_u32 v{vo2}, {8*3584}, v{vo2}')
    a('s_mov_b32 exec_lo, -1')
    loads[3] = loads[3].replace(f'v{vo1},', f'v{vo2},')
    if BMODE == 'late':
        a('s_barrier')
        bstore()
        if cfg.get('bdelay'): a(f's_sleep {cfg["bdelay"]}')
    else:
        flagwait()
    if not cfg.get('noffn'):
        poll(a, loads, [vY + 4 * k for k in range(4)], vt, sCnt, name='pb', sleep=cfg.get('bsleep', 16))
    a('s_mov_b32 exec_lo, 0')
    a(f'v_mov_b32 v{vY+12}, 0')
    a(f'v_mov_b32 v{vY+14}, 0')
    a('s_mov_b32 exec_lo, -1')
    sumup(vb, 4, vY)
    xsum(vb)
    for i in range(2):
        rnd_bf16(a, vb + i, vb + i, vf + 4 + i)
        a(f'v_mul_f32 v{vb+i}, s{sG1}, v{vb+i}')
        rnd_bf16(a, vb + i, vb + i, vf + 4 + i)
    stamp(a, cfg, 76)
    stamp_store(a, cfg, [(10, 76)], vt)
    if BMODE != 'late': a('s_barrier')
    if cfg.get('b4', 1): a('s_barrier')
    if cfg.get('f2', 1):
        flagpoll(a, f'buffer_load_dword v{vf+7}, v{vf+6}, {sr(S_WS,4)}, s35 offen sc1', [vf + 7], vt, sCnt, 'pf2', sleep=cfg.get('f2sleep', 1))
        if cfg.get('d2'): a(f's_sleep {cfg["d2"]}')
    stamp(a, cfg, 78)
    poll(a, [f'buffer_load_dwordx4 {vr(vY+4*k,4)}, v{vYa}, {sr(S_WS,4)}, s{24+k//4} offen offset:{(k%4)*1024} sc1' for k in range(16)],
         [vY + 4 * k for k in range(16)], vt, sCnt, name='py', sleep=cfg.get('ysleep', 1))
    if cfg.get('prof'): a(f's_sub_u32 s36, {POLL_MAX}, s{sCnt}')
    sumup(vf, 16, vY)
    xsum(vf)
    for i in range(2):
        rnd_bf16(a, vf + i, vf + i, vf + 4 + i)
        a(f'v_mul_f32 v{vf+i}, s{sG}, v{vf+i}')
        rnd_bf16(a, vf + i, vf + i, vf + 4 + i)
        a(f'v_add_f32 v{vf+i}, v{vf+i}, v{vb+i}')
    a(f'v_cvt_pk_bf16_f32 v{vt}, v{vf}, v{vf+1}')
    a(f's_and_b64 exec, s[{sEX}:{sEX+1}], 15')
    a(f'buffer_store_dword v{vt}, v{vYa}, {sr(sOUT,4)}, s{sT2} offen')
    a('s_mov_b64 exec, -1')
    if WARM:
        a(f's_cmp_lg_u32 s{sDry}, 0')
        a(f's_cbranch_scc1 {Lreal}')
    stamp(a, cfg, 76)
    stamp_store(a, cfg, [(6, 76), (23, 78), (24, 36)], vt + 2)
    stamp_flush(a, cfg, [13, 14, 15, 10, 6, 23, 24], vt + 2)
    a('s_endpgm')
    a.label(Lnofin)
    if cfg.get('prof') or BMODE == 'late':
        a('s_barrier')
        if BMODE == 'late': bstore()
        stamp_flush(a, cfg, [13, 14, 15], vt)
    a('s_endpgm')
    return V.n


def gen(cfg):
    a = Asm()
    a.raw(kernel_header(NAME))
    a('s_cmp_ge_u32 s2, 256')
    a('s_cbranch_scc1 L_end')
    a('s_load_dwordx16 s[16:31], s[0:1], 0')
    a('s_load_dwordx8 s[32:39], s[0:1], 64')
    a('s_load_dwordx2 s[40:41], s[0:1], 96')
    a('v_lshrrev_b32 v1, 6, v0')
    a('v_and_b32 v0, 63, v0')
    a(f'v_readfirstlane_b32 s{S_WAVE}, v1')
    a(f's_mov_b32 s{S_SELLO}, 0x05040100')
    a(f's_mov_b32 s{S_SELHI}, 0x07060302')
    a('s_waitcnt lgkmcnt(0)')
    srd(a, S_WS, P_WS, WS_SIZE)
    a(f's_cmp_eq_u32 s{S_WAVE}, 2')
    a('s_cbranch_scc1 L_auxA')
    a(f's_cmp_eq_u32 s{S_WAVE}, 3')
    a('s_cbranch_scc1 L_auxB')
    n0 = gen_stream(a, cfg)
    a.label('L_auxA')
    n1 = gen_auxA(a, cfg)
    a.label('L_auxB')
    n2 = gen_auxB(a, cfg)
    a.label('L_end')
    a('s_endpgm')
    nv = max(n0, n1, n2)
    if cfg.get('prof'): nv = max(nv, PROFV + 1)
    acc_off = (nv + 3) // 4 * 4
    npre = cfg.get('npre', 4)
    print('vgprs', n0, n1, n2, 'agprs', 64 * npre, file=sys.stderr)
    hdr = open('gated_mix__gqa_block_cached__geglu_ffn__decode.s.ref').read().split('; @launch')[0]
    lds = cfg.get('lds', 16384)
    hdr += f'; @launch grid=(256,1,1) block=(256,1,1) lds={lds}\n.amdgcn_target "amdgcn-amd-amdhsa--gfx950"\n'
    return hdr + a.text() + kernel_desc(NAME, acc_off + 64 * npre, 102, acc_off)


if __name__ == '__main__':
    cfg = json.loads(sys.argv[2]) if len(sys.argv) > 2 else {}
    open(sys.argv[1], 'w').write(gen(cfg))
```

```python
import sys, struct, json
from asmlib import *
from ctl import aux_rounds

def f2u(f): return struct.unpack('<I', struct.pack('<f', f))[0]
C_SCALE = f2u(1.4426950408889634 / 16.0)

WS_QP = 0x0
WS_TK = 0x4e0000
TK_STRIDE = 4352
WS_PROF = 0x24000
WS_GP = 0x40000
WS_PLAN = 0x40000
WS_F1 = 0x50000
WS_F2 = 0x58000
WS_CAL = 0x48000
WS_IT = 0x80000
WS_ML = 0x60000
WS_O = 0x100000
WS_Y = 0x300000
WS_B = 0x400000
WS_SIZE = 0x500000

NAME = 'gated_mix__gqa_block_cached__geglu_ffn__decode_kernel'
P_X, P_K, P_V, P_WQ, P_WO, P_BX, P_WG, P_WU, P_WD, P_GW, P_OUT, P_DBG, P_WS = [16 + 2 * i for i in range(13)]
S_WS = 12
S_WAVE = 3
S_SELLO = 60; S_SELHI = 61
S_TA = 88; S_TB = 89
POLL_MAX = 1 << 14
FIN0 = 200
INVALID = 0x20000000
LDS_TAG = 1024
LDS_CTR = 1028
LDS_FLAG = 1032
LDS_REC = 2048
LDS_LIST = 3072
LDS_DONE = 1036
LDS_FLAG2 = 1040
LDS_REF = 1088
LDS_G = 1044
LDS_B = 16384
LDS_CMB = 4096
LDS_SC = 8192


class VM:
    def __init__(self, a):
        self.a = a; self.n = 0
    def issue(self, s):
        self.a(s); self.n += 1
        return self.n - 1
    def wait(self, idx):
        k = self.n - idx - 1
        assert 0 <= k <= 63
        self.a(f's_waitcnt vmcnt({k})')


def srd(a, d, p, nbytes):
    a(f's_mov_b32 s{d}, s{p}')
    a(f's_mov_b32 s{d+1}, s{p+1}')
    a(f's_mov_b32 s{d+2}, {nbytes:#x}')
    a(f's_mov_b32 s{d+3}, 0x00020000')


def dpp(op, d, s0, s1, ctrl):
    return f'{op}_dpp v{d}, v{s0}, v{s1} {ctrl} row_mask:0xf bank_mask:0xf'


def xlane_reduce(a, regs, tmps, op, steps):
    n = len(regs)
    for st in steps:
        if st in ('x1', 'x2', 'r4', 'r8'):
            ctrl = {'x1': 'quad_perm:[1,0,3,2]', 'x2': 'quad_perm:[2,3,0,1]', 'r4': 'row_ror:4', 'r8': 'row_ror:8'}[st]
            if n < 3: a('s_nop 1')
            for r in regs:
                a(dpp(op, r, r, r, ctrl))
        else:
            ins = 'v_permlane16_swap_b32' if st == 'p16' else 'v_permlane32_swap_b32'
            for r, t in zip(regs, tmps):
                a(f'v_mov_b32 v{t}, v{r}')
            a('s_nop 1')
            for r, t in zip(regs, tmps):
                a(f'{ins} v{r}, v{t}')
            if n < 2: a('s_nop 0')
            for r, t in zip(regs, tmps):
                a(f'{op} v{r}, v{r}, v{t}')


def tagB(a):
    a(f's_mul_i32 s{S_TB}, s{S_TA}, 0x9e3779b1')
    a(f's_add_u32 s{S_TB}, s{S_TB}, 0x7f4a7c15')


def poll(a, loads, chunks, vt, scnt, name='poll', sleep=1):
    L = a.newlabel(name); D = a.newlabel(name + '_done')
    a(f's_mov_b32 s{scnt}, {POLL_MAX}')
    a.label(L)
    for l in loads: a(l)
    n = len(chunks)
    for i, c in enumerate(chunks):
        if i % 4 == 0:
            a(f's_waitcnt vmcnt({max(0, n - i - 4)})')
        a(f'v_xor_b32 v{vt+1}, s{S_TA}, v{c+1}')
        a(f'v_xor_b32 v{vt+2}, s{S_TB}, v{c+3}')
        if i == 0: a(f'v_or_b32 v{vt}, v{vt+1}, v{vt+2}')
        else: a(f'v_or3_b32 v{vt}, v{vt}, v{vt+1}, v{vt+2}')
    a(f'v_cmp_ne_u32 vcc, 0, v{vt}')
    a('s_mov_b64 exec, vcc')
    a(f's_cbranch_execz {D}')
    a(f's_sub_u32 s{scnt}, s{scnt}, 1')
    a(f's_cbranch_scc1 {D}')
    if sleep: a(f's_sleep {sleep}')
    a(f's_branch {L}')
    a.label(D)
    a('s_mov_b64 exec, -1')


def poll_pipe(a, nsets, loads, chunks, on_new, vt, scnt, sP, sQ, sEX, sDry, name='pp', gap=6, thr=0, slp=0, skipnew=False):
    L = a.newlabel(name); D = a.newlabel(name + '_done')
    n = len(loads(0))
    a(f's_mov_b64 s[{sP}:{sP+1}], s[{sEX}:{sEX+1}]')
    a(f's_mov_b64 exec, s[{sEX}:{sEX+1}]')
    a(f's_cmp_eq_u32 s{sDry}, 0')
    a(f's_cselect_b32 s{scnt}, {POLL_MAX}, 0')
    for s in range(nsets):
        for l in loads(s): a(l)
        if gap and s < nsets - 1: a(f's_sleep {gap}')
    a.label(L)
    for s in range(nsets):
        ch = chunks(s)
        for i, c in enumerate(ch):
            if i % 4 == 0:
                a(f's_waitcnt vmcnt({(nsets - 1) * n + max(0, n - i - 4)})')
            a(f'v_xor_b32 v{vt+1}, s{S_TA}, v{c+1}')
            a(f'v_xor_b32 v{vt+2}, s{S_TB}, v{c+3}')
            if i == 0: a(f'v_or_b32 v{vt}, v{vt+1}, v{vt+2}')
            else: a(f'v_or3_b32 v{vt}, v{vt}, v{vt+1}, v{vt+2}')
        a(f'v_cmp_ne_u32 vcc, 0, v{vt}')
        a(f's_andn2_b64 exec, s[{sP}:{sP+1}], vcc')
        a(f's_mov_b64 s[{sP}:{sP+1}], vcc')
        Ls = a.newlabel(name + '_sk')
        if skipnew:
            a(f's_or_b32 s{sQ}, exec_lo, exec_hi')
            a(f's_or_b32 s{sQ}, s{sQ}, s{sDry}')
            a(f's_cbranch_scc0 {Ls}')
        on_new(s)
        a.label(Ls)
        a(f's_mov_b64 exec, s[{sP}:{sP+1}]')
        a(f's_or_b32 s{sQ}, s{sP}, s{sP+1}')
        a(f's_or_b32 s{sQ}, s{sQ}, s{sDry}')
        a(f's_cbranch_scc0 {D}')
        if slp:
            Ln = a.newlabel(name + '_ns')
            a(f's_bcnt1_i32_b64 s{sQ}, s[{sP}:{sP+1}]')
            a(f's_cmp_le_u32 s{sQ}, {thr}')
            a(f's_cbranch_scc1 {Ln}')
            a(f's_sleep {slp}')
            a.label(Ln)
        for l in loads(s): a(l)
    a(f's_sub_u32 s{scnt}, s{scnt}, 1')
    a(f's_cbranch_scc0 {L}')
    a.label(D)
    a(f's_mov_b64 exec, s[{sEX}:{sEX+1}]')


def flagpoll(a, load, regs, vt, scnt, name, sleep=1, mask=None):
    L = a.newlabel(name); D = a.newlabel(name + '_done')
    a(f's_mov_b32 s{scnt}, {POLL_MAX}')
    if mask: a(f's_mov_b64 exec, {mask}')
    a.label(L)
    a(load)
    a('s_waitcnt vmcnt(0)')
    a(f'v_xor_b32 v{vt}, s{S_TA}, v{regs[0]}')
    for r in regs[1:]:
        a(f'v_xor_b32 v{vt+1}, s{S_TA}, v{r}')
        a(f'v_or_b32 v{vt}, v{vt}, v{vt+1}')
    a(f'v_cmp_ne_u32 vcc, 0, v{vt}')
    a('s_mov_b64 exec, vcc')
    a(f's_cbranch_execz {D}')
    a(f's_sub_u32 s{scnt}, s{scnt}, 1')
    a(f's_cbranch_scc1 {D}')
    if sleep: a(f's_sleep {sleep}')
    a(f's_branch {L}')
    a.label(D)
    a('s_mov_b64 exec, -1')


def mkchunks(a, dst, vals):
    for i, v in enumerate(vals):
        a(f'v_mov_b32 v{dst+2*i}, v{v}')
        a(f'v_mov_b32 v{dst+2*i+1}, s{S_TA if i % 2 == 0 else S_TB}')


def stamp(a, cfg, sreg):
    if cfg.get('prof'): a(f's_memrealtime s[{sreg}:{sreg+1}]')

PROFV = 227
class Prof:
    slots = 0
def stamp_store(a, cfg, pairs, vt):
    if not cfg.get('prof'): return
    a('s_waitcnt lgkmcnt(0)')
    for slot, sreg in pairs:
        a(f'v_writelane_b32 v{PROFV}, s{sreg}, {slot}')

def stamp_flush(a, cfg, slots, vt):
    if not cfg.get('prof'): return
    m = sum(1 << s for s in slots)
    a(f's_lshl_b32 s78, s2, 7')
    a(f's_add_u32 s78, s78, {WS_PROF:#x}')
    a(f'v_lshlrev_b32 v{vt}, 2, v0')
    a(f's_mov_b32 exec_lo, {m:#x}')
    a('s_mov_b32 exec_hi, 0')
    a(f'buffer_store_dword v{PROFV}, v{vt}, s[{S_WS}:{S_WS+3}], s78 offen')
    a('s_mov_b64 exec, -1')


DEF_MAP = 'v t1 t0 w3 t2 t3 t4 t5 w0 w1 w2 w4 w5 w6 w7'
def map_cols(cfg):
    f = cfg.get('map', DEF_MAP).split()
    assert len(f) == 15 and f[12:] == ['w5', 'w6', 'w7']
    cols = {}
    for b, e in enumerate(f):
        for n in e.split('^'):
            cols[n] = cols.get(n, 0) ^ (1 << (13 + b))
    names = ['v'] + [f't{i}' for i in range(6)] + [f'w{i}' for i in range(8)]
    seen = set()
    for h in range(1 << 15):
        x = 0
        for i, n in enumerate(names):
            if h >> i & 1: x ^= cols[n]
        seen.add(x)
    assert len(seen) == 1 << 15
    return cols
def tconst(cols, t):
    x = 0
    for i in range(6):
        if t >> i & 1: x ^= cols[f't{i}']
    return x
def runs(cl):
    out = []; i = 0
    while i < len(cl):
        c = cl[i]
        if c & (c - 1):
            out.append((i, None, c)); i += 1; continue
        n = 1
        while i + n < len(cl) and cl[i + n] == c << n: n += 1
        out.append((i, n, c.bit_length() - 1)); i += n
    return out
def smap(a, dst, src, cl, tmp, first=True):
    for st, n, o in runs(cl):
        d = dst if first else tmp
        if n is None:
            a(f's_bitcmp1_b32 s{src}, {st}')
            a(f's_cselect_b32 s{d}, {o:#x}, 0')
        else:
            a(f's_bfe_u32 s{d}, s{src}, {(n << 16) | st:#x}')
            a(f's_lshl_b32 s{d}, s{d}, {o}')
        if not first: a(f's_xor_b32 s{dst}, s{dst}, s{tmp}')
        first = False
def vmap(a, dst, src, off, cl, tmp):
    for st, n, o in runs(cl):
        if n is None:
            a(f'v_bfe_i32 v{tmp}, v{src}, {off + st}, 1')
            a(f'v_and_b32 v{tmp}, {o:#x}, v{tmp}')
        else:
            a(f'v_bfe_u32 v{tmp}, v{src}, {off + st}, {n}')
            a(f'v_lshlrev_b32 v{tmp}, {o}, v{tmp}')
        a(f'v_xor_b32 v{dst}, v{dst}, v{tmp}')


def gen_stream(a, cfg):
    NA = 8
    cols = map_cols(cfg)
    flags = 'nt'
    V = Regs(1, 256)
    vKoff = [V.alloc(), V.alloc()]; vVoff = [V.alloc(), V.alloc()]; vOo = [V.alloc(), V.alloc()]
    vm = V.alloc(); vl = V.alloc(); vt0 = V.alloc(); vt1 = V.alloc(); valpha = V.alloc(); vmc = V.alloc()
    vc = V.alloc(); vg = V.alloc(); vRa = V.alloc()
    vTk = V.alloc(); vOne = V.alloc()
    vIt = V.alloc(); vF1 = V.alloc(); vZero = V.alloc()
    vTbl = V.alloc(); vSa = V.alloc(); vSb = V.alloc(); vSr = V.alloc()
    vAd = V.alloc(2, 2)
    vRec = V.alloc(2, 2)
    vSc = V.alloc(2, 2)
    vRef = V.alloc(4, 4)
    vmask = V.alloc(4, 4)
    vS = V.alloc(4, 4)
    vP = V.alloc(4, 4)
    vacc = V.alloc(8, 4)
    vA = V.alloc(16, 4)
    vQ = V.alloc(16, 4)
    vB = [V.alloc(32, 4) for _ in range(4)]
    sK = 4; sVv = 8
    sY, sSl, sThf, sThx = 16, 17, 18, 19
    sNom = 20; sPend = 21; sE = 22; sD = 23; sG = [24, 25, 26, 27]; sNg = 28; sL = 29
    sMode = [30, 32, 34, 36]; sCur = 38; sMf = 40; sMx = 60
    sN = 42; sCf = 43; sMk = 44; sCx = 46
    sC = 47; sTmp = 48; sBase = 49; sT2 = 52; sI = 53
    sCtr = 54; sF1 = 55; sTk = 56
    FS = cfg.get('fs', 2); B0q = int(cfg.get('b0', 2.14) / 4 * 25600)
    GF = cfg.get('gf', -14); GX = cfg.get('gx', 25)
    smap(a, sBase, 2, [cols[f'w{i}'] for i in range(8)], sTmp)
    smap(a, sBase, S_WAVE, [cols['v']], sTmp, first=False)
    srd(a, sK, P_K, 0x10000000)
    a(f'v_and_b32 v{vc}, 15, v0')
    a(f'v_lshrrev_b32 v{vg}, 4, v0')
    CM = [[0, 1, 2, 4], [5, 6, 7, 3]]
    def chunkoff(dst, cm, qf, sf, rowf):
        def gather(d, fl, t):
            first = True
            for lb, ob, n in fl:
                r = d if first else t
                a(f'v_bfe_u32 v{r}, v0, {lb}, {n}')
                if first:
                    if ob: a(f'v_lshlrev_b32 v{d}, {ob}, v{d}')
                else:
                    a(f'v_lshl_or_b32 v{d}, v{t}, {ob}, v{d}')
                first = False
        gather(vt0, [(l, o + 2, n) for l, o, n in qf], vt1)
        gather(valpha, [(l, o + 4, n) for l, o, n in sf] + [(rowf, 11, 2)], vt1)
        for hf in range(2):
            tb = sum(cm[hf][i] << (4 * i) for i in range(4))
            a(f's_mov_b32 s{sTmp}, {tb:#x}')
            a(f'v_lshrrev_b32 v{dst[hf]}, v{vt0}, s{sTmp}')
            a(f'v_and_b32 v{dst[hf]}, 15, v{dst[hf]}')
            a(f'v_lshl_or_b32 v{dst[hf]}, v{dst[hf]}, 6, v{valpha}')
    KSC = ([(1, 0, 1), (4, 1, 1)], [(0, 0, 1), (5, 1, 1)])
    VSC = ([(1, 0, 2)], [(0, 0, 1), (3, 1, 1)])
    KMF, KMX, VMF, VMX = 0xcccc0000, 0x0000cccc, 0xc0c0c0c0, 0x0c0c0c0c
    def setmasks(mf, mx):
        for k in range(2):
            a(f's_mov_b32 s{sMf+k}, {mf:#x}')
            a(f's_mov_b32 s{sMx+k}, {mx:#x}')
    chunkoff(vKoff, CM, KSC[0], KSC[1], 2)
    def R(file, base, n): return f'{file}[{base}:{base+n-1}]'
    def issue(file, base, so, ad, srdn):
        for j in range(8):
            a(f'buffer_load_dwordx4 {R(file,base+4*j,4)}, v{ad[j&1]}, {sr(srdn,4)}, s{so} offen offset:{(j>>1)*512} {flags}')
    PST = [66 + 2 * i for i in range(11)] + [90 + 2 * i for i in range(6)]
    pst_n = [0]
    def pst():
        if cfg.get('prof') and pst_n[0] < len(PST):
            r = PST[pst_n[0]]; pst_n[0] += 1
            a(f's_memrealtime s[{r}:{r+1}]')
    a('s_barrier')
    pst()
    PD = cfg.get('pd', 4)
    seq = [('a', 32 * i) for i in range(NA)] + [('v', vB[s]) for s in range(4)]
    for i, (file, kb) in enumerate(seq):
        a(f's_xor_b32 s{sTmp}, s{sBase}, {tconst(cols, i):#x}')
        if i >= PD:
            a(f's_waitcnt vmcnt({8 * PD - 8})')
            pst()
        issue(file, kb, sTmp, vKoff, sK)
        if i == PD - 1:
            srd(a, sVv, P_V, 0x10000000)
            a(f's_mov_b32 s{sC}, {C_SCALE:#x}')
            chunkoff(vVoff, CM, VSC[0], VSC[1], 4)
            for hf in range(2):
                a(f'v_bfe_u32 v{vOo[hf]}, v{vVoff[hf]}, 8, 1')
                a(f'v_lshlrev_b32 v{vOo[hf]}, 11, v{vOo[hf]}')
                a(f'v_bfe_u32 v{vt0}, v{vVoff[hf]}, 4, 4')
                a(f'v_lshl_or_b32 v{vOo[hf]}, v{vt0}, 6, v{vOo[hf]}')
                a(f'v_lshl_or_b32 v{vOo[hf]}, v{vg}, 4, v{vOo[hf]}')
            a(f'v_lshrrev_b32 v{vt1}, 2, v{vc}')
            a(f'v_and_b32 v{vt0}, 2, v0')
            a(f'v_lshlrev_b32 v{vt0}, 3, v{vt0}')
            a(f'v_mov_b32 v{vl}, 0xffff')
            a(f'v_lshlrev_b32 v{vt0}, v{vt0}, v{vl}')
            for j in range(4):
                a(f'v_cmp_eq_u32 vcc, {j}, v{vt1}')
                a('s_nop 1')
                a(f'v_cndmask_b32 v{vmask+j}, 0, v{vt0}, vcc')
            a(f'v_mov_b32 v{vm}, 0xf149f2ca')
            a(f'v_mov_b32 v{vl}, 0')
            for k in range(8):
                a(f'v_mov_b32 v{vacc+k}, 0')
            a(f's_lshl_b32 s{sT2}, s{S_WAVE}, 9')
            a(f's_add_u32 s{sT2}, s{sT2}, {LDS_REC}')
            a(f'v_lshlrev_b32 v{vRa}, 3, v0')
            a(f'v_add_u32 v{vRa}, s{sT2}, v{vRa}')
            a(f'v_mov_b32 v{vOne}, 1')
            a(f'v_mov_b32 v{vTbl}, s{sBase}')
            vmap(a, vTbl, 0, 0, [cols[f't{k}'] for k in range(6)], vt0)
            a(f's_lshl_b32 s{sT2}, s{S_WAVE}, 12')
            a(f's_add_u32 s{sT2}, s{sT2}, {LDS_SC}')
            a(f'v_and_b32 v{vSr}, 1, v0')
            a(f'v_lshlrev_b32 v{vSr}, 5, v{vSr}')
            a(f'v_lshl_add_u32 v{vSr}, v{vg}, 3, v{vSr}')
            a(f'v_add_u32 v{vSr}, s{sT2}, v{vSr}')
            a(f'v_bfe_u32 v{vSa}, v0, 2, 1')
            a(f'v_lshlrev_b32 v{vSa}, 5, v{vSa}')
            a(f'v_lshl_add_u32 v{vSa}, v{vg}, 3, v{vSa}')
            a(f'v_bfe_u32 v{vSb}, v0, 3, 1')
            a(f'v_lshl_add_u32 v{vSa}, v{vSb}, 2, v{vSa}')
            a(f'v_add_u32 v{vSa}, s{sT2}, v{vSa}')
            a(f'v_add_u32 v{vSb}, {20 * 64}, v{vSa}')
            for k in range(16):
                a(f'v_mov_b32 v{vQ+k}, 0')
            a(f's_mov_b32 s{sMk}, 0x00ff00ff')
            a(f's_mov_b32 s{sMk+1}, 0x00ff00ff')
            a(f'v_mov_b32 v{vZero}, 0')
            a(f's_lshl_b32 s{sF1}, s2, 5')
            a(f's_add_u32 s{sF1}, s{sF1}, s{S_WAVE}')
            a(f's_lshl_b32 s{sF1}, s{sF1}, 2')
            a(f's_add_u32 s{sF1}, s{sF1}, {WS_F1:#x}')
            a(f's_mov_b32 s{sN}, {NA + 4}')
            for r in [sY, sSl, sPend, sD, sCf, sCx] + sG + list(range(sMode[0], sCur + 2)): a(f's_mov_b32 s{r}, 0')
            a(f's_mov_b32 s{sThf}, 0x7fffffff')
            a(f's_mov_b32 s{sThx}, 0x80000000')
            a(f's_mov_b32 s{sNom}, {NA * B0q}')
            a(f's_mov_b32 s{sNg}, {NA}')
            setmasks(KMF, KMX)
    a(f'v_bfe_u32 v{vt1}, v0, 2, 1')
    a(f'v_lshlrev_b32 v{vt1}, 9, v{vt1}')
    a(f's_movk_i32 s{sTmp}, 0x1ff')
    a(f'v_and_or_b32 v{vt0}, v{vKoff[0]}, s{sTmp}, v{vt1}')
    a(f'v_and_or_b32 v{valpha}, v{vKoff[1]}, s{sTmp}, v{vt1}')
    a(f'v_mov_b32 v{vt1}, 0')
    stamp(a, cfg, 62)
    a(f's_mov_b64 exec, s[{sMk}:{sMk+1}]')
    a('s_barrier')
    a(f'ds_read_b128 {vr(vQ,4)}, v{vt0}')
    a(f'ds_read_b128 {vr(vQ+4,4)}, v{valpha}')
    a(f's_not_b64 exec, exec')
    a(f'ds_read_b128 {vr(vQ+8,4)}, v{vt0}')
    a(f'ds_read_b128 {vr(vQ+12,4)}, v{valpha}')
    a('s_mov_b64 exec, -1')
    a(f'ds_read_b32 v{vt1}, v{vt1} offset:{LDS_TAG}')
    a('s_waitcnt lgkmcnt(0)')
    a(f'v_readfirstlane_b32 s{S_TA}, v{vt1}')
    pst()

    def relayout(b, pairs):
        a(f's_xor_b64 exec, s[{sCur}:{sCur+1}], s[{sMode[b]}:{sMode[b]+1}]')
        for x, y in pairs: a(f'v_swap_b32 v{x}, v{y}')
        a(f's_mov_b64 s[{sCur}:{sCur+1}], s[{sMode[b]}:{sMode[b]+1}]')
        a('s_mov_b64 exec, -1')
    QP = [(vQ + k, vQ + 4 + k) for k in range(4)] + [(vQ + 8 + k, vQ + 12 + k) for k in range(4)]
    AP = [(vacc + k, vacc + 4 + k) for k in range(4)]
    def ctl_pre(b):
        gb = sG[b]
        a(f's_lshr_b32 s{sE}, s{sNom}, 8')
        a(f's_add_u32 s{sE}, s{sE}, s{S_TA}')
        a(f's_add_u32 s{sNom}, s{sNom}, {B0q}')
        a(f's_sub_u32 s{sPend}, s{sPend}, s{gb}')
        a(f's_add_u32 s{sD}, s{sD}, s{gb}')
        a(f's_add_u32 s{sE}, s{sE}, s{sD}')
        a(f's_ashr_i32 s{sL}, s{sY}, 8')
        a(f's_add_u32 s{sY}, s{sY}, s{sSl}')
        a(f's_sub_u32 s{sL}, s{sPend}, s{sL}')
    def ctl_post(b, off):
        gb = sG[b]; mk = sMode[b]
        a('s_waitcnt lgkmcnt(0)')
        a(f's_sub_u32 s{sE}, s58, s{sE}')
        a(f's_ashr_i32 s{sE}, s{sE}, {FS}')
        a(f's_add_u32 s{sD}, s{sD}, s{sE}')
        a(f's_add_u32 s{sE}, s{sD}, s{sL}')
        a(f's_cmp_gt_i32 s{sE}, s{sThf}')
        a(f's_cselect_b64 s[{mk}:{mk+1}], s[{sMf}:{sMf+1}], 0')
        a(f's_cselect_b32 s{gb}, {GF}, 0')
        if cfg.get('prof'): a(f's_addc_u32 s{sCf}, s{sCf}, 0')
        a(f's_cmp_lt_i32 s{sE}, s{sThx}')
        a(f's_cselect_b64 s[{mk}:{mk+1}], s[{sMx}:{sMx+1}], s[{mk}:{mk+1}]')
        a(f's_cselect_b32 s{gb}, {GX}, s{gb}')
        if cfg.get('prof'): a(f's_addc_u32 s{sCx}, s{sCx}, 0')
        if cfg.get('rndmode'):
            a(f's_lshr_b32 s{sE}, s58, 1')
            a(f's_bitcmp1_b32 s{sE}, 0')
            a(f's_cselect_b64 s[{mk}:{mk+1}], s[{sMf}:{sMf+1}], 0')
            a(f's_bitcmp1_b32 s{sE}, 1')
            a(f's_cselect_b64 s[{mk}:{mk+1}], s[{sMx}:{sMx+1}], s[{mk}:{mk+1}]')
        a(f'v_cndmask_b32 v{vAd}, v{off[0]}, v{off[1]}, s[{mk}:{mk+1}]')
        a(f'v_cndmask_b32 v{vAd+1}, v{off[1]}, v{off[0]}, s[{mk}:{mk+1}]')
        a(f's_add_u32 s{sPend}, s{sPend}, s{gb}')
    def rec():
        a(f'v_mov_b32 v{vRec}, s{sNg}')
        a(f'v_mov_b32 v{vRec+1}, s{sD}')
        a(f'ds_write_b64 v{vRa}, {vr(vRec,2)}')
        a(f's_add_u32 s{sNg}, s{sNg}, 1')
    def refread():
        a(f'ds_read_b128 {vr(vRef,4)}, v{vZero} offset:{LDS_REF}')
    def reftake():
        a('s_waitcnt lgkmcnt(0)')
        for k in range(4): a(f'v_readfirstlane_b32 s{sY+k}, v{vRef+k}')
        a(f's_mul_i32 s{sL}, s{sSl}, s{sNg}')
        a(f's_add_u32 s{sY}, s{sY}, s{sL}')

    def pmask():
        for i in range(4):
            a(f'v_cvt_pk_bf16_f32 v{vP+i}, v{vP+i}, v{vP+i}')
        for i in range(4):
            for j in range(4):
                a(f'v_and_b32 v{vA+4*i+j}, v{vP+i}, v{vmask+j}')
    def pv(file, vb):
        for i in range(4):
            for hf in range(2):
                a(f'v_mfma_f32_16x16x32_bf16 {vr(vacc+4*hf,4)}, {vr(vA+4*i,4)}, {R(file,vb+4*(2*i+hf),4)}, {vr(vacc+4*hf,4)}')
    def f1store():
        if not cfg.get('f1', 1): return
        a('s_mov_b64 exec, 1')
        a(f'buffer_store_dword v{vF1}, v{vZero}, {sr(S_WS,4)}, s{sF1} offen sc1')
        a('s_mov_b64 exec, -1')
    def qk1(file, kb):
        first = [True, True]
        for cg in range(2):
            for half in range(2):
                for aa in range(2):
                    j = cg * 4 + aa * 2 + half
                    d = vS if aa == 0 else vP
                    cc = '0' if first[aa] else vr(d, 4)
                    first[aa] = False
                    a(f'v_mfma_f32_16x16x32_bf16 {vr(d,4)}, {R(file,kb+4*j,4)}, {vr(vQ+8*cg+4*half,4)}, {cc}')
    def kpost(va, off):
        for d, t in ((vS, vt0), (vP, vt1)):
            a(f'v_mov_b32_dpp v{t}, v{d} quad_perm:[0,0,0,0] row_mask:0xf bank_mask:0xf')
        for i in range(1, 4):
            for d, t in ((vS, vt0), (vP, vt1)):
                a(f'v_add_f32_dpp v{t}, v{d+i}, v{t} quad_perm:[{i},{i},{i},{i}] row_mask:0xf bank_mask:0xf')
        a(f'v_cvt_pk_bf16_f32 v{vSc}, v{vt0}, v{vt1}')
        a(f'v_max3_f32 v{vm}, v{vt0}, v{vt1}, v{vm}')
        a(f'ds_write_b32 v{va}, v{vSc} offset:{off}')
    def kbody(b, va, off, nxt='K', pro=False, ref=False):
        a(f'v_readlane_b32 s{sI}, v{vTbl}, s{sN}')
        if not pro: relayout(b, QP)
        ctl_pre(b)
        a(f's_waitcnt vmcnt(24)')
        a('s_memrealtime s[58:59]')
        qk1('v', vB[b])
        a(f's_add_u32 s{sN}, s{sN}, 1')
        if pro and cfg.get('rndmode'):
            a('s_waitcnt lgkmcnt(0)')
            issue('v', vB[b], sI, vKoff, sK)
        else:
            ctl_post(b, vKoff if nxt == 'K' else vVoff)
            issue('v', vB[b], sI, [vAd, vAd + 1], sK if nxt == 'K' else sVv)
        kpost(va, off)
        rec()
        if ref: refread()
    def atile(i):
        qk1('a', 32 * i)
        a('s_nop 7')
        kpost(vSa, 64 * i)
    def vbody(b, off, last=False, ref=False):
        a('s_waitcnt lgkmcnt(0)')
        a(f'v_lshlrev_b32 v{vS}, 16, v{vSc}')
        a(f'v_and_b32 v{vS+1}, 0xffff0000, v{vSc}')
        a(f'v_lshlrev_b32 v{vS+2}, 16, v{vSc+1}')
        a(f'v_and_b32 v{vS+3}, 0xffff0000, v{vSc+1}')
        if off is not None:
            a(f'ds_read_b64 {vr(vSc,2)}, v{vSb} offset:{off}')
        if ref: refread()
        for i in range(4):
            a(f'v_fma_f32 v{vP+i}, v{vS+i}, s{sC}, -v{vmc}')
        for i in range(4):
            a(f'v_exp_f32 v{vP+i}, v{vP+i}')
        if not last:
            a(f'v_readlane_b32 s{sI}, v{vTbl}, s{sN}')
        else:
            a('s_nop 0')
        a(f'v_add_f32 v{vt0}, v{vP}, v{vP+1}')
        a(f'v_add_f32 v{vt1}, v{vP+2}, v{vP+3}')
        a(f'v_add_f32 v{vl}, v{vl}, v{vt0}')
        a(f'v_add_f32 v{vl}, v{vl}, v{vt1}')
        pmask()
        relayout(b, AP)
        if not last:
            ctl_pre(b)
            a(f's_waitcnt vmcnt(24)')
            a('s_memrealtime s[58:59]')
            a(f's_add_u32 s{sN}, s{sN}, 1')
            pv('v', vB[b])
            ctl_post(b, vVoff)
            issue('v', vB[b], sI, [vAd, vAd + 1], sVv)
            rec()
        else:
            if b == cfg.get('f1b', 1): f1store()
            if b == 3:
                xlane_reduce(a, [vl], [vt0], 'v_add_f32', ['p32', 'p16'])
                a(f'v_lshlrev_b32 v{vt0}, 4, v0')
                a(f's_lshl_b32 s{sT2}, s2, 7')
                a(f's_add_u32 s{sT2}, s{sT2}, {WS_ML:#x}')
                a(f's_lshl_b32 s{sBase}, s2, 12')
                a(f's_add_u32 s{sBase}, s{sBase}, {WS_O:#x}')
                a(f'v_mov_b32 v{vRa}, {LDS_CTR}')
            a(f's_waitcnt vmcnt({24 - 8 * b})')
            pv('v', vB[b])
    pat = cfg.get('pat', '0123ab0c1d2e3f0g1h23')
    kt = NA
    for ci, ch in enumerate(pat):
        if ch in '0123':
            kbody(int(ch), vSa, 64 * kt, pro=True, ref=(ci == len(pat) - 1)); kt += 1
        else: atile(ord(ch) - ord('a'))
        if ch in '13bdf': pst()
        if kt == NA + 1 and ch == '0':
            tagB(a)
            a(f'v_mov_b32 v{vF1}, s{S_TA}')
    assert kt == 20 and pat[-1] == '3'
    LK = a.newlabel('st_loopK'); LV = a.newlabel('st_loopV')
    def itstamp():
        if cfg.get('prof'):
            a('s_mov_b32 m0, s57')
            a('s_add_u32 s57, s57, 1')
            a(f'v_writelane_b32 v{vIt}, s58, m0')
    if cfg.get('prof'):
        a('s_mov_b32 s57, 0')
        a(f'v_mov_b32 v{vIt}, 0')
        a('s_waitcnt lgkmcnt(0)')
        for k in range(pst_n[0]):
            a(f'v_writelane_b32 v{vIt}, s{PST[k]}, {40 + k}')
    a.label(LK)
    itstamp()
    reftake()
    for b in range(4): kbody(b, vSb, 64 * b, ref=(b == 3))
    a(f'v_add_u32 v{vSb}, 256, v{vSb}')
    a(f's_cmp_lt_u32 s{sN}, 64')
    a(f's_cbranch_scc1 {LK}')
    itstamp()
    reftake()
    a(f's_mov_b32 s{sN}, 0')
    setmasks(VMF, VMX)
    for b in range(4): kbody(b, vSb, 64 * b, 'V', ref=(b == 3))
    a(f's_mov_b64 s[{sCur}:{sCur+1}], 0')
    a(f'ds_read_b64 {vr(vSc,2)}, v{vSr}')
    a(f'v_mov_b32 v{vSb}, v{vSr}')
    xlane_reduce(a, [vm], [vt0], 'v_max_f32', ['r8', 'p32', 'p16'])
    a(f'v_cvt_pk_bf16_f32 v{vm}, v{vm}, v{vm}')
    a(f'v_lshlrev_b32 v{vm}, 16, v{vm}')
    a('s_mov_b32 vcc_lo, 0xaaaaaaaa')
    a('s_mov_b32 vcc_hi, 0xaaaaaaaa')
    a(f'v_readlane_b32 s{sMk}, v{vm}, 0')
    a(f'v_readlane_b32 s{sMk+1}, v{vm}, 4')
    a('s_nop 1')
    a(f'v_mov_b32 v{vm}, s{sMk}')
    a(f'v_mov_b32 v{vt0}, s{sMk+1}')
    a(f'v_cndmask_b32 v{vm}, v{vm}, v{vt0}, vcc')
    a(f'v_mul_f32 v{vmc}, s{sC}, v{vm}')
    a.label(LV)
    itstamp()
    reftake()
    for b in range(4): vbody(b, 64 * (b + 1), ref=(b == 3))
    a(f'v_add_u32 v{vSb}, 256, v{vSb}')
    a(f's_cmp_lt_u32 s{sN}, 64')
    a(f's_cbranch_scc1 {LV}')
    itstamp()
    for b in range(4): vbody(b, 64 * (b + 1) if b < 3 else None, last=True)
    a('s_mov_b64 exec, 1')
    a(f'ds_add_rtn_u32 v{vTk}, v{vRa}, v{vOne} offset:{LDS_DONE - LDS_CTR}')
    a(f's_mov_b64 exec, s[{sCur}:{sCur+1}]')
    a(f's_nop 4')
    for x, y in AP: a(f'v_swap_b32 v{x}, v{y}')
    a('s_mov_b64 exec, -1')
    L2nd = a.newlabel('st_2nd'); LB3 = a.newlabel('st_b3')
    a('s_waitcnt lgkmcnt(0)')
    a(f'v_readfirstlane_b32 s{sTk}, v{vTk}')
    a(f's_cmp_lg_u32 s{sTk}, 0')
    a(f's_cbranch_scc1 {L2nd}')
    a(f'v_mov_b32 v{vS}, v{vm}')
    a(f'v_mov_b32 v{vS+1}, v{vl}')
    a(f'v_mov_b32 v{vTk}, s{S_TA}')
    a(f'ds_write_b128 v{vt0}, {vr(vacc,4)} offset:{LDS_CMB}')
    a(f'ds_write_b128 v{vt0}, {vr(vacc+4,4)} offset:{LDS_CMB+1024}')
    a(f'ds_write_b64 v{vt0}, {vr(vS,2)} offset:{LDS_CMB+2048}')
    a(f'ds_write_b32 v{vRa}, v{vTk} offset:{LDS_FLAG2 - LDS_CTR}')
    a(f's_branch {LB3}')
    a.label(L2nd)
    Lw2 = a.newlabel('st_w2'); Lg2 = a.newlabel('st_g2')
    a(f's_mov_b32 s{sCtr}, {POLL_MAX}')
    a.label(Lw2)
    a(f'ds_read_b32 v{vTk}, v{vRa} offset:{LDS_FLAG2 - LDS_CTR}')
    a(f'ds_read_b64 {vr(vS,2)}, v{vt0} offset:{LDS_CMB+2048}')
    a(f'ds_read_b128 {vr(vA,4)}, v{vt0} offset:{LDS_CMB}')
    a(f'ds_read_b128 {vr(vA+4,4)}, v{vt0} offset:{LDS_CMB+1024}')
    a('s_waitcnt lgkmcnt(3)')
    a(f'v_readfirstlane_b32 s{sTk}, v{vTk}')
    a(f's_cmp_eq_u32 s{sTk}, s{S_TA}')
    a(f's_cbranch_scc1 {Lg2}')
    a(f's_sub_u32 s{sCtr}, s{sCtr}, 1')
    a(f's_cbranch_scc1 {Lg2}')
    a('s_waitcnt lgkmcnt(0)')
    a(f's_branch {Lw2}')
    a.label(Lg2)
    a('s_waitcnt lgkmcnt(2)')
    a(f'v_max_f32 v{vt1}, v{vm}, v{vS}')
    a(f'v_sub_f32 v{valpha}, v{vm}, v{vt1}')
    a(f'v_sub_f32 v{vmc}, v{vS}, v{vt1}')
    a(f'v_mul_f32 v{valpha}, s{sC}, v{valpha}')
    a(f'v_mul_f32 v{vmc}, s{sC}, v{vmc}')
    a(f'v_exp_f32 v{valpha}, v{valpha}')
    a(f'v_exp_f32 v{vmc}, v{vmc}')
    a(f'v_mov_b32 v{vm}, v{vt1}')
    a(f'v_mul_f32 v{vl}, v{vl}, v{valpha}')
    a(f'v_fmac_f32 v{vl}, v{vS+1}, v{vmc}')
    for i in range(8):
        qp = '[0,0,2,2]' if (i & 1) == 0 else '[1,1,3,3]'
        a(f'v_mul_f32_dpp v{vacc+i}, v{valpha}, v{vacc+i} quad_perm:{qp} row_mask:0xf bank_mask:0xf')
    a('s_waitcnt lgkmcnt(0)')
    for i in range(8):
        qp = '[0,0,2,2]' if (i & 1) == 0 else '[1,1,3,3]'
        a(f'v_fmac_f32_dpp v{vacc+i}, v{vmc}, v{vA+i} quad_perm:{qp} row_mask:0xf bank_mask:0xf')
    a(f'v_and_b32 v{vTk}, 1, v{vc}')
    a(f'v_cmp_eq_u32 vcc, 1, v{vTk}')
    a(f'v_mov_b32_dpp v{vP}, v{vm} quad_perm:[1,0,3,2] row_mask:0xf bank_mask:0xf')
    a(f'v_mov_b32_dpp v{vP+1}, v{vl} quad_perm:[1,0,3,2] row_mask:0xf bank_mask:0xf')
    a(f'v_mov_b32 v{vS+1}, s{S_TA}')
    a(f'v_mov_b32 v{vS+3}, s{S_TB}')
    a(f'v_cndmask_b32 v{vS}, v{vm}, v{vP+1}, vcc')
    a(f'v_cndmask_b32 v{vS+2}, v{vP}, v{vl}, vcc')
    mkchunks(a, vA, [vacc + i for i in range(8)])
    for i in range(4):
        a(f'buffer_store_dwordx4 {vr(vA+4*i,4)}, v{vOo[i>>1]}, {sr(S_WS,4)}, s{sBase} offen offset:{1024*(i&1)} sc1')
    a('s_mov_b64 exec, 0xff')
    a(f'buffer_store_dwordx4 {vr(vS,4)}, v{vt0}, {sr(S_WS,4)}, s{sT2} offen sc1')
    a('s_mov_b64 exec, -1')
    a.label(LB3)
    a(f'v_mov_b32 v{vt0}, 0')
    if cfg.get('prof'):
        a(f's_memrealtime s[58:59]')
    a('s_barrier')
    if cfg.get('prof'):
        a(f's_add_u32 s{sT2}, s{S_WAVE}, 4')
        a(f's_lshl_b32 s{sTmp}, s2, 5')
        a(f's_add_u32 s{sTmp}, s{sTmp}, s{sT2}')
        a(f's_lshl_b32 s{sTmp}, s{sTmp}, 2')
        a(f's_add_u32 s{sTmp}, s{sTmp}, {WS_PROF:#x}')
        a('s_waitcnt lgkmcnt(0)')
        a(f'v_mov_b32 v{vt1}, s58')
        a(f'buffer_store_dword v{vt1}, v{vt0}, {sr(S_WS,4)}, s{sTmp} offen')
        a(f'v_mov_b32 v{vt1}, s62')
        a(f'buffer_store_dword v{vt1}, v{vt0}, {sr(S_WS,4)}, s{sTmp} offen offset:28')
        a(f'v_writelane_b32 v{vIt}, s{sCf}, 62')
        a(f'v_writelane_b32 v{vIt}, s{sCx}, 63')
        a(f's_lshl_b32 s{sTmp}, s2, 1')
        a(f's_add_u32 s{sTmp}, s{sTmp}, s{S_WAVE}')
        a(f's_lshl_b32 s{sTmp}, s{sTmp}, 8')
        a(f's_add_u32 s{sTmp}, s{sTmp}, {WS_IT:#x}')
        a(f'v_lshlrev_b32 v{vt0}, 2, v0')
        a(f'buffer_store_dword v{vIt}, v{vt0}, {sr(S_WS,4)}, s{sTmp} offen')
    a('s_endpgm')
    return V.n


def gemv_pairs(a, vm, W, nrows, ndw, vX, acc, tmps, loads, first=True):
    for t in range(nrows // 2):
        if loads is not None:
            vm.wait(loads[2 * t + 1])
        for d in range(ndw):
            lo, hi = tmps[2 * d], tmps[2 * d + 1]
            a(f'v_perm_b32 v{lo}, v{W[2*t+1]+d}, v{W[2*t]+d}, s{S_SELLO}')
            a(f'v_perm_b32 v{hi}, v{W[2*t+1]+d}, v{W[2*t]+d}, s{S_SELHI}')
        for d in range(ndw):
            lo, hi = tmps[2 * d], tmps[2 * d + 1]
            c0 = '0' if (t == 0 and first) else f'v{acc[2*d]}'
            c1 = '0' if (t == 0 and first) else f'v{acc[2*d+1]}'
            a(f'v_dot2_f32_bf16 v{acc[2*d]}, v{lo}, v{vX+t}, {c0}')
            a(f'v_dot2_f32_bf16 v{acc[2*d+1]}, v{hi}, v{vX+t}, {c1}')
    a('s_nop 2')


def rnd_bf16(a, d, s, t):
    a(f'v_cvt_pk_bf16_f32 v{t}, v{s}, v{s}')
    a(f'v_lshlrev_b32 v{d}, 16, v{t}')


def ksplit_loads(a, vm, sX, sW, rowbytes, sKq, sColByte, vX, vW, vo1, vo2, vo3, sT, sT2):
    a(f'v_lshrrev_b32 v{vo1}, 3, v0')
    a(f'v_mul_u32_u24 v{vo2}, {14*rowbytes}, v{vo1}')
    a(f'v_and_b32 v{vo3}, 7, v0')
    a(f'v_lshl_add_u32 v{vo2}, v{vo3}, 4, v{vo2}')
    a(f's_mul_i32 s{sT2}, s{sKq}, {112*rowbytes}')
    a(f's_add_u32 s{sT2}, s{sT2}, s{sColByte}')
    lw = []
    for k in range(14):
        lw.append(vm.issue(f'buffer_load_dwordx4 {vr(vW+4*k,4)}, v{vo2}, {sr(sW,4)}, s{sT2} offen nt'))
        if k < 13: a(f's_add_u32 s{sT2}, s{sT2}, {rowbytes}')
        if k == 0:
            a(f'v_mul_u32_u24 v{vo3}, 28, v{vo1}')
            a(f's_mul_i32 s{sT}, s{sKq}, 224')
            vm.issue(f'buffer_load_dwordx4 {vr(vX,4)}, v{vo3}, {sr(sX,4)}, s{sT} offen')
            vm.issue(f'buffer_load_dwordx3 {vr(vX+4,3)}, v{vo3}, {sr(sX,4)}, s{sT} offen offset:16')
    return lw


def gen_auxA(a, cfg):
    V = Regs(1, 256)
    vt = V.alloc(8, 4)
    vX = V.alloc(8, 4)
    vacc = V.alloc(8, 4)
    vtmp = V.alloc(8, 4)
    vo1 = V.alloc(); vo2 = V.alloc(); vo3 = V.alloc(); vTag = V.alloc(); vOa = vTag; vYs = V.alloc()
    vCh = V.alloc(16, 4)
    vW = V.alloc(72, 4); vSet = vW
    vWp = V.alloc(64, 4)
    vOq = V.alloc(16, 4)
    vML = V.alloc(8, 4)
    sX = 4; sWQ = 8; sDBG = 44; sWO = 48
    sT = 52; sT2 = 53; sHead = 54; sJ = 55; sCnt = 56; sC = 57; sKq = 58; sCb = 59
    sPk = 80
    vm = VM(a)
    stamp(a, cfg, 62)
    srd(a, sX, P_X, 896)
    srd(a, sWQ, P_WQ, 448 * 8192)
    a(f's_lshr_b32 s{sHead}, s2, 5')
    a(f's_and_b32 s{sJ}, s2, 31')
    a(f's_and_b32 s{sKq}, s2, 3')
    a(f's_lshr_b32 s{sCb}, s2, 2')
    a(f's_lshl_b32 s{sCb}, s{sCb}, 7')
    lw = ksplit_loads(a, vm, sX, sWQ, 8192, sKq, sCb, vX, vW, vo1, vo2, vo3, sT, sT2)
    a('s_barrier')
    srd(a, sDBG, P_DBG, 256)
    srd(a, sWO, P_WO, 4096 * 896)
    a(f'v_mov_b32 v{vo3}, 0')
    vm.issue(f'buffer_load_dword v{vTag}, v{vo3}, {sr(sDBG,4)}, 0 offen sc1')
    gemv_pairs(a, vm, [vW + 4 * k for k in range(14)], 14, 4, vX, [vacc + i for i in range(8)], [vtmp + i for i in range(8)], lw)
    xlane_reduce(a, [vacc + i for i in range(8)], [vtmp + i for i in range(8)], 'v_add_f32', ['r8', 'p16', 'p32'])
    stamp(a, cfg, 64)
    a(f'v_lshlrev_b32 v{vo1}, 4, v0')
    a(f's_lshl_b32 s{sT}, s{sHead}, 14')
    a(f's_lshl_b32 s{sT2}, s{sKq}, 12')
    a(f's_add_u32 s{sT2}, s{sT2}, s{sT}')
    a(f's_and_b32 s{sC}, s{sCb}, 0x380')
    a(f's_lshl_b32 s{sC}, s{sC}, 2')
    a(f's_add_u32 s{sT2}, s{sT2}, s{sC}')
    L = a.newlabel('ptag'); Dn = a.newlabel('ptag_done')
    a(f's_mov_b32 s{sCnt}, {POLL_MAX}')
    a.label(L)
    a('s_waitcnt vmcnt(0)')
    a(f'v_readfirstlane_b32 s{S_TA}, v{vTag}')
    a(f's_cmp_lg_u32 s{S_TA}, 0')
    a(f's_cbranch_scc1 {Dn}')
    a(f's_sub_u32 s{sCnt}, s{sCnt}, 1')
    a(f's_cbranch_scc1 {Dn}')
    a('s_sleep 1')
    a(f'buffer_load_dword v{vTag}, v{vo3}, {sr(sDBG,4)}, 0 offen sc1')
    a(f's_branch {L}')
    a.label(Dn)
    tagB(a)
    stamp(a, cfg, 66)
    mkchunks(a, vCh, [vacc + i for i in range(8)])
    a('s_mov_b64 exec, 0xff')
    for c in range(4):
        a(f'buffer_store_dwordx4 {vr(vCh+4*c,4)}, v{vo1}, {sr(S_WS,4)}, s{sT2} offen offset:{128*c} sc1')
    a('s_mov_b64 exec, -1')
    a(f'v_lshrrev_b32 v{vo2}, 5, v0')
    a(f'v_lshlrev_b32 v{vo2}, 7, v{vo2}')
    a(f'v_and_b32 v{vt}, 7, v0')
    a(f'v_lshl_add_u32 v{vo2}, v{vt}, 4, v{vo2}')
    a(f'v_bfe_u32 v{vt}, v0, 3, 2')
    a(f'v_lshl_add_u32 v{vo2}, v{vt}, 2, v{vo2}')
    for kq in range(1, 4):
        a(f's_add_u32 s{80+kq}, s{sT}, {4096*kq}')
    loads = []
    for kq in range(4):
        for i in range(4):
            so = sT if kq == 0 else 80 + kq
            loads.append(f'buffer_load_dwordx4 {vr(vW+4*(4*kq+i),4)}, v{vo1}, {sr(S_WS,4)}, s{so} offen offset:{i*1024} sc1')
    a(f'v_mov_b32 v{vML}, 0')
    a(f'v_mov_b32 v{vML+1}, 0')
    a(f'v_mov_b32 v{vML+2}, 0x7fffffff')
    a(f'v_mov_b32 v{vML+3}, 0x80000000')
    if cfg.get('qsleep'): a(f's_sleep {cfg["qsleep"]}')
    poll(a, loads, [vW + 4 * k for k in range(16)], vt, sCnt, name='pq')
    stamp(a, cfg, 68)
    for i in range(4):
        for e in (0, 2):
            a(f'v_add_f32 v{vW+4*i+e}, v{vW+4*i+e}, v{vW+4*(4+i)+e}')
            a(f'v_add_f32 v{vW+4*(8+i)+e}, v{vW+4*(8+i)+e}, v{vW+4*(12+i)+e}')
    for i in range(4):
        for e in (0, 2):
            a(f'v_add_f32 v{vW+4*i+e}, v{vW+4*i+e}, v{vW+4*(8+i)+e}')
    for i in range(4):
        a(f'v_cvt_pk_bf16_f32 v{vt+i}, v{vW+4*i}, v{vW+4*i+2}')
    for i in range(4):
        a(f'ds_write_b32 v{vo2}, v{vt+i} offset:{256*i}')
    a(f'ds_write_b32 v{vo3}, v{vTag} offset:{LDS_TAG}')
    a(f'ds_write_b128 v{vo3}, {vr(vML,4)} offset:{LDS_REF}')
    a(f'ds_write_b32 v{vo3}, v{vo3} offset:{LDS_DONE}')
    a(f'ds_write_b64 v{vo3}, {vr(vML,2)} offset:{LDS_REC}')
    a(f'ds_write_b64 v{vo3}, {vr(vML,2)} offset:{LDS_REC + 512}')
    a('s_waitcnt lgkmcnt(0)')
    a('s_barrier')
    stamp(a, cfg, 70)
    stamp_store(a, cfg, [(0, 62), (7, 64), (8, 66), (9, 68), (1, 70)], vt)
    a(f's_lshl_b32 s{sT}, s{sHead}, 9')
    a(f's_and_b32 s{sT2}, s{sJ}, 16')
    a(f's_lshl_b32 s{sT2}, s{sT2}, 3')
    a(f's_add_u32 s{sT}, s{sT}, s{sT2}')
    a(f's_and_b32 s{sT2}, s{sJ}, 7')
    a(f's_lshl_b32 s{sT2}, s{sT2}, 4')
    a(f's_add_u32 s{sT}, s{sT}, s{sT2}')
    a(f's_bfe_u32 s{sT2}, s{sJ}, 0x10003')
    a(f's_add_u32 s{sT}, s{sT}, s{sT2}')
    a(f's_mul_i32 s{sT}, s{sT}, 896')
    a(f'v_min_u32 v{vo2}, 55, v0')
    a(f'v_lshlrev_b32 v{vo2}, 4, v{vo2}')
    for hh in range(2):
        for e in range(8):
            a(f'buffer_load_dwordx4 {vr(vW+4*(8*hh+e),4)}, v{vo2}, {sr(sWO,4)}, s{sT} offen offset:{(e%2)*1792} nt')
            if e % 2 == 1:
                a(f's_add_u32 s{sT}, s{sT}, {3584 if e < 7 else 3584 + (256-16)*896}')
    a('s_waitcnt vmcnt(0)')
    stamp(a, cfg, 62)
    stamp_store(a, cfg, [(16, 62)], vt)
    for pr in range(8):
        r0 = vW + 4 * (2 * pr); r1 = vW + 4 * (2 * pr + 1)
        for d in range(4):
            a(f'v_perm_b32 v{vWp+8*pr+2*d}, v{r1+d}, v{r0+d}, s{S_SELLO}')
            a(f'v_perm_b32 v{vWp+8*pr+2*d+1}, v{r1+d}, v{r0+d}, s{S_SELHI}')
    a(f'v_and_b32 v{vo2}, 31, v0')
    a(f'v_lshlrev_b32 v{vo2}, 7, v{vo2}')
    a(f'v_lshrrev_b32 v{vo3}, 3, v0')
    a(f'v_lshlrev_b32 v{vOa}, 12, v{vo3}')
    a(f'v_and_b32 v{vt}, 7, v0')
    a(f'v_lshl_add_u32 v{vOa}, v{vt}, 4, v{vOa}')
    a(f'v_lshlrev_b32 v{vo3}, 2, v{vo3}')
    a(f's_lshl_b32 s{sT}, s{sHead}, 17')
    a(f's_lshl_b32 s{sT2}, s{sJ}, 7')
    a(f's_add_u32 s{sT}, s{sT}, s{sT2}')
    a(f's_add_u32 s{sT}, s{sT}, {WS_O:#x}')
    for k in range(1, 4):
        a(f's_add_u32 s{72+k}, s{sT}, {k << 15}')
    a(f's_lshl_b32 s{sT2}, s{sHead}, 12')
    a(f's_add_u32 s{sT2}, s{sT2}, {WS_ML:#x}')
    a(f's_mov_b32 s{sC}, {C_SCALE:#x}')
    a(f's_lshl_b32 s72, s2, 6')
    for c in range(4):
        a(f's_add_u32 s{24+c}, s72, {WS_Y + c * 14 * 16384:#x}')
    a(f'v_lshrrev_b32 v{vYs}, 2, v0')
    a(f'v_lshlrev_b32 v{vYs}, 14, v{vYs}')
    a(f'v_and_b32 v{vt}, 3, v0')
    a(f'v_lshl_add_u32 v{vYs}, v{vt}, 4, v{vYs}')
    for i in range(8):
        a(f'v_mov_b32 v{vCh+2*i+1}, s{S_TA if i % 2 == 0 else S_TB}')
    a(f's_mul_i32 s37, s{sHead}, 11')
    a('s_lshr_b32 s37, s37, 5')
    a('s_mul_i32 s37, s37, 3')
    a(f's_sub_u32 s37, s{sHead}, s37')
    a('s_bfe_u32 s38, s2, 0x20003')
    a(f's_lshl_b32 s36, s{sHead}, 3')
    a('s_and_b32 s39, s2, 7')
    a('s_add_u32 s36, s36, s39')
    a('s_lshl_b32 s36, s36, 4')
    a('s_cmp_eq_u32 s37, s38')
    a('s_cselect_b32 s36, s36, 0x40000000')
    if not cfg.get('noctl'):
        aux_rounds(a, cfg, dict(v=vW, s=28, S_WS=S_WS, S_TA=S_TA, S_TB=S_TB, LDS_REC=LDS_REC, LDS_REF=LDS_REF, WS_R=WS_PLAN, sPub=36))
    stamp(a, cfg, 70)
    stamp_store(a, cfg, [(20, 70)], vt)
    sEX = 16; sDry = 18
    WARM = 0
    a(f's_mov_b64 s[{sEX}:{sEX+1}], -1')
    a(f's_lshl_b32 s20, s{sHead}, 12')
    a(f's_add_u32 s20, s20, {WS_F1:#x}')
    a(f's_lshl_b32 s21, s2, 7')
    a(f's_add_u32 s21, s21, {WS_F2:#x}')
    a(f'v_mov_b32 v{vSet+4}, s{S_TA}')
    a(f'v_mov_b32 v{vSet+5}, 0')
    a('s_barrier')
    vBp = vSet + 8; vGs = vSet + 6
    a(f'ds_read_b128 {vr(vBp,4)}, v{vo1} offset:{LDS_B}')
    a(f'ds_read_b128 {vr(vBp+4,4)}, v{vo1} offset:{LDS_B+1024}')
    a(f'ds_read_b32 v{vGs}, v{vSet+5} offset:{LDS_G}')
    if cfg.get('f1', 1):
        flagpoll(a, f'buffer_load_dwordx2 {vr(vSet,2)}, v{vo2}, {sr(S_WS,4)}, s20 offen sc1', [vSet, vSet + 1], vt, sCnt, 'pf1',
                 sleep=cfg.get('f1sleep', 1))
    stamp(a, cfg, 66)
    R2 = cfg.get('r2', 4)
    def f2store():
        if not cfg.get('f2', 1): return
        Lnf = a.newlabel('nf2')
        a(f's_and_b32 s22, s{sJ}, {32 // R2 - 1}')
        a(f's_cmp_lg_u32 s22, {cfg.get("r2c", 3) % (32 // R2)}')
        a(f's_cbranch_scc1 {Lnf}')
        a('s_mov_b64 exec, 1')
        a(f'buffer_store_dword v{vSet+4}, v{vSet+5}, {sr(S_WS,4)}, s21 offen sc1')
        a('s_mov_b64 exec, -1')
        a.label(Lnf)
    if cfg.get('f2pos', 'gath') == 'f1': f2store()
    if cfg.get('d1'): a(f's_sleep {cfg["d1"]}')
    loads = [f'buffer_load_dwordx4 {vr(vML,4)}, v{vo2}, {sr(S_WS,4)}, s{sT2} offen sc1',
             f'buffer_load_dwordx4 {vr(vML+4,4)}, v{vo2}, {sr(S_WS,4)}, s{sT2} offen offset:16 sc1']
    for k in range(4):
        loads.append(f'buffer_load_dwordx4 {vr(vOq+4*k,4)}, v{vOa}, {sr(S_WS,4)}, s{sT if k == 0 else 72 + k} offen sc1')
    poll(a, loads, [vML, vML + 4] + [vOq + 4 * k for k in range(4)], vt, sCnt, name='ps2', sleep=cfg.get('s2sleep', 1))
    if cfg.get('f2pos', 'gath') == 'gath': f2store()
    if cfg.get('prof'): a(f's_sub_u32 s23, {POLL_MAX}, s{sCnt}')
    stamp(a, cfg, 62)
    vWt = vX
    M = [vt, vt + 1]
    a(f'v_mov_b32 v{M[0]}, v{vML}')
    a(f'v_mov_b32 v{M[1]}, v{vML+2}')
    xlane_reduce(a, M, [vt + 2, vt + 3], 'v_max_f32', ['x1', 'x2', 'r4', 'r8', 'p16'])
    for hh in range(2):
        a(f'v_sub_f32 v{vML+2*hh}, v{vML+2*hh}, v{M[hh]}')
        a(f'v_mul_f32 v{vML+2*hh}, s{sC}, v{vML+2*hh}')
    for hh in range(2):
        a(f'v_exp_f32 v{vML+2*hh}, v{vML+2*hh}')
    a('s_nop 0')
    for k in range(4):
        for hh in range(2):
            a(f'ds_bpermute_b32 v{vWt+2*k+hh}, v{vo3}, v{vML+2*hh} offset:{32*k}')
    for hh in range(2):
        a(f'v_mul_f32 v{vacc+2+hh}, v{vML+2*hh}, v{vML+4+2*hh}')
    a('s_mov_b32 exec_lo, 0')
    for hh in range(2):
        a(f'v_mov_b32 v{vacc+2+hh}, 0')
    a(f's_mov_b32 exec_lo, s{sEX}')
    xlane_reduce(a, [vacc + 2, vacc + 3], [vt + 2, vt + 3], 'v_add_f32', ['x1', 'x2', 'r4'])
    a('s_waitcnt lgkmcnt(0)')
    for k in range(4):
        for hh in range(2):
            if k == 0: a(f'v_mul_f32 v{vacc+hh}, v{vWt+2*k+hh}, v{vOq+4*k+2*hh}')
            else: a(f'v_fmac_f32 v{vacc+hh}, v{vWt+2*k+hh}, v{vOq+4*k+2*hh}')
    a('s_nop 1')
    xlane_reduce(a, [vacc + i for i in range(4)], [vtmp + i for i in range(4)], 'v_add_f32', ['r8', 'p16', 'p32'])
    a(f'v_rcp_f32 v{vacc+2}, v{vacc+2}')
    a(f'v_rcp_f32 v{vacc+3}, v{vacc+3}')
    a('s_nop 0')
    for hh in range(2):
        a(f'v_mul_f32 v{vacc+hh}, v{vacc+hh}, v{vacc+2+hh}')
    a('s_nop 1')
    for hh in range(2):
        a(f'v_mov_b32_dpp v{vacc+2+hh}, v{vacc+hh} quad_perm:[1,0,3,2] row_mask:0xf bank_mask:0xf')
    for hh in range(2):
        a(f'v_cvt_pk_bf16_f32 v{vt+hh}, v{vacc+hh}, v{vacc+2+hh}')
    a('s_nop 0')
    for hh in range(2):
        for g in range(4):
            a(f'v_readlane_b32 s{sPk+4*hh+g}, v{vt+hh}, {2*g}')
    a('s_nop 1')
    for pr in range(8):
        for col in range(8):
            c0 = '0' if pr == 0 else f'v{vCh+2*col}'
            a(f'v_dot2_f32_bf16 v{vCh+2*col}, v{vWp+8*pr+col}, s{sPk+pr}, {c0}')
    a(f's_and_b32 exec_hi, s{sEX+1}, 0x00ffffff')
    for c in range(4):
        for e in range(2):
            a(f'v_fma_f32 v{vCh+4*c+2*e}, v{vCh+4*c+2*e}, v{vGs}, v{vBp+2*c+e}')
        a(f'buffer_store_dwordx4 {vr(vCh+4*c,4)}, v{vYs}, {sr(S_WS,4)}, s{24+c} offen sc1')
    a('s_mov_b64 exec, -1')
    if WARM:
        a(f's_cmp_lg_u32 s{sDry}, 0')
        a(f's_cbranch_scc1 {Lreal}')
    stamp(a, cfg, 64)
    if cfg.get('b4', 1): a('s_barrier')
    if cfg.get('prof'): a('s_getpc_b64 s[68:69]')
    stamp_store(a, cfg, [(2, 62), (3, 64), (21, 66), (22, 23), (25, 68), (26, 69)], vt)
    stamp_flush(a, cfg, [0, 7, 8, 9, 1, 16, 20, 2, 3, 21, 22, 25, 26], vt)
    a('s_endpgm')
    return V.n


def gen_auxB(a, cfg):
    V = Regs(1, 256)
    vt = V.alloc(8, 4)
    vf = V.alloc(8, 4)
    vo1 = V.alloc(); vo2 = V.alloc(); vo3 = V.alloc(); vg = V.alloc(); vYa = V.alloc(); vZ = V.alloc()
    vX = V.alloc(16, 4)
    vacc = V.alloc(8, 4)
    vtmp = V.alloc(8, 4)
    vCh = V.alloc(8, 4)
    vW = V.alloc(64, 4)
    vD = V.alloc(64, 4)
    vY = vW
    sX = 4; sWG = 8; sWD = 48; sDBG = 64; sGW = 68; sOUT = 72
    sT = 52; sT2 = 53; sKq = 54; sJ = 55; sCnt = 56; sF = 57; sG = 62; sG1 = 63; sR = 58; sCb = 59
    sPk = 16
    vm = VM(a)
    srd(a, sDBG, P_DBG, 256)
    Lnt = a.newlabel('notag')
    a(f'v_mov_b32 v{vZ}, 0')
    a('s_cmp_lg_u32 s2, 0')
    a(f's_cbranch_scc1 {Lnt}')
    a(f's_memrealtime s[{sG}:{sG1}]')
    a('s_waitcnt lgkmcnt(0)')
    a(f's_or_b32 s{sG}, s{sG}, 1')
    a(f'v_mov_b32 v{vo2}, s{sG}')
    a('s_mov_b64 exec, 1')
    a(f'buffer_store_dword v{vo2}, v{vZ}, {sr(sDBG,4)}, 0 offen sc1')
    a('s_mov_b64 exec, -1')
    a.label(Lnt)
    a('s_barrier')
    srd(a, sX, P_X, 896)
    srd(a, sWD, P_WD, 1792 * 896)
    srd(a, sGW, P_GW, 896)
    srd(a, sOUT, P_OUT, 896)
    a(f's_lshr_b32 s{sT}, s2, 5')
    a(f's_add_u32 s{sR}, s2, s{sT}')
    a(f's_and_b32 s{sR}, s{sR}, 31')
    a(f's_mul_i32 s{sF}, s{sT}, 14')
    a(f's_add_u32 s{sF}, s{sF}, s{sR}')
    a(f's_lshr_b32 s{sCb}, s{sF}, 1')
    a(f's_cmp_ge_u32 s{sCb}, 28')
    a(f's_cselect_b32 s{sWG}, s{P_WU}, s{P_WG}')
    a(f's_cselect_b32 s{sWG+1}, s{P_WU+1}, s{P_WG+1}')
    a(f's_cselect_b32 s{sT2}, 28, 0')
    a(f's_cselect_b32 s{sJ}, 256, 0')
    a(f's_mov_b32 s{sWG+2}, {448 * 3584:#x}')
    a(f's_mov_b32 s{sWG+3}, 0x00020000')
    a(f's_sub_u32 s{sCb}, s{sCb}, s{sT2}')
    a(f'v_lshlrev_b32 v{vYa}, 4, v0')
    Lf2 = a.newlabel('ffn2'); Lfd = a.newlabel('ffnd'); Lnofin = a.newlabel('nofin')
    a('s_barrier')
    a(f'ds_read_b32 v{vo2}, v{vZ} offset:{LDS_TAG}')
    a(f'buffer_load_dwordx4 {vr(vX,4)}, v{vYa}, {sr(sX,4)}, 0 offen')
    a(f'buffer_load_dwordx4 {vr(vX+4,4)}, v{vYa}, {sr(sGW,4)}, 0 offen')
    a('s_waitcnt lgkmcnt(0)')
    a(f'v_readfirstlane_b32 s{S_TA}, v{vo2}')
    tagB(a)
    for i in range(8):
        a(f'v_mov_b32 v{vCh+i}, 0')
    a('s_waitcnt vmcnt(0)')
    for d in range(4):
        a(f'v_lshlrev_b32 v{vt}, 16, v{vX+d}')
        a(f'v_lshlrev_b32 v{vt+1}, 16, v{vX+4+d}')
        a(f'v_and_b32 v{vt+2}, 0xffff0000, v{vX+d}')
        a(f'v_and_b32 v{vt+3}, 0xffff0000, v{vX+4+d}')
        a(f'v_mul_f32 v{vt}, v{vt}, v{vt+1}')
        a(f'v_mul_f32 v{vt+2}, v{vt+2}, v{vt+3}')
        a(f'v_cvt_pk_bf16_f32 v{vt}, v{vt}, v{vt+2}')
        a(f'v_lshlrev_b32 v{vt+1}, 16, v{vt}')
        a(f'v_and_b32 v{vt+2}, 0xffff0000, v{vt}')
        if d == 0:
            a(f'v_add_f32 v{vg}, v{vt+1}, v{vt+2}')
        else:
            a(f'v_add_f32 v{vg}, v{vg}, v{vt+1}')
            a(f'v_add_f32 v{vg}, v{vg}, v{vt+2}')
    xlane_reduce(a, [vg], [vt], 'v_add_f32', ['x1', 'x2', 'r4', 'r8', 'p16', 'p32'])
    rnd_bf16(a, vg, vg, vt)
    a(f'v_mul_f32 v{vg}, {f2u(-1.4426950408889634):#x}, v{vg}')
    a(f'v_exp_f32 v{vg}, v{vg}')
    a('s_nop 0')
    a(f'v_add_f32 v{vg}, 1.0, v{vg}')
    a(f'v_rcp_f32 v{vg}, v{vg}')
    a('s_nop 0')
    rnd_bf16(a, vg, vg, vt)
    a(f'v_sub_f32 v{vt+1}, 1.0, v{vg}')
    rnd_bf16(a, vt + 1, vt + 1, vt)
    a(f'ds_write_b32 v{vZ}, v{vg} offset:{LDS_G}')
    a(f'v_readfirstlane_b32 s{sG1}, v{vt+1}')
    if cfg.get('noffn'): a(f's_branch {Lfd}')
    a(f's_cmp_ge_u32 s{sR}, 14')
    a(f's_cbranch_scc1 {Lf2}')
    if cfg.get('fsleep'): a(f's_sleep {cfg["fsleep"]}')
    a(f's_and_b32 s{sKq}, s{sF}, 1')
    a(f's_lshl_b32 s{sKq}, s{sKq}, 1')
    a(f's_lshl_b32 s{sF}, s{sCb}, 7')
    l0 = ksplit_loads(a, vm, sX, sWG, 3584, sKq, sF, vX, vW, vo1, vo2, vo3, sT, sT2)
    a(f's_add_u32 s{sKq}, s{sKq}, 1')
    l1 = ksplit_loads(a, vm, sX, sWG, 3584, sKq, sF, vX + 8, vD, vo1, vo2, vo3, sT, sT2)
    a(f'v_bfe_u32 v{vo1}, v0, 1, 2')
    a(f'v_lshlrev_b32 v{vo1}, 9, v{vo1}')
    a(f'v_and_b32 v{vo2}, 1, v0')
    a(f'v_lshl_or_b32 v{vo1}, v{vo2}, 6, v{vo1}')
    a(f'v_bfe_u32 v{vo2}, v0, 3, 2')
    a(f'v_lshl_or_b32 v{vo1}, v{vo2}, 4, v{vo1}')
    a(f's_lshl_b32 s{sT}, s{sCb}, 11')
    a(f's_add_u32 s{sT}, s{sT}, s{sJ}')
    a(f's_lshl_b32 s{sKq}, s{sKq}, 6')
    a(f's_and_b32 s{sKq}, s{sKq}, 128')
    a(f's_add_u32 s{sT}, s{sT}, s{sKq}')
    a(f's_add_u32 s{sT}, s{sT}, {WS_B:#x}')
    A8 = [vacc + i for i in range(8)]; T8 = [vtmp + i for i in range(8)]
    gemv_pairs(a, vm, [vW + 4 * k for k in range(14)], 14, 4, vX, A8, T8, l0)
    gemv_pairs(a, vm, [vD + 4 * k for k in range(14)], 14, 4, vX + 8, A8, T8, l1, first=False)
    xlane_reduce(a, A8, T8, 'v_add_f32', ['r8', 'p16', 'p32'])
    a('s_mov_b32 vcc_lo, 0xff00ff00')
    a('s_mov_b32 vcc_hi, 0xff00ff00')
    for i in range(4):
        a(f'v_cndmask_b32 v{vtmp+i}, v{vacc+(i&1)+4*(i>>1)}, v{vacc+2+(i&1)+4*(i>>1)}, vcc')
    a('s_mov_b32 vcc_lo, 0xffff0000')
    a('s_mov_b32 vcc_hi, 0xffff0000')
    a(f'v_cndmask_b32 v{vt}, v{vtmp}, v{vtmp+2}, vcc')
    a(f'v_cndmask_b32 v{vt+2}, v{vtmp+1}, v{vtmp+3}, vcc')
    a(f'v_mov_b32 v{vt+1}, s{S_TA}')
    a(f'v_mov_b32 v{vt+3}, s{S_TB}')
    a('s_mov_b32 exec_hi, 0')
    a(f'buffer_store_dwordx4 {vr(vt,4)}, v{vo1}, {sr(S_WS,4)}, s{sT} offen sc1')
    a('s_mov_b32 exec_hi, -1')
    stamp(a, cfg, 90)
    stamp_store(a, cfg, [(13, 90)], vt)
    a(f's_branch {Lfd}')
    a.label(Lf2)
    a(f's_cmp_ge_u32 s{sR}, 28')
    a(f's_cbranch_scc1 {Lfd}')
    a(f's_sub_u32 s{sF}, s{sF}, 14')
    a(f'v_min_u32 v{vo1}, 55, v0')
    a(f'v_lshlrev_b32 v{vo1}, 4, v{vo1}')
    a(f's_mul_i32 s{sT}, s{sF}, {16*896}')
    for e in range(16):
        a(f'buffer_load_dwordx4 {vr(vW+4*e,4)}, v{vo1}, {sr(sWD,4)}, s{sT} offen offset:{(e%4)*896} nt')
        if e % 4 == 3 and e < 15: a(f's_add_u32 s{sT}, s{sT}, {4*896}')
    a('s_waitcnt vmcnt(0)')
    for pr in range(8):
        r0 = vW + 4 * (2 * pr); r1 = vW + 4 * (2 * pr + 1)
        for d in range(4):
            a(f'v_perm_b32 v{vD+8*pr+2*d}, v{r1+d}, v{r0+d}, s{S_SELLO}')
            a(f'v_perm_b32 v{vD+8*pr+2*d+1}, v{r1+d}, v{r0+d}, s{S_SELHI}')
    Lw = a.newlabel('fl_w'); Lg = a.newlabel('fl_g')
    a(f's_mov_b32 s{sCnt}, {POLL_MAX}')
    a.label(Lw)
    a(f'ds_read_b32 v{vo2}, v{vZ} offset:{LDS_REC}')
    a('s_waitcnt lgkmcnt(0)')
    a(f'v_readfirstlane_b32 s{sT}, v{vo2}')
    a(f's_cmp_ge_u32 s{sT}, {cfg.get("bstep", 36)}')
    a(f's_cbranch_scc1 {Lg}')
    a(f's_sub_u32 s{sCnt}, s{sCnt}, 1')
    a(f's_cbranch_scc1 {Lg}')
    a('s_sleep 64')
    a(f's_branch {Lw}')
    a.label(Lg)
    a(f's_lshl_b32 s{sT}, s{sF}, 9')
    a(f's_add_u32 s{sT}, s{sT}, {WS_B:#x}')
    a(f'v_and_b32 v{vo2}, 0x1f0, v{vYa}')
    stamp(a, cfg, 90)
    poll(a, [f'buffer_load_dwordx4 {vr(vX,4)}, v{vo2}, {sr(S_WS,4)}, s{sT} offen sc1'], [vX], vt, sCnt, name='pb', sleep=cfg.get('bsleep', 32))
    stamp(a, cfg, 92)
    xlane_reduce(a, [vX, vX + 2], [vt, vt + 1], 'v_add_f32', ['r8'])
    for i in range(2):
        rnd_bf16(a, vacc + i, vX + 2 * i, vt + i)
    for i in range(2):
        a(f'v_mov_b32 v{vacc+2+i}, v{vacc+i}')
    a(f's_mov_b32 s{sT}, {f2u(0.044715):#x}')
    a(f's_mov_b32 s{sT2}, {f2u(-2*0.7978845608028654*1.4426950408889634):#x}')
    for i in range(2):
        a(f'v_permlane16_swap_b32 v{vacc+i}, v{vacc+2+i}')
    for i in range(2):
        x = vacc + i; t = vtmp + i
        a(f'v_mul_f32 v{t}, v{x}, v{x}')
        a(f'v_mul_f32 v{t}, v{t}, v{x}')
        a(f'v_fma_f32 v{t}, v{t}, s{sT}, v{x}')
        a(f'v_mul_f32 v{t}, s{sT2}, v{t}')
    for i in range(2):
        a(f'v_exp_f32 v{vtmp+i}, v{vtmp+i}')
    a('s_nop 0')
    for i in range(2):
        a(f'v_add_f32 v{vtmp+i}, 1.0, v{vtmp+i}')
    for i in range(2):
        a(f'v_rcp_f32 v{vtmp+i}, v{vtmp+i}')
    a('s_nop 0')
    for i in range(2):
        a(f'v_mul_f32 v{vacc+i}, v{vacc+i}, v{vtmp+i}')
    for i in range(2):
        rnd_bf16(a, vacc + i, vacc + i, vtmp + i)
    for i in range(2):
        a(f'v_mul_f32 v{vacc+i}, v{vacc+i}, v{vacc+2+i}')
    a(f'v_cvt_pk_bf16_f32 v{vt}, v{vacc}, v{vacc+1}')
    a('s_nop 0')
    for pr in range(8):
        a(f'v_readlane_b32 s{sPk+pr}, v{vt}, {pr}')
    a('s_nop 1')
    for pr in range(8):
        for col in range(8):
            a(f'v_dot2_f32_bf16 v{vCh+col}, v{vD+8*pr+col}, s{sPk+pr}, v{vCh+col}')
    a('s_nop 2')
    for col in range(8):
        a(f'v_mul_f32 v{vCh+col}, s{sG1}, v{vCh+col}')
    stamp(a, cfg, 94)
    stamp_store(a, cfg, [(13, 90), (14, 92), (15, 94)], vt)
    a.label(Lfd)
    a(f'ds_write_b128 v{vYa}, {vr(vCh,4)} offset:{LDS_B}')
    a(f'ds_write_b128 v{vYa}, {vr(vCh+4,4)} offset:{LDS_B+1024}')
    a(f's_cmp_lt_u32 s2, {FIN0}')
    a(f's_cbranch_scc1 {Lnofin}')
    a(f's_sub_u32 s{sJ}, s2, {FIN0}')
    a(f's_and_b32 s{sT}, s{sJ}, 3')
    a(f's_mul_i32 s{sT}, s{sT}, 14')
    a(f's_lshr_b32 s{sT2}, s{sJ}, 2')
    a(f's_add_u32 s{sT}, s{sT}, s{sT2}')
    def sumup(dst, n, src):
        for e in range(2):
            a(f'v_add_f32 v{dst+e}, v{src+2*e}, v{src+4+2*e}')
            a(f'v_add_f32 v{dst+2+e}, v{src+8+2*e}, v{src+12+2*e}')
        for k in range(4, n):
            for e in range(2):
                d = dst + e + 2 * (k & 1)
                a(f'v_add_f32 v{d}, v{d}, v{src+4*k+2*e}')
        for e in range(2):
            a(f'v_add_f32 v{dst+e}, v{dst+e}, v{dst+2+e}')
    def xsum(dst):
        xlane_reduce(a, [dst, dst + 1], [vf + 4, vf + 5], 'v_add_f32', ['r4', 'r8', 'p16', 'p32'])
    a(f's_lshl_b32 s{sT}, s{sT}, 14')
    for k in range(4):
        a(f's_add_u32 s{24+k}, s{sT}, {WS_Y + k * 4096:#x}')
    a(f's_lshr_b32 s{sT2}, s{sJ}, 2')
    a(f's_lshl_b32 s{sT2}, s{sT2}, 6')
    a(f's_and_b32 s{sKq}, s{sJ}, 3')
    a(f's_lshl_b32 s{sKq}, s{sKq}, 2')
    a(f's_add_u32 s{sT2}, s{sT2}, s{sKq}')
    R2 = cfg.get('r2', 4)
    a(f'v_lshrrev_b32 v{vf+6}, 3, v0')
    a(f'v_lshlrev_b32 v{vf+6}, 12, v{vf+6}')
    a(f'v_and_b32 v{vf+7}, {R2 - 1}, v0')
    a(f'v_mul_u32_u24 v{vf+7}, {(32 // R2) * 128}, v{vf+7}')
    a(f'v_add_u32 v{vf+6}, v{vf+6}, v{vf+7}')
    a(f's_mov_b32 s35, {WS_F2 + (cfg.get("r2c", 3) % (32 // R2)) * 128:#x}')
    a('s_waitcnt lgkmcnt(0)')
    a('s_barrier')
    if cfg.get('b4', 1): a('s_barrier')
    if cfg.get('f2', 1):
        flagpoll(a, f'buffer_load_dword v{vf+7}, v{vf+6}, {sr(S_WS,4)}, s35 offen sc1', [vf + 7], vt, sCnt, 'pf2', sleep=cfg.get('f2sleep', 1))
    if cfg.get('d2'): a(f's_sleep {cfg["d2"]}')
    stamp(a, cfg, 78)
    poll(a, [f'buffer_load_dwordx4 {vr(vY+4*k,4)}, v{vYa}, {sr(S_WS,4)}, s{24+k//4} offen offset:{(k%4)*1024} sc1' for k in range(16)],
         [vY + 4 * k for k in range(16)], vt, sCnt, name='py', sleep=cfg.get('ysleep', 1))
    if cfg.get('prof'): a(f's_sub_u32 s36, {POLL_MAX}, s{sCnt}')
    sumup(vf, 16, vY)
    xsum(vf)
    a(f'v_cvt_pk_bf16_f32 v{vt}, v{vf}, v{vf+1}')
    a('s_mov_b64 exec, 15')
    a(f'buffer_store_dword v{vt}, v{vYa}, {sr(sOUT,4)}, s{sT2} offen')
    a('s_mov_b64 exec, -1')
    stamp(a, cfg, 76)
    stamp_store(a, cfg, [(6, 76), (23, 78), (24, 36)], vt + 2)
    stamp_flush(a, cfg, [13, 14, 15, 6, 23, 24], vt + 2)
    a('s_endpgm')
    a.label(Lnofin)
    a('s_waitcnt lgkmcnt(0)')
    a('s_barrier')
    stamp_flush(a, cfg, [13, 14, 15], vt)
    a('s_endpgm')
    return V.n


def gen(cfg):
    a = Asm()
    a.raw(kernel_header(NAME))
    a('s_cmp_ge_u32 s2, 256')
    a('s_cbranch_scc1 L_end')
    a('s_load_dwordx16 s[16:31], s[0:1], 0')
    a('s_load_dwordx8 s[32:39], s[0:1], 64')
    a('s_load_dwordx2 s[40:41], s[0:1], 96')
    a('v_lshrrev_b32 v1, 6, v0')
    a('v_and_b32 v0, 63, v0')
    a(f'v_readfirstlane_b32 s{S_WAVE}, v1')
    a(f's_mov_b32 s{S_SELLO}, 0x05040100')
    a(f's_mov_b32 s{S_SELHI}, 0x07060302')
    a('s_waitcnt lgkmcnt(0)')
    srd(a, S_WS, P_WS, WS_SIZE)
    a(f's_cmp_eq_u32 s{S_WAVE}, 2')
    a('s_cbranch_scc1 L_auxA')
    a(f's_cmp_eq_u32 s{S_WAVE}, 3')
    a('s_cbranch_scc1 L_auxB')
    n0 = gen_stream(a, cfg)
    a.label('L_auxA')
    n1 = gen_auxA(a, cfg)
    a.label('L_auxB')
    n2 = gen_auxB(a, cfg)
    a.label('L_end')
    a('s_endpgm')
    nv = max(n0, n1, n2)
    if cfg.get('prof'): nv = max(nv, PROFV + 1)
    acc_off = (nv + 3) // 4 * 4
    npre = cfg.get('npre', 4)
    print('vgprs', n0, n1, n2, 'agprs', 64 * npre, file=sys.stderr)
    hdr = open('gated_mix__gqa_block_cached__geglu_ffn__decode.s.ref').read().split('; @launch')[0]
    lds = cfg.get('lds', 18432)
    hdr += f'; @launch grid=(256,1,1) block=(256,1,1) lds={lds}\n.amdgcn_target "amdgcn-amd-amdhsa--gfx950"\n'
    return hdr + a.text() + kernel_desc(NAME, acc_off + 64 * npre, 102, acc_off)


if __name__ == '__main__':
    cfg = json.loads(sys.argv[2]) if len(sys.argv) > 2 else {}
    open(sys.argv[1], 'w').write(gen(cfg))
```

```python
import struct
from asmlib import *
def f2u(f): return struct.unpack('<I', struct.pack('<f', f))[0]

def dpp(op, d, s0, s1, ctrl):
    return f'{op}_dpp v{d}, v{s0}, v{s1} {ctrl} row_mask:0xf bank_mask:0xf'

def xsum(a, regs, tmps, op='v_add_f32'):
    n = len(regs)
    for st in ['x1', 'x2', 'r4', 'r8', 'p16', 'p32']:
        if st in ('x1', 'x2', 'r4', 'r8'):
            ctrl = {'x1': 'quad_perm:[1,0,3,2]', 'x2': 'quad_perm:[2,3,0,1]', 'r4': 'row_ror:4', 'r8': 'row_ror:8'}[st]
            if n < 3: a('s_nop 1')
            for r in regs: a(dpp(op, r, r, r, ctrl))
        else:
            ins = 'v_permlane16_swap_b32' if st == 'p16' else 'v_permlane32_swap_b32'
            for r, t in zip(regs, tmps): a(f'v_mov_b32 v{t}, v{r}')
            a('s_nop 1')
            for r, t in zip(regs, tmps): a(f'{ins} v{r}, v{t}')
            if n < 2: a('s_nop 0')
            for r, t in zip(regs, tmps): a(f'{op} v{r}, v{r}, v{t}')

def aux_rounds(a, cfg, P, hook=None):
    v = P['v']; s = P['s']; WS = P['S_WS']; TA = P['S_TA']; TB = P['S_TB']
    vR = v; vC = v + 4; vA = v + 8; vS = v + 9; vNp = v + 10; vAd = v + 11; vL = v + 12; vt = v + 13; vO = v + 16; vZ = v + 20; vtm = v + 21
    sK = s; sThr = s + 1; sCnt = s + 2; sT = s + 3; sBlk = s + 4; sTry = s + 5; sE = s + 6
    N0 = cfg.get('n0', 24); DN = cfg.get('dn', 12); GAP = cfg.get('gap', 7); NR = cfg.get('nr', 8)
    KI = cfg.get('ki', 0.4); KP = cfg.get('kp', 1.0); S0 = cfg.get('s0', 0.0); MINV = cfg.get('minv', 56)
    a(f'v_mov_b32 v{vAd}, {P["LDS_REC"]}')
    a(f'v_lshlrev_b32 v{vL}, 4, v0')
    a(f'v_mov_b32 v{vZ}, 0')
    a(f'v_mov_b32 v{vC+1}, s{TA}')
    a(f'v_mov_b32 v{vC+3}, s{TB}')
    a(f'v_mov_b32 v{vS}, {f2u(S0 * 25.0):#x}')
    a(f'v_mov_b32 v{vO+2}, {cfg.get("thf", 50) & 0xffffffff:#x}')
    a(f'v_mov_b32 v{vO+3}, {cfg.get("thx", -5) & 0xffffffff:#x}')
    a(f's_mov_b32 s{sK}, 0')
    TF = cfg.get('thfs'); TX = cfg.get('thxs')
    def tbl(r, l):
        x = sum((v & 0xff) << (8 * i) for i, v in enumerate(l))
        a(f's_mov_b32 s{r}, {x & 0xffffffff:#x}'); a(f's_mov_b32 s{r+1}, {x >> 32:#x}')
    if TF: tbl(38, TF)
    if TX: tbl(40, TX)
    a(f's_mov_b32 s{sThr}, {2 * N0}')
    a(f's_mov_b32 s{sBlk}, {P["WS_R"]:#x}')
    def progwait(slp):
        Lw = a.newlabel('pl_w'); Lg = a.newlabel('pl_g')
        a(f's_mov_b32 s{sCnt}, {1 << 14}')
        a.label(Lw)
        a(f'ds_read_b64 {vr(vR,2)}, v{vAd}')
        a(f'ds_read_b64 {vr(vR+2,2)}, v{vAd} offset:512')
        a('s_waitcnt lgkmcnt(0)')
        a(f'v_add_u32 v{vC+2}, v{vR}, v{vR+2}')
        a(f'v_add_u32 v{vC}, v{vR+1}, v{vR+3}')
        a(f'v_readfirstlane_b32 s{sT}, v{vC+2}')
        a(f's_cmp_ge_u32 s{sT}, s{sThr}')
        a(f's_cbranch_scc1 {Lg}')
        a(f's_sub_u32 s{sCnt}, s{sCnt}, 1')
        a(f's_cbranch_scc1 {Lg}')
        a(f's_sleep {slp}')
        a(f's_branch {Lw}')
        a.label(Lg)
    Ltop = a.newlabel('rd_top'); Lnext = a.newlabel('rd_next'); Lre = a.newlabel('rd_re'); Lgo = a.newlabel('rd_go'); Lfirst = a.newlabel('rd_first'); Lw = a.newlabel('rd_w')
    a.label(Ltop)
    progwait(cfg.get('psl', 8))
    a(f's_add_u32 s{sT}, s{sBlk}, s{P["sPub"]}')
    a('s_mov_b64 exec, 1')
    a(f'buffer_store_dwordx4 {vr(vC,4)}, v{vZ}, {sr(WS,4)}, s{sT} offen sc1')
    a('s_mov_b64 exec, -1')
    if hook: hook(sK)
    a(f's_add_u32 s{sThr}, s{sThr}, {2 * GAP}')
    progwait(cfg.get('psl', 8))
    a(f's_add_u32 s{sThr}, s{sThr}, {2 * (DN - GAP)}')
    a(f's_mov_b32 s{sTry}, {cfg.get("ntry", 3)}')
    a(f'buffer_load_dwordx4 {vr(vR,4)}, v{vL}, {sr(WS,4)}, s{sBlk} offen {cfg.get("rflag", "")}')
    a.label(Lre)
    a('s_waitcnt vmcnt(0)')
    a(f'v_xor_b32 v{vt}, s{TA}, v{vR+1}')
    a(f'v_xor_b32 v{vt+1}, s{TB}, v{vR+3}')
    a(f'v_or_b32 v{vt}, v{vt}, v{vt+1}')
    a(f'v_cmp_eq_u32 vcc, 0, v{vt}')
    a(f's_bcnt1_i32_b64 s{sT}, vcc')
    a(f's_cmp_ge_u32 s{sT}, {MINV}')
    a(f's_cbranch_scc1 {Lgo}')
    a(f's_sub_u32 s{sTry}, s{sTry}, 1')
    a(f's_cbranch_scc1 {Lnext}')
    a(f's_sleep 16')
    a(f'buffer_load_dwordx4 {vr(vR,4)}, v{vL}, {sr(WS,4)}, s{sBlk} offen sc1')
    a(f's_branch {Lre}')
    a.label(Lgo)
    a(f'v_cvt_f32_i32 v{vR}, v{vR}')
    a(f'v_cvt_f32_u32 v{vR+2}, v{vR+2}')
    a(f's_lshl_b32 s{sT}, s{sT}, 1')
    a(f'v_cvt_f32_u32 v{vt}, s{sT}')
    a(f'v_cndmask_b32 v{vR}, 0, v{vR}, vcc')
    a(f'v_cndmask_b32 v{vR+2}, 0, v{vR+2}, vcc')
    a(f'v_rcp_f32 v{vt}, v{vt}')
    xsum(a, [vR, vR + 2], [vtm, vtm + 1])
    a(f'v_mul_f32 v{vR}, v{vR}, v{vt}')
    a(f'v_mul_f32 v{vR+2}, v{vR+2}, v{vt}')
    a(f's_cmp_eq_u32 s{sK}, 0')
    a(f's_cbranch_scc1 {Lfirst}')
    a(f'v_fma_f32 v{vt}, v{vS}, v{vR+2}, v{vA}')
    a(f'v_sub_f32 v{vt+1}, v{vR}, v{vt}')
    a(f'v_sub_f32 v{vt+2}, v{vR+2}, v{vNp}')
    a(f'v_rcp_f32 v{vt+2}, v{vt+2}')
    a(f'v_mov_b32 v{vR+1}, {f2u(KP):#x}')
    a(f'v_fma_f32 v{vR}, v{vt+1}, v{vR+1}, v{vt}')
    a(f'v_mul_f32 v{vt+1}, {f2u(KI):#x}, v{vt+1}')
    a(f'v_fma_f32 v{vS}, v{vt+1}, v{vt+2}, v{vS}')
    a(f'v_max_f32 v{vS}, {f2u(-cfg.get("smax", 3.0)):#x}, v{vS}')
    a(f'v_min_f32 v{vS}, {f2u(cfg.get("smax", 3.0) * 3):#x}, v{vS}')
    a.label(Lfirst)
    a(f'v_fma_f32 v{vA}, -v{vS}, v{vR+2}, v{vR}')
    a(f'v_mov_b32 v{vNp}, v{vR+2}')
    a(f'v_mul_f32 v{vO}, {f2u(256.0):#x}, v{vA}')
    a(f'v_mul_f32 v{vO+1}, {f2u(256.0):#x}, v{vS}')
    a(f'v_cvt_i32_f32 v{vO}, v{vO}')
    a(f'v_cvt_i32_f32 v{vO+1}, v{vO+1}')
    a(f's_add_u32 s{sK}, s{sK}, 1')
    if TF:
        a(f's_sext_i32_i8 s{sT}, s38'); a(f'v_mov_b32 v{vO+2}, s{sT}')
    if TX:
        a(f's_sext_i32_i8 s{sT}, s40'); a(f'v_mov_b32 v{vO+3}, s{sT}')
    a(f'ds_write_b128 v{vZ}, {vr(vO,4)} offset:{P["LDS_REF"]}')
    if P.get('log'): P['log'](vO, sBlk)
    a.label(Lnext)
    if TF: a('s_lshr_b64 s[38:39], s[38:39], 8')
    if TX: a('s_lshr_b64 s[40:41], s[40:41], 8')
    a(f's_add_u32 s{sBlk}, s{sBlk}, 1024')
    a(f's_cmp_lt_u32 s{sBlk}, {P["WS_R"] + NR * 1024:#x}')
    a(f's_cbranch_scc1 {Ltop}')
```

```python
import sys, struct, json
from asmlib import *
from ctl2 import aux_rounds

def f2u(f): return struct.unpack('<I', struct.pack('<f', f))[0]
C_SCALE = f2u(1.4426950408889634 / 16.0)

WS_QP = 0x0
WS_TK = 0x4e0000
TK_STRIDE = 4352
WS_PROF = 0x24000
WS_GP = 0x40000
WS_PLAN = 0x40000
WS_F1 = 0x50000
WS_F2 = 0x58000
WS_CAL = 0x48000
WS_IT = 0x80000
WS_ML = 0x60000
WS_O = 0x100000
WS_Y = 0x300000
WS_B = 0x400000
WS_SIZE = 0x500000
OSTR = 4224

NAME = 'gated_mix__gqa_block_cached__geglu_ffn__decode_kernel'
P_X, P_K, P_V, P_WQ, P_WO, P_BX, P_WG, P_WU, P_WD, P_GW, P_OUT, P_DBG, P_WS = [16 + 2 * i for i in range(13)]
S_WS = 12
S_WAVE = 3
S_SELLO = 60; S_SELHI = 61
S_TA = 88; S_TB = 89
POLL_MAX = 1 << 14
FIN0 = 200
INVALID = 0x20000000
LDS_TAG = 1024
LDS_CTR = 1028
LDS_FLAG = 1032
LDS_REC = 2048
LDS_LIST = 3072
LDS_DONE = 1036
LDS_FLAG2 = 1040
LDS_REF = 1088
LDS_G = 1044
LDS_FLAG3 = 1048
LDS_B = 16384
LDS_CMB = 4096
LDS_SC = 8192


class VM:
    def __init__(self, a):
        self.a = a; self.n = 0
    def issue(self, s):
        self.a(s); self.n += 1
        return self.n - 1
    def wait(self, idx):
        k = self.n - idx - 1
        assert 0 <= k <= 63
        self.a(f's_waitcnt vmcnt({k})')


def srd(a, d, p, nbytes):
    a(f's_mov_b32 s{d}, s{p}')
    a(f's_mov_b32 s{d+1}, s{p+1}')
    a(f's_mov_b32 s{d+2}, {nbytes:#x}')
    a(f's_mov_b32 s{d+3}, 0x00020000')


def dpp(op, d, s0, s1, ctrl):
    return f'{op}_dpp v{d}, v{s0}, v{s1} {ctrl} row_mask:0xf bank_mask:0xf'


def xlane_reduce(a, regs, tmps, op, steps):
    n = len(regs)
    for st in steps:
        if st in ('x1', 'x2', 'r4', 'r8'):
            ctrl = {'x1': 'quad_perm:[1,0,3,2]', 'x2': 'quad_perm:[2,3,0,1]', 'r4': 'row_ror:4', 'r8': 'row_ror:8'}[st]
            if n < 3: a('s_nop 1')
            for r in regs:
                a(dpp(op, r, r, r, ctrl))
        else:
            ins = 'v_permlane16_swap_b32' if st == 'p16' else 'v_permlane32_swap_b32'
            for r, t in zip(regs, tmps):
                a(f'v_mov_b32 v{t}, v{r}')
            a('s_nop 1')
            for r, t in zip(regs, tmps):
                a(f'{ins} v{r}, v{t}')
            if n < 2: a('s_nop 0')
            for r, t in zip(regs, tmps):
                a(f'{op} v{r}, v{r}, v{t}')


def tagB(a):
    a(f's_mul_i32 s{S_TB}, s{S_TA}, 0x9e3779b1')
    a(f's_add_u32 s{S_TB}, s{S_TB}, 0x7f4a7c15')


def poll(a, loads, chunks, vt, scnt, name='poll', sleep=1, mid=None):
    L = a.newlabel(name); D = a.newlabel(name + '_done')
    a(f's_mov_b32 s{scnt}, {POLL_MAX}')
    for l in loads: a(l)
    if mid: mid()
    a.label(L)
    n = len(chunks)
    for i, c in enumerate(chunks):
        if i % 4 == 0:
            a(f's_waitcnt vmcnt({max(0, n - i - 4)})')
        a(f'v_xor_b32 v{vt+1}, s{S_TA}, v{c+1}')
        a(f'v_xor_b32 v{vt+2}, s{S_TB}, v{c+3}')
        if i == 0: a(f'v_or_b32 v{vt}, v{vt+1}, v{vt+2}')
        else: a(f'v_or3_b32 v{vt}, v{vt}, v{vt+1}, v{vt+2}')
    a(f'v_cmp_ne_u32 vcc, 0, v{vt}')
    a('s_mov_b64 exec, vcc')
    a(f's_cbranch_execz {D}')
    a(f's_sub_u32 s{scnt}, s{scnt}, 1')
    a(f's_cbranch_scc1 {D}')
    if sleep: a(f's_sleep {sleep}')
    for l in loads: a(l)
    a(f's_branch {L}')
    a.label(D)
    a('s_mov_b64 exec, -1')


def progwait(a, thr, vz, vt, st, scnt, slp, name='pw'):
    Lw = a.newlabel(name + '_w'); Lg = a.newlabel(name + '_g')
    a(f's_mov_b32 s{scnt}, {POLL_MAX}')
    a.label(Lw)
    a(f'ds_read_b32 v{vt}, v{vz} offset:{LDS_REC}')
    a(f'ds_read_b32 v{vt+1}, v{vz} offset:{LDS_REC + 512}')
    a('s_waitcnt lgkmcnt(0)')
    a(f'v_add_u32 v{vt}, v{vt}, v{vt+1}')
    a('s_nop 0')
    a(f'v_readfirstlane_b32 s{st}, v{vt}')
    a(f's_cmp_ge_u32 s{st}, {int(2 * thr)}')
    a(f's_cbranch_scc1 {Lg}')
    a(f's_sub_u32 s{scnt}, s{scnt}, 1')
    a(f's_cbranch_scc1 {Lg}')
    a(f's_sleep {slp}')
    a(f's_branch {Lw}')
    a.label(Lg)


def poll_pipe(a, nsets, loads, chunks, on_new, vt, scnt, sP, sQ, sEX, sDry, name='pp', gap=6, thr=0, slp=0, skipnew=False):
    L = a.newlabel(name); D = a.newlabel(name + '_done')
    n = len(loads(0))
    a(f's_mov_b64 s[{sP}:{sP+1}], s[{sEX}:{sEX+1}]')
    a(f's_mov_b64 exec, s[{sEX}:{sEX+1}]')
    a(f's_cmp_eq_u32 s{sDry}, 0')
    a(f's_cselect_b32 s{scnt}, {POLL_MAX}, 0')
    for s in range(nsets):
        for l in loads(s): a(l)
        if gap and s < nsets - 1: a(f's_sleep {gap}')
    a.label(L)
    for s in range(nsets):
        ch = chunks(s)
        for i, c in enumerate(ch):
            if i % 4 == 0:
                a(f's_waitcnt vmcnt({(nsets - 1) * n + max(0, n - i - 4)})')
            a(f'v_xor_b32 v{vt+1}, s{S_TA}, v{c+1}')
            a(f'v_xor_b32 v{vt+2}, s{S_TB}, v{c+3}')
            if i == 0: a(f'v_or_b32 v{vt}, v{vt+1}, v{vt+2}')
            else: a(f'v_or3_b32 v{vt}, v{vt}, v{vt+1}, v{vt+2}')
        a(f'v_cmp_ne_u32 vcc, 0, v{vt}')
        a(f's_andn2_b64 exec, s[{sP}:{sP+1}], vcc')
        a(f's_mov_b64 s[{sP}:{sP+1}], vcc')
        Ls = a.newlabel(name + '_sk')
        if skipnew:
            a(f's_or_b32 s{sQ}, exec_lo, exec_hi')
            a(f's_or_b32 s{sQ}, s{sQ}, s{sDry}')
            a(f's_cbranch_scc0 {Ls}')
        on_new(s)
        a.label(Ls)
        a(f's_mov_b64 exec, s[{sP}:{sP+1}]')
        a(f's_or_b32 s{sQ}, s{sP}, s{sP+1}')
        a(f's_or_b32 s{sQ}, s{sQ}, s{sDry}')
        a(f's_cbranch_scc0 {D}')
        if slp:
            Ln = a.newlabel(name + '_ns')
            a(f's_bcnt1_i32_b64 s{sQ}, s[{sP}:{sP+1}]')
            a(f's_cmp_le_u32 s{sQ}, {thr}')
            a(f's_cbranch_scc1 {Ln}')
            a(f's_sleep {slp}')
            a.label(Ln)
        for l in loads(s): a(l)
    a(f's_sub_u32 s{scnt}, s{scnt}, 1')
    a(f's_cbranch_scc0 {L}')
    a.label(D)
    a(f's_mov_b64 exec, s[{sEX}:{sEX+1}]')


def flagpoll(a, load, regs, vt, scnt, name, sleep=1, mask=None):
    L = a.newlabel(name); D = a.newlabel(name + '_done')
    a(f's_mov_b32 s{scnt}, {POLL_MAX}')
    if mask: a(f's_mov_b64 exec, {mask}')
    a.label(L)
    a(load)
    a('s_waitcnt vmcnt(0)')
    a(f'v_xor_b32 v{vt}, s{S_TA}, v{regs[0]}')
    for r in regs[1:]:
        a(f'v_xor_b32 v{vt+1}, s{S_TA}, v{r}')
        a(f'v_or_b32 v{vt}, v{vt}, v{vt+1}')
    a(f'v_cmp_ne_u32 vcc, 0, v{vt}')
    a('s_mov_b64 exec, vcc')
    a(f's_cbranch_execz {D}')
    a(f's_sub_u32 s{scnt}, s{scnt}, 1')
    a(f's_cbranch_scc1 {D}')
    if sleep: a(f's_sleep {sleep}')
    a(f's_branch {L}')
    a.label(D)
    a('s_mov_b64 exec, -1')


def mkchunks(a, dst, vals):
    for i, v in enumerate(vals):
        a(f'v_mov_b32 v{dst+2*i}, v{v}')
        a(f'v_mov_b32 v{dst+2*i+1}, s{S_TA if i % 2 == 0 else S_TB}')


def stamp(a, cfg, sreg):
    if cfg.get('prof'): a(f's_memrealtime s[{sreg}:{sreg+1}]')

PROFV = 251
class Prof:
    slots = 0
def stamp_store(a, cfg, pairs, vt):
    if not cfg.get('prof'): return
    a('s_waitcnt lgkmcnt(0)')
    for slot, sreg in pairs:
        a(f'v_writelane_b32 v{PROFV}, s{sreg}, {slot}')

def stamp_flush(a, cfg, slots, vt):
    if not cfg.get('prof'): return
    m = sum(1 << s for s in slots)
    a(f's_lshl_b32 s78, s2, 7')
    a(f's_add_u32 s78, s78, {WS_PROF:#x}')
    a(f'v_lshlrev_b32 v{vt}, 2, v0')
    a(f's_mov_b32 exec_lo, {m:#x}')
    a('s_mov_b32 exec_hi, 0')
    a(f'buffer_store_dword v{PROFV}, v{vt}, s[{S_WS}:{S_WS+3}], s78 offen')
    a('s_mov_b64 exec, -1')


DEF_MAP = 'v t1 t0 w3 t2 t3 t4 t5 w0 w1 w2 w4 w5 w6 w7'
def map_cols(cfg):
    f = cfg.get('map', DEF_MAP).split()
    assert len(f) == 15 and f[12:] == ['w5', 'w6', 'w7']
    cols = {}
    for b, e in enumerate(f):
        for n in e.split('^'):
            cols[n] = cols.get(n, 0) ^ (1 << (13 + b))
    names = ['v'] + [f't{i}' for i in range(6)] + [f'w{i}' for i in range(8)]
    seen = set()
    for h in range(1 << 15):
        x = 0
        for i, n in enumerate(names):
            if h >> i & 1: x ^= cols[n]
        seen.add(x)
    assert len(seen) == 1 << 15
    return cols
def tconst(cols, t):
    x = 0
    for i in range(6):
        if t >> i & 1: x ^= cols[f't{i}']
    return x
def runs(cl):
    out = []; i = 0
    while i < len(cl):
        c = cl[i]
        if c & (c - 1):
            out.append((i, None, c)); i += 1; continue
        n = 1
        while i + n < len(cl) and cl[i + n] == c << n: n += 1
        out.append((i, n, c.bit_length() - 1)); i += n
    return out
def smap(a, dst, src, cl, tmp, first=True):
    for st, n, o in runs(cl):
        d = dst if first else tmp
        if n is None:
            a(f's_bitcmp1_b32 s{src}, {st}')
            a(f's_cselect_b32 s{d}, {o:#x}, 0')
        else:
            a(f's_bfe_u32 s{d}, s{src}, {(n << 16) | st:#x}')
            a(f's_lshl_b32 s{d}, s{d}, {o}')
        if not first: a(f's_xor_b32 s{dst}, s{dst}, s{tmp}')
        first = False
def vmap(a, dst, src, off, cl, tmp):
    for st, n, o in runs(cl):
        if n is None:
            a(f'v_bfe_i32 v{tmp}, v{src}, {off + st}, 1')
            a(f'v_and_b32 v{tmp}, {o:#x}, v{tmp}')
        else:
            a(f'v_bfe_u32 v{tmp}, v{src}, {off + st}, {n}')
            a(f'v_lshlrev_b32 v{tmp}, {o}, v{tmp}')
        a(f'v_xor_b32 v{dst}, v{dst}, v{tmp}')


CM = [[0, 1, 2, 4], [5, 6, 7, 3]]
def gen_stream(a, cfg):
    NA = 8
    cols = map_cols(cfg)
    flags = 'nt'
    V = Regs(1, 256)
    vKoff = [V.alloc(), V.alloc()]; vVoff = [V.alloc(), V.alloc()]; vOo = [V.alloc(), V.alloc()]
    vm = V.alloc(); vl = V.alloc(); vt0 = V.alloc(); vt1 = V.alloc(); valpha = V.alloc(); vmc = V.alloc()
    vc = V.alloc(); vg = V.alloc(); vRa = V.alloc()
    vTk = V.alloc(); vOne = V.alloc()
    vIt = V.alloc(); vF1 = V.alloc(); vZero = V.alloc()
    vTbl = V.alloc(); vSa = V.alloc(); vSb = V.alloc(); vSr = V.alloc()
    vAd = V.alloc(2, 2)
    vRec = V.alloc(2, 2)
    vSc = V.alloc(2, 2)
    vRef = V.alloc(4, 4)
    vmask = V.alloc(4, 4)
    vS = V.alloc(4, 4)
    vP = V.alloc(4, 4)
    vacc = V.alloc(8, 4)
    vA = V.alloc(16, 4)
    vQ = V.alloc(16, 4)
    vB = [V.alloc(32, 4) for _ in range(4)]
    sK = 4; sVv = 8
    sY, sSl, sThf, sThx = 16, 17, 18, 19
    sNom = 20; sPend = 21; sE = 22; sD = 23; sG = [24, 25, 26, 27]; sNg = 28; sL = 29
    sMode = [30, 32, 34, 36]; sCur = 38; sMf = 40; sMx = 60
    sN = 42; sCf = 43; sMk = 44; sCx = 46
    sC = 47; sTmp = 48; sBase = 49; sT2 = 52; sI = 53
    sCtr = 54; sF1 = 55; sTk = 56
    FS = cfg.get('fs', 2); B0q = int(cfg.get('b0', 2.14) / 4 * 25600)
    GF = cfg.get('gf', -14); GX = cfg.get('gx', 25)
    LOC = '' if cfg.get('loc', 0) else 'sc1'
    smap(a, sBase, 2, [cols[f'w{i}'] for i in range(8)], sTmp)
    smap(a, sBase, S_WAVE, [cols['v']], sTmp, first=False)
    srd(a, sK, P_K, 0x10000000)
    a(f'v_and_b32 v{vc}, 15, v0')
    a(f'v_lshrrev_b32 v{vg}, 4, v0')
    def chunkoff(dst, cm, qf, sf, rowf):
        def gather(d, fl, t):
            first = True
            for lb, ob, n in fl:
                r = d if first else t
                a(f'v_bfe_u32 v{r}, v0, {lb}, {n}')
                if first:
                    if ob: a(f'v_lshlrev_b32 v{d}, {ob}, v{d}')
                else:
                    a(f'v_lshl_or_b32 v{d}, v{t}, {ob}, v{d}')
                first = False
        gather(vt0, [(l, o + 2, n) for l, o, n in qf], vt1)
        gather(valpha, [(l, o + 4, n) for l, o, n in sf] + [(rowf, 11, 2)], vt1)
        for hf in range(2):
            tb = sum(cm[hf][i] << (4 * i) for i in range(4))
            a(f's_mov_b32 s{sTmp}, {tb:#x}')
            a(f'v_lshrrev_b32 v{dst[hf]}, v{vt0}, s{sTmp}')
            a(f'v_and_b32 v{dst[hf]}, 15, v{dst[hf]}')
            a(f'v_lshl_or_b32 v{dst[hf]}, v{dst[hf]}, 6, v{valpha}')
    KSC = ([(1, 0, 1), (4, 1, 1)], [(0, 0, 1), (5, 1, 1)])
    VSC = ([(1, 0, 2)], [(0, 0, 1), (3, 1, 1)])
    KMF, KMX, VMF, VMX = 0xcccc0000, 0x0000cccc, 0xc0c0c0c0, 0x0c0c0c0c
    def setmasks(mf, mx):
        for k in range(2):
            a(f's_mov_b32 s{sMf+k}, {mf:#x}')
            a(f's_mov_b32 s{sMx+k}, {mx:#x}')
    chunkoff(vKoff, CM, KSC[0], KSC[1], 2)
    def R(file, base, n): return f'{file}[{base}:{base+n-1}]'
    def issue(file, base, so, ad, srdn):
        for j in range(8):
            a(f'buffer_load_dwordx4 {R(file,base+4*j,4)}, v{ad[j&1]}, {sr(srdn,4)}, s{so} offen offset:{(j>>1)*512} {flags}')
    PST = [66 + 2 * i for i in range(11)] + [90 + 2 * i for i in range(6)]
    pst_n = [0]
    def pst():
        if cfg.get('prof') and pst_n[0] < len(PST):
            r = PST[pst_n[0]]; pst_n[0] += 1
            a(f's_memrealtime s[{r}:{r+1}]')
    a('s_barrier')
    pst()
    PD = cfg.get('pd', 4)
    seq = [('a', 32 * i) for i in range(NA)] + [('v', vB[s]) for s in range(4)]
    for i, (file, kb) in enumerate(seq):
        a(f's_xor_b32 s{sTmp}, s{sBase}, {tconst(cols, i):#x}')
        if i >= PD:
            a(f's_waitcnt vmcnt({8 * PD - 8})')
            pst()
        issue(file, kb, sTmp, vKoff, sK)
        if i == PD - 1:
            srd(a, sVv, P_V, 0x10000000)
            a(f's_mov_b32 s{sC}, {C_SCALE:#x}')
            chunkoff(vVoff, CM, VSC[0], VSC[1], 4)
            a(f'v_lshrrev_b32 v{vt1}, 2, v{vc}')
            a(f'v_and_b32 v{vt0}, 2, v0')
            a(f'v_lshlrev_b32 v{vt0}, 3, v{vt0}')
            a(f'v_mov_b32 v{vl}, 0xffff')
            a(f'v_lshlrev_b32 v{vt0}, v{vt0}, v{vl}')
            for j in range(4):
                a(f'v_cmp_eq_u32 vcc, {j}, v{vt1}')
                a('s_nop 1')
                a(f'v_cndmask_b32 v{vmask+j}, 0, v{vt0}, vcc')
            a(f'v_mov_b32 v{vm}, 0xf149f2ca')
            a(f'v_mov_b32 v{vl}, 0')
            for k in range(8):
                a(f'v_mov_b32 v{vacc+k}, 0')
            a(f's_lshl_b32 s{sT2}, s{S_WAVE}, 9')
            a(f's_add_u32 s{sT2}, s{sT2}, {LDS_REC}')
            a(f'v_lshlrev_b32 v{vRa}, 3, v0')
            a(f'v_add_u32 v{vRa}, s{sT2}, v{vRa}')
            a(f'v_mov_b32 v{vOne}, 1')
            a(f'v_mov_b32 v{vTbl}, s{sBase}')
            vmap(a, vTbl, 0, 0, [cols[f't{k}'] for k in range(6)], vt0)
            a(f's_lshl_b32 s{sT2}, s{S_WAVE}, 12')
            a(f's_add_u32 s{sT2}, s{sT2}, {LDS_SC}')
            a(f'v_and_b32 v{vSr}, 1, v0')
            a(f'v_lshlrev_b32 v{vSr}, 5, v{vSr}')
            a(f'v_lshl_add_u32 v{vSr}, v{vg}, 3, v{vSr}')
            a(f'v_add_u32 v{vSr}, s{sT2}, v{vSr}')
            a(f'v_bfe_u32 v{vSa}, v0, 2, 1')
            a(f'v_lshlrev_b32 v{vSa}, 5, v{vSa}')
            a(f'v_lshl_add_u32 v{vSa}, v{vg}, 3, v{vSa}')
            a(f'v_bfe_u32 v{vSb}, v0, 3, 1')
            a(f'v_lshl_add_u32 v{vSa}, v{vSb}, 2, v{vSa}')
            a(f'v_add_u32 v{vSa}, s{sT2}, v{vSa}')
            a(f'v_add_u32 v{vSb}, {20 * 64}, v{vSa}')
            for k in range(16):
                a(f'v_mov_b32 v{vQ+k}, 0')
            a(f's_mov_b32 s{sMk}, 0x00ff00ff')
            a(f's_mov_b32 s{sMk+1}, 0x00ff00ff')
            a(f'v_mov_b32 v{vZero}, 0')
            a(f's_mul_i32 s{sF1}, s2, {OSTR}')
            a(f's_lshl_b32 s{sT2}, s{S_WAVE}, 2')
            a(f's_add_u32 s{sF1}, s{sF1}, s{sT2}')
            a(f's_add_u32 s{sF1}, s{sF1}, {WS_O + 4096 + 64:#x}')
            a(f's_mov_b32 s{sN}, {NA + 4}')
            for r in [sY, sSl, sPend, sD, sCf, sCx] + sG + list(range(sMode[0], sCur + 2)): a(f's_mov_b32 s{r}, 0')
            a(f's_mov_b32 s{sThf}, 0x7fffffff')
            a(f's_mov_b32 s{sThx}, 0x80000000')
            a(f's_mov_b32 s{sNom}, {NA * B0q}')
            a(f's_mov_b32 s{sNg}, {NA}')
            setmasks(KMF, KMX)
    a(f'v_bfe_u32 v{vt1}, v0, 2, 1')
    a(f'v_lshlrev_b32 v{vt1}, 9, v{vt1}')
    a(f's_movk_i32 s{sTmp}, 0x1ff')
    a(f'v_and_or_b32 v{vt0}, v{vKoff[0]}, s{sTmp}, v{vt1}')
    a(f'v_and_or_b32 v{valpha}, v{vKoff[1]}, s{sTmp}, v{vt1}')
    a(f'v_mov_b32 v{vt1}, 0')
    stamp(a, cfg, 62)
    a(f's_mov_b64 exec, s[{sMk}:{sMk+1}]')
    a('s_barrier')
    a(f'ds_read_b128 {vr(vQ,4)}, v{vt0}')
    a(f'ds_read_b128 {vr(vQ+4,4)}, v{valpha}')
    a(f's_not_b64 exec, exec')
    a(f'ds_read_b128 {vr(vQ+8,4)}, v{vt0}')
    a(f'ds_read_b128 {vr(vQ+12,4)}, v{valpha}')
    a('s_mov_b64 exec, -1')
    a(f'ds_read_b32 v{vt1}, v{vt1} offset:{LDS_TAG}')
    a('s_waitcnt lgkmcnt(0)')
    a(f'v_readfirstlane_b32 s{S_TA}, v{vt1}')
    pst()

    def relayout(b, pairs):
        a(f's_xor_b64 exec, s[{sCur}:{sCur+1}], s[{sMode[b]}:{sMode[b]+1}]')
        for x, y in pairs: a(f'v_swap_b32 v{x}, v{y}')
        a(f's_mov_b64 s[{sCur}:{sCur+1}], s[{sMode[b]}:{sMode[b]+1}]')
        a('s_mov_b64 exec, -1')
    QP = [(vQ + k, vQ + 4 + k) for k in range(4)] + [(vQ + 8 + k, vQ + 12 + k) for k in range(4)]
    AP = [(vacc + k, vacc + 4 + k) for k in range(4)]
    def ctl_pre(b):
        gb = sG[b]
        a(f's_lshr_b32 s{sE}, s{sNom}, 8')
        a(f's_add_u32 s{sE}, s{sE}, s{S_TA}')
        a(f's_add_u32 s{sNom}, s{sNom}, {B0q}')
        a(f's_sub_u32 s{sPend}, s{sPend}, s{gb}')
        a(f's_add_u32 s{sD}, s{sD}, s{gb}')
        a(f's_add_u32 s{sE}, s{sE}, s{sD}')
        a(f's_ashr_i32 s{sL}, s{sY}, 8')
        a(f's_add_u32 s{sY}, s{sY}, s{sSl}')
        a(f's_sub_u32 s{sL}, s{sPend}, s{sL}')
    def ctl_post(b, off):
        gb = sG[b]; mk = sMode[b]
        a('s_waitcnt lgkmcnt(0)')
        a(f's_sub_u32 s{sE}, s58, s{sE}')
        a(f's_ashr_i32 s{sE}, s{sE}, {FS}')
        a(f's_add_u32 s{sD}, s{sD}, s{sE}')
        a(f's_add_u32 s{sE}, s{sD}, s{sL}')
        a(f's_cmp_gt_i32 s{sE}, s{sThf}')
        a(f's_cselect_b64 s[{mk}:{mk+1}], s[{sMf}:{sMf+1}], 0')
        a(f's_cselect_b32 s{gb}, {GF}, 0')
        if cfg.get('prof'): a(f's_addc_u32 s{sCf}, s{sCf}, 0')
        a(f's_cmp_lt_i32 s{sE}, s{sThx}')
        a(f's_cselect_b64 s[{mk}:{mk+1}], s[{sMx}:{sMx+1}], s[{mk}:{mk+1}]')
        a(f's_cselect_b32 s{gb}, {GX}, s{gb}')
        if cfg.get('prof'): a(f's_addc_u32 s{sCx}, s{sCx}, 0')
        if cfg.get('rndmode'):
            a(f's_lshr_b32 s{sE}, s58, 1')
            a(f's_bitcmp1_b32 s{sE}, 0')
            a(f's_cselect_b64 s[{mk}:{mk+1}], s[{sMf}:{sMf+1}], 0')
            a(f's_bitcmp1_b32 s{sE}, 1')
            a(f's_cselect_b64 s[{mk}:{mk+1}], s[{sMx}:{sMx+1}], s[{mk}:{mk+1}]')
        a(f'v_cndmask_b32 v{vAd}, v{off[0]}, v{off[1]}, s[{mk}:{mk+1}]')
        a(f'v_cndmask_b32 v{vAd+1}, v{off[1]}, v{off[0]}, s[{mk}:{mk+1}]')
        a(f's_add_u32 s{sPend}, s{sPend}, s{gb}')
    def rec():
        a(f'v_mov_b32 v{vRec}, s{sNg}')
        a(f'v_mov_b32 v{vRec+1}, s{sD}')
        a(f'ds_write_b64 v{vRa}, {vr(vRec,2)}')
        a(f's_add_u32 s{sNg}, s{sNg}, 1')
    def refread():
        a(f'ds_read_b128 {vr(vRef,4)}, v{vZero} offset:{LDS_REF}')
    def reftake():
        a('s_waitcnt lgkmcnt(0)')
        for k in range(4): a(f'v_readfirstlane_b32 s{sY+k}, v{vRef+k}')
        a(f's_mul_i32 s{sL}, s{sSl}, s{sNg}')
        a(f's_add_u32 s{sY}, s{sY}, s{sL}')

    def pmask():
        for i in range(4):
            a(f'v_cvt_pk_bf16_f32 v{vP+i}, v{vP+i}, v{vP+i}')
        for i in range(4):
            for j in range(4):
                a(f'v_and_b32 v{vA+4*i+j}, v{vP+i}, v{vmask+j}')
    def pv(file, vb):
        for i in range(4):
            for hf in range(2):
                a(f'v_mfma_f32_16x16x32_bf16 {vr(vacc+4*hf,4)}, {vr(vA+4*i,4)}, {R(file,vb+4*(2*i+hf),4)}, {vr(vacc+4*hf,4)}')
    def f1store():
        if not cfg.get('f1', 1): return
        a('s_mov_b64 exec, 1')
        a(f'buffer_store_dword v{vF1}, v{vZero}, {sr(S_WS,4)}, s{sF1} offen {LOC}')
        a('s_mov_b64 exec, -1')
    def qk1(file, kb):
        first = [True, True]
        for cg in range(2):
            for half in range(2):
                for aa in range(2):
                    j = cg * 4 + aa * 2 + half
                    d = vS if aa == 0 else vP
                    cc = '0' if first[aa] else vr(d, 4)
                    first[aa] = False
                    a(f'v_mfma_f32_16x16x32_bf16 {vr(d,4)}, {R(file,kb+4*j,4)}, {vr(vQ+8*cg+4*half,4)}, {cc}')
    def kpost(va, off):
        for d, t in ((vS, vt0), (vP, vt1)):
            a(f'v_mov_b32_dpp v{t}, v{d} quad_perm:[0,0,0,0] row_mask:0xf bank_mask:0xf')
        for i in range(1, 4):
            for d, t in ((vS, vt0), (vP, vt1)):
                a(f'v_add_f32_dpp v{t}, v{d+i}, v{t} quad_perm:[{i},{i},{i},{i}] row_mask:0xf bank_mask:0xf')
        a(f'v_cvt_pk_bf16_f32 v{vSc}, v{vt0}, v{vt1}')
        a(f'v_max3_f32 v{vm}, v{vt0}, v{vt1}, v{vm}')
        a(f'ds_write_b32 v{va}, v{vSc} offset:{off}')
    def kbody(b, va, off, nxt='K', pro=False, ref=False):
        a(f'v_readlane_b32 s{sI}, v{vTbl}, s{sN}')
        if not pro: relayout(b, QP)
        ctl_pre(b)
        a(f's_waitcnt vmcnt(24)')
        a('s_memrealtime s[58:59]')
        qk1('v', vB[b])
        a(f's_add_u32 s{sN}, s{sN}, 1')
        if pro and cfg.get('rndmode'):
            a('s_waitcnt lgkmcnt(0)')
            issue('v', vB[b], sI, vKoff, sK)
        else:
            ctl_post(b, vKoff if nxt == 'K' else vVoff)
            issue('v', vB[b], sI, [vAd, vAd + 1], sK if nxt == 'K' else sVv)
        kpost(va, off)
        rec()
        if ref: refread()
    def atile(i):
        qk1('a', 32 * i)
        a('s_nop 7')
        kpost(vSa, 64 * i)
    def vbody(b, off, last=False, ref=False):
        a('s_waitcnt lgkmcnt(0)')
        a(f'v_lshlrev_b32 v{vS}, 16, v{vSc}')
        a(f'v_and_b32 v{vS+1}, 0xffff0000, v{vSc}')
        a(f'v_lshlrev_b32 v{vS+2}, 16, v{vSc+1}')
        a(f'v_and_b32 v{vS+3}, 0xffff0000, v{vSc+1}')
        if off is not None:
            a(f'ds_read_b64 {vr(vSc,2)}, v{vSb} offset:{off}')
        if ref: refread()
        for i in range(4):
            a(f'v_fma_f32 v{vP+i}, v{vS+i}, s{sC}, -v{vmc}')
        for i in range(4):
            a(f'v_exp_f32 v{vP+i}, v{vP+i}')
        if not last:
            a(f'v_readlane_b32 s{sI}, v{vTbl}, s{sN}')
        else:
            a('s_nop 0')
        a(f'v_add_f32 v{vt0}, v{vP}, v{vP+1}')
        a(f'v_add_f32 v{vt1}, v{vP+2}, v{vP+3}')
        a(f'v_add_f32 v{vl}, v{vl}, v{vt0}')
        a(f'v_add_f32 v{vl}, v{vl}, v{vt1}')
        pmask()
        relayout(b, AP)
        if not last:
            ctl_pre(b)
            a(f's_waitcnt vmcnt(24)')
            a('s_memrealtime s[58:59]')
            a(f's_add_u32 s{sN}, s{sN}, 1')
            pv('v', vB[b])
            ctl_post(b, vVoff)
            issue('v', vB[b], sI, [vAd, vAd + 1], sVv)
            rec()
        else:
            if b == cfg.get('f1b', 1): f1store()
            if b == 3:
                xlane_reduce(a, [vl], [vt0], 'v_add_f32', ['p32', 'p16'])
                a(f'v_lshlrev_b32 v{vt0}, 4, v0')
                a(f's_mul_i32 s{sBase}, s2, {OSTR}')
                a(f's_add_u32 s{sBase}, s{sBase}, {WS_O:#x}')
                a(f's_add_u32 s{sT2}, s{sBase}, 4096')
                a(f'v_mov_b32 v{vRa}, {LDS_CTR}')
            a(f's_waitcnt vmcnt({24 - 8 * b})')
            pv('v', vB[b])
            if b < 3: rec()
    pat = cfg.get('pat', '0123ab0c1d2e3f0g1h23')
    kt = NA
    for ci, ch in enumerate(pat):
        if ch in '0123':
            kbody(int(ch), vSa, 64 * kt, pro=True, ref=(ci == len(pat) - 1)); kt += 1
        else: atile(ord(ch) - ord('a'))
        if ch in '13bdf': pst()
        if kt == NA + 1 and ch == '0':
            tagB(a)
            a(f'v_mov_b32 v{vF1}, s{S_TA}')
    assert kt == 20 and pat[-1] == '3'
    LK = a.newlabel('st_loopK'); LV = a.newlabel('st_loopV')
    def itstamp():
        if cfg.get('prof'):
            a('s_mov_b32 m0, s57')
            a('s_add_u32 s57, s57, 1')
            a(f'v_writelane_b32 v{vIt}, s58, m0')
    if cfg.get('prof'):
        a('s_mov_b32 s57, 0')
        a(f'v_mov_b32 v{vIt}, 0')
        a('s_waitcnt lgkmcnt(0)')
        for k in range(pst_n[0]):
            a(f'v_writelane_b32 v{vIt}, s{PST[k]}, {40 + k}')
    a.label(LK)
    itstamp()
    reftake()
    for b in range(4): kbody(b, vSb, 64 * b, ref=(b == 3))
    a(f'v_add_u32 v{vSb}, 256, v{vSb}')
    a(f's_cmp_lt_u32 s{sN}, 64')
    a(f's_cbranch_scc1 {LK}')
    itstamp()
    reftake()
    a(f's_mov_b32 s{sN}, 0')
    setmasks(VMF, VMX)
    for b in range(4): kbody(b, vSb, 64 * b, 'V', ref=(b == 3))
    a(f's_mov_b64 s[{sCur}:{sCur+1}], 0')
    a(f'ds_read_b64 {vr(vSc,2)}, v{vSr}')
    a(f'v_mov_b32 v{vSb}, v{vSr}')
    xlane_reduce(a, [vm], [vt0], 'v_max_f32', ['r8', 'p32', 'p16'])
    a(f'v_cvt_pk_bf16_f32 v{vm}, v{vm}, v{vm}')
    a(f'v_lshlrev_b32 v{vm}, 16, v{vm}')
    a('s_mov_b32 vcc_lo, 0xaaaaaaaa')
    a('s_mov_b32 vcc_hi, 0xaaaaaaaa')
    a(f'v_readlane_b32 s{sMk}, v{vm}, 0')
    a(f'v_readlane_b32 s{sMk+1}, v{vm}, 4')
    a('s_nop 1')
    a(f'v_mov_b32 v{vm}, s{sMk}')
    a(f'v_mov_b32 v{vt0}, s{sMk+1}')
    a(f'v_cndmask_b32 v{vm}, v{vm}, v{vt0}, vcc')
    a(f'v_mul_f32 v{vmc}, s{sC}, v{vm}')
    a.label(LV)
    itstamp()
    reftake()
    for b in range(4): vbody(b, 64 * (b + 1), ref=(b == 3))
    a(f'v_add_u32 v{vSb}, 256, v{vSb}')
    a(f's_cmp_lt_u32 s{sN}, 64')
    a(f's_cbranch_scc1 {LV}')
    itstamp()
    for b in range(4): vbody(b, 64 * (b + 1) if b < 3 else None, last=True)
    a('s_mov_b64 exec, 1')
    a(f'ds_add_rtn_u32 v{vTk}, v{vRa}, v{vOne} offset:{LDS_DONE - LDS_CTR}')
    a(f's_mov_b64 exec, s[{sCur}:{sCur+1}]')
    a(f's_nop 4')
    for x, y in AP: a(f'v_swap_b32 v{x}, v{y}')
    a('s_mov_b64 exec, -1')
    L2nd = a.newlabel('st_2nd'); LB3 = a.newlabel('st_b3')
    a('s_waitcnt lgkmcnt(0)')
    a(f'v_readfirstlane_b32 s{sTk}, v{vTk}')
    a(f's_cmp_lg_u32 s{sTk}, 0')
    a(f's_cbranch_scc1 {L2nd}')
    a(f'v_mov_b32 v{vS}, v{vm}')
    a(f'v_mov_b32 v{vS+1}, v{vl}')
    a(f'v_mov_b32 v{vTk}, s{S_TA}')
    a(f'ds_write_b128 v{vt0}, {vr(vacc,4)} offset:{LDS_CMB}')
    a(f'ds_write_b128 v{vt0}, {vr(vacc+4,4)} offset:{LDS_CMB+1024}')
    a(f'ds_write_b64 v{vt0}, {vr(vS,2)} offset:{LDS_CMB+2048}')
    a(f'ds_write_b32 v{vRa}, v{vTk} offset:{LDS_FLAG2 - LDS_CTR}')
    a(f's_branch {LB3}')
    a.label(L2nd)
    Lw2 = a.newlabel('st_w2'); Lg2 = a.newlabel('st_g2')
    a(f's_mov_b32 s{sCtr}, {POLL_MAX}')
    a.label(Lw2)
    a(f'ds_read_b32 v{vTk}, v{vRa} offset:{LDS_FLAG2 - LDS_CTR}')
    a(f'ds_read_b64 {vr(vS,2)}, v{vt0} offset:{LDS_CMB+2048}')
    a(f'ds_read_b128 {vr(vA,4)}, v{vt0} offset:{LDS_CMB}')
    a(f'ds_read_b128 {vr(vA+4,4)}, v{vt0} offset:{LDS_CMB+1024}')
    a('s_waitcnt lgkmcnt(3)')
    a(f'v_readfirstlane_b32 s{sTk}, v{vTk}')
    a(f's_cmp_eq_u32 s{sTk}, s{S_TA}')
    a(f's_cbranch_scc1 {Lg2}')
    a(f's_sub_u32 s{sCtr}, s{sCtr}, 1')
    a(f's_cbranch_scc1 {Lg2}')
    a('s_waitcnt lgkmcnt(0)')
    a(f's_branch {Lw2}')
    a.label(Lg2)
    a('s_waitcnt lgkmcnt(2)')
    a(f'v_max_f32 v{vt1}, v{vm}, v{vS}')
    a(f'v_sub_f32 v{valpha}, v{vm}, v{vt1}')
    a(f'v_sub_f32 v{vmc}, v{vS}, v{vt1}')
    a(f'v_mul_f32 v{valpha}, s{sC}, v{valpha}')
    a(f'v_mul_f32 v{vmc}, s{sC}, v{vmc}')
    a(f'v_exp_f32 v{valpha}, v{valpha}')
    a(f'v_exp_f32 v{vmc}, v{vmc}')
    a(f'v_mov_b32 v{vm}, v{vt1}')
    a(f'v_mul_f32 v{vl}, v{vl}, v{valpha}')
    a(f'v_fmac_f32 v{vl}, v{vS+1}, v{vmc}')
    for i in range(8):
        qp = '[0,0,2,2]' if (i & 1) == 0 else '[1,1,3,3]'
        a(f'v_mul_f32_dpp v{vacc+i}, v{valpha}, v{vacc+i} quad_perm:{qp} row_mask:0xf bank_mask:0xf')
    a('s_waitcnt lgkmcnt(0)')
    for i in range(8):
        qp = '[0,0,2,2]' if (i & 1) == 0 else '[1,1,3,3]'
        a(f'v_fmac_f32_dpp v{vacc+i}, v{vmc}, v{vA+i} quad_perm:{qp} row_mask:0xf bank_mask:0xf')
    a(f'v_and_b32 v{vTk}, 1, v{vc}')
    a(f'v_cmp_eq_u32 vcc, 1, v{vTk}')
    a(f'v_mov_b32_dpp v{vP}, v{vm} quad_perm:[1,0,3,2] row_mask:0xf bank_mask:0xf')
    a(f'v_mov_b32_dpp v{vP+1}, v{vl} quad_perm:[1,0,3,2] row_mask:0xf bank_mask:0xf')
    a(f'v_mov_b32 v{vS+1}, s{S_TA}')
    a(f'v_mov_b32 v{vS+3}, s{S_TB}')
    a(f'v_cndmask_b32 v{vS}, v{vm}, v{vP+1}, vcc')
    a(f'v_cndmask_b32 v{vS+2}, v{vP}, v{vl}, vcc')
    mkchunks(a, vA, [vacc + i for i in range(8)])
    def ostore(fl):
        for i in range(4):
            a(f'buffer_store_dwordx4 {vr(vA+4*i,4)}, v{vt0}, {sr(S_WS,4)}, s{sBase} offen offset:{1024*i} {fl}')
        a('s_mov_b64 exec, 3')
        a(f'buffer_store_dwordx4 {vr(vS,4)}, v{vt0}, {sr(S_WS,4)}, s{sT2} offen {fl}')
        a('s_mov_b64 exec, -1')
    ostore(LOC)
    if LOC == '':
        if cfg.get('prof'):
            a(f's_memrealtime s[58:59]')
        a('s_barrier')
        Lw3 = a.newlabel('st_w3'); Lg3 = a.newlabel('st_g3'); LB4 = a.newlabel('st_b4')
        a(f's_mov_b32 s{sCtr}, {cfg.get("rt", 14)}')
        a(f's_and_b32 s{sF1}, s{sF1}, 0xfffffff8')
        a(f'v_mov_b32 v{vP}, s{S_TA}')
        a(f'v_mov_b32 v{vP+1}, s{S_TA}')
        a.label(Lw3)
        a(f'ds_read_b32 v{vTk}, v{vRa} offset:{LDS_FLAG3 - LDS_CTR}')
        a('s_waitcnt lgkmcnt(0)')
        a(f'v_readfirstlane_b32 s{sTk}, v{vTk}')
        a(f's_cmp_eq_u32 s{sTk}, s{S_TA}')
        a(f's_cbranch_scc1 {Lg3}')
        a(f's_sub_u32 s{sCtr}, s{sCtr}, 1')
        a(f's_cbranch_scc1 {Lg3}')
        a('s_sleep 4')
        a(f's_branch {Lw3}')
        a.label(Lg3)
        if cfg.get('rd'): a(f's_sleep {cfg["rd"]}')
        if cfg.get('wb'):
            a('s_waitcnt vmcnt(0)')
            a('buffer_wbl2 sc1')
        elif not cfg.get('norestore'):
            ostore('sc1')
            if cfg.get('f1', 1):
                a('s_mov_b64 exec, 1')
                a(f'buffer_store_dwordx2 {vr(vP,2)}, v{vZero}, {sr(S_WS,4)}, s{sF1} offen sc1')
                a('s_mov_b64 exec, -1')
        a(f's_branch {LB4}')
    a.label(LB3)
    if cfg.get('prof'):
        a(f's_memrealtime s[58:59]')
    a('s_barrier')
    if LOC == '': a.label(LB4)
    a(f'v_mov_b32 v{vt0}, 0')
    if cfg.get('prof'):
        a(f's_add_u32 s{sT2}, s{S_WAVE}, 4')
        a(f's_lshl_b32 s{sTmp}, s2, 5')
        a(f's_add_u32 s{sTmp}, s{sTmp}, s{sT2}')
        a(f's_lshl_b32 s{sTmp}, s{sTmp}, 2')
        a(f's_add_u32 s{sTmp}, s{sTmp}, {WS_PROF:#x}')
        a('s_waitcnt lgkmcnt(0)')
        a(f'v_mov_b32 v{vt1}, s58')
        a(f'buffer_store_dword v{vt1}, v{vt0}, {sr(S_WS,4)}, s{sTmp} offen')
        a(f'v_mov_b32 v{vt1}, s62')
        a(f'buffer_store_dword v{vt1}, v{vt0}, {sr(S_WS,4)}, s{sTmp} offen offset:28')
        a(f'v_writelane_b32 v{vIt}, s{sCf}, 62')
        a(f'v_writelane_b32 v{vIt}, s{sCx}, 63')
        a(f's_lshl_b32 s{sTmp}, s2, 1')
        a(f's_add_u32 s{sTmp}, s{sTmp}, s{S_WAVE}')
        a(f's_lshl_b32 s{sTmp}, s{sTmp}, 8')
        a(f's_add_u32 s{sTmp}, s{sTmp}, {WS_IT:#x}')
        a(f'v_lshlrev_b32 v{vt0}, 2, v0')
        a(f'buffer_store_dword v{vIt}, v{vt0}, {sr(S_WS,4)}, s{sTmp} offen')
    a('s_endpgm')
    return V.n


def gemv_pairs(a, vm, W, nrows, ndw, vX, acc, tmps, loads, first=True):
    for t in range(nrows // 2):
        if loads is not None:
            vm.wait(loads[2 * t + 1])
        for d in range(ndw):
            lo, hi = tmps[2 * d], tmps[2 * d + 1]
            a(f'v_perm_b32 v{lo}, v{W[2*t+1]+d}, v{W[2*t]+d}, s{S_SELLO}')
            a(f'v_perm_b32 v{hi}, v{W[2*t+1]+d}, v{W[2*t]+d}, s{S_SELHI}')
        for d in range(ndw):
            lo, hi = tmps[2 * d], tmps[2 * d + 1]
            c0 = '0' if (t == 0 and first) else f'v{acc[2*d]}'
            c1 = '0' if (t == 0 and first) else f'v{acc[2*d+1]}'
            a(f'v_dot2_f32_bf16 v{acc[2*d]}, v{lo}, v{vX+t}, {c0}')
            a(f'v_dot2_f32_bf16 v{acc[2*d+1]}, v{hi}, v{vX+t}, {c1}')
    a('s_nop 2')


def rnd_bf16(a, d, s, t):
    a(f'v_cvt_pk_bf16_f32 v{t}, v{s}, v{s}')
    a(f'v_lshlrev_b32 v{d}, 16, v{t}')


def ksplit_loads(a, vm, sX, sW, rowbytes, sKq, sColByte, vX, vW, vo1, vo2, vo3, sT, sT2):
    a(f'v_lshrrev_b32 v{vo1}, 3, v0')
    a(f'v_mul_u32_u24 v{vo2}, {14*rowbytes}, v{vo1}')
    a(f'v_and_b32 v{vo3}, 7, v0')
    a(f'v_lshl_add_u32 v{vo2}, v{vo3}, 4, v{vo2}')
    a(f's_mul_i32 s{sT2}, s{sKq}, {112*rowbytes}')
    a(f's_add_u32 s{sT2}, s{sT2}, s{sColByte}')
    lw = []
    for k in range(14):
        lw.append(vm.issue(f'buffer_load_dwordx4 {vr(vW+4*k,4)}, v{vo2}, {sr(sW,4)}, s{sT2} offen nt'))
        if k < 13: a(f's_add_u32 s{sT2}, s{sT2}, {rowbytes}')
        if k == 0:
            a(f'v_mul_u32_u24 v{vo3}, 28, v{vo1}')
            a(f's_mul_i32 s{sT}, s{sKq}, 224')
            vm.issue(f'buffer_load_dwordx4 {vr(vX,4)}, v{vo3}, {sr(sX,4)}, s{sT} offen')
            vm.issue(f'buffer_load_dwordx3 {vr(vX+4,3)}, v{vo3}, {sr(sX,4)}, s{sT} offen offset:16')
    return lw


def gen_auxA(a, cfg):
    V = Regs(1, 256)
    vt = V.alloc(8, 4)
    vX = V.alloc(8, 4)
    vacc = V.alloc(8, 4)
    vtmp = V.alloc(8, 4)
    vo1 = V.alloc(); vo2 = V.alloc(); vo3 = V.alloc(); vTag = V.alloc(); vOa = vTag; vYs = V.alloc(); vWa = V.alloc()
    vCh = V.alloc(16, 4)
    vW = V.alloc(80, 4); vSet = vW
    vWp = V.alloc(64, 4)
    vOq = V.alloc(16, 4)
    vML = V.alloc(8, 4)
    sX = 4; sWQ = 8; sDBG = 44; sWO = 48
    sT = 52; sT2 = 53; sHead = 54; sJ = 55; sCnt = 56; sC = 57; sKq = 58; sCb = 59
    sPk = 80; sWoB = 19
    vm = VM(a)
    stamp(a, cfg, 62)
    srd(a, sX, P_X, 896)
    srd(a, sWQ, P_WQ, 448 * 8192)
    a(f's_lshr_b32 s{sHead}, s2, 5')
    a(f's_and_b32 s{sJ}, s2, 31')
    a(f's_and_b32 s{sKq}, s2, 3')
    a(f's_lshr_b32 s{sCb}, s2, 2')
    a(f's_lshl_b32 s{sCb}, s{sCb}, 7')
    lw = ksplit_loads(a, vm, sX, sWQ, 8192, sKq, sCb, vX, vW, vo1, vo2, vo3, sT, sT2)
    a('s_barrier')
    srd(a, sDBG, P_DBG, 256)
    srd(a, sWO, P_WO, 4096 * 896)
    a(f'v_mov_b32 v{vo3}, 0')
    vm.issue(f'buffer_load_dword v{vTag}, v{vo3}, {sr(sDBG,4)}, 0 offen sc1')
    gemv_pairs(a, vm, [vW + 4 * k for k in range(14)], 14, 4, vX, [vacc + i for i in range(8)], [vtmp + i for i in range(8)], lw)
    xlane_reduce(a, [vacc + i for i in range(8)], [vtmp + i for i in range(8)], 'v_add_f32', ['r8', 'p16', 'p32'])
    stamp(a, cfg, 64)
    a(f'v_lshlrev_b32 v{vo1}, 4, v0')
    a(f's_lshl_b32 s{sT}, s{sHead}, 14')
    a(f's_lshl_b32 s{sT2}, s{sKq}, 12')
    a(f's_add_u32 s{sT2}, s{sT2}, s{sT}')
    a(f's_and_b32 s{sC}, s{sCb}, 0x380')
    a(f's_lshl_b32 s{sC}, s{sC}, 2')
    a(f's_add_u32 s{sT2}, s{sT2}, s{sC}')
    L = a.newlabel('ptag'); Dn = a.newlabel('ptag_done')
    a(f's_mov_b32 s{sCnt}, {POLL_MAX}')
    a.label(L)
    a('s_waitcnt vmcnt(0)')
    a(f'v_readfirstlane_b32 s{S_TA}, v{vTag}')
    a(f's_cmp_lg_u32 s{S_TA}, 0')
    a(f's_cbranch_scc1 {Dn}')
    a(f's_sub_u32 s{sCnt}, s{sCnt}, 1')
    a(f's_cbranch_scc1 {Dn}')
    a('s_sleep 1')
    a(f'buffer_load_dword v{vTag}, v{vo3}, {sr(sDBG,4)}, 0 offen sc1')
    a(f's_branch {L}')
    a.label(Dn)
    tagB(a)
    stamp(a, cfg, 66)
    mkchunks(a, vCh, [vacc + i for i in range(8)])
    a('s_mov_b64 exec, 0xff')
    for c in range(4):
        a(f'buffer_store_dwordx4 {vr(vCh+4*c,4)}, v{vo1}, {sr(S_WS,4)}, s{sT2} offen offset:{128*c} sc1')
    a('s_mov_b64 exec, -1')
    a(f'v_lshrrev_b32 v{vo2}, 5, v0')
    a(f'v_lshlrev_b32 v{vo2}, 7, v{vo2}')
    a(f'v_and_b32 v{vt}, 7, v0')
    a(f'v_lshl_add_u32 v{vo2}, v{vt}, 4, v{vo2}')
    a(f'v_bfe_u32 v{vt}, v0, 3, 2')
    a(f'v_lshl_add_u32 v{vo2}, v{vt}, 2, v{vo2}')
    for kq in range(1, 4):
        a(f's_add_u32 s{80+kq}, s{sT}, {4096*kq}')
    loads = []
    for kq in range(4):
        for i in range(4):
            so = sT if kq == 0 else 80 + kq
            loads.append(f'buffer_load_dwordx4 {vr(vW+4*(4*kq+i),4)}, v{vo1}, {sr(S_WS,4)}, s{so} offen offset:{i*1024} sc1')
    a(f'v_mov_b32 v{vML}, 0')
    a(f'v_mov_b32 v{vML+1}, 0')
    a(f'v_mov_b32 v{vML+2}, 0x7fffffff')
    a(f'v_mov_b32 v{vML+3}, 0x80000000')
    if cfg.get('qsleep'): a(f's_sleep {cfg["qsleep"]}')
    poll(a, loads, [vW + 4 * k for k in range(16)], vt, sCnt, name='pq')
    stamp(a, cfg, 68)
    for i in range(4):
        for e in (0, 2):
            a(f'v_add_f32 v{vW+4*i+e}, v{vW+4*i+e}, v{vW+4*(4+i)+e}')
            a(f'v_add_f32 v{vW+4*(8+i)+e}, v{vW+4*(8+i)+e}, v{vW+4*(12+i)+e}')
    for i in range(4):
        for e in (0, 2):
            a(f'v_add_f32 v{vW+4*i+e}, v{vW+4*i+e}, v{vW+4*(8+i)+e}')
    for i in range(4):
        a(f'v_cvt_pk_bf16_f32 v{vt+i}, v{vW+4*i}, v{vW+4*i+2}')
    for i in range(4):
        a(f'ds_write_b32 v{vo2}, v{vt+i} offset:{256*i}')
    a(f'ds_write_b32 v{vo3}, v{vTag} offset:{LDS_TAG}')
    a(f'ds_write_b128 v{vo3}, {vr(vML,4)} offset:{LDS_REF}')
    a(f'ds_write_b32 v{vo3}, v{vo3} offset:{LDS_DONE}')
    a(f'ds_write_b32 v{vo3}, v{vo3} offset:{LDS_FLAG3}')
    a(f'ds_write_b64 v{vo3}, {vr(vML,2)} offset:{LDS_REC}')
    a(f'ds_write_b64 v{vo3}, {vr(vML,2)} offset:{LDS_REC + 512}')
    a('s_waitcnt lgkmcnt(0)')
    a('s_barrier')
    stamp(a, cfg, 70)
    stamp_store(a, cfg, [(0, 62), (7, 64), (8, 66), (9, 68), (1, 70), (27, 98)], vt)
    a(f's_lshl_b32 s{sT}, s{sHead}, 9')
    a(f's_and_b32 s{sT2}, s{sJ}, 1')
    a(f's_lshl_b32 s{sT2}, s{sT2}, 4')
    a(f's_add_u32 s{sT}, s{sT}, s{sT2}')
    a(f's_and_b32 s{sT2}, s{sJ}, 6')
    a(f's_add_u32 s{sT}, s{sT}, s{sT2}')
    a(f's_bfe_u32 s{sT2}, s{sJ}, 0x10003')
    a(f's_add_u32 s{sT}, s{sT}, s{sT2}')
    a(f's_mul_i32 s{sWoB}, s{sT}, 896')
    a(f'v_min_u32 v{vWa}, 55, v0')
    a(f'v_lshlrev_b32 v{vWa}, 4, v{vWa}')
    WOL = cfg.get('wol', 0)
    vR = vW + 16
    def woload():
        for g2 in range(4):
            a(f's_bitcmp1_b32 s{sJ}, 4')
            a(f's_cselect_b32 s22, {CM[1][g2]}, {CM[0][g2]}')
            a(f's_mul_i32 s22, s22, {32 * 896}')
            a(f's_add_u32 s22, s22, s{sWoB}')
            for hh in range(2):
                for u1 in range(2):
                    a(f's_add_u32 s23, s22, {(hh * 256 + 8 * u1) * 896}')
                    a(f'buffer_load_dwordx4 {vr(vR+4*(8*hh+2*g2+u1),4)}, v{vWa}, {sr(sWO,4)}, s23 offen nt')
    def woperm():
        for pr in range(8):
            r0 = vR + 4 * (2 * pr); r1 = vR + 4 * (2 * pr + 1)
            for d in range(4):
                a(f'v_perm_b32 v{vWp+8*pr+2*d}, v{r1+d}, v{r0+d}, s{S_SELLO}')
                a(f'v_perm_b32 v{vWp+8*pr+2*d+1}, v{r1+d}, v{r0+d}, s{S_SELHI}')
    if not WOL:
        woload()
        a('s_waitcnt vmcnt(0)')
        woperm()
    a(f'v_and_b32 v{vo2}, 31, v0')
    a(f'v_mul_u32_u24 v{vo2}, {OSTR}, v{vo2}')
    a(f'v_lshrrev_b32 v{vo3}, 3, v0')
    a(f'v_mul_u32_u24 v{vOa}, {OSTR}, v{vo3}')
    a(f'v_and_b32 v{vt}, 7, v0')
    a(f'v_lshl_add_u32 v{vOa}, v{vt}, 4, v{vOa}')
    a(f'v_lshlrev_b32 v{vo3}, 2, v{vo3}')
    a(f's_mul_i32 s{sT2}, s{sHead}, {32 * OSTR}')
    a(f's_add_u32 s{sT2}, s{sT2}, {WS_O:#x}')
    a(f's_lshl_b32 s{sT}, s{sJ}, 7')
    a(f's_add_u32 s{sT}, s{sT}, s{sT2}')
    for k in range(1, 4):
        a(f's_add_u32 s{72+k}, s{sT}, {8 * k * OSTR}')
    a(f's_add_u32 s{sT2}, s{sT2}, 4096')
    a(f's_mov_b32 s{sC}, {C_SCALE:#x}')
    a(f's_lshl_b32 s72, s2, 6')
    for c in range(4):
        a(f's_add_u32 s{24+c}, s72, {WS_Y + c * 14 * 16384:#x}')
    a(f'v_lshrrev_b32 v{vYs}, 2, v0')
    a(f'v_lshlrev_b32 v{vYs}, 14, v{vYs}')
    a(f'v_and_b32 v{vt}, 3, v0')
    a(f'v_lshl_add_u32 v{vYs}, v{vt}, 4, v{vYs}')
    for i in range(8):
        a(f'v_mov_b32 v{vCh+2*i+1}, s{S_TA if i % 2 == 0 else S_TB}')
    a(f's_mul_i32 s37, s{sHead}, 11')
    a('s_lshr_b32 s37, s37, 5')
    a('s_mul_i32 s37, s37, 3')
    a(f's_sub_u32 s37, s{sHead}, s37')
    a('s_bfe_u32 s38, s2, 0x20003')
    a(f's_lshl_b32 s36, s{sHead}, 3')
    a('s_and_b32 s39, s2, 7')
    a('s_add_u32 s36, s36, s39')
    a('s_lshl_b32 s36, s36, 4')
    a('s_cmp_eq_u32 s37, s38')
    a('s_cselect_b32 s36, s36, 0x40000000')
    def prewrite():
        pk = cfg.get('prek', 'w')
        if pk == 't':
            a(f's_lshr_b32 s22, s2, 3')
            a(f's_lshl_b32 s22, s22, 15')
            a(f's_add_u32 s23, s22, {WS_Y:#x}')
            a(f's_add_u32 s22, s22, {WS_O:#x}')
            a(f'v_lshlrev_b32 v{vOq}, 12, v0')
            a('s_mov_b64 exec, 0x1ff')
            a(f'buffer_load_dword v{vOq+1}, v{vOq}, {sr(S_WS,4)}, s22 offen offset:{cfg.get("toff", 0)} sc1')
            a('s_mov_b64 exec, 0xff')
            a(f'buffer_load_dword v{vOq+2}, v{vOq}, {sr(S_WS,4)}, s23 offen offset:{cfg.get("toff", 0)} sc1')
            a('s_mov_b64 exec, -1')
            return
        op = 'store' if pk == 'w' else 'load'
        fl = cfg.get('prefl', 'sc1')
        for k in range(4): a(f'v_mov_b32 v{vOq+k}, 0')
        a(f's_mul_i32 s22, s2, {OSTR}')
        a(f's_add_u32 s22, s22, {WS_O:#x}')
        a(f's_add_u32 s23, s22, 4096')
        if cfg.get('prewo', 1):
            for k in range(4):
                a(f'buffer_{op}_dwordx4 {vr(vOq,4)}, v{vo1}, {sr(S_WS,4)}, s22 offen offset:{1024*k} {fl}')
            a('s_mov_b64 exec, 0xff')
            a(f'buffer_{op}_dwordx4 {vr(vOq,4)}, v{vo1}, {sr(S_WS,4)}, s23 offen {fl}')
            a('s_mov_b64 exec, -1')
        if cfg.get('prewy', 0):
            a(f's_mov_b32 exec_hi, 0x00ffffff')
            for c in range(4):
                a(f'buffer_{op}_dwordx4 {vr(vOq,4)}, v{vYs}, {sr(S_WS,4)}, s{24+c} offen {fl}')
            a('s_mov_b64 exec, -1')
    hook = None
    if 'prer' in cfg:
        lo, n = cfg['prer']
        if lo < 0: prewrite()
        else:
            a(f's_bfe_u32 s35, s2, {(n.bit_length() - 1) << 16 | cfg.get("prerb", 3):#x}' if n > 1 else 's_mov_b32 s35, 0')
            a(f's_add_u32 s35, s35, {lo}')
            a(f's_lshl_b32 s35, s35, 10')
            a(f's_add_u32 s35, s35, {WS_PLAN:#x}')
            def hook(sK):
                Lh = a.newlabel('hk')
                a('s_cmp_lg_u32 s35, s32')
                a(f's_cbranch_scc1 {Lh}')
                prewrite()
                a.label(Lh)
    if not cfg.get('noctl'):
        aux_rounds(a, cfg, dict(v=vW, s=28, S_WS=S_WS, S_TA=S_TA, S_TB=S_TB, LDS_REC=LDS_REC, LDS_REF=LDS_REF, WS_R=WS_PLAN, sPub=36), hook=hook)
    stamp(a, cfg, 70)
    stamp_store(a, cfg, [(20, 70)], vt)
    sEX = 16; sDry = 18
    WARM = 0
    a(f's_mov_b64 s[{sEX}:{sEX+1}], -1')
    a(f's_add_u32 s20, s{sT2}, 64')
    a(f's_lshl_b32 s21, s2, 7')
    a(f's_add_u32 s21, s21, {WS_F2:#x}')
    a(f'v_mov_b32 v{vSet+4}, s{S_TA}')
    a(f'v_mov_b32 v{vSet+5}, 0')
    loads = [f'buffer_load_dwordx4 {vr(vML,4)}, v{vo2}, {sr(S_WS,4)}, s{sT2} offen sc1',
             f'buffer_load_dwordx4 {vr(vML+4,4)}, v{vo2}, {sr(S_WS,4)}, s{sT2} offen offset:16 sc1']
    for k in range(4):
        loads.append(f'buffer_load_dwordx4 {vr(vOq+4*k,4)}, v{vOa}, {sr(S_WS,4)}, s{sT if k == 0 else 72 + k} offen sc1')
    if cfg.get('pre'):
        Lw = a.newlabel('pre_w'); Lg = a.newlabel('pre_g')
        a(f's_mov_b32 s{sCnt}, {POLL_MAX}')
        a.label(Lw)
        a(f'ds_read_b32 v{vt}, v{vSet+5} offset:{LDS_REC}')
        a('s_waitcnt lgkmcnt(0)')
        a(f'v_readfirstlane_b32 s22, v{vt}')
        a(f's_cmp_ge_u32 s22, {cfg["pre"]}')
        a(f's_cbranch_scc1 {Lg}')
        a(f's_sub_u32 s{sCnt}, s{sCnt}, 1')
        a(f's_cbranch_scc1 {Lg}')
        a('s_sleep 4')
        a(f's_branch {Lw}')
        a.label(Lg)
        if cfg.get('prec'):
            for l in loads[1:]: a(l)
        else:
            a(f's_mul_i32 s22, s2, {OSTR}')
            a(f's_add_u32 s22, s22, {WS_O:#x}')
            a(f's_add_u32 s23, s22, 4096')
            for k in range(4):
                a(f'buffer_load_dwordx4 {vr(vOq+4*k,4)}, v{vo1}, {sr(S_WS,4)}, s22 offen offset:{1024*k} {cfg.get("prefl", "sc1")}')
            a('s_mov_b64 exec, 1')
            a(f'buffer_load_dwordx4 {vr(vML,4)}, v{vo1}, {sr(S_WS,4)}, s23 offen {cfg.get("prefl", "sc1")}')
            a('s_mov_b64 exec, -1')
        a('s_waitcnt vmcnt(0)')
    EF = cfg.get('ef', 0)
    if cfg.get('prew'):
        progwait(a, cfg['prew'], vSet + 5, vt, 22, sCnt, 8, 'prw')
        prewrite()
        a('s_waitcnt vmcnt(0)')
    def f1poll():
        if cfg.get('f1', 1):
            flagpoll(a, f'buffer_load_dwordx2 {vr(vSet,2)}, v{vo2}, {sr(S_WS,4)}, s20 offen sc1', [vSet, vSet + 1], vt, sCnt, 'pf1',
                     sleep=cfg.get('f1sleep', 1))
        stamp(a, cfg, 66)
    if WOL:
        progwait(a, WOL, vSet + 5, vt, 22, sCnt, 2, 'wo')
        stamp(a, cfg, 64)
        woload()
    if EF:
        f1poll()
        if WOL:
            a('s_waitcnt vmcnt(0)')
            woperm()
    a('s_barrier')
    if cfg.get('prof'):
        stamp(a, cfg, 62)
        stamp_store(a, cfg, [(16, 62), (17, 64)], vt)
    if WOL and not cfg.get('f1', 1) and not EF: a('s_waitcnt vmcnt(0)')
    vBp = vSet + 8; vGs = vSet + 6
    def ldsb():
        a(f'ds_read_b128 {vr(vBp,4)}, v{vo1} offset:{LDS_B}')
        a(f'ds_read_b128 {vr(vBp+4,4)}, v{vo1} offset:{LDS_B+1024}')
        a(f'ds_read_b32 v{vGs}, v{vSet+5} offset:{LDS_G}')
    if not EF:
        ldsb()
        f1poll()
    R2 = cfg.get('r2', 4)
    def f2store():
        if not cfg.get('f2', 1): return
        Lnf = a.newlabel('nf2')
        a(f's_and_b32 s22, s{sJ}, {32 // R2 - 1}')
        a(f's_cmp_lg_u32 s22, {cfg.get("r2c", 3) % (32 // R2)}')
        a(f's_cbranch_scc1 {Lnf}')
        a('s_mov_b64 exec, 1')
        a(f'buffer_store_dword v{vSet+4}, v{vSet+5}, {sr(S_WS,4)}, s21 offen sc1')
        a('s_mov_b64 exec, -1')
        a.label(Lnf)
    if cfg.get('f2pos', 'gath') == 'f1': f2store()
    if cfg.get('d1'): a(f's_sleep {cfg["d1"]}')
    poll(a, loads, [vML, vML + 4] + [vOq + 4 * k for k in range(4)], vt, sCnt, name='ps2', sleep=cfg.get('s2sleep', 1), mid=(ldsb if EF else woperm if WOL else None))
    if cfg.get('f2pos', 'gath') == 'gath': f2store()
    if cfg.get('prof'): a(f's_sub_u32 s23, {POLL_MAX}, s{sCnt}')
    stamp(a, cfg, 62)
    vWt = vX
    M = [vt, vt + 1]
    a(f'v_mov_b32 v{M[0]}, v{vML}')
    a(f'v_mov_b32 v{M[1]}, v{vML+2}')
    xlane_reduce(a, M, [vt + 2, vt + 3], 'v_max_f32', ['x1', 'x2', 'r4', 'r8', 'p16'])
    for hh in range(2):
        a(f'v_sub_f32 v{vML+2*hh}, v{vML+2*hh}, v{M[hh]}')
        a(f'v_mul_f32 v{vML+2*hh}, s{sC}, v{vML+2*hh}')
    for hh in range(2):
        a(f'v_exp_f32 v{vML+2*hh}, v{vML+2*hh}')
    a('s_nop 0')
    for k in range(4):
        for hh in range(2):
            a(f'ds_bpermute_b32 v{vWt+2*k+hh}, v{vo3}, v{vML+2*hh} offset:{32*k}')
    for hh in range(2):
        a(f'v_mul_f32 v{vacc+2+hh}, v{vML+2*hh}, v{vML+4+2*hh}')
    a('s_mov_b32 exec_lo, 0')
    for hh in range(2):
        a(f'v_mov_b32 v{vacc+2+hh}, 0')
    a(f's_mov_b32 exec_lo, s{sEX}')
    xlane_reduce(a, [vacc + 2, vacc + 3], [vt + 2, vt + 3], 'v_add_f32', ['x1', 'x2', 'r4'])
    a('s_waitcnt lgkmcnt(0)')
    for k in range(4):
        for hh in range(2):
            if k == 0: a(f'v_mul_f32 v{vacc+hh}, v{vWt+2*k+hh}, v{vOq+4*k+2*hh}')
            else: a(f'v_fmac_f32 v{vacc+hh}, v{vWt+2*k+hh}, v{vOq+4*k+2*hh}')
    a('s_nop 1')
    xlane_reduce(a, [vacc + i for i in range(4)], [vtmp + i for i in range(4)], 'v_add_f32', ['r8', 'p16', 'p32'])
    a(f'v_rcp_f32 v{vacc+2}, v{vacc+2}')
    a(f'v_rcp_f32 v{vacc+3}, v{vacc+3}')
    a('s_nop 0')
    for hh in range(2):
        a(f'v_mul_f32 v{vacc+hh}, v{vacc+hh}, v{vacc+2+hh}')
    a('s_nop 1')
    for hh in range(2):
        a(f'v_mov_b32_dpp v{vacc+2+hh}, v{vacc+hh} quad_perm:[1,0,3,2] row_mask:0xf bank_mask:0xf')
    for hh in range(2):
        a(f'v_cvt_pk_bf16_f32 v{vt+hh}, v{vacc+hh}, v{vacc+2+hh}')
    a('s_nop 0')
    for hh in range(2):
        for g in range(4):
            a(f'v_readlane_b32 s{sPk+4*hh+g}, v{vt+hh}, {2*g}')
    a('s_nop 1')
    for pr in range(8):
        for col in range(8):
            c0 = '0' if pr == 0 else f'v{vCh+2*col}'
            a(f'v_dot2_f32_bf16 v{vCh+2*col}, v{vWp+8*pr+col}, s{sPk+pr}, {c0}')
    a(f's_and_b32 exec_hi, s{sEX+1}, 0x00ffffff')
    for c in range(4):
        for e in range(2):
            a(f'v_fma_f32 v{vCh+4*c+2*e}, v{vCh+4*c+2*e}, v{vGs}, v{vBp+2*c+e}')
        a(f'buffer_store_dwordx4 {vr(vCh+4*c,4)}, v{vYs}, {sr(S_WS,4)}, s{24+c} offen sc1')
    a('s_mov_b64 exec, -1')
    if WARM:
        a(f's_cmp_lg_u32 s{sDry}, 0')
        a(f's_cbranch_scc1 {Lreal}')
    stamp(a, cfg, 64)
    a(f'ds_write_b32 v{vSet+5}, v{vSet+4} offset:{LDS_FLAG3}')
    if cfg.get('prof'):
        a('s_getreg_b32 s68, hwreg(HW_REG_XCC_ID)')
        a('s_mov_b32 s69, s100')
    stamp_store(a, cfg, [(2, 62), (3, 64), (21, 66), (22, 23), (25, 68), (26, 69)], vt)
    stamp_flush(a, cfg, [0, 7, 8, 9, 1, 16, 17, 20, 2, 3, 21, 22, 25, 26, 27], vt)
    a('s_endpgm')
    return V.n


def gen_auxB(a, cfg):
    V = Regs(1, 256)
    vt = V.alloc(8, 4)
    vf = V.alloc(8, 4)
    vo1 = V.alloc(); vo2 = V.alloc(); vo3 = V.alloc(); vg = V.alloc(); vYa = V.alloc(); vZ = V.alloc()
    vX = V.alloc(16, 4)
    vacc = V.alloc(8, 4)
    vtmp = V.alloc(8, 4)
    vCh = V.alloc(8, 4)
    vW = V.alloc(64, 4)
    vD = V.alloc(64, 4)
    vY = vW
    sX = 4; sWG = 8; sWD = 48; sDBG = 64; sGW = 68; sOUT = 72
    sT = 52; sT2 = 53; sKq = 54; sJ = 55; sCnt = 56; sF = 57; sG = 62; sG1 = 63; sR = 58; sCb = 59
    sPk = 16
    vm = VM(a)
    srd(a, sDBG, P_DBG, 256)
    Lnt = a.newlabel('notag')
    a(f'v_mov_b32 v{vZ}, 0')
    a('s_cmp_lg_u32 s2, 0')
    a(f's_cbranch_scc1 {Lnt}')
    a(f's_memrealtime s[{sG}:{sG1}]')
    a('s_waitcnt lgkmcnt(0)')
    a(f's_or_b32 s{sG}, s{sG}, 1')
    a(f'v_mov_b32 v{vo2}, s{sG}')
    a('s_mov_b64 exec, 1')
    a(f'buffer_store_dword v{vo2}, v{vZ}, {sr(sDBG,4)}, 0 offen sc1')
    a('s_mov_b64 exec, -1')
    a.label(Lnt)
    def pre0():
        op = 'store' if cfg['pre0'] == 'w' else 'load'
        fl = cfg.get('prefl', 'sc1')
        for k in range(4): a(f'v_mov_b32 v{vW+k}, 0')
        a(f'v_lshlrev_b32 v{vo1}, 4, v0')
        a(f's_mul_i32 s{sT}, s2, {OSTR}')
        a(f's_add_u32 s{sT}, s{sT}, {WS_O:#x}')
        a(f's_add_u32 s{sT2}, s{sT}, 4096')
        if cfg.get('prewo', 1):
            for k in range(4):
                a(f'buffer_{op}_dwordx4 {vr(vW,4)}, v{vo1}, {sr(S_WS,4)}, s{sT} offen offset:{1024*k} {fl}')
            a('s_mov_b64 exec, 0xff')
            a(f'buffer_{op}_dwordx4 {vr(vW,4)}, v{vo1}, {sr(S_WS,4)}, s{sT2} offen {fl}')
            a('s_mov_b64 exec, -1')
        if cfg.get('prewy', 0):
            a(f's_mul_i32 s{sT}, s2, 3584')
            a(f's_add_u32 s{sT}, s{sT}, {WS_Y:#x}')
            for c in range(4):
                if c == 3: a('s_mov_b32 exec_hi, 0')
                a(f'buffer_{op}_dwordx4 {vr(vW,4)}, v{vo1}, {sr(S_WS,4)}, s{sT} offen offset:{1024*c} {fl}')
            a('s_mov_b64 exec, -1')
    if cfg.get('pre0') and not cfg.get('pre0b'): pre0()
    a('s_barrier')
    if cfg.get('pre0') and cfg.get('pre0b'): pre0()
    srd(a, sX, P_X, 896)
    srd(a, sWD, P_WD, 1792 * 896)
    srd(a, sGW, P_GW, 896)
    srd(a, sOUT, P_OUT, 896)
    a(f's_lshr_b32 s{sT}, s2, 5')
    a(f's_add_u32 s{sR}, s2, s{sT}')
    a(f's_and_b32 s{sR}, s{sR}, 31')
    a(f's_mul_i32 s{sF}, s{sT}, 14')
    a(f's_add_u32 s{sF}, s{sF}, s{sR}')
    a(f's_lshr_b32 s{sCb}, s{sF}, 1')
    a(f's_cmp_ge_u32 s{sCb}, 28')
    a(f's_cselect_b32 s{sWG}, s{P_WU}, s{P_WG}')
    a(f's_cselect_b32 s{sWG+1}, s{P_WU+1}, s{P_WG+1}')
    a(f's_cselect_b32 s{sT2}, 28, 0')
    a(f's_cselect_b32 s{sJ}, 256, 0')
    a(f's_mov_b32 s{sWG+2}, {448 * 3584:#x}')
    a(f's_mov_b32 s{sWG+3}, 0x00020000')
    a(f's_sub_u32 s{sCb}, s{sCb}, s{sT2}')
    a(f'v_lshlrev_b32 v{vYa}, 4, v0')
    Lf2 = a.newlabel('ffn2'); Lfd = a.newlabel('ffnd'); Lnofin = a.newlabel('nofin')
    a('s_barrier')
    a(f'ds_read_b32 v{vo2}, v{vZ} offset:{LDS_TAG}')
    a(f'buffer_load_dwordx4 {vr(vX,4)}, v{vYa}, {sr(sX,4)}, 0 offen')
    a(f'buffer_load_dwordx4 {vr(vX+4,4)}, v{vYa}, {sr(sGW,4)}, 0 offen')
    a('s_waitcnt lgkmcnt(0)')
    a(f'v_readfirstlane_b32 s{S_TA}, v{vo2}')
    tagB(a)
    for i in range(8):
        a(f'v_mov_b32 v{vCh+i}, 0')
    a('s_waitcnt vmcnt(0)')
    for d in range(4):
        a(f'v_lshlrev_b32 v{vt}, 16, v{vX+d}')
        a(f'v_lshlrev_b32 v{vt+1}, 16, v{vX+4+d}')
        a(f'v_and_b32 v{vt+2}, 0xffff0000, v{vX+d}')
        a(f'v_and_b32 v{vt+3}, 0xffff0000, v{vX+4+d}')
        a(f'v_mul_f32 v{vt}, v{vt}, v{vt+1}')
        a(f'v_mul_f32 v{vt+2}, v{vt+2}, v{vt+3}')
        a(f'v_cvt_pk_bf16_f32 v{vt}, v{vt}, v{vt+2}')
        a(f'v_lshlrev_b32 v{vt+1}, 16, v{vt}')
        a(f'v_and_b32 v{vt+2}, 0xffff0000, v{vt}')
        if d == 0:
            a(f'v_add_f32 v{vg}, v{vt+1}, v{vt+2}')
        else:
            a(f'v_add_f32 v{vg}, v{vg}, v{vt+1}')
            a(f'v_add_f32 v{vg}, v{vg}, v{vt+2}')
    xlane_reduce(a, [vg], [vt], 'v_add_f32', ['x1', 'x2', 'r4', 'r8', 'p16', 'p32'])
    rnd_bf16(a, vg, vg, vt)
    a(f'v_mul_f32 v{vg}, {f2u(-1.4426950408889634):#x}, v{vg}')
    a(f'v_exp_f32 v{vg}, v{vg}')
    a('s_nop 0')
    a(f'v_add_f32 v{vg}, 1.0, v{vg}')
    a(f'v_rcp_f32 v{vg}, v{vg}')
    a('s_nop 0')
    rnd_bf16(a, vg, vg, vt)
    a(f'v_sub_f32 v{vt+1}, 1.0, v{vg}')
    rnd_bf16(a, vt + 1, vt + 1, vt)
    a(f'ds_write_b32 v{vZ}, v{vg} offset:{LDS_G}')
    a(f'v_readfirstlane_b32 s{sG1}, v{vt+1}')
    if cfg.get('noffn'): a(f's_branch {Lfd}')
    a(f's_cmp_ge_u32 s{sR}, 14')
    a(f's_cbranch_scc1 {Lf2}')
    if cfg.get('fsleep'): a(f's_sleep {cfg["fsleep"]}')
    a(f's_and_b32 s{sKq}, s{sF}, 1')
    a(f's_lshl_b32 s{sKq}, s{sKq}, 1')
    a(f's_lshl_b32 s{sF}, s{sCb}, 7')
    l0 = ksplit_loads(a, vm, sX, sWG, 3584, sKq, sF, vX, vW, vo1, vo2, vo3, sT, sT2)
    a(f's_add_u32 s{sKq}, s{sKq}, 1')
    l1 = ksplit_loads(a, vm, sX, sWG, 3584, sKq, sF, vX + 8, vD, vo1, vo2, vo3, sT, sT2)
    a(f'v_bfe_u32 v{vo1}, v0, 1, 2')
    a(f'v_lshlrev_b32 v{vo1}, 9, v{vo1}')
    a(f'v_and_b32 v{vo2}, 1, v0')
    a(f'v_lshl_or_b32 v{vo1}, v{vo2}, 6, v{vo1}')
    a(f'v_bfe_u32 v{vo2}, v0, 3, 2')
    a(f'v_lshl_or_b32 v{vo1}, v{vo2}, 4, v{vo1}')
    a(f's_lshl_b32 s{sT}, s{sCb}, 11')
    a(f's_add_u32 s{sT}, s{sT}, s{sJ}')
    a(f's_lshl_b32 s{sKq}, s{sKq}, 6')
    a(f's_and_b32 s{sKq}, s{sKq}, 128')
    a(f's_add_u32 s{sT}, s{sT}, s{sKq}')
    a(f's_add_u32 s{sT}, s{sT}, {WS_B:#x}')
    A8 = [vacc + i for i in range(8)]; T8 = [vtmp + i for i in range(8)]
    gemv_pairs(a, vm, [vW + 4 * k for k in range(14)], 14, 4, vX, A8, T8, l0)
    gemv_pairs(a, vm, [vD + 4 * k for k in range(14)], 14, 4, vX + 8, A8, T8, l1, first=False)
    xlane_reduce(a, A8, T8, 'v_add_f32', ['r8', 'p16', 'p32'])
    a('s_mov_b32 vcc_lo, 0xff00ff00')
    a('s_mov_b32 vcc_hi, 0xff00ff00')
    for i in range(4):
        a(f'v_cndmask_b32 v{vtmp+i}, v{vacc+(i&1)+4*(i>>1)}, v{vacc+2+(i&1)+4*(i>>1)}, vcc')
    a('s_mov_b32 vcc_lo, 0xffff0000')
    a('s_mov_b32 vcc_hi, 0xffff0000')
    a(f'v_cndmask_b32 v{vt}, v{vtmp}, v{vtmp+2}, vcc')
    a(f'v_cndmask_b32 v{vt+2}, v{vtmp+1}, v{vtmp+3}, vcc')
    a(f'v_mov_b32 v{vt+1}, s{S_TA}')
    a(f'v_mov_b32 v{vt+3}, s{S_TB}')
    a('s_mov_b32 exec_hi, 0')
    a(f'buffer_store_dwordx4 {vr(vt,4)}, v{vo1}, {sr(S_WS,4)}, s{sT} offen sc1')
    a('s_mov_b32 exec_hi, -1')
    stamp(a, cfg, 90)
    stamp_store(a, cfg, [(13, 90)], vt)
    a(f's_branch {Lfd}')
    a.label(Lf2)
    a(f's_cmp_ge_u32 s{sR}, 28')
    a(f's_cbranch_scc1 {Lfd}')
    a(f's_sub_u32 s{sF}, s{sF}, 14')
    a(f'v_min_u32 v{vo1}, 55, v0')
    a(f'v_lshlrev_b32 v{vo1}, 4, v{vo1}')
    a(f's_mul_i32 s{sT}, s{sF}, {16*896}')
    for e in range(16):
        a(f'buffer_load_dwordx4 {vr(vW+4*e,4)}, v{vo1}, {sr(sWD,4)}, s{sT} offen offset:{(e%4)*896} nt')
        if e % 4 == 3 and e < 15: a(f's_add_u32 s{sT}, s{sT}, {4*896}')
    a('s_waitcnt vmcnt(0)')
    for pr in range(8):
        r0 = vW + 4 * (2 * pr); r1 = vW + 4 * (2 * pr + 1)
        for d in range(4):
            a(f'v_perm_b32 v{vD+8*pr+2*d}, v{r1+d}, v{r0+d}, s{S_SELLO}')
            a(f'v_perm_b32 v{vD+8*pr+2*d+1}, v{r1+d}, v{r0+d}, s{S_SELHI}')
    Lw = a.newlabel('fl_w'); Lg = a.newlabel('fl_g')
    a(f's_mov_b32 s{sCnt}, {POLL_MAX}')
    a.label(Lw)
    a(f'ds_read_b32 v{vo2}, v{vZ} offset:{LDS_REC}')
    a('s_waitcnt lgkmcnt(0)')
    a(f'v_readfirstlane_b32 s{sT}, v{vo2}')
    a(f's_cmp_ge_u32 s{sT}, {cfg.get("bstep", 36)}')
    a(f's_cbranch_scc1 {Lg}')
    a(f's_sub_u32 s{sCnt}, s{sCnt}, 1')
    a(f's_cbranch_scc1 {Lg}')
    a('s_sleep 64')
    a(f's_branch {Lw}')
    a.label(Lg)
    a(f's_lshl_b32 s{sT}, s{sF}, 9')
    a(f's_add_u32 s{sT}, s{sT}, {WS_B:#x}')
    a(f'v_and_b32 v{vo2}, 0x1f0, v{vYa}')
    stamp(a, cfg, 90)
    poll(a, [f'buffer_load_dwordx4 {vr(vX,4)}, v{vo2}, {sr(S_WS,4)}, s{sT} offen sc1'], [vX], vt, sCnt, name='pb', sleep=cfg.get('bsleep', 32))
    stamp(a, cfg, 92)
    xlane_reduce(a, [vX, vX + 2], [vt, vt + 1], 'v_add_f32', ['r8'])
    for i in range(2):
        rnd_bf16(a, vacc + i, vX + 2 * i, vt + i)
    for i in range(2):
        a(f'v_mov_b32 v{vacc+2+i}, v{vacc+i}')
    a(f's_mov_b32 s{sT}, {f2u(0.044715):#x}')
    a(f's_mov_b32 s{sT2}, {f2u(-2*0.7978845608028654*1.4426950408889634):#x}')
    for i in range(2):
        a(f'v_permlane16_swap_b32 v{vacc+i}, v{vacc+2+i}')
    for i in range(2):
        x = vacc + i; t = vtmp + i
        a(f'v_mul_f32 v{t}, v{x}, v{x}')
        a(f'v_mul_f32 v{t}, v{t}, v{x}')
        a(f'v_fma_f32 v{t}, v{t}, s{sT}, v{x}')
        a(f'v_mul_f32 v{t}, s{sT2}, v{t}')
    for i in range(2):
        a(f'v_exp_f32 v{vtmp+i}, v{vtmp+i}')
    a('s_nop 0')
    for i in range(2):
        a(f'v_add_f32 v{vtmp+i}, 1.0, v{vtmp+i}')
    for i in range(2):
        a(f'v_rcp_f32 v{vtmp+i}, v{vtmp+i}')
    a('s_nop 0')
    for i in range(2):
        a(f'v_mul_f32 v{vacc+i}, v{vacc+i}, v{vtmp+i}')
    for i in range(2):
        rnd_bf16(a, vacc + i, vacc + i, vtmp + i)
    for i in range(2):
        a(f'v_mul_f32 v{vacc+i}, v{vacc+i}, v{vacc+2+i}')
    a(f'v_cvt_pk_bf16_f32 v{vt}, v{vacc}, v{vacc+1}')
    a('s_nop 0')
    for pr in range(8):
        a(f'v_readlane_b32 s{sPk+pr}, v{vt}, {pr}')
    a('s_nop 1')
    for pr in range(8):
        for col in range(8):
            a(f'v_dot2_f32_bf16 v{vCh+col}, v{vD+8*pr+col}, s{sPk+pr}, v{vCh+col}')
    a('s_nop 2')
    for col in range(8):
        a(f'v_mul_f32 v{vCh+col}, s{sG1}, v{vCh+col}')
    stamp(a, cfg, 94)
    stamp_store(a, cfg, [(13, 90), (14, 92), (15, 94)], vt)
    a.label(Lfd)
    a(f'ds_write_b128 v{vYa}, {vr(vCh,4)} offset:{LDS_B}')
    a(f'ds_write_b128 v{vYa}, {vr(vCh+4,4)} offset:{LDS_B+1024}')
    a(f's_cmp_lt_u32 s100, {FIN0}')
    a(f's_cbranch_scc1 {Lnofin}')
    a(f's_sub_u32 s{sJ}, s100, {FIN0}')
    a(f's_and_b32 s{sT}, s{sJ}, 3')
    a(f's_mul_i32 s{sT}, s{sT}, 14')
    a(f's_lshr_b32 s{sT2}, s{sJ}, 2')
    a(f's_add_u32 s{sT}, s{sT}, s{sT2}')
    def sumup(dst, n, src):
        for e in range(2):
            a(f'v_add_f32 v{dst+e}, v{src+2*e}, v{src+4+2*e}')
            a(f'v_add_f32 v{dst+2+e}, v{src+8+2*e}, v{src+12+2*e}')
        for k in range(4, n):
            for e in range(2):
                d = dst + e + 2 * (k & 1)
                a(f'v_add_f32 v{d}, v{d}, v{src+4*k+2*e}')
        for e in range(2):
            a(f'v_add_f32 v{dst+e}, v{dst+e}, v{dst+2+e}')
    def xsum(dst):
        xlane_reduce(a, [dst, dst + 1], [vf + 4, vf + 5], 'v_add_f32', ['r4', 'r8', 'p16', 'p32'])
    a(f's_lshl_b32 s{sT}, s{sT}, 14')
    for k in range(4):
        a(f's_add_u32 s{24+k}, s{sT}, {WS_Y + k * 4096:#x}')
    a(f's_lshr_b32 s{sT2}, s{sJ}, 2')
    a(f's_lshl_b32 s{sT2}, s{sT2}, 6')
    a(f's_and_b32 s{sKq}, s{sJ}, 3')
    a(f's_lshl_b32 s{sKq}, s{sKq}, 2')
    a(f's_add_u32 s{sT2}, s{sT2}, s{sKq}')
    R2 = cfg.get('r2', 4)
    a(f'v_lshrrev_b32 v{vf+6}, 3, v0')
    a(f'v_lshlrev_b32 v{vf+6}, 12, v{vf+6}')
    a(f'v_and_b32 v{vf+7}, {R2 - 1}, v0')
    a(f'v_mul_u32_u24 v{vf+7}, {(32 // R2) * 128}, v{vf+7}')
    a(f'v_add_u32 v{vf+6}, v{vf+6}, v{vf+7}')
    a(f's_mov_b32 s35, {WS_F2 + (cfg.get("r2c", 3) % (32 // R2)) * 128:#x}')
    a('s_waitcnt lgkmcnt(0)')
    a('s_barrier')
    if cfg.get('b4', 1):
        Lw = a.newlabel('b4_w'); Lg = a.newlabel('b4_g')
        a(f's_mov_b32 s{sCnt}, {POLL_MAX}')
        a.label(Lw)
        a(f'ds_read_b32 v{vo2}, v{vZ} offset:{LDS_FLAG3}')
        a('s_waitcnt lgkmcnt(0)')
        a(f'v_readfirstlane_b32 s{sKq}, v{vo2}')
        a(f's_cmp_eq_u32 s{sKq}, s{S_TA}')
        a(f's_cbranch_scc1 {Lg}')
        a(f's_sub_u32 s{sCnt}, s{sCnt}, 1')
        a(f's_cbranch_scc1 {Lg}')
        a('s_sleep 1')
        a(f's_branch {Lw}')
        a.label(Lg)
    if cfg.get('f2', 1):
        flagpoll(a, f'buffer_load_dword v{vf+7}, v{vf+6}, {sr(S_WS,4)}, s35 offen sc1', [vf + 7], vt, sCnt, 'pf2', sleep=cfg.get('f2sleep', 1))
    if cfg.get('d2'): a(f's_sleep {cfg["d2"]}')
    stamp(a, cfg, 78)
    poll(a, [f'buffer_load_dwordx4 {vr(vY+4*k,4)}, v{vYa}, {sr(S_WS,4)}, s{24+k//4} offen offset:{(k%4)*1024} sc1' for k in range(16)],
         [vY + 4 * k for k in range(16)], vt, sCnt, name='py', sleep=cfg.get('ysleep', 1))
    if cfg.get('prof'): a(f's_sub_u32 s36, {POLL_MAX}, s{sCnt}')
    sumup(vf, 16, vY)
    xsum(vf)
    a(f'v_cvt_pk_bf16_f32 v{vt}, v{vf}, v{vf+1}')
    a('s_mov_b64 exec, 15')
    a(f'buffer_store_dword v{vt}, v{vYa}, {sr(sOUT,4)}, s{sT2} offen')
    a('s_mov_b64 exec, -1')
    stamp(a, cfg, 76)
    stamp_store(a, cfg, [(6, 76), (23, 78), (24, 36)], vt + 2)
    stamp_flush(a, cfg, [13, 14, 15, 6, 23, 24], vt + 2)
    a('s_endpgm')
    a.label(Lnofin)
    a('s_waitcnt lgkmcnt(0)')
    a('s_barrier')
    stamp_flush(a, cfg, [13, 14, 15], vt)
    a('s_endpgm')
    return V.n


def gen(cfg):
    a = Asm()
    a.raw(kernel_header(NAME))
    if cfg.get('prof'): a('s_memrealtime s[98:99]')
    a('s_cmp_ge_u32 s2, 256')
    a('s_cbranch_scc1 L_end')
    a('s_load_dwordx16 s[16:31], s[0:1], 0')
    a('s_mov_b32 s100, s2')
    if cfg.get('ren', 0):
        a('s_and_b32 s3, s2, 7                 ; ren')
        a('s_lshr_b32 s2, s2, 3')
        a('s_lshl_b32 s3, s3, 5')
        a('s_or_b32 s2, s2, s3')
    a('s_load_dwordx8 s[32:39], s[0:1], 64')
    a('s_load_dwordx2 s[40:41], s[0:1], 96')
    a('v_lshrrev_b32 v1, 6, v0')
    a('v_and_b32 v0, 63, v0')
    a(f'v_readfirstlane_b32 s{S_WAVE}, v1')
    a(f's_mov_b32 s{S_SELLO}, 0x05040100')
    a(f's_mov_b32 s{S_SELHI}, 0x07060302')
    a('s_waitcnt lgkmcnt(0)')
    srd(a, S_WS, P_WS, WS_SIZE)
    a(f's_cmp_eq_u32 s{S_WAVE}, 2')
    a('s_cbranch_scc1 L_auxA')
    a(f's_cmp_eq_u32 s{S_WAVE}, 3')
    a('s_cbranch_scc1 L_auxB')
    n0 = gen_stream(a, cfg)
    a.label('L_auxA')
    n1 = gen_auxA(a, cfg)
    a.label('L_auxB')
    n2 = gen_auxB(a, cfg)
    a.label('L_end')
    a('s_endpgm')
    nv = max(n0, n1, n2)
    if cfg.get('prof'): nv = max(nv, PROFV + 1)
    acc_off = (nv + 3) // 4 * 4
    npre = cfg.get('npre', 4)
    print('vgprs', n0, n1, n2, 'agprs', 64 * npre, file=sys.stderr)
    hdr = open('gated_mix__gqa_block_cached__geglu_ffn__decode.s.ref').read().split('; @launch')[0]
    lds = cfg.get('lds', 18432)
    hdr += f'; @launch grid=(256,1,1) block=(256,1,1) lds={lds}\n.amdgcn_target "amdgcn-amd-amdhsa--gfx950"\n'
    return hdr + a.text() + kernel_desc(NAME, acc_off + 64 * npre, 102, acc_off)


if __name__ == '__main__':
    cfg = json.loads(sys.argv[2]) if len(sys.argv) > 2 else {}
    open(sys.argv[1], 'w').write(gen(cfg))
```

```python
import sys, struct, json
from asmlib import *
from ctl2 import aux_rounds

def f2u(f): return struct.unpack('<I', struct.pack('<f', f))[0]
C_SCALE = f2u(1.4426950408889634 / 16.0)

WS_QP = 0x0
WS_TK = 0x4e0000
TK_STRIDE = 4352
WS_PROF = 0x24000
WS_GP = 0x40000
WS_PLAN = 0x40000
WS_F1 = 0x50000
WS_F2 = 0x58000
WS_CAL = 0x48000
WS_IT = 0x80000
WS_ML = 0x60000
WS_O = 0x100000
WS_Y = 0x300000
WS_B = 0x400000
WS_SIZE = 0x500000
OSTR = 4224

NAME = 'gated_mix__gqa_block_cached__geglu_ffn__decode_kernel'
P_X, P_K, P_V, P_WQ, P_WO, P_BX, P_WG, P_WU, P_WD, P_GW, P_OUT, P_DBG, P_WS = [16 + 2 * i for i in range(13)]
S_WS = 12
S_WAVE = 3
S_SELLO = 60; S_SELHI = 61
S_TA = 88; S_TB = 89
POLL_MAX = 1 << 14
FIN0 = 200
INVALID = 0x20000000
LDS_TAG = 1024
LDS_CTR = 1028
LDS_FLAG = 1032
LDS_REC = 2048
LDS_LIST = 3072
LDS_DONE = 1036
LDS_FLAG2 = 1040
LDS_REF = 1088
LDS_G = 1044
LDS_FLAG3 = 1048
LDS_Z = 1056
LDS_FLAGZ = 1064
LDS_O = 1120
LDS_FLAGO = 1072
WS_F2P = 0x480000
LDS_B = 16384
LDS_CMB = 4096
LDS_SC = 8192


class Dry:
    s = None
def setex(a, m):
    m &= (1 << 64) - 1
    lo, hi = m & 0xffffffff, m >> 32
    if Dry.s is None:
        if m == (1 << 64) - 1: a('s_mov_b64 exec, -1')
        elif hi == 0 and lo < 0x80000000: a(f's_mov_b64 exec, {lo:#x}')
        else:
            a(f's_mov_b32 exec_lo, {lo:#x}'); a(f's_mov_b32 exec_hi, {hi:#x}')
    else:
        if m == (1 << 64) - 1: a(f's_mov_b64 exec, s[{Dry.s}:{Dry.s+1}]')
        elif hi == 0 and lo < 0x80000000: a(f's_and_b64 exec, s[{Dry.s}:{Dry.s+1}], {lo:#x}')
        else:
            a(f's_and_b32 exec_lo, s{Dry.s}, {lo:#x}'); a(f's_and_b32 exec_hi, s{Dry.s}, {hi:#x}')
def setcnt(a, r, n):
    if Dry.s is None: a(f's_mov_b32 s{r}, {n}')
    else: a(f's_and_b32 s{r}, s{Dry.s}, {n}')
def dry_begin(a, cfg, key, s):
    if not cfg.get(key): return None
    L = a.newlabel('dry')
    a(f's_mov_b64 s[{s}:{s+1}], 0')
    a('s_mov_b64 exec, 0')
    a.label(L)
    Dry.s = s
    return L
def dry_end(a, L):
    if L is None: return
    s = Dry.s; Dry.s = None
    D = a.newlabel('dry_d')
    a(f's_cmp_lg_u32 s{s}, 0')
    a(f's_cbranch_scc1 {D}')
    a(f's_mov_b64 s[{s}:{s+1}], -1')
    a('s_mov_b64 exec, -1')
    a(f's_branch {L}')
    a.label(D)


class VM:
    def __init__(self, a):
        self.a = a; self.n = 0
    def issue(self, s):
        self.a(s); self.n += 1
        return self.n - 1
    def wait(self, idx):
        k = self.n - idx - 1
        assert 0 <= k <= 63
        self.a(f's_waitcnt vmcnt({k})')


def srd(a, d, p, nbytes):
    a(f's_mov_b32 s{d}, s{p}')
    a(f's_mov_b32 s{d+1}, s{p+1}')
    a(f's_mov_b32 s{d+2}, {nbytes:#x}')
    a(f's_mov_b32 s{d+3}, 0x00020000')


def dpp(op, d, s0, s1, ctrl):
    return f'{op}_dpp v{d}, v{s0}, v{s1} {ctrl} row_mask:0xf bank_mask:0xf'


def xlane_reduce(a, regs, tmps, op, steps):
    n = len(regs)
    for st in steps:
        if st in ('x1', 'x2', 'r4', 'r8'):
            ctrl = {'x1': 'quad_perm:[1,0,3,2]', 'x2': 'quad_perm:[2,3,0,1]', 'r4': 'row_ror:4', 'r8': 'row_ror:8'}[st]
            if n < 3: a('s_nop 1')
            for r in regs:
                a(dpp(op, r, r, r, ctrl))
        else:
            ins = 'v_permlane16_swap_b32' if st == 'p16' else 'v_permlane32_swap_b32'
            for r, t in zip(regs, tmps):
                a(f'v_mov_b32 v{t}, v{r}')
            a('s_nop 1')
            for r, t in zip(regs, tmps):
                a(f'{ins} v{r}, v{t}')
            if n < 2: a('s_nop 0')
            for r, t in zip(regs, tmps):
                a(f'{op} v{r}, v{r}, v{t}')


def tagB(a):
    a(f's_mul_i32 s{S_TB}, s{S_TA}, 0x9e3779b1')
    a(f's_add_u32 s{S_TB}, s{S_TB}, 0x7f4a7c15')


def poll(a, loads, chunks, vt, scnt, name='poll', sleep=1, mid=None, first=None, tags=None):
    L = a.newlabel(name); D = a.newlabel(name + '_done')
    setcnt(a, scnt, POLL_MAX)
    for l in (first or loads): a(l)
    if mid: mid()
    a.label(L)
    n = len(chunks)
    for i, c in enumerate(chunks):
        if i % 4 == 0:
            a(f's_waitcnt vmcnt({max(0, n - i - 4)})')
        a(f'v_xor_b32 v{vt+1}, s{(tags or (S_TA, S_TB))[0]}, v{c+1}')
        a(f'v_xor_b32 v{vt+2}, s{(tags or (S_TA, S_TB))[1]}, v{c+3}')
        if i == 0: a(f'v_or_b32 v{vt}, v{vt+1}, v{vt+2}')
        else: a(f'v_or3_b32 v{vt}, v{vt}, v{vt+1}, v{vt+2}')
    a(f'v_cmp_ne_u32 vcc, 0, v{vt}')
    a('s_mov_b64 exec, vcc')
    a(f's_cbranch_execz {D}')
    a(f's_sub_u32 s{scnt}, s{scnt}, 1')
    a(f's_cbranch_scc1 {D}')
    if sleep: a(f's_sleep {sleep}')
    for l in loads: a(l)
    a(f's_branch {L}')
    a.label(D)
    setex(a, -1)


def progwait(a, thr, vz, vt, st, scnt, slp, name='pw', both=False):
    Lw = a.newlabel(name + '_w'); Lg = a.newlabel(name + '_g')
    setcnt(a, scnt, POLL_MAX)
    a.label(Lw)
    a(f'ds_read_b32 v{vt}, v{vz} offset:{LDS_REC}')
    a(f'ds_read_b32 v{vt+1}, v{vz} offset:{LDS_REC + 512}')
    a('s_waitcnt lgkmcnt(0)')
    a(f'{"v_min_u32" if both else "v_add_u32"} v{vt}, v{vt}, v{vt+1}')
    a('s_nop 0')
    a(f'v_readfirstlane_b32 s{st}, v{vt}')
    a(f's_cmp_ge_u32 s{st}, {int(thr if both else 2 * thr)}')
    a(f's_cbranch_scc1 {Lg}')
    a(f's_sub_u32 s{scnt}, s{scnt}, 1')
    a(f's_cbranch_scc1 {Lg}')
    a(f's_sleep {slp}')
    a(f's_branch {Lw}')
    a.label(Lg)


def poll_pipe(a, nsets, loads, chunks, on_new, vt, scnt, sP, sQ, sEX, sDry, name='pp', gap=6, thr=0, slp=0, skipnew=False):
    L = a.newlabel(name); D = a.newlabel(name + '_done')
    n = len(loads(0))
    a(f's_mov_b64 s[{sP}:{sP+1}], s[{sEX}:{sEX+1}]')
    a(f's_mov_b64 exec, s[{sEX}:{sEX+1}]')
    a(f's_cmp_eq_u32 s{sDry}, 0')
    a(f's_cselect_b32 s{scnt}, {POLL_MAX}, 0')
    for s in range(nsets):
        for l in loads(s): a(l)
        if gap and s < nsets - 1: a(f's_sleep {gap}')
    a.label(L)
    for s in range(nsets):
        ch = chunks(s)
        for i, c in enumerate(ch):
            if i % 4 == 0:
                a(f's_waitcnt vmcnt({(nsets - 1) * n + max(0, n - i - 4)})')
            a(f'v_xor_b32 v{vt+1}, s{S_TA}, v{c+1}')
            a(f'v_xor_b32 v{vt+2}, s{S_TB}, v{c+3}')
            if i == 0: a(f'v_or_b32 v{vt}, v{vt+1}, v{vt+2}')
            else: a(f'v_or3_b32 v{vt}, v{vt}, v{vt+1}, v{vt+2}')
        a(f'v_cmp_ne_u32 vcc, 0, v{vt}')
        a(f's_andn2_b64 exec, s[{sP}:{sP+1}], vcc')
        a(f's_mov_b64 s[{sP}:{sP+1}], vcc')
        Ls = a.newlabel(name + '_sk')
        if skipnew:
            a(f's_or_b32 s{sQ}, exec_lo, exec_hi')
            a(f's_or_b32 s{sQ}, s{sQ}, s{sDry}')
            a(f's_cbranch_scc0 {Ls}')
        on_new(s)
        a.label(Ls)
        a(f's_mov_b64 exec, s[{sP}:{sP+1}]')
        a(f's_or_b32 s{sQ}, s{sP}, s{sP+1}')
        a(f's_or_b32 s{sQ}, s{sQ}, s{sDry}')
        a(f's_cbranch_scc0 {D}')
        if slp:
            Ln = a.newlabel(name + '_ns')
            a(f's_bcnt1_i32_b64 s{sQ}, s[{sP}:{sP+1}]')
            a(f's_cmp_le_u32 s{sQ}, {thr}')
            a(f's_cbranch_scc1 {Ln}')
            a(f's_sleep {slp}')
            a.label(Ln)
        for l in loads(s): a(l)
    a(f's_sub_u32 s{scnt}, s{scnt}, 1')
    a(f's_cbranch_scc0 {L}')
    a.label(D)
    a(f's_mov_b64 exec, s[{sEX}:{sEX+1}]')


def flagpoll(a, load, regs, vt, scnt, name, sleep=1, mask=None):
    L = a.newlabel(name); D = a.newlabel(name + '_done')
    setcnt(a, scnt, POLL_MAX)
    assert not mask
    a.label(L)
    a(load)
    a('s_waitcnt vmcnt(0)')
    a(f'v_xor_b32 v{vt}, s{S_TA}, v{regs[0]}')
    for r in regs[1:]:
        a(f'v_xor_b32 v{vt+1}, s{S_TA}, v{r}')
        a(f'v_or_b32 v{vt}, v{vt}, v{vt+1}')
    a(f'v_cmp_ne_u32 vcc, 0, v{vt}')
    a('s_mov_b64 exec, vcc')
    a(f's_cbranch_execz {D}')
    a(f's_sub_u32 s{scnt}, s{scnt}, 1')
    a(f's_cbranch_scc1 {D}')
    if sleep: a(f's_sleep {sleep}')
    a(f's_branch {L}')
    a.label(D)
    setex(a, -1)


def flagpipe(a, load, sets, nreg, vt, scnt, name, gap=2, slp=0):
    L = a.newlabel(name); D = a.newlabel(name + '_done')
    n = len(sets)
    a(f's_mov_b32 s{scnt}, {POLL_MAX}')
    for i, r in enumerate(sets):
        a(load(r))
        if gap and i < n - 1: a(f's_sleep {gap}')
    a.label(L)
    for r in sets:
        a(f's_waitcnt vmcnt({n - 1})')
        a(f'v_xor_b32 v{vt}, s{S_TA}, v{r}')
        for k in range(1, nreg):
            a(f'v_xor_b32 v{vt+1}, s{S_TA}, v{r+k}')
            a(f'v_or_b32 v{vt}, v{vt}, v{vt+1}')
        a(f'v_cmp_ne_u32 vcc, 0, v{vt}')
        a('s_cmp_eq_u64 vcc, 0')
        a(f's_cbranch_scc1 {D}')
        if slp: a(f's_sleep {slp}')
        a(load(r))
    a(f's_sub_u32 s{scnt}, s{scnt}, 1')
    a(f's_cbranch_scc0 {L}')
    a.label(D)


def ldswait(a, off, vz, vr_, st, scnt, name, slp=0):
    Lw = a.newlabel(name + '_w'); Lg = a.newlabel(name + '_g')
    setcnt(a, scnt, POLL_MAX * 4)
    a.label(Lw)
    a(f'ds_read_b32 v{vr_}, v{vz} offset:{off}')
    a('s_waitcnt lgkmcnt(0)')
    a(f'v_readfirstlane_b32 s{st}, v{vr_}')
    a(f's_cmp_eq_u32 s{st}, s{S_TA}')
    a(f's_cbranch_scc1 {Lg}')
    a(f's_sub_u32 s{scnt}, s{scnt}, 1')
    if slp: a(f's_sleep {slp}')
    a(f's_cbranch_scc0 {Lw}')
    a.label(Lg)


def mkchunks(a, dst, vals):
    for i, v in enumerate(vals):
        a(f'v_mov_b32 v{dst+2*i}, v{v}')
        a(f'v_mov_b32 v{dst+2*i+1}, s{S_TA if i % 2 == 0 else S_TB}')


def stamp(a, cfg, sreg):
    if cfg.get('prof'): a(f's_memrealtime s[{sreg}:{sreg+1}]')

PROFV = 251
class Prof:
    slots = 0
def stamp_store(a, cfg, pairs, vt):
    if not cfg.get('prof'): return
    a('s_waitcnt lgkmcnt(0)')
    for slot, sreg in pairs:
        a(f'v_writelane_b32 v{PROFV}, s{sreg}, {slot}')

def stamp_flush(a, cfg, slots, vt):
    if not cfg.get('prof'): return
    m = sum(1 << s for s in slots)
    a(f's_lshl_b32 s78, s2, 7')
    a(f's_add_u32 s78, s78, {WS_PROF:#x}')
    a(f'v_lshlrev_b32 v{vt}, 2, v0')
    a(f's_mov_b32 exec_lo, {m:#x}')
    a('s_mov_b32 exec_hi, 0')
    a(f'buffer_store_dword v{PROFV}, v{vt}, s[{S_WS}:{S_WS+3}], s78 offen')
    a('s_mov_b64 exec, -1')


DEF_MAP = 'v t1 t0 w3 t2^w5 t3^w6 t4^w7 t5 w0 w1 w2 w4 w5 w6 w7'
def map_cols(cfg):
    f = cfg.get('map', DEF_MAP).split()
    assert len(f) == 15 and f[12:] == ['w5', 'w6', 'w7']
    cols = {}
    for b, e in enumerate(f):
        for n in e.split('^'):
            cols[n] = cols.get(n, 0) ^ (1 << (13 + b))
    names = ['v'] + [f't{i}' for i in range(6)] + [f'w{i}' for i in range(8)]
    seen = set()
    for h in range(1 << 15):
        x = 0
        for i, n in enumerate(names):
            if h >> i & 1: x ^= cols[n]
        seen.add(x)
    assert len(seen) == 1 << 15
    return cols
def tconst(cols, t):
    x = 0
    for i in range(6):
        if t >> i & 1: x ^= cols[f't{i}']
    return x
def runs(cl):
    out = []; i = 0
    while i < len(cl):
        c = cl[i]
        if c & (c - 1):
            out.append((i, None, c)); i += 1; continue
        n = 1
        while i + n < len(cl) and cl[i + n] == c << n: n += 1
        out.append((i, n, c.bit_length() - 1)); i += n
    return out
def smap(a, dst, src, cl, tmp, first=True):
    for st, n, o in runs(cl):
        d = dst if first else tmp
        if n is None:
            a(f's_bitcmp1_b32 s{src}, {st}')
            a(f's_cselect_b32 s{d}, {o:#x}, 0')
        else:
            a(f's_bfe_u32 s{d}, s{src}, {(n << 16) | st:#x}')
            a(f's_lshl_b32 s{d}, s{d}, {o}')
        if not first: a(f's_xor_b32 s{dst}, s{dst}, s{tmp}')
        first = False
def vmap(a, dst, src, off, cl, tmp):
    for st, n, o in runs(cl):
        if n is None:
            a(f'v_bfe_i32 v{tmp}, v{src}, {off + st}, 1')
            a(f'v_and_b32 v{tmp}, {o:#x}, v{tmp}')
        else:
            a(f'v_bfe_u32 v{tmp}, v{src}, {off + st}, {n}')
            a(f'v_lshlrev_b32 v{tmp}, {o}, v{tmp}')
        a(f'v_xor_b32 v{dst}, v{dst}, v{tmp}')


CM = [[0, 1, 2, 4], [5, 6, 7, 3]]
def gen_stream(a, cfg):
    NA = 8
    cols = map_cols(cfg)
    flags = 'nt'
    V = Regs(1, 256)
    vKoff = [V.alloc(), V.alloc()]; vVoff = [V.alloc(), V.alloc()]; vOo = [V.alloc(), V.alloc()]
    vm = V.alloc(); vl = V.alloc(); vt0 = V.alloc(); vt1 = V.alloc(); valpha = V.alloc(); vmc = V.alloc()
    vc = V.alloc(); vg = V.alloc(); vRa = V.alloc()
    vTk = V.alloc(); vOne = V.alloc()
    vIt = V.alloc(); vF1 = V.alloc(); vZero = V.alloc()
    vTbl = V.alloc(); vSa = V.alloc(); vSb = V.alloc(); vSr = V.alloc()
    vAd = V.alloc(2, 2)
    vRec = V.alloc(2, 2)
    vSc = V.alloc(2, 2)
    vRef = V.alloc(4, 4)
    vmask = V.alloc(4, 4)
    vS = V.alloc(4, 4)
    vP = V.alloc(4, 4)
    vacc = V.alloc(8, 4)
    vA = V.alloc(16, 4)
    vQ = V.alloc(16, 4)
    vB = [V.alloc(32, 4) for _ in range(4)]
    sK = 4; sVv = 8
    sY, sSl, sThf, sThx = 16, 17, 18, 19
    sNom = 20; sPend = 21; sE = 22; sD = 23; sG = [24, 25, 26, 27]; sNg = 28; sL = 29
    sMode = [30, 32, 34, 36]; sCur = 38; sMf = 40; sMx = 60
    sN = 42; sCf = 43; sMk = 44; sCx = 46
    sC = 47; sTmp = 48; sBase = 49; sT2 = 52; sI = 53
    sCtr = 54; sF1 = 55; sTk = 56; sLoc = 50
    FS = cfg.get('fs', 2); B0q = int(cfg.get('b0', 2.14) / 4 * 25600)
    GF = cfg.get('gf', -14); GX = cfg.get('gx', 25)
    LOC = '' if cfg.get('loc', 0) else 'sc1'
    smap(a, sBase, 2, [cols[f'w{i}'] for i in range(8)], sTmp)
    smap(a, sBase, S_WAVE, [cols['v']], sTmp, first=False)
    srd(a, sK, P_K, 0x10000000)
    a(f'v_and_b32 v{vc}, 15, v0')
    a(f'v_lshrrev_b32 v{vg}, 4, v0')
    def chunkoff(dst, cm, qf, sf, rowf):
        def gather(d, fl, t):
            first = True
            for lb, ob, n in fl:
                r = d if first else t
                a(f'v_bfe_u32 v{r}, v0, {lb}, {n}')
                if first:
                    if ob: a(f'v_lshlrev_b32 v{d}, {ob}, v{d}')
                else:
                    a(f'v_lshl_or_b32 v{d}, v{t}, {ob}, v{d}')
                first = False
        gather(vt0, [(l, o + 2, n) for l, o, n in qf], vt1)
        gather(valpha, [(l, o + 4, n) for l, o, n in sf] + [(rowf, 11, 2)], vt1)
        for hf in range(2):
            tb = sum(cm[hf][i] << (4 * i) for i in range(4))
            a(f's_mov_b32 s{sTmp}, {tb:#x}')
            a(f'v_lshrrev_b32 v{dst[hf]}, v{vt0}, s{sTmp}')
            a(f'v_and_b32 v{dst[hf]}, 15, v{dst[hf]}')
            a(f'v_lshl_or_b32 v{dst[hf]}, v{dst[hf]}, 6, v{valpha}')
    KSC = ([(1, 0, 1), (4, 1, 1)], [(0, 0, 1), (5, 1, 1)])
    VSC = ([(1, 0, 2)], [(0, 0, 1), (3, 1, 1)])
    KMF, KMX, VMF, VMX = 0xcccc0000, 0x0000cccc, 0xc0c0c0c0, 0x0c0c0c0c
    def setmasks(mf, mx):
        for k in range(2):
            a(f's_mov_b32 s{sMf+k}, {mf:#x}')
            a(f's_mov_b32 s{sMx+k}, {mx:#x}')
    chunkoff(vKoff, CM, KSC[0], KSC[1], 2)
    def R(file, base, n): return f'{file}[{base}:{base+n-1}]'
    def issue(file, base, so, ad, srdn):
        for j in range(8):
            a(f'buffer_load_dwordx4 {R(file,base+4*j,4)}, v{ad[j&1]}, {sr(srdn,4)}, s{so} offen offset:{(j>>1)*512} {flags}')
    PST = [66 + 2 * i for i in range(11)] + [90 + 2 * i for i in range(6)]
    pst_n = [0]
    def pst():
        if cfg.get('prof') and pst_n[0] < len(PST):
            r = PST[pst_n[0]]; pst_n[0] += 1
            a(f's_memrealtime s[{r}:{r+1}]')
    a('s_barrier')
    pst()
    PD = cfg.get('pd', 4)
    seq = [('a', 32 * i) for i in range(NA)] + [('v', vB[s]) for s in range(4)]
    for i, (file, kb) in enumerate(seq):
        a(f's_xor_b32 s{sTmp}, s{sBase}, {tconst(cols, i):#x}')
        if i >= PD:
            a(f's_waitcnt vmcnt({8 * PD - 8})')
            pst()
        issue(file, kb, sTmp, vKoff, sK)
        if i == PD - 1:
            srd(a, sVv, P_V, 0x10000000)
            a(f's_mov_b32 s{sC}, {C_SCALE:#x}')
            chunkoff(vVoff, CM, VSC[0], VSC[1], 4)
            a(f'v_lshrrev_b32 v{vt1}, 2, v{vc}')
            a(f'v_and_b32 v{vt0}, 2, v0')
            a(f'v_lshlrev_b32 v{vt0}, 3, v{vt0}')
            a(f'v_mov_b32 v{vl}, 0xffff')
            a(f'v_lshlrev_b32 v{vt0}, v{vt0}, v{vl}')
            for j in range(4):
                a(f'v_cmp_eq_u32 vcc, {j}, v{vt1}')
                a('s_nop 1')
                a(f'v_cndmask_b32 v{vmask+j}, 0, v{vt0}, vcc')
            a(f'v_mov_b32 v{vm}, 0xf149f2ca')
            a(f'v_mov_b32 v{vl}, 0')
            for k in range(8):
                a(f'v_mov_b32 v{vacc+k}, 0')
            a(f's_lshl_b32 s{sT2}, s{S_WAVE}, 9')
            a(f's_add_u32 s{sT2}, s{sT2}, {LDS_REC}')
            a(f'v_lshlrev_b32 v{vRa}, 3, v0')
            a(f'v_add_u32 v{vRa}, s{sT2}, v{vRa}')
            a(f'v_mov_b32 v{vOne}, 1')
            a(f'v_mov_b32 v{vTbl}, s{sBase}')
            vmap(a, vTbl, 0, 0, [cols[f't{k}'] for k in range(6)], vt0)
            a(f's_lshl_b32 s{sT2}, s{S_WAVE}, 12')
            a(f's_add_u32 s{sT2}, s{sT2}, {LDS_SC}')
            a(f'v_and_b32 v{vSr}, 1, v0')
            a(f'v_lshlrev_b32 v{vSr}, 5, v{vSr}')
            a(f'v_lshl_add_u32 v{vSr}, v{vg}, 3, v{vSr}')
            a(f'v_add_u32 v{vSr}, s{sT2}, v{vSr}')
            a(f'v_bfe_u32 v{vSa}, v0, 2, 1')
            a(f'v_lshlrev_b32 v{vSa}, 5, v{vSa}')
            a(f'v_lshl_add_u32 v{vSa}, v{vg}, 3, v{vSa}')
            a(f'v_bfe_u32 v{vSb}, v0, 3, 1')
            a(f'v_lshl_add_u32 v{vSa}, v{vSb}, 2, v{vSa}')
            a(f'v_add_u32 v{vSa}, s{sT2}, v{vSa}')
            a(f'v_add_u32 v{vSb}, {20 * 64}, v{vSa}')
            for k in range(16):
                a(f'v_mov_b32 v{vQ+k}, 0')
            a(f's_mov_b32 s{sMk}, 0x00ff00ff')
            a(f's_mov_b32 s{sMk+1}, 0x00ff00ff')
            a(f'v_mov_b32 v{vZero}, 0')
            a(f's_lshl_b32 s{sF1}, s2, {7 if cfg.get("sp", 1) else 3}')
            a(f's_lshl_b32 s{sT2}, s{S_WAVE}, 2')
            a(f's_add_u32 s{sF1}, s{sF1}, s{sT2}')
            a(f's_add_u32 s{sF1}, s{sF1}, {WS_F1:#x}')
            a(f's_mov_b32 s{sN}, {NA + 4}')
            for r in [sY, sSl, sPend, sD, sCf, sCx] + sG + list(range(sMode[0], sCur + 2)): a(f's_mov_b32 s{r}, 0')
            a(f's_mov_b32 s{sThf}, 0x7fffffff')
            a(f's_mov_b32 s{sThx}, 0x80000000')
            a(f's_mov_b32 s{sNom}, {NA * B0q}')
            a(f's_mov_b32 s{sNg}, {NA}')
            setmasks(KMF, KMX)
    a(f'v_bfe_u32 v{vt1}, v0, 2, 1')
    a(f'v_lshlrev_b32 v{vt1}, 9, v{vt1}')
    a(f's_movk_i32 s{sTmp}, 0x1ff')
    a(f'v_and_or_b32 v{vt0}, v{vKoff[0]}, s{sTmp}, v{vt1}')
    a(f'v_and_or_b32 v{valpha}, v{vKoff[1]}, s{sTmp}, v{vt1}')
    a(f'v_mov_b32 v{vt1}, 0')
    stamp(a, cfg, 62)
    a(f's_mov_b64 exec, s[{sMk}:{sMk+1}]')
    a('s_barrier')
    a(f'ds_read_b128 {vr(vQ,4)}, v{vt0}')
    a(f'ds_read_b128 {vr(vQ+4,4)}, v{valpha}')
    a(f's_not_b64 exec, exec')
    a(f'ds_read_b128 {vr(vQ+8,4)}, v{vt0}')
    a(f'ds_read_b128 {vr(vQ+12,4)}, v{valpha}')
    a('s_mov_b64 exec, -1')
    a(f'ds_read_b32 v{vt1}, v{vt1} offset:{LDS_TAG}')
    a('s_waitcnt lgkmcnt(0)')
    a(f'v_readfirstlane_b32 s{S_TA}, v{vt1}')
    pst()

    def relayout(b, pairs):
        a(f's_xor_b64 exec, s[{sCur}:{sCur+1}], s[{sMode[b]}:{sMode[b]+1}]')
        for x, y in pairs: a(f'v_swap_b32 v{x}, v{y}')
        a(f's_mov_b64 s[{sCur}:{sCur+1}], s[{sMode[b]}:{sMode[b]+1}]')
        a('s_mov_b64 exec, -1')
    QP = [(vQ + k, vQ + 4 + k) for k in range(4)] + [(vQ + 8 + k, vQ + 12 + k) for k in range(4)]
    AP = [(vacc + k, vacc + 4 + k) for k in range(4)]
    def ctl_pre(b):
        gb = sG[b]
        a(f's_lshr_b32 s{sE}, s{sNom}, 8')
        a(f's_add_u32 s{sE}, s{sE}, s{S_TA}')
        a(f's_add_u32 s{sNom}, s{sNom}, {B0q}')
        a(f's_sub_u32 s{sPend}, s{sPend}, s{gb}')
        a(f's_add_u32 s{sD}, s{sD}, s{gb}')
        a(f's_add_u32 s{sE}, s{sE}, s{sD}')
        a(f's_ashr_i32 s{sL}, s{sY}, 8')
        a(f's_add_u32 s{sY}, s{sY}, s{sSl}')
        a(f's_sub_u32 s{sL}, s{sPend}, s{sL}')
    def ctl_post(b, off):
        gb = sG[b]; mk = sMode[b]
        a('s_waitcnt lgkmcnt(0)')
        a(f's_sub_u32 s{sE}, s58, s{sE}')
        a(f's_ashr_i32 s{sE}, s{sE}, {FS}')
        a(f's_add_u32 s{sD}, s{sD}, s{sE}')
        a(f's_add_u32 s{sE}, s{sD}, s{sL}')
        a(f's_cmp_gt_i32 s{sE}, s{sThf}')
        a(f's_cselect_b64 s[{mk}:{mk+1}], s[{sMf}:{sMf+1}], 0')
        a(f's_cselect_b32 s{gb}, {GF}, 0')
        if cfg.get('prof'): a(f's_addc_u32 s{sCf}, s{sCf}, 0')
        a(f's_cmp_lt_i32 s{sE}, s{sThx}')
        a(f's_cselect_b64 s[{mk}:{mk+1}], s[{sMx}:{sMx+1}], s[{mk}:{mk+1}]')
        a(f's_cselect_b32 s{gb}, {GX}, s{gb}')
        if cfg.get('prof'): a(f's_addc_u32 s{sCx}, s{sCx}, 0')
        if cfg.get('rndmode'):
            a(f's_lshr_b32 s{sE}, s58, 1')
            a(f's_bitcmp1_b32 s{sE}, 0')
            a(f's_cselect_b64 s[{mk}:{mk+1}], s[{sMf}:{sMf+1}], 0')
            a(f's_bitcmp1_b32 s{sE}, 1')
            a(f's_cselect_b64 s[{mk}:{mk+1}], s[{sMx}:{sMx+1}], s[{mk}:{mk+1}]')
        a(f'v_cndmask_b32 v{vAd}, v{off[0]}, v{off[1]}, s[{mk}:{mk+1}]')
        a(f'v_cndmask_b32 v{vAd+1}, v{off[1]}, v{off[0]}, s[{mk}:{mk+1}]')
        a(f's_add_u32 s{sPend}, s{sPend}, s{gb}')
    def rec():
        a(f'v_mov_b32 v{vRec}, s{sNg}')
        a(f'v_mov_b32 v{vRec+1}, s{sD}')
        a(f'ds_write_b64 v{vRa}, {vr(vRec,2)}')
        a(f's_add_u32 s{sNg}, s{sNg}, 1')
    def refread():
        a(f'ds_read_b128 {vr(vRef,4)}, v{vZero} offset:{LDS_REF}')
    def reftake():
        a('s_waitcnt lgkmcnt(0)')
        for k in range(4): a(f'v_readfirstlane_b32 s{sY+k}, v{vRef+k}')
        a(f's_mul_i32 s{sL}, s{sSl}, s{sNg}')
        a(f's_add_u32 s{sY}, s{sY}, s{sL}')

    def pmask():
        for i in range(4):
            a(f'v_cvt_pk_bf16_f32 v{vP+i}, v{vP+i}, v{vP+i}')
        for i in range(4):
            for j in range(4):
                a(f'v_and_b32 v{vA+4*i+j}, v{vP+i}, v{vmask+j}')
    def pv(file, vb):
        for i in range(4):
            for hf in range(2):
                a(f'v_mfma_f32_16x16x32_bf16 {vr(vacc+4*hf,4)}, {vr(vA+4*i,4)}, {R(file,vb+4*(2*i+hf),4)}, {vr(vacc+4*hf,4)}')
    def f1store():
        if not cfg.get('f1', 1): return
        a('s_mov_b64 exec, 1')
        a(f'buffer_store_dword v{vF1}, v{vZero}, {sr(S_WS,4)}, s{sF1} offen {LOC}')
        a('s_mov_b64 exec, -1')
    def qk1(file, kb):
        first = [True, True]
        for cg in range(2):
            for half in range(2):
                for aa in range(2):
                    j = cg * 4 + aa * 2 + half
                    d = vS if aa == 0 else vP
                    cc = '0' if first[aa] else vr(d, 4)
                    first[aa] = False
                    a(f'v_mfma_f32_16x16x32_bf16 {vr(d,4)}, {R(file,kb+4*j,4)}, {vr(vQ+8*cg+4*half,4)}, {cc}')
    def kpost(va, off):
        for d, t in ((vS, vt0), (vP, vt1)):
            a(f'v_mov_b32_dpp v{t}, v{d} quad_perm:[0,0,0,0] row_mask:0xf bank_mask:0xf')
        for i in range(1, 4):
            for d, t in ((vS, vt0), (vP, vt1)):
                a(f'v_add_f32_dpp v{t}, v{d+i}, v{t} quad_perm:[{i},{i},{i},{i}] row_mask:0xf bank_mask:0xf')
        a(f'v_cvt_pk_bf16_f32 v{vSc}, v{vt0}, v{vt1}')
        a(f'v_max3_f32 v{vm}, v{vt0}, v{vt1}, v{vm}')
        a(f'ds_write_b32 v{va}, v{vSc} offset:{off}')
    def kbody(b, va, off, nxt='K', pro=False, ref=False):
        a(f'v_readlane_b32 s{sI}, v{vTbl}, s{sN}')
        if not pro: relayout(b, QP)
        ctl_pre(b)
        a(f's_waitcnt vmcnt(24)')
        a('s_memrealtime s[58:59]')
        qk1('v', vB[b])
        a(f's_add_u32 s{sN}, s{sN}, 1')
        if pro and cfg.get('rndmode'):
            a('s_waitcnt lgkmcnt(0)')
            issue('v', vB[b], sI, vKoff, sK)
        else:
            ctl_post(b, vKoff if nxt == 'K' else vVoff)
            issue('v', vB[b], sI, [vAd, vAd + 1], sK if nxt == 'K' else sVv)
        kpost(va, off)
        rec()
        if ref: refread()
    def atile(i):
        qk1('a', 32 * i)
        a('s_nop 7')
        kpost(vSa, 64 * i)
    def vbody(b, off, last=False, ref=False):
        a('s_waitcnt lgkmcnt(0)')
        a(f'v_lshlrev_b32 v{vS}, 16, v{vSc}')
        a(f'v_and_b32 v{vS+1}, 0xffff0000, v{vSc}')
        a(f'v_lshlrev_b32 v{vS+2}, 16, v{vSc+1}')
        a(f'v_and_b32 v{vS+3}, 0xffff0000, v{vSc+1}')
        if off is not None:
            a(f'ds_read_b64 {vr(vSc,2)}, v{vSb} offset:{off}')
        if ref: refread()
        for i in range(4):
            a(f'v_fma_f32 v{vP+i}, v{vS+i}, s{sC}, -v{vmc}')
        for i in range(4):
            a(f'v_exp_f32 v{vP+i}, v{vP+i}')
        if not last:
            a(f'v_readlane_b32 s{sI}, v{vTbl}, s{sN}')
        else:
            a('s_nop 0')
        pmask()
        relayout(b, AP)
        if not last:
            ctl_pre(b)
            a(f's_waitcnt vmcnt(24)')
            a('s_memrealtime s[58:59]')
            a(f's_add_u32 s{sN}, s{sN}, 1')
            pv('v', vB[b])
            ctl_post(b, vVoff)
            issue('v', vB[b], sI, [vAd, vAd + 1], sVv)
            rec()
        else:
            if b == 1:
                for i in range(8):
                    a(f'v_mov_b32 v{vB[0]+2*i+1}, s{S_TA if i % 2 == 0 else S_TB}')
            if b == 3:
                a(f'v_lshlrev_b32 v{vt0}, 4, v0')
                a(f's_mul_i32 s{sBase}, s2, {OSTR}')
                a(f's_add_u32 s{sBase}, s{sBase}, {WS_O:#x}')
                a(f'v_mov_b32 v{vRa}, {LDS_CTR}')
            a(f's_waitcnt vmcnt({24 - 8 * b})')
            pv('v', vB[b])
            if b < 3: rec()
    pat = cfg.get('pat', '0123ab0c1d2e3f0g1h23')
    kt = NA
    for ci, ch in enumerate(pat):
        if ch in '0123':
            kbody(int(ch), vSa, 64 * kt, pro=True, ref=(ci == len(pat) - 1)); kt += 1
        else: atile(ord(ch) - ord('a'))
        if ch in '13bdf': pst()
        if kt == NA + 1 and ch == '0':
            tagB(a)
            a(f'v_mov_b32 v{vF1}, s{S_TA}')
    assert kt == 20 and pat[-1] == '3'
    LK = a.newlabel('st_loopK'); LV = a.newlabel('st_loopV')
    def itstamp():
        if cfg.get('prof'):
            a('s_mov_b32 m0, s57')
            a('s_add_u32 s57, s57, 1')
            a(f'v_writelane_b32 v{vIt}, s58, m0')
    if cfg.get('prof'):
        a('s_mov_b32 s57, 0')
        a(f'v_mov_b32 v{vIt}, 0')
        a('s_waitcnt lgkmcnt(0)')
        for k in range(pst_n[0]):
            a(f'v_writelane_b32 v{vIt}, s{PST[k]}, {40 + k}')
    a.label(LK)
    itstamp()
    reftake()
    for b in range(4): kbody(b, vSb, 64 * b, ref=(b == 3))
    a(f'v_add_u32 v{vSb}, 256, v{vSb}')
    a(f's_cmp_lt_u32 s{sN}, 64')
    a(f's_cbranch_scc1 {LK}')
    itstamp()
    reftake()
    a(f's_mov_b32 s{sN}, 0')
    setmasks(VMF, VMX)
    for b in range(4): kbody(b, vSb, 64 * b, 'V', ref=(b == 3))
    a(f's_mov_b64 s[{sCur}:{sCur+1}], 0')
    a(f'ds_read_b64 {vr(vSc,2)}, v{vSr}')
    a(f'v_mov_b32 v{vSb}, v{vSr}')
    xlane_reduce(a, [vm], [vt0], 'v_max_f32', ['r8', 'p32', 'p16'])
    a(f'v_cvt_pk_bf16_f32 v{vm}, v{vm}, v{vm}')
    a(f'v_lshlrev_b32 v{vm}, 16, v{vm}')
    a('s_mov_b32 vcc_lo, 0xaaaaaaaa')
    a('s_mov_b32 vcc_hi, 0xaaaaaaaa')
    a(f'v_readlane_b32 s{sMk}, v{vm}, 0')
    a(f'v_readlane_b32 s{sMk+1}, v{vm}, 4')
    a('s_nop 1')
    a(f'v_mov_b32 v{vm}, s{sMk}')
    a(f'v_mov_b32 v{vt0}, s{sMk+1}')
    a(f'v_cndmask_b32 v{vm}, v{vm}, v{vt0}, vcc')
    a(f'v_mul_f32 v{vmc}, s{sC}, v{vm}')
    a.label(LV)
    itstamp()
    reftake()
    for b in range(4): vbody(b, 64 * (b + 1), ref=(b == 3))
    a(f'v_add_u32 v{vSb}, 256, v{vSb}')
    a(f's_cmp_lt_u32 s{sN}, 64')
    a(f's_cbranch_scc1 {LV}')
    itstamp()
    Lz = a.newlabel('st_zw'); Lzg = a.newlabel('st_zg')
    a(f'v_and_b32 v{vt0}, 1, v0')
    a(f'v_lshlrev_b32 v{vt0}, 2, v{vt0}')
    a(f's_mov_b32 s{sCtr}, {POLL_MAX * 16}')
    a.label(Lz)
    a(f'ds_read_b64 {vr(vRec,2)}, v{vZero} offset:{LDS_FLAGZ}')
    a(f'ds_read_b32 v{vt1}, v{vt0} offset:{LDS_Z}')
    a('s_waitcnt lgkmcnt(0)')
    a(f'v_readfirstlane_b32 s{sTk}, v{vRec}')
    a(f'v_readfirstlane_b32 s{sLoc}, v{vRec+1}')
    a(f's_cmp_eq_u32 s{sTk}, s{S_TA}')
    a(f's_cbranch_scc1 {Lzg}')
    a(f's_sub_u32 s{sCtr}, s{sCtr}, 1')
    a(f's_cbranch_scc0 {Lz}')
    a.label(Lzg)
    a(f'v_sub_f32 v{valpha}, v{vmc}, v{vt1}')
    a(f'v_exp_f32 v{valpha}, v{valpha}')
    a(f'v_mov_b32 v{vmc}, v{vt1}')
    a('s_nop 1')
    for i in range(8):
        qp = '[0,0,2,2]' if (i & 1) == 0 else '[1,1,3,3]'
        a(f'v_mul_f32_dpp v{vacc+i}, v{valpha}, v{vacc+i} quad_perm:{qp} row_mask:0xf bank_mask:0xf')
    for b in range(4): vbody(b, 64 * (b + 1) if b < 3 else None, last=True)
    a('s_mov_b64 exec, 1')
    a(f'ds_add_rtn_u32 v{vTk}, v{vRa}, v{vOne} offset:{LDS_DONE - LDS_CTR}')
    a(f's_mov_b64 exec, s[{sCur}:{sCur+1}]')
    a(f's_nop 4')
    for x, y in AP: a(f'v_swap_b32 v{x}, v{y}')
    a('s_mov_b64 exec, -1')
    L2nd = a.newlabel('st_2nd'); LB3 = a.newlabel('st_b3')
    a('s_waitcnt lgkmcnt(0)')
    a(f'v_readfirstlane_b32 s{sTk}, v{vTk}')
    a(f's_cmp_lg_u32 s{sTk}, 0')
    a(f's_cbranch_scc1 {L2nd}')
    a(f'ds_write_b128 v{vt0}, {vr(vacc,4)} offset:{LDS_CMB}')
    a(f'ds_write_b128 v{vt0}, {vr(vacc+4,4)} offset:{LDS_CMB+1024}')
    a(f'ds_write_b32 v{vRa}, v{vF1} offset:{LDS_FLAG2 - LDS_CTR}')
    a(f's_branch {LB3}')
    a.label(L2nd)
    Lw2 = a.newlabel('st_w2'); Lg2 = a.newlabel('st_g2')
    a(f's_mov_b32 s{sCtr}, {POLL_MAX}')
    a.label(Lw2)
    a(f'ds_read_b32 v{vTk}, v{vRa} offset:{LDS_FLAG2 - LDS_CTR}')
    a(f'ds_read_b128 {vr(vA,4)}, v{vt0} offset:{LDS_CMB}')
    a(f'ds_read_b128 {vr(vA+4,4)}, v{vt0} offset:{LDS_CMB+1024}')
    a('s_waitcnt lgkmcnt(2)')
    a(f'v_readfirstlane_b32 s{sTk}, v{vTk}')
    a(f's_cmp_eq_u32 s{sTk}, s{S_TA}')
    a(f's_cbranch_scc1 {Lg2}')
    a(f's_sub_u32 s{sCtr}, s{sCtr}, 1')
    a(f's_cbranch_scc1 {Lg2}')
    a('s_waitcnt lgkmcnt(0)')
    a(f's_branch {Lw2}')
    a.label(Lg2)
    Lrem = a.newlabel('st_rem')
    a(f's_cmp_eq_u32 s{sLoc}, 0')
    a(f's_cbranch_scc1 {Lrem}')
    for fl in (cfg.get('lfl', ''), 'sc1'):
        if fl == 'sc1': a.label(Lrem)
        for i in range(4):
            if i % 2 == 0: a(f's_waitcnt lgkmcnt({1 - i // 2})')
            for e in range(2):
                a(f'v_add_f32 v{vB[0]+4*i+2*e}, v{vacc+2*i+e}, v{vA+2*i+e}')
            a(f'buffer_store_dwordx4 {vr(vB[0]+4*i,4)}, v{vt0}, {sr(S_WS,4)}, s{sBase} offen offset:{1024*i} {fl}')
        if fl != 'sc1': a(f's_branch {LB3}')
    a.label(LB3)
    if cfg.get('prof'):
        a(f's_memrealtime s[58:59]')
    a(f'v_mov_b32 v{vt0}, 0')
    if cfg.get('prof'):
        a(f's_add_u32 s{sT2}, s{S_WAVE}, 4')
        a(f's_lshl_b32 s{sTmp}, s2, 5')
        a(f's_add_u32 s{sTmp}, s{sTmp}, s{sT2}')
        a(f's_lshl_b32 s{sTmp}, s{sTmp}, 2')
        a(f's_add_u32 s{sTmp}, s{sTmp}, {WS_PROF:#x}')
        a('s_waitcnt lgkmcnt(0)')
        a(f'v_mov_b32 v{vt1}, s58')
        a(f'buffer_store_dword v{vt1}, v{vt0}, {sr(S_WS,4)}, s{sTmp} offen')
        a(f'v_mov_b32 v{vt1}, s62')
        a(f'buffer_store_dword v{vt1}, v{vt0}, {sr(S_WS,4)}, s{sTmp} offen offset:28')
        a(f'v_writelane_b32 v{vIt}, s{sCf}, 62')
        a(f'v_writelane_b32 v{vIt}, s{sCx}, 63')
        a(f's_lshl_b32 s{sTmp}, s2, 1')
        a(f's_add_u32 s{sTmp}, s{sTmp}, s{S_WAVE}')
        a(f's_lshl_b32 s{sTmp}, s{sTmp}, 8')
        a(f's_add_u32 s{sTmp}, s{sTmp}, {WS_IT:#x}')
        a(f'v_lshlrev_b32 v{vt0}, 2, v0')
        a(f'buffer_store_dword v{vIt}, v{vt0}, {sr(S_WS,4)}, s{sTmp} offen')
    a('s_endpgm')
    return V.n


def gemv_pairs(a, vm, W, nrows, ndw, vX, acc, tmps, loads, first=True):
    for t in range(nrows // 2):
        if loads is not None:
            vm.wait(loads[2 * t + 1])
        for d in range(ndw):
            lo, hi = tmps[2 * d], tmps[2 * d + 1]
            a(f'v_perm_b32 v{lo}, v{W[2*t+1]+d}, v{W[2*t]+d}, s{S_SELLO}')
            a(f'v_perm_b32 v{hi}, v{W[2*t+1]+d}, v{W[2*t]+d}, s{S_SELHI}')
        for d in range(ndw):
            lo, hi = tmps[2 * d], tmps[2 * d + 1]
            c0 = '0' if (t == 0 and first) else f'v{acc[2*d]}'
            c1 = '0' if (t == 0 and first) else f'v{acc[2*d+1]}'
            a(f'v_dot2_f32_bf16 v{acc[2*d]}, v{lo}, v{vX+t}, {c0}')
            a(f'v_dot2_f32_bf16 v{acc[2*d+1]}, v{hi}, v{vX+t}, {c1}')
    a('s_nop 2')


def rnd_bf16(a, d, s, t):
    a(f'v_cvt_pk_bf16_f32 v{t}, v{s}, v{s}')
    a(f'v_lshlrev_b32 v{d}, 16, v{t}')


def ksplit_loads(a, vm, sX, sW, rowbytes, sKq, sColByte, vX, vW, vo1, vo2, vo3, sT, sT2):
    a(f'v_lshrrev_b32 v{vo1}, 3, v0')
    a(f'v_mul_u32_u24 v{vo2}, {14*rowbytes}, v{vo1}')
    a(f'v_and_b32 v{vo3}, 7, v0')
    a(f'v_lshl_add_u32 v{vo2}, v{vo3}, 4, v{vo2}')
    a(f's_mul_i32 s{sT2}, s{sKq}, {112*rowbytes}')
    a(f's_add_u32 s{sT2}, s{sT2}, s{sColByte}')
    lw = []
    for k in range(14):
        lw.append(vm.issue(f'buffer_load_dwordx4 {vr(vW+4*k,4)}, v{vo2}, {sr(sW,4)}, s{sT2} offen nt'))
        if k < 13: a(f's_add_u32 s{sT2}, s{sT2}, {rowbytes}')
        if k == 0:
            a(f'v_mul_u32_u24 v{vo3}, 28, v{vo1}')
            a(f's_mul_i32 s{sT}, s{sKq}, 224')
            vm.issue(f'buffer_load_dwordx4 {vr(vX,4)}, v{vo3}, {sr(sX,4)}, s{sT} offen')
            vm.issue(f'buffer_load_dwordx3 {vr(vX+4,3)}, v{vo3}, {sr(sX,4)}, s{sT} offen offset:16')
    return lw


def gen_auxA(a, cfg):
    V = Regs(1, 256)
    vt = V.alloc(8, 4)
    vX = V.alloc(8, 4)
    vacc = V.alloc(8, 4)
    vtmp = V.alloc(8, 4)
    vo1 = V.alloc(); vo2 = V.alloc(); vo3 = V.alloc(); vTag = V.alloc(); vOa = vTag; vYs = V.alloc(); vWa = V.alloc()
    vCh = V.alloc(16, 4)
    vW = V.alloc(80, 4); vSet = vW
    vWp = V.alloc(64, 4)
    vOq = V.alloc(16, 4)
    vML = V.alloc(8, 4)
    sX = 4; sWQ = 8; sDBG = 44; sWO = 48
    sT = 52; sT2 = 53; sHead = 54; sJ = 55; sCnt = 56; sC = 57; sKq = 58; sCb = 59
    sPk = 80; sWoB = 19
    vm = VM(a)
    stamp(a, cfg, 62)
    srd(a, sX, P_X, 896)
    srd(a, sWQ, P_WQ, 448 * 8192)
    a(f's_lshr_b32 s{sHead}, s2, 5')
    a(f's_and_b32 s{sJ}, s2, 31')
    a(f's_and_b32 s{sKq}, s2, 3')
    a(f's_lshr_b32 s{sCb}, s2, 2')
    a(f's_lshl_b32 s{sCb}, s{sCb}, 7')
    lw = ksplit_loads(a, vm, sX, sWQ, 8192, sKq, sCb, vX, vW, vo1, vo2, vo3, sT, sT2)
    a('s_barrier')
    srd(a, sDBG, P_DBG, 256)
    srd(a, sWO, P_WO, 4096 * 896)
    a(f's_mov_b64 s[42:43], s[{P_OUT}:{P_OUT+1}]')
    a(f'v_mov_b32 v{vo3}, 0')
    vm.issue(f'buffer_load_dword v{vTag}, v{vo3}, {sr(sDBG,4)}, 0 offen sc1')
    gemv_pairs(a, vm, [vW + 4 * k for k in range(14)], 14, 4, vX, [vacc + i for i in range(8)], [vtmp + i for i in range(8)], lw)
    xlane_reduce(a, [vacc + i for i in range(8)], [vtmp + i for i in range(8)], 'v_add_f32', ['r8', 'p16', 'p32'])
    stamp(a, cfg, 64)
    a(f'v_lshlrev_b32 v{vo1}, 4, v0')
    a(f's_lshl_b32 s{sT}, s{sHead}, 14')
    a(f's_lshl_b32 s{sT2}, s{sKq}, 12')
    a(f's_add_u32 s{sT2}, s{sT2}, s{sT}')
    a(f's_and_b32 s{sC}, s{sCb}, 0x380')
    a(f's_lshl_b32 s{sC}, s{sC}, 2')
    a(f's_add_u32 s{sT2}, s{sT2}, s{sC}')
    L = a.newlabel('ptag'); Dn = a.newlabel('ptag_done')
    a(f's_mov_b32 s{sCnt}, {POLL_MAX}')
    a.label(L)
    a('s_waitcnt vmcnt(0)')
    a(f'v_readfirstlane_b32 s{S_TA}, v{vTag}')
    a(f's_cmp_lg_u32 s{S_TA}, 0')
    a(f's_cbranch_scc1 {Dn}')
    a(f's_sub_u32 s{sCnt}, s{sCnt}, 1')
    a(f's_cbranch_scc1 {Dn}')
    a('s_sleep 1')
    a(f'buffer_load_dword v{vTag}, v{vo3}, {sr(sDBG,4)}, 0 offen sc1')
    a(f's_branch {L}')
    a.label(Dn)
    tagB(a)
    stamp(a, cfg, 66)
    mkchunks(a, vCh, [vacc + i for i in range(8)])
    a('s_mov_b64 exec, 0xff')
    for c in range(4):
        a(f'buffer_store_dwordx4 {vr(vCh+4*c,4)}, v{vo1}, {sr(S_WS,4)}, s{sT2} offen offset:{128*c} sc1')
    a('s_mov_b64 exec, -1')
    a(f'v_lshrrev_b32 v{vo2}, 5, v0')
    a(f'v_lshlrev_b32 v{vo2}, 7, v{vo2}')
    a(f'v_and_b32 v{vt}, 7, v0')
    a(f'v_lshl_add_u32 v{vo2}, v{vt}, 4, v{vo2}')
    a(f'v_bfe_u32 v{vt}, v0, 3, 2')
    a(f'v_lshl_add_u32 v{vo2}, v{vt}, 2, v{vo2}')
    for kq in range(1, 4):
        a(f's_add_u32 s{80+kq}, s{sT}, {4096*kq}')
    loads = []
    for kq in range(4):
        for i in range(4):
            so = sT if kq == 0 else 80 + kq
            loads.append(f'buffer_load_dwordx4 {vr(vW+4*(4*kq+i),4)}, v{vo1}, {sr(S_WS,4)}, s{so} offen offset:{i*1024} sc1')
    a(f'v_mov_b32 v{vML}, 0')
    a(f'v_mov_b32 v{vML+1}, 0')
    a(f'v_mov_b32 v{vML+2}, 0x7fffffff')
    a(f'v_mov_b32 v{vML+3}, 0x80000000')
    if cfg.get('qsleep'): a(f's_sleep {cfg["qsleep"]}')
    poll(a, loads, [vW + 4 * k for k in range(16)], vt, sCnt, name='pq')
    stamp(a, cfg, 68)
    for i in range(4):
        for e in (0, 2):
            a(f'v_add_f32 v{vW+4*i+e}, v{vW+4*i+e}, v{vW+4*(4+i)+e}')
            a(f'v_add_f32 v{vW+4*(8+i)+e}, v{vW+4*(8+i)+e}, v{vW+4*(12+i)+e}')
    for i in range(4):
        for e in (0, 2):
            a(f'v_add_f32 v{vW+4*i+e}, v{vW+4*i+e}, v{vW+4*(8+i)+e}')
    for i in range(4):
        a(f'v_cvt_pk_bf16_f32 v{vt+i}, v{vW+4*i}, v{vW+4*i+2}')
    for i in range(4):
        a(f'ds_write_b32 v{vo2}, v{vt+i} offset:{256*i}')
    a(f'ds_write_b32 v{vo3}, v{vTag} offset:{LDS_TAG}')
    a(f'ds_write_b128 v{vo3}, {vr(vML,4)} offset:{LDS_REF}')
    a(f'ds_write_b32 v{vo3}, v{vo3} offset:{LDS_DONE}')
    a(f'ds_write_b32 v{vo3}, v{vo3} offset:{LDS_FLAG3}')
    a(f'ds_write_b32 v{vo3}, v{vo3} offset:{LDS_FLAGZ}')
    a(f'ds_write_b32 v{vo3}, v{vo3} offset:{LDS_FLAGO}')
    a(f'ds_write_b64 v{vo3}, {vr(vML,2)} offset:{LDS_REC}')
    a(f'ds_write_b64 v{vo3}, {vr(vML,2)} offset:{LDS_REC + 512}')
    a('s_waitcnt lgkmcnt(0)')
    a('s_barrier')
    stamp(a, cfg, 70)
    stamp_store(a, cfg, [(0, 62), (7, 64), (8, 66), (9, 68), (1, 70), (27, 98)], vt)
    for k, off in enumerate(cfg.get('tw', [])):
        a('s_mov_b64 exec, 1')
        a(f's_mov_b32 s22, {off:#x}')
        a(f'buffer_load_dword v{vOq+k}, v{vo3}, {sr(S_WS,4)}, s22 offen {cfg.get("twf", "nt")}')
        a('s_mov_b64 exec, -1')
    a(f's_lshl_b32 s{sT}, s{sHead}, 9')
    a(f's_and_b32 s{sT2}, s{sJ}, 1')
    a(f's_lshl_b32 s{sT2}, s{sT2}, 4')
    a(f's_add_u32 s{sT}, s{sT}, s{sT2}')
    a(f's_and_b32 s{sT2}, s{sJ}, 6')
    a(f's_add_u32 s{sT}, s{sT}, s{sT2}')
    a(f's_bfe_u32 s{sT2}, s{sJ}, 0x10003')
    a(f's_add_u32 s{sT}, s{sT}, s{sT2}')
    a(f's_mul_i32 s{sWoB}, s{sT}, 896')
    a(f'v_min_u32 v{vWa}, 55, v0')
    a(f'v_lshlrev_b32 v{vWa}, 4, v{vWa}')
    WOL = cfg.get('wol', 0)
    vR = vW + 16
    def woload():
        for g2 in range(4):
            a(f's_bitcmp1_b32 s{sJ}, 4')
            a(f's_cselect_b32 s22, {CM[1][g2]}, {CM[0][g2]}')
            a(f's_mul_i32 s22, s22, {32 * 896}')
            a(f's_add_u32 s22, s22, s{sWoB}')
            for hh in range(2):
                for u1 in range(2):
                    a(f's_add_u32 s23, s22, {(hh * 256 + 8 * u1) * 896}')
                    a(f'buffer_load_dwordx4 {vr(vR+4*(8*hh+2*g2+u1),4)}, v{vWa}, {sr(sWO,4)}, s23 offen nt')
    def woperm():
        for pr in range(8):
            r0 = vR + 4 * (2 * pr); r1 = vR + 4 * (2 * pr + 1)
            for d in range(4):
                a(f'v_perm_b32 v{vWp+8*pr+2*d}, v{r1+d}, v{r0+d}, s{S_SELLO}')
                a(f'v_perm_b32 v{vWp+8*pr+2*d+1}, v{r1+d}, v{r0+d}, s{S_SELHI}')
    if not WOL:
        woload()
        a('s_waitcnt vmcnt(0)')
        woperm()
    a(f'v_and_b32 v{vo2}, 31, v0')
    a(f'v_mul_u32_u24 v{vo2}, {OSTR}, v{vo2}')
    a(f'v_lshrrev_b32 v{vo3}, 3, v0')
    a(f'v_mul_u32_u24 v{vOa}, {OSTR}, v{vo3}')
    a(f'v_and_b32 v{vt}, 7, v0')
    a(f'v_lshl_add_u32 v{vOa}, v{vt}, 4, v{vOa}')
    a(f'v_lshlrev_b32 v{vo3}, 2, v{vo3}')
    a(f's_mul_i32 s{sT2}, s{sHead}, {32 * OSTR}')
    a(f's_add_u32 s{sT2}, s{sT2}, {WS_O:#x}')
    a(f's_lshl_b32 s{sT}, s{sJ}, 7')
    a(f's_add_u32 s{sT}, s{sT}, s{sT2}')
    for k in range(1, 4):
        a(f's_add_u32 s{72+k}, s{sT}, {8 * k * OSTR}')
    a(f's_add_u32 s{sT2}, s{sT2}, 4096')
    a(f's_mov_b32 s{sC}, {C_SCALE:#x}')
    a(f's_lshl_b32 s72, s2, 6')
    for c in range(4):
        a(f's_add_u32 s{24+c}, s72, {WS_Y + c * 14 * 16384:#x}')
    a(f'v_lshrrev_b32 v{vYs}, 2, v0')
    a(f'v_lshlrev_b32 v{vYs}, 14, v{vYs}')
    a(f'v_and_b32 v{vt}, 3, v0')
    a(f'v_lshl_add_u32 v{vYs}, v{vt}, 4, v{vYs}')
    H3 = cfg.get('h3', 0)
    if H3:
        for i in range(4):
            a(f'v_lshl_add_u32 v{vt}, v0, 2, {i}')
            a(f'v_mul_u32_u24 v{vt+1}, 9363, v{vt}')
            a(f'v_lshrrev_b32 v{vt+1}, 16, v{vt+1}')
            a(f'v_mul_u32_u24 v{vt+2}, 7, v{vt+1}')
            a(f'v_sub_u32 v{vt}, v{vt}, v{vt+2}')
            a(f'v_mul_u32_u24 v{vt+1}, {OSTR}, v{vt+1}')
            a(f'v_lshl_add_u32 v{vML+i}, v{vt}, 4, v{vt+1}')
        a(f's_not_b32 s24, s{S_TA}')
        a(f's_not_b32 s25, s{S_TB}')
        for i in range(8):
            a(f'v_mov_b32 v{vCh+2*i+1}, s{24 + i % 2}')
        a(f's_mov_b32 s24, s{sT}')
        a(f's_lshl_b32 s25, s{sJ}, 10')
        a(f's_add_u32 s25, s25, {WS_Y:#x}')
        a(f's_mul_i32 s26, s{sJ}, 28')
        a(f's_and_b32 s27, s{sJ}, 7')
        srd(a, 76, 42, 896)
    else:
        for i in range(8):
            a(f'v_mov_b32 v{vCh+2*i+1}, s{S_TA if i % 2 == 0 else S_TB}')
    a(f's_mul_i32 s37, s{sHead}, 11')
    a('s_lshr_b32 s37, s37, 5')
    a('s_mul_i32 s37, s37, 3')
    a(f's_sub_u32 s37, s{sHead}, s37')
    a('s_bfe_u32 s38, s2, 0x20003')
    a(f's_lshl_b32 s36, s{sHead}, 3')
    a('s_and_b32 s39, s2, 7')
    a('s_add_u32 s36, s36, s39')
    a('s_lshl_b32 s36, s36, 4')
    a('s_cmp_eq_u32 s37, s38')
    a('s_cselect_b32 s36, s36, 0x40000000')
    hook = None
    if not cfg.get('noctl'):
        aux_rounds(a, cfg, dict(v=vW, s=28, S_WS=S_WS, S_TA=S_TA, S_TB=S_TB, LDS_REC=LDS_REC, LDS_REF=LDS_REF, WS_R=WS_PLAN, sPub=36), hook=hook)
    stamp(a, cfg, 70)
    stamp_store(a, cfg, [(20, 70)], vt)
    sEX = 16; sDry = 18
    WARM = 0
    a(f's_mov_b64 s[{sEX}:{sEX+1}], -1')
    a(f'v_mov_b32 v{vSet+4}, s{S_TA}')
    a(f'v_mov_b32 v{vSet+5}, 0')
    vBp = vSet + 8; vGs = vSet + 6
    ldswait(a, LDS_FLAGZ, vSet + 5, vt, 22, sCnt, 'za', slp=8)
    a(f'ds_read_b128 {vr(vBp,4)}, v{vo1} offset:{LDS_B}')
    a(f'ds_read_b128 {vr(vBp+4,4)}, v{vo1} offset:{LDS_B+1024}')
    a(f'ds_read_b32 v{vGs}, v{vSet+5} offset:{LDS_G}')
    a(f'ds_read_b32 v{vt}, v{vSet+5} offset:{LDS_FLAGZ+4}')
    a('s_waitcnt lgkmcnt(0)')
    a(f'v_readfirstlane_b32 s20, v{vt}')
    if H3 and cfg.get('zpt'):
        Lz = a.newlabel('zpt')
        a(f's_cmp_lg_u32 s27, s{sHead}')
        a(f's_cbranch_scc1 {Lz}')
        progwait(a, cfg['zpt'], vSet + 5, vt, 22, sCnt, 8, 'zp')
        a(f'buffer_load_dwordx4 {vr(vOq+8,4)}, v{vo1}, {sr(S_WS,4)}, s25 offen sc1')
        a.label(Lz)
    a(f'v_lshlrev_b32 v{vo2}, 2, v0')
    LdA = dry_begin(a, cfg, 'dryA', sEX)
    progwait(a, WOL, vSet + 5, vt, 22, sCnt, 2, 'wo')
    stamp(a, cfg, 64)
    woload()
    a('s_waitcnt vmcnt(0)')
    if cfg.get('prof'):
        stamp(a, cfg, 62)
        stamp_store(a, cfg, [(16, 62), (17, 64)], vt)
    woperm()
    Lo = a.newlabel('ow'); Log = a.newlabel('og')
    setcnt(a, sCnt, POLL_MAX * 16)
    a.label(Lo)
    a(f'ds_read_b32 v{vt}, v{vSet+5} offset:{LDS_FLAGO}')
    a(f'ds_read_b128 {vr(vOq,4)}, v{vSet+5} offset:{LDS_O}')
    a(f'ds_read_b128 {vr(vOq+4,4)}, v{vSet+5} offset:{LDS_O+16}')
    a('s_waitcnt lgkmcnt(2)')
    a(f'v_readfirstlane_b32 s22, v{vt}')
    a(f's_cmp_eq_u32 s22, s{S_TA}')
    a(f's_cbranch_scc1 {Log}')
    a(f's_sub_u32 s{sCnt}, s{sCnt}, 1')
    a('s_waitcnt lgkmcnt(0)')
    a(f's_cbranch_scc0 {Lo}')
    a.label(Log)
    stamp(a, cfg, 62)
    for pr in range(8):
        if pr % 4 == 0: a(f's_waitcnt lgkmcnt({(1 - pr // 4) + (1 if cfg.get("prof") else 0)})' if False else f's_waitcnt lgkmcnt(0)' if cfg.get('prof') else f's_waitcnt lgkmcnt({1 - pr // 4})')
        for col in range(8):
            c0 = '0' if pr == 0 else f'v{vCh+2*col}'
            a(f'v_dot2_f32_bf16 v{vCh+2*col}, v{vWp+8*pr+col}, v{vOq+pr}, {c0}')
    a(f's_and_b32 exec_hi, s{sEX+1}, 0x00ffffff')
    if H3:
        Lr = a.newlabel('y_rem'); Ld = a.newlabel('y_done')
        a('s_cmp_eq_u32 s20, 0')
        a(f's_cbranch_scc1 {Lr}')
        for fl in ('', 'sc1'):
            if fl: a.label(Lr)
            for c in range(4):
                for e in range(2):
                    a(f'v_fma_f32 v{vCh+4*c+2*e}, v{vCh+4*c+2*e}, v{vGs}, v{vBp+2*c+e}')
                a(f'buffer_store_dwordx4 {vr(vCh+4*c,4)}, v{vML+c}, {sr(S_WS,4)}, s24 offen {fl}')
            if not fl: a(f's_branch {Ld}')
        a.label(Ld)
    else:
        for c in range(4):
            for e in range(2):
                a(f'v_fma_f32 v{vCh+4*c+2*e}, v{vCh+4*c+2*e}, v{vGs}, v{vBp+2*c+e}')
            a(f'buffer_store_dwordx4 {vr(vCh+4*c,4)}, v{vYs}, {sr(S_WS,4)}, s{24+c} offen sc1')
    setex(a, -1)
    if WARM:
        a(f's_cmp_lg_u32 s{sDry}, 0')
        a(f's_cbranch_scc1 {Lreal}')
    stamp(a, cfg, 64)
    a(f'ds_write_b32 v{vSet+5}, v{vSet+4} offset:{LDS_FLAG3}')
    if cfg.get('prof'):
        a('s_getreg_b32 s68, hwreg(HW_REG_XCC_ID)')
        a('s_mov_b32 s69, s100')
    stamp_store(a, cfg, [(30, 62), (3, 64), (25, 68), (26, 69)], vt)
    if H3:
        Lnf = a.newlabel('a_nofin')
        a(f's_cmp_lg_u32 s27, s{sHead}                ; h3')
        a(f's_cbranch_scc1 {Lnf}')
        if cfg.get('dz'): a(f's_sleep {cfg["dz"]}')
        setex(a, 0x7f7f7f7f7f7f7f7f)
        stamp(a, cfg, 66)
        poll(a, [f'buffer_load_dwordx4 {vr(vOq,4)}, v{vo1}, {sr(S_WS,4)}, s25 offen sc1'], [vOq], vt, sCnt, name='pz', sleep=cfg.get('zsleep', 1))
        xlane_reduce(a, [vOq, vOq + 2], [vtmp, vtmp + 1], 'v_add_f32', ['r8', 'p16', 'p32'])
        a(f'v_cvt_pk_bf16_f32 v{vt}, v{vOq}, v{vOq+2}')
        setex(a, 0x7f)
        a(f'buffer_store_dword v{vt}, v{vo2}, {sr(76,4)}, s26 offen')
        setex(a, -1)
        stamp(a, cfg, 62)
        if cfg.get('prof'): a(f's_sub_u32 s23, {POLL_MAX}, s{sCnt}')
        stamp_store(a, cfg, [(6, 62), (23, 66), (24, 23)], vt)
        a.label(Lnf)
    dry_end(a, LdA)
    stamp_flush(a, cfg, [0, 7, 8, 9, 1, 16, 17, 20, 30, 3, 25, 26, 27] + ([6, 23, 24] if H3 else []), vt)
    a('s_endpgm')
    return V.n


def gen_auxB(a, cfg):
    V = Regs(1, 256)
    vt = V.alloc(8, 4)
    vf = V.alloc(8, 4)
    vo1 = V.alloc(); vo2 = V.alloc(); vo3 = V.alloc(); vg = V.alloc(); vYa = V.alloc(); vZ = V.alloc()
    vX = V.alloc(16, 4)
    vacc = V.alloc(8, 4)
    vtmp = V.alloc(8, 4)
    vCh = V.alloc(8, 4)
    vW = V.alloc(64, 4)
    vD = V.alloc(64, 4)
    vY = vW
    sX = 4; sWG = 8; sWD = 48; sDBG = 64; sGW = 68; sOUT = 72
    sT = 52; sT2 = 53; sKq = 54; sJ = 55; sCnt = 56; sF = 57; sG = 62; sG1 = 63; sR = 58; sCb = 59
    sPk = 16; sLoc = 38
    vOa = V.alloc()
    vm = VM(a)
    srd(a, sDBG, P_DBG, 256)
    Lnt = a.newlabel('notag')
    a(f'v_mov_b32 v{vZ}, 0')
    a('s_cmp_lg_u32 s2, 0')
    a(f's_cbranch_scc1 {Lnt}')
    a(f's_memrealtime s[{sG}:{sG1}]')
    a('s_waitcnt lgkmcnt(0)')
    a(f's_or_b32 s{sG}, s{sG}, 1')
    a(f'v_mov_b32 v{vo2}, s{sG}')
    a('s_mov_b64 exec, 1')
    a(f'buffer_store_dword v{vo2}, v{vZ}, {sr(sDBG,4)}, 0 offen sc1')
    a('s_mov_b64 exec, -1')
    a.label(Lnt)
    a('s_barrier')
    srd(a, sX, P_X, 896)
    srd(a, sWD, P_WD, 1792 * 896)
    srd(a, sGW, P_GW, 896)
    srd(a, sOUT, P_OUT, 896)
    a(f's_lshr_b32 s{sT}, s2, 5')
    a(f's_add_u32 s{sR}, s2, s{sT}')
    a(f's_and_b32 s{sR}, s{sR}, 31')
    a(f's_mul_i32 s{sF}, s{sT}, 14')
    a(f's_add_u32 s{sF}, s{sF}, s{sR}')
    a(f's_lshr_b32 s{sCb}, s{sF}, 1')
    a(f's_cmp_ge_u32 s{sCb}, 28')
    a(f's_cselect_b32 s{sWG}, s{P_WU}, s{P_WG}')
    a(f's_cselect_b32 s{sWG+1}, s{P_WU+1}, s{P_WG+1}')
    a(f's_cselect_b32 s{sT2}, 28, 0')
    a(f's_cselect_b32 s{sJ}, 256, 0')
    a(f's_mov_b32 s{sWG+2}, {448 * 3584:#x}')
    a(f's_mov_b32 s{sWG+3}, 0x00020000')
    a(f's_sub_u32 s{sCb}, s{sCb}, s{sT2}')
    a(f'v_lshlrev_b32 v{vYa}, 4, v0')
    Lf2 = a.newlabel('ffn2'); Lfd = a.newlabel('ffnd'); Lnofin = a.newlabel('nofin')
    a('s_barrier')
    a(f'ds_read_b32 v{vo2}, v{vZ} offset:{LDS_TAG}')
    a(f'buffer_load_dwordx4 {vr(vX,4)}, v{vYa}, {sr(sX,4)}, 0 offen')
    a(f'buffer_load_dwordx4 {vr(vX+4,4)}, v{vYa}, {sr(sGW,4)}, 0 offen')
    a('s_waitcnt lgkmcnt(0)')
    a(f'v_readfirstlane_b32 s{S_TA}, v{vo2}')
    tagB(a)
    for i in range(8):
        a(f'v_mov_b32 v{vCh+i}, 0')
    a('s_waitcnt vmcnt(0)')
    for d in range(4):
        a(f'v_lshlrev_b32 v{vt}, 16, v{vX+d}')
        a(f'v_lshlrev_b32 v{vt+1}, 16, v{vX+4+d}')
        a(f'v_and_b32 v{vt+2}, 0xffff0000, v{vX+d}')
        a(f'v_and_b32 v{vt+3}, 0xffff0000, v{vX+4+d}')
        a(f'v_mul_f32 v{vt}, v{vt}, v{vt+1}')
        a(f'v_mul_f32 v{vt+2}, v{vt+2}, v{vt+3}')
        a(f'v_cvt_pk_bf16_f32 v{vt}, v{vt}, v{vt+2}')
        a(f'v_lshlrev_b32 v{vt+1}, 16, v{vt}')
        a(f'v_and_b32 v{vt+2}, 0xffff0000, v{vt}')
        if d == 0:
            a(f'v_add_f32 v{vg}, v{vt+1}, v{vt+2}')
        else:
            a(f'v_add_f32 v{vg}, v{vg}, v{vt+1}')
            a(f'v_add_f32 v{vg}, v{vg}, v{vt+2}')
    xlane_reduce(a, [vg], [vt], 'v_add_f32', ['x1', 'x2', 'r4', 'r8', 'p16', 'p32'])
    rnd_bf16(a, vg, vg, vt)
    a(f'v_mul_f32 v{vg}, {f2u(-1.4426950408889634):#x}, v{vg}')
    a(f'v_exp_f32 v{vg}, v{vg}')
    a('s_nop 0')
    a(f'v_add_f32 v{vg}, 1.0, v{vg}')
    a(f'v_rcp_f32 v{vg}, v{vg}')
    a('s_nop 0')
    rnd_bf16(a, vg, vg, vt)
    a(f'v_sub_f32 v{vt+1}, 1.0, v{vg}')
    rnd_bf16(a, vt + 1, vt + 1, vt)
    a(f'ds_write_b32 v{vZ}, v{vg} offset:{LDS_G}')
    a(f'v_readfirstlane_b32 s{sG1}, v{vt+1}')
    if cfg.get('noffn'): a(f's_branch {Lfd}')
    a(f's_cmp_ge_u32 s{sR}, 14')
    a(f's_cbranch_scc1 {Lf2}')
    if cfg.get('fsleep'): a(f's_sleep {cfg["fsleep"]}')
    a(f's_and_b32 s{sKq}, s{sF}, 1')
    a(f's_lshl_b32 s{sKq}, s{sKq}, 1')
    a(f's_lshl_b32 s{sF}, s{sCb}, 7')
    l0 = ksplit_loads(a, vm, sX, sWG, 3584, sKq, sF, vX, vW, vo1, vo2, vo3, sT, sT2)
    a(f's_add_u32 s{sKq}, s{sKq}, 1')
    l1 = ksplit_loads(a, vm, sX, sWG, 3584, sKq, sF, vX + 8, vD, vo1, vo2, vo3, sT, sT2)
    a(f'v_bfe_u32 v{vo1}, v0, 1, 2')
    a(f'v_lshlrev_b32 v{vo1}, 9, v{vo1}')
    a(f'v_and_b32 v{vo2}, 1, v0')
    a(f'v_lshl_or_b32 v{vo1}, v{vo2}, 6, v{vo1}')
    a(f'v_bfe_u32 v{vo2}, v0, 3, 2')
    a(f'v_lshl_or_b32 v{vo1}, v{vo2}, 4, v{vo1}')
    a(f's_lshl_b32 s{sT}, s{sCb}, 11')
    a(f's_add_u32 s{sT}, s{sT}, s{sJ}')
    a(f's_lshl_b32 s{sKq}, s{sKq}, 6')
    a(f's_and_b32 s{sKq}, s{sKq}, 128')
    a(f's_add_u32 s{sT}, s{sT}, s{sKq}')
    a(f's_add_u32 s{sT}, s{sT}, {WS_B:#x}')
    A8 = [vacc + i for i in range(8)]; T8 = [vtmp + i for i in range(8)]
    gemv_pairs(a, vm, [vW + 4 * k for k in range(14)], 14, 4, vX, A8, T8, l0)
    gemv_pairs(a, vm, [vD + 4 * k for k in range(14)], 14, 4, vX + 8, A8, T8, l1, first=False)
    xlane_reduce(a, A8, T8, 'v_add_f32', ['r8', 'p16', 'p32'])
    a('s_mov_b32 vcc_lo, 0xff00ff00')
    a('s_mov_b32 vcc_hi, 0xff00ff00')
    for i in range(4):
        a(f'v_cndmask_b32 v{vtmp+i}, v{vacc+(i&1)+4*(i>>1)}, v{vacc+2+(i&1)+4*(i>>1)}, vcc')
    a('s_mov_b32 vcc_lo, 0xffff0000')
    a('s_mov_b32 vcc_hi, 0xffff0000')
    a(f'v_cndmask_b32 v{vt}, v{vtmp}, v{vtmp+2}, vcc')
    a(f'v_cndmask_b32 v{vt+2}, v{vtmp+1}, v{vtmp+3}, vcc')
    a(f'v_mov_b32 v{vt+1}, s{S_TA}')
    a(f'v_mov_b32 v{vt+3}, s{S_TB}')
    a('s_mov_b32 exec_hi, 0')
    a(f'buffer_store_dwordx4 {vr(vt,4)}, v{vo1}, {sr(S_WS,4)}, s{sT} offen sc1')
    a('s_mov_b32 exec_hi, -1')
    stamp(a, cfg, 90)
    stamp_store(a, cfg, [(13, 90)], vt)
    a(f's_branch {Lfd}')
    a.label(Lf2)
    a(f's_cmp_ge_u32 s{sR}, 28')
    a(f's_cbranch_scc1 {Lfd}')
    a(f's_sub_u32 s{sF}, s{sF}, 14')
    a(f'v_min_u32 v{vo1}, 55, v0')
    a(f'v_lshlrev_b32 v{vo1}, 4, v{vo1}')
    a(f's_mul_i32 s{sT}, s{sF}, {16*896}')
    for e in range(16):
        a(f'buffer_load_dwordx4 {vr(vW+4*e,4)}, v{vo1}, {sr(sWD,4)}, s{sT} offen offset:{(e%4)*896} nt')
        if e % 4 == 3 and e < 15: a(f's_add_u32 s{sT}, s{sT}, {4*896}')
    a('s_waitcnt vmcnt(0)')
    for pr in range(8):
        r0 = vW + 4 * (2 * pr); r1 = vW + 4 * (2 * pr + 1)
        for d in range(4):
            a(f'v_perm_b32 v{vD+8*pr+2*d}, v{r1+d}, v{r0+d}, s{S_SELLO}')
            a(f'v_perm_b32 v{vD+8*pr+2*d+1}, v{r1+d}, v{r0+d}, s{S_SELHI}')
    Lw = a.newlabel('fl_w'); Lg = a.newlabel('fl_g')
    a(f's_mov_b32 s{sCnt}, {POLL_MAX}')
    a.label(Lw)
    a(f'ds_read_b32 v{vo2}, v{vZ} offset:{LDS_REC}')
    a('s_waitcnt lgkmcnt(0)')
    a(f'v_readfirstlane_b32 s{sT}, v{vo2}')
    a(f's_cmp_ge_u32 s{sT}, {cfg.get("bstep", 36)}')
    a(f's_cbranch_scc1 {Lg}')
    a(f's_sub_u32 s{sCnt}, s{sCnt}, 1')
    a(f's_cbranch_scc1 {Lg}')
    a('s_sleep 64')
    a(f's_branch {Lw}')
    a.label(Lg)
    a(f's_lshl_b32 s{sT}, s{sF}, 9')
    a(f's_add_u32 s{sT}, s{sT}, {WS_B:#x}')
    a(f'v_and_b32 v{vo2}, 0x1f0, v{vYa}')
    stamp(a, cfg, 90)
    poll(a, [f'buffer_load_dwordx4 {vr(vX,4)}, v{vo2}, {sr(S_WS,4)}, s{sT} offen sc1'], [vX], vt, sCnt, name='pb', sleep=cfg.get('bsleep', 32))
    stamp(a, cfg, 92)
    xlane_reduce(a, [vX, vX + 2], [vt, vt + 1], 'v_add_f32', ['r8'])
    for i in range(2):
        rnd_bf16(a, vacc + i, vX + 2 * i, vt + i)
    for i in range(2):
        a(f'v_mov_b32 v{vacc+2+i}, v{vacc+i}')
    a(f's_mov_b32 s{sT}, {f2u(0.044715):#x}')
    a(f's_mov_b32 s{sT2}, {f2u(-2*0.7978845608028654*1.4426950408889634):#x}')
    for i in range(2):
        a(f'v_permlane16_swap_b32 v{vacc+i}, v{vacc+2+i}')
    for i in range(2):
        x = vacc + i; t = vtmp + i
        a(f'v_mul_f32 v{t}, v{x}, v{x}')
        a(f'v_mul_f32 v{t}, v{t}, v{x}')
        a(f'v_fma_f32 v{t}, v{t}, s{sT}, v{x}')
        a(f'v_mul_f32 v{t}, s{sT2}, v{t}')
    for i in range(2):
        a(f'v_exp_f32 v{vtmp+i}, v{vtmp+i}')
    a('s_nop 0')
    for i in range(2):
        a(f'v_add_f32 v{vtmp+i}, 1.0, v{vtmp+i}')
    for i in range(2):
        a(f'v_rcp_f32 v{vtmp+i}, v{vtmp+i}')
    a('s_nop 0')
    for i in range(2):
        a(f'v_mul_f32 v{vacc+i}, v{vacc+i}, v{vtmp+i}')
    for i in range(2):
        rnd_bf16(a, vacc + i, vacc + i, vtmp + i)
    for i in range(2):
        a(f'v_mul_f32 v{vacc+i}, v{vacc+i}, v{vacc+2+i}')
    a(f'v_cvt_pk_bf16_f32 v{vt}, v{vacc}, v{vacc+1}')
    a('s_nop 0')
    for pr in range(8):
        a(f'v_readlane_b32 s{sPk+pr}, v{vt}, {pr}')
    a('s_nop 1')
    for pr in range(8):
        for col in range(8):
            a(f'v_dot2_f32_bf16 v{vCh+col}, v{vD+8*pr+col}, s{sPk+pr}, v{vCh+col}')
    a('s_nop 2')
    for col in range(8):
        a(f'v_mul_f32 v{vCh+col}, s{sG1}, v{vCh+col}')
    stamp(a, cfg, 94)
    stamp_store(a, cfg, [(13, 90), (14, 92), (15, 94)], vt)
    a.label(Lfd)
    a(f'ds_write_b128 v{vYa}, {vr(vCh,4)} offset:{LDS_B}')
    a(f'ds_write_b128 v{vYa}, {vr(vCh+4,4)} offset:{LDS_B+1024}')
    a(f's_mov_b32 s34, {C_SCALE:#x}')
    a(f's_lshl_b32 s35, s2, 5')
    a(f's_add_u32 s35, s35, {WS_ML:#x}')
    a(f's_and_b32 s36, s35, 0xfffffc00')
    a(f'v_lshlrev_b32 v{vo1}, 3, v0')
    a(f'v_mov_b32 v{vo3}, s{S_TA}')
    progwait(a, 63, vZ, vt, sT, sCnt, 32, 'mlw', both=True)
    for k in range(8):
        a(f'ds_read_b128 {vr(vD+4*k,4)}, v{vYa} offset:{LDS_SC + 1024 * k}')
    for k in range(8):
        a(f's_waitcnt lgkmcnt({7 - k})')
        for d in range(4):
            a(f'v_lshlrev_b32 v{vW+8*k+2*d}, 16, v{vD+4*k+d}')
            a(f'v_and_b32 v{vW+8*k+2*d+1}, 0xffff0000, v{vD+4*k+d}')
    a(f'v_max_f32 v{vf}, v{vW}, v{vW+1}')
    for k in range(1, 32):
        a(f'v_max3_f32 v{vf}, v{vW+2*k}, v{vW+2*k+1}, v{vf}')
    xlane_reduce(a, [vf], [vt], 'v_max_f32', ['x1', 'r4', 'r8', 'p16', 'p32'])
    a(f'v_mul_f32 v{vf}, s34, v{vf}')
    for k in range(64):
        a(f'v_fma_f32 v{vW+k}, v{vW+k}, s34, -v{vf}')
    for k in range(64):
        a(f'v_exp_f32 v{vW+k}, v{vW+k}')
    a('s_nop 0')
    n = 32
    while n >= 1:
        for k in range(n):
            a(f'v_add_f32 v{vW+k}, v{vW+k}, v{vW+n+k}')
        n //= 2
    xlane_reduce(a, [vW], [vt], 'v_add_f32', ['x1', 'r4', 'r8', 'p16', 'p32'])
    a(f'v_mov_b32 v{vf+1}, s{S_TA}')
    a(f'v_mov_b32 v{vf+2}, v{vW}')
    a('s_getreg_b32 s37, hwreg(HW_REG_XCC_ID)')
    a('s_and_b32 s37, s37, 15')
    if cfg.get('fakex'): a(f's_xor_b32 s37, s37, s2'); a('s_and_b32 s37, s37, 15')
    a(f's_xor_b32 s37, s37, s{S_TB}')
    a(f'v_mov_b32 v{vf+3}, s37')
    a('s_mov_b64 exec, 5')
    a(f'buffer_store_dwordx4 {vr(vf,4)}, v{vo1}, {sr(S_WS,4)}, s35 offen sc1')
    a('s_mov_b64 exec, -1')
    progwait(a, cfg.get('mlg', 72), vZ, vt, sT, sCnt, 32, 'mlg')
    Lm = a.newlabel('pml'); Lmd = a.newlabel('pml_done')
    a(f's_mov_b32 s{sCnt}, {POLL_MAX}')
    a(f'buffer_load_dwordx4 {vr(vX,4)}, v{vYa}, {sr(S_WS,4)}, s36 offen')
    a.label(Lm)
    a('s_waitcnt vmcnt(0)')
    a(f'v_xor_b32 v{vt}, s{S_TA}, v{vX+1}')
    a(f'v_xor_b32 v{vt+1}, s37, v{vX+3}')
    a(f'v_lshrrev_b32 v{vt+2}, 4, v{vt+1}')
    a(f'v_or_b32 v{vt}, v{vt}, v{vt+2}')
    a(f'v_cmp_ne_u32 vcc, 0, v{vt}')
    a('s_mov_b64 exec, vcc')
    a(f's_cbranch_execz {Lmd}')
    a(f's_sub_u32 s{sCnt}, s{sCnt}, 1')
    a(f's_cbranch_scc1 {Lmd}')
    a('s_sleep 32')
    a(f'buffer_load_dwordx4 {vr(vX,4)}, v{vYa}, {sr(S_WS,4)}, s36 offen sc1')
    a(f's_branch {Lm}')
    a.label(Lmd)
    a('s_mov_b64 exec, -1')
    a(f'v_cmp_ne_u32 vcc, 0, v{vt+1}')
    a('s_cmp_eq_u64 vcc, 0')
    a(f's_cselect_b32 s{sLoc}, {0 if cfg.get("noloc") else 1}, 0')
    a(f'v_mov_b32 v{vf}, v{vX}')
    xlane_reduce(a, [vf], [vt], 'v_max_f32', ['x2', 'r4', 'r8', 'p16', 'p32'])
    a(f'v_sub_f32 v{vX}, v{vX}, v{vf}')
    a(f'v_exp_f32 v{vX}, v{vX}')
    a('s_nop 0')
    a(f'v_mul_f32 v{vX}, v{vX}, v{vX+2}')
    xlane_reduce(a, [vX], [vt], 'v_add_f32', ['x2', 'r4', 'r8', 'p16', 'p32'])
    a(f'v_log_f32 v{vX}, v{vX}')
    a(f'v_lshlrev_b32 v{vo1}, 2, v0')
    a(f'v_mov_b32 v{vf+2}, s{S_TA}')
    a(f'v_mov_b32 v{vf+3}, s{sLoc}')
    a(f'v_add_f32 v{vX}, v{vX}, v{vf}')
    a('s_mov_b64 exec, 3')
    a(f'ds_write_b32 v{vo1}, v{vX} offset:{LDS_Z}')
    a(f'ds_write_b64 v{vZ}, {vr(vf+2,2)} offset:{LDS_FLAGZ}')
    a('s_mov_b64 exec, -1')
    stamp(a, cfg, 90)
    stamp_store(a, cfg, [(18, 90)], vt)
    R2 = cfg.get('r2', 4); F2M = cfg.get('f2m', 1)
    a(f'v_lshrrev_b32 v{vo3}, 3, v0')
    a(f'v_mul_u32_u24 v{vOa}, {OSTR}, v{vo3}')
    a(f'v_and_b32 v{vt}, 7, v0')
    a(f'v_lshl_add_u32 v{vOa}, v{vt}, 4, v{vOa}')
    a(f's_lshr_b32 s28, s2, 5')
    a(f's_mul_i32 s28, s28, {32 * OSTR}')
    a(f's_and_b32 s29, s2, 31')
    a(f's_lshl_b32 s29, s29, 7')
    a(f's_add_u32 s28, s28, s29')
    a(f's_add_u32 s28, s28, {WS_O:#x}')
    for k in range(1, 4):
        a(f's_add_u32 s{28+k}, s28, {8 * k * OSTR}')
    a(f's_lshl_b32 s21, s2, 7')
    a(f's_add_u32 s21, s21, {WS_F2:#x}')
    a(f's_and_b32 s22, s2, {32 // R2 - 1}')
    a(f's_cmp_lg_u32 s22, {cfg.get("r2c", 3) % (32 // R2)}')
    a(f's_cselect_b32 s21, 0x40000000, s21')
    a(f'v_lshlrev_b32 v{vo1}, 1, v0')
    a(f'v_mov_b32 v{vo3}, s{S_TA}')
    def gather():
        gl = lambda fl: [f'buffer_load_dwordx4 {vr(vX+4*k,4)}, v{vOa}, {sr(S_WS,4)}, s{28+k} offen {fl}' for k in range(4)]
        Lr = a.newlabel('g_rem'); Lp = a.newlabel('g_poll'); Lw = a.newlabel('g_w')
        a(f's_cmp_eq_u32 s{sLoc}, 0')
        a(f's_cbranch_scc1 {Lr}')
        if cfg.get('pt'):
            progwait(a, cfg['pt'], vZ, vt, sKq, sCnt, 16, 'ptw')
            stamp(a, cfg, 90)
            for l in gl(cfg.get('ptf', 'nt')): a(l)
            a('s_waitcnt vmcnt(0)')
            stamp(a, cfg, 92)
            stamp_store(a, cfg, [(28, 90), (29, 92)], vt)
        if cfg.get('p1', 126) <= 126:
            progwait(a, cfg.get('p1', 126), vZ, vt, sKq, sCnt, cfg.get('p1s', 2), 'p1w')
            a(f's_branch {Lp}')
        a.label(Lr)
        setcnt(a, sCnt, POLL_MAX * 16)
        a.label(Lw)
        a(f'ds_read_b32 v{vt}, v{vZ} offset:{LDS_DONE}')
        a('s_waitcnt lgkmcnt(0)')
        a(f'v_readfirstlane_b32 s{sKq}, v{vt}')
        a(f's_cmp_ge_u32 s{sKq}, {cfg.get("dn2", 2)}')
        a(f's_cbranch_scc1 {Lp}')
        a(f's_sub_u32 s{sCnt}, s{sCnt}, 1')
        a('s_sleep 1')
        a(f's_cbranch_scc0 {Lw}')
        a.label(Lp)
        stamp(a, cfg, 90)
        poll(a, gl(cfg.get('pf', 'sc1')), [vX + 4 * k for k in range(4)], vt, sCnt, name='ps2', sleep=cfg.get('s2sleep', 1))
        stamp(a, cfg, 92)
        for hh in range(2):
            a(f'v_add_f32 v{vacc+hh}, v{vX+2*hh}, v{vX+4+2*hh}')
            a(f'v_add_f32 v{vacc+2+hh}, v{vX+8+2*hh}, v{vX+12+2*hh}')
        for hh in range(2):
            a(f'v_add_f32 v{vacc+hh}, v{vacc+hh}, v{vacc+2+hh}')
        xlane_reduce(a, [vacc, vacc + 1], [vtmp, vtmp + 1], 'v_add_f32', ['r8', 'p16', 'p32'])
        a('s_nop 0')
        for hh in range(2):
            a(f'v_mov_b32_dpp v{vacc+2+hh}, v{vacc+hh} quad_perm:[1,0,3,2] row_mask:0xf bank_mask:0xf')
        for hh in range(2):
            a(f'v_cvt_pk_bf16_f32 v{vt+hh}, v{vacc+hh}, v{vacc+2+hh}')
        setex(a, 0x55)
        for hh in range(2):
            a(f'ds_write_b32 v{vo1}, v{vt+hh} offset:{LDS_O + 16 * hh}')
        setex(a, 1)
        a(f'ds_write_b32 v{vZ}, v{vo3} offset:{LDS_FLAGO}')
        if F2M: a(f'buffer_store_dword v{vo3}, v{vZ}, {sr(S_WS,4)}, s21 offen sc1')
        setex(a, -1)
        if cfg.get('prof'): a(f's_sub_u32 s23, {POLL_MAX}, s{sCnt}')
        stamp_store(a, cfg, [(21, 90), (2, 92), (22, 23)], vt)
    if cfg.get('h3', 0):
        F2M = 0
        a(f's_mul_i32 s24, s2, {OSTR}')
        a(f's_add_u32 s24, s24, {WS_O:#x}')
        a(f's_not_b32 s26, s{S_TA}')
        a(f's_not_b32 s27, s{S_TB}')
        a(f's_and_b32 s25, s2, 31')
        a(f's_lshl_b32 s25, s25, 10')
        a(f's_lshr_b32 s{sT}, s2, 5')
        a(f's_lshl_b32 s{sT}, s{sT}, 7')
        a(f's_add_u32 s25, s25, s{sT}')
        a(f's_add_u32 s25, s25, {WS_Y:#x}')
        a(f'v_mov_b32 v{vf+1}, s{S_TA}')
        a(f'v_mov_b32 v{vf+3}, s{S_TB}')
        LdB = dry_begin(a, cfg, 'dryB', 32)
        gather()
        if cfg.get('b4', 0): ldswait(a, LDS_FLAG3, vZ, vt, sKq, sCnt, 'b4', slp=1)
        if cfg.get('d3'): a(f's_sleep {cfg["d3"]}')
        setex(a, 0x7f7f7f7f7f7f7f7f)
        stamp(a, cfg, 90)
        poll(a, [f'buffer_load_dwordx4 {vr(vX+4*k,4)}, v{vYa}, {sr(S_WS,4)}, s24 offen offset:{1024*k} sc1' for k in range(4)],
             [vX + 4 * k for k in range(4)], vt, sCnt, name='pg2', sleep=cfg.get('s3sleep', 1), tags=(26, 27))
        stamp(a, cfg, 92)
        for hh in range(2):
            a(f'v_add_f32 v{vf+2*hh}, v{vX+2*hh}, v{vX+4+2*hh}')
            a(f'v_add_f32 v{vacc+2+hh}, v{vX+8+2*hh}, v{vX+12+2*hh}')
        for hh in range(2):
            a(f'v_add_f32 v{vf+2*hh}, v{vf+2*hh}, v{vacc+2+hh}')
        xlane_reduce(a, [vf, vf + 2], [vtmp, vtmp + 1], 'v_add_f32', ['r8', 'p16', 'p32'])
        setex(a, 0x7f)
        a(f'buffer_store_dwordx4 {vr(vf,4)}, v{vYa}, {sr(S_WS,4)}, s25 offen sc1')
        setex(a, -1)
        stamp(a, cfg, 94)
        stamp_store(a, cfg, [(10, 90), (19, 92), (31, 94)], vt)
        dry_end(a, LdB)
        stamp_flush(a, cfg, [13, 14, 15, 18, 21, 2, 22, 28, 29, 10, 19, 31], vt)
        a('s_endpgm')
        return V.n
    a(f's_cmp_lt_u32 s100, {FIN0}')
    a(f's_cbranch_scc1 {Lnofin}')
    a(f's_sub_u32 s{sJ}, s100, {FIN0}')
    a(f's_and_b32 s{sT}, s{sJ}, 3')
    a(f's_mul_i32 s{sT}, s{sT}, 14')
    a(f's_lshr_b32 s{sT2}, s{sJ}, 2')
    a(f's_add_u32 s{sT}, s{sT}, s{sT2}')
    def sumup(dst, n, src):
        for e in range(2):
            a(f'v_add_f32 v{dst+e}, v{src+2*e}, v{src+4+2*e}')
            a(f'v_add_f32 v{dst+2+e}, v{src+8+2*e}, v{src+12+2*e}')
        for k in range(4, n):
            for e in range(2):
                d = dst + e + 2 * (k & 1)
                a(f'v_add_f32 v{d}, v{d}, v{src+4*k+2*e}')
        for e in range(2):
            a(f'v_add_f32 v{dst+e}, v{dst+e}, v{dst+2+e}')
    def xsum(dst):
        xlane_reduce(a, [dst, dst + 1], [vf + 4, vf + 5], 'v_add_f32', ['r4', 'r8', 'p16', 'p32'])
    a(f's_lshl_b32 s{sT}, s{sT}, 14')
    for k in range(4):
        a(f's_add_u32 s{24+k}, s{sT}, {WS_Y + k * 4096:#x}')
    a(f's_lshr_b32 s{sT2}, s{sJ}, 2')
    a(f's_lshl_b32 s{sT2}, s{sT2}, 6')
    a(f's_and_b32 s{sKq}, s{sJ}, 3')
    a(f's_lshl_b32 s{sKq}, s{sKq}, 2')
    a(f's_add_u32 s{sT2}, s{sT2}, s{sKq}')
    if F2M == 1:
        a(f'v_lshrrev_b32 v{vo2}, 3, v0')
        a(f'v_lshlrev_b32 v{vo2}, 12, v{vo2}')
        a(f'v_and_b32 v{vf+7}, {R2 - 1}, v0')
        a(f'v_mul_u32_u24 v{vf+7}, {(32 // R2) * 128}, v{vf+7}')
        a(f'v_add_u32 v{vo2}, v{vo2}, v{vf+7}')
        a(f's_mov_b32 s35, {WS_F2 + (cfg.get("r2c", 3) % (32 // R2)) * 128:#x}')
    elif F2M == 2:
        a(f'v_and_b32 v{vo2}, {8 * R2 - 1}, v0')
        a(f'v_lshlrev_b32 v{vo2}, 7, v{vo2}')
        a(f's_mul_i32 s35, s{sJ}, {8 * R2 * 128 + 128}')
        a(f's_add_u32 s35, s35, {WS_F2P:#x}')
    f2l = f'buffer_load_dword v{vf+7}, v{vo2}, {sr(S_WS,4)}, s35 offen sc1'
    f2mask = f'{(1 << (8 * R2)) - 1:#x}' if F2M == 2 and R2 < 4 else None
    LdB = dry_begin(a, cfg, 'dryB', 32)
    if cfg.get('fp0') and F2M:
        progwait(a, cfg['fp0'], vZ, vt, sT, sCnt, 32, 'fpa')
        a(f2l)
    gather()
    if cfg.get('b4', 0): ldswait(a, LDS_FLAG3, vZ, vt, sKq, sCnt, 'b4', slp=1)
    if cfg.get('d3'): a(f's_sleep {cfg["d3"]}')
    if F2M: flagpoll(a, f2l, [vf + 7], vt, sCnt, 'pf2', sleep=cfg.get('sl2', 1), mask=f2mask)
    if cfg.get('d2'): a(f's_sleep {cfg["d2"]}')
    stamp(a, cfg, 78)
    poll(a, [f'buffer_load_dwordx4 {vr(vY+4*k,4)}, v{vYa}, {sr(S_WS,4)}, s{24+k//4} offen offset:{(k%4)*1024} sc1' for k in range(16)],
         [vY + 4 * k for k in range(16)], vt, sCnt, name='py', sleep=cfg.get('ysleep', 1))
    if cfg.get('prof'): a(f's_sub_u32 s36, {POLL_MAX}, s{sCnt}')
    sumup(vf, 16, vY)
    xsum(vf)
    a(f'v_cvt_pk_bf16_f32 v{vt}, v{vf}, v{vf+1}')
    setex(a, 15)
    a(f'buffer_store_dword v{vt}, v{vYa}, {sr(sOUT,4)}, s{sT2} offen')
    setex(a, -1)
    stamp(a, cfg, 76)
    stamp_store(a, cfg, [(6, 76), (23, 78), (24, 36)], vt + 2)
    dry_end(a, LdB)
    stamp_flush(a, cfg, [13, 14, 15, 6, 23, 24, 18, 21, 2, 22, 28, 29], vt + 2)
    a('s_endpgm')
    a.label(Lnofin)
    LdB = dry_begin(a, cfg, 'dryB', 32)
    gather()
    dry_end(a, LdB)
    stamp_flush(a, cfg, [13, 14, 15, 18, 21, 2, 22, 28, 29], vt)
    a('s_endpgm')
    return V.n


def gen(cfg):
    global WS_O, WS_Y, OSTR, WS_B
    WS_O = cfg.get('wso', WS_O); WS_Y = cfg.get('wsy', WS_Y); OSTR = cfg.get('ostr', OSTR); WS_B = cfg.get('wsb', WS_B)
    a = Asm()
    a.raw(kernel_header(NAME))
    if cfg.get('prof'): a('s_memrealtime s[98:99]')
    a('s_cmp_ge_u32 s2, 256')
    a('s_cbranch_scc1 L_end')
    a('s_load_dwordx16 s[16:31], s[0:1], 0')
    a('s_mov_b32 s100, s2')
    if cfg.get('ren', 1):
        a('s_and_b32 s3, s2, 7                 ; ren')
        a('s_lshr_b32 s2, s2, 3')
        a('s_lshl_b32 s3, s3, 5')
        a('s_or_b32 s2, s2, s3')
    a('s_load_dwordx8 s[32:39], s[0:1], 64')
    a('s_load_dwordx2 s[40:41], s[0:1], 96')
    a('v_lshrrev_b32 v1, 6, v0')
    a('v_and_b32 v0, 63, v0')
    a(f'v_readfirstlane_b32 s{S_WAVE}, v1')
    a(f's_mov_b32 s{S_SELLO}, 0x05040100')
    a(f's_mov_b32 s{S_SELHI}, 0x07060302')
    a('s_waitcnt lgkmcnt(0)')
    srd(a, S_WS, P_WS, WS_SIZE)
    a(f's_cmp_eq_u32 s{S_WAVE}, 2')
    a('s_cbranch_scc1 L_auxA')
    a(f's_cmp_eq_u32 s{S_WAVE}, 3')
    a('s_cbranch_scc1 L_auxB')
    n0 = gen_stream(a, cfg)
    a.label('L_auxA')
    n1 = gen_auxA(a, cfg)
    a.label('L_auxB')
    n2 = gen_auxB(a, cfg)
    a.label('L_end')
    a('s_endpgm')
    nv = max(n0, n1, n2)
    if cfg.get('prof'): nv = max(nv, PROFV + 1)
    acc_off = (nv + 3) // 4 * 4
    npre = cfg.get('npre', 4)
    print('vgprs', n0, n1, n2, 'agprs', 64 * npre, file=sys.stderr)
    hdr = open('gated_mix__gqa_block_cached__geglu_ffn__decode.s.ref').read().split('; @launch')[0]
    lds = cfg.get('lds', 18432)
    hdr += f'; @launch grid=(256,1,1) block=(256,1,1) lds={lds}\n.amdgcn_target "amdgcn-amd-amdhsa--gfx950"\n'
    return hdr + a.text() + kernel_desc(NAME, acc_off + 64 * npre, 102, acc_off)


if __name__ == '__main__':
    cfg = json.loads(sys.argv[2]) if len(sys.argv) > 2 else {}
    open(sys.argv[1], 'w').write(gen(cfg))
```

```python
import sys, struct, json
from asmlib import *
from ctl2 import aux_rounds

def f2u(f): return struct.unpack('<I', struct.pack('<f', f))[0]
C_SCALE = f2u(1.4426950408889634 / 16.0)

WS_QP = 0x0
WS_TK = 0x4e0000
TK_STRIDE = 4352
WS_PROF = 0x24000
WS_GP = 0x40000
WS_PLAN = 0x40000
WS_F1 = 0x50000
WS_F2 = 0x58000
WS_CAL = 0x48000
WS_IT = 0x80000
WS_ML = 0x60000
WS_O = 0x100000
WS_Y = 0x300000
WS_B = 0x400000
WS_SIZE = 0x500000
OSTR = 4224

NAME = 'gated_mix__gqa_block_cached__geglu_ffn__decode_kernel'
P_X, P_K, P_V, P_WQ, P_WO, P_BX, P_WG, P_WU, P_WD, P_GW, P_OUT, P_DBG, P_WS = [16 + 2 * i for i in range(13)]
S_WS = 12
S_WAVE = 3
S_SELLO = 60; S_SELHI = 61
S_TA = 88; S_TB = 89
POLL_MAX = 1 << 14
FIN0 = 200
INVALID = 0x20000000
LDS_TAG = 1024
LDS_CTR = 1028
LDS_FLAG = 1032
LDS_REC = 2048
LDS_LIST = 3072
LDS_DONE = 1036
LDS_FLAG2 = 1040
LDS_REF = 1088
LDS_G = 1044
LDS_FLAG3 = 1048
LDS_Z = 1056
LDS_FLAGZ = 1064
LDS_O = 1120
LDS_FLAGO = 1072
WS_F2P = 0x480000
LDS_B = 16384
LDS_CMB = 4096
LDS_SC = 8192


class Dry:
    s = None
def setex(a, m):
    m &= (1 << 64) - 1
    lo, hi = m & 0xffffffff, m >> 32
    if Dry.s is None:
        if m == (1 << 64) - 1: a('s_mov_b64 exec, -1')
        elif hi == 0 and lo < 0x80000000: a(f's_mov_b64 exec, {lo:#x}')
        else:
            a(f's_mov_b32 exec_lo, {lo:#x}'); a(f's_mov_b32 exec_hi, {hi:#x}')
    else:
        if m == (1 << 64) - 1: a(f's_mov_b64 exec, s[{Dry.s}:{Dry.s+1}]')
        elif hi == 0 and lo < 0x80000000: a(f's_and_b64 exec, s[{Dry.s}:{Dry.s+1}], {lo:#x}')
        else:
            a(f's_and_b32 exec_lo, s{Dry.s}, {lo:#x}'); a(f's_and_b32 exec_hi, s{Dry.s}, {hi:#x}')
def setcnt(a, r, n):
    if Dry.s is None: a(f's_mov_b32 s{r}, {n}')
    else: a(f's_and_b32 s{r}, s{Dry.s}, {n}')
def dry_begin(a, cfg, key, s):
    if not cfg.get(key): return None
    L = a.newlabel('dry')
    a(f's_mov_b64 s[{s}:{s+1}], 0')
    a('s_mov_b64 exec, 0')
    a.label(L)
    Dry.s = s
    return L
def dry_end(a, L):
    if L is None: return
    s = Dry.s; Dry.s = None
    D = a.newlabel('dry_d')
    a(f's_cmp_lg_u32 s{s}, 0')
    a(f's_cbranch_scc1 {D}')
    a(f's_mov_b64 s[{s}:{s+1}], -1')
    a('s_mov_b64 exec, -1')
    a(f's_branch {L}')
    a.label(D)


class VM:
    def __init__(self, a):
        self.a = a; self.n = 0
    def issue(self, s):
        self.a(s); self.n += 1
        return self.n - 1
    def wait(self, idx):
        k = self.n - idx - 1
        assert 0 <= k <= 63
        self.a(f's_waitcnt vmcnt({k})')


def srd(a, d, p, nbytes):
    a(f's_mov_b32 s{d}, s{p}')
    a(f's_mov_b32 s{d+1}, s{p+1}')
    a(f's_mov_b32 s{d+2}, {nbytes:#x}')
    a(f's_mov_b32 s{d+3}, 0x00020000')


def dpp(op, d, s0, s1, ctrl):
    return f'{op}_dpp v{d}, v{s0}, v{s1} {ctrl} row_mask:0xf bank_mask:0xf'


def xlane_reduce(a, regs, tmps, op, steps):
    n = len(regs)
    for st in steps:
        if st in ('x1', 'x2', 'r4', 'r8'):
            ctrl = {'x1': 'quad_perm:[1,0,3,2]', 'x2': 'quad_perm:[2,3,0,1]', 'r4': 'row_ror:4', 'r8': 'row_ror:8'}[st]
            if n < 3: a('s_nop 1')
            for r in regs:
                a(dpp(op, r, r, r, ctrl))
        else:
            ins = 'v_permlane16_swap_b32' if st == 'p16' else 'v_permlane32_swap_b32'
            for r, t in zip(regs, tmps):
                a(f'v_mov_b32 v{t}, v{r}')
            a('s_nop 1')
            for r, t in zip(regs, tmps):
                a(f'{ins} v{r}, v{t}')
            if n < 2: a('s_nop 0')
            for r, t in zip(regs, tmps):
                a(f'{op} v{r}, v{r}, v{t}')


def tagB(a):
    a(f's_mul_i32 s{S_TB}, s{S_TA}, 0x9e3779b1')
    a(f's_add_u32 s{S_TB}, s{S_TB}, 0x7f4a7c15')


def poll(a, loads, chunks, vt, scnt, name='poll', sleep=1, mid=None, first=None, tags=None):
    L = a.newlabel(name); D = a.newlabel(name + '_done')
    setcnt(a, scnt, POLL_MAX)
    for l in (first or loads): a(l)
    if mid: mid()
    a.label(L)
    n = len(chunks)
    for i, c in enumerate(chunks):
        if i % 4 == 0:
            a(f's_waitcnt vmcnt({max(0, n - i - 4)})')
        a(f'v_xor_b32 v{vt+1}, s{(tags or (S_TA, S_TB))[0]}, v{c+1}')
        a(f'v_xor_b32 v{vt+2}, s{(tags or (S_TA, S_TB))[1]}, v{c+3}')
        if i == 0: a(f'v_or_b32 v{vt}, v{vt+1}, v{vt+2}')
        else: a(f'v_or3_b32 v{vt}, v{vt}, v{vt+1}, v{vt+2}')
    a(f'v_cmp_ne_u32 vcc, 0, v{vt}')
    a('s_mov_b64 exec, vcc')
    a(f's_cbranch_execz {D}')
    a(f's_sub_u32 s{scnt}, s{scnt}, 1')
    a(f's_cbranch_scc1 {D}')
    if sleep: a(f's_sleep {sleep}')
    for l in loads: a(l)
    a(f's_branch {L}')
    a.label(D)
    setex(a, -1)


def progwait(a, thr, vz, vt, st, scnt, slp, name='pw', both=False):
    Lw = a.newlabel(name + '_w'); Lg = a.newlabel(name + '_g')
    setcnt(a, scnt, POLL_MAX)
    a.label(Lw)
    a(f'ds_read_b32 v{vt}, v{vz} offset:{LDS_REC}')
    a(f'ds_read_b32 v{vt+1}, v{vz} offset:{LDS_REC + 512}')
    a('s_waitcnt lgkmcnt(0)')
    a(f'{"v_min_u32" if both else "v_add_u32"} v{vt}, v{vt}, v{vt+1}')
    a('s_nop 0')
    a(f'v_readfirstlane_b32 s{st}, v{vt}')
    a(f's_cmp_ge_u32 s{st}, {int(thr if both else 2 * thr)}')
    a(f's_cbranch_scc1 {Lg}')
    a(f's_sub_u32 s{scnt}, s{scnt}, 1')
    a(f's_cbranch_scc1 {Lg}')
    a(f's_sleep {slp}')
    a(f's_branch {Lw}')
    a.label(Lg)


def poll_pipe(a, nsets, loads, chunks, on_new, vt, scnt, sP, sQ, sEX, sDry, name='pp', gap=6, thr=0, slp=0, skipnew=False):
    L = a.newlabel(name); D = a.newlabel(name + '_done')
    n = len(loads(0))
    a(f's_mov_b64 s[{sP}:{sP+1}], s[{sEX}:{sEX+1}]')
    a(f's_mov_b64 exec, s[{sEX}:{sEX+1}]')
    a(f's_cmp_eq_u32 s{sDry}, 0')
    a(f's_cselect_b32 s{scnt}, {POLL_MAX}, 0')
    for s in range(nsets):
        for l in loads(s): a(l)
        if gap and s < nsets - 1: a(f's_sleep {gap}')
    a.label(L)
    for s in range(nsets):
        ch = chunks(s)
        for i, c in enumerate(ch):
            if i % 4 == 0:
                a(f's_waitcnt vmcnt({(nsets - 1) * n + max(0, n - i - 4)})')
            a(f'v_xor_b32 v{vt+1}, s{S_TA}, v{c+1}')
            a(f'v_xor_b32 v{vt+2}, s{S_TB}, v{c+3}')
            if i == 0: a(f'v_or_b32 v{vt}, v{vt+1}, v{vt+2}')
            else: a(f'v_or3_b32 v{vt}, v{vt}, v{vt+1}, v{vt+2}')
        a(f'v_cmp_ne_u32 vcc, 0, v{vt}')
        a(f's_andn2_b64 exec, s[{sP}:{sP+1}], vcc')
        a(f's_mov_b64 s[{sP}:{sP+1}], vcc')
        Ls = a.newlabel(name + '_sk')
        if skipnew:
            a(f's_or_b32 s{sQ}, exec_lo, exec_hi')
            a(f's_or_b32 s{sQ}, s{sQ}, s{sDry}')
            a(f's_cbranch_scc0 {Ls}')
        on_new(s)
        a.label(Ls)
        a(f's_mov_b64 exec, s[{sP}:{sP+1}]')
        a(f's_or_b32 s{sQ}, s{sP}, s{sP+1}')
        a(f's_or_b32 s{sQ}, s{sQ}, s{sDry}')
        a(f's_cbranch_scc0 {D}')
        if slp:
            Ln = a.newlabel(name + '_ns')
            a(f's_bcnt1_i32_b64 s{sQ}, s[{sP}:{sP+1}]')
            a(f's_cmp_le_u32 s{sQ}, {thr}')
            a(f's_cbranch_scc1 {Ln}')
            a(f's_sleep {slp}')
            a.label(Ln)
        for l in loads(s): a(l)
    a(f's_sub_u32 s{scnt}, s{scnt}, 1')
    a(f's_cbranch_scc0 {L}')
    a.label(D)
    a(f's_mov_b64 exec, s[{sEX}:{sEX+1}]')


def flagpoll(a, load, regs, vt, scnt, name, sleep=1, mask=None):
    L = a.newlabel(name); D = a.newlabel(name + '_done')
    setcnt(a, scnt, POLL_MAX)
    assert not mask
    a.label(L)
    a(load)
    a('s_waitcnt vmcnt(0)')
    a(f'v_xor_b32 v{vt}, s{S_TA}, v{regs[0]}')
    for r in regs[1:]:
        a(f'v_xor_b32 v{vt+1}, s{S_TA}, v{r}')
        a(f'v_or_b32 v{vt}, v{vt}, v{vt+1}')
    a(f'v_cmp_ne_u32 vcc, 0, v{vt}')
    a('s_mov_b64 exec, vcc')
    a(f's_cbranch_execz {D}')
    a(f's_sub_u32 s{scnt}, s{scnt}, 1')
    a(f's_cbranch_scc1 {D}')
    if sleep: a(f's_sleep {sleep}')
    a(f's_branch {L}')
    a.label(D)
    setex(a, -1)


def flagpipe(a, load, sets, nreg, vt, scnt, name, gap=2, slp=0):
    L = a.newlabel(name); D = a.newlabel(name + '_done')
    n = len(sets)
    a(f's_mov_b32 s{scnt}, {POLL_MAX}')
    for i, r in enumerate(sets):
        a(load(r))
        if gap and i < n - 1: a(f's_sleep {gap}')
    a.label(L)
    for r in sets:
        a(f's_waitcnt vmcnt({n - 1})')
        a(f'v_xor_b32 v{vt}, s{S_TA}, v{r}')
        for k in range(1, nreg):
            a(f'v_xor_b32 v{vt+1}, s{S_TA}, v{r+k}')
            a(f'v_or_b32 v{vt}, v{vt}, v{vt+1}')
        a(f'v_cmp_ne_u32 vcc, 0, v{vt}')
        a('s_cmp_eq_u64 vcc, 0')
        a(f's_cbranch_scc1 {D}')
        if slp: a(f's_sleep {slp}')
        a(load(r))
    a(f's_sub_u32 s{scnt}, s{scnt}, 1')
    a(f's_cbranch_scc0 {L}')
    a.label(D)


def ldswait(a, off, vz, vr_, st, scnt, name, slp=0):
    Lw = a.newlabel(name + '_w'); Lg = a.newlabel(name + '_g')
    setcnt(a, scnt, POLL_MAX * 4)
    a.label(Lw)
    a(f'ds_read_b32 v{vr_}, v{vz} offset:{off}')
    a('s_waitcnt lgkmcnt(0)')
    a(f'v_readfirstlane_b32 s{st}, v{vr_}')
    a(f's_cmp_eq_u32 s{st}, s{S_TA}')
    a(f's_cbranch_scc1 {Lg}')
    a(f's_sub_u32 s{scnt}, s{scnt}, 1')
    if slp: a(f's_sleep {slp}')
    a(f's_cbranch_scc0 {Lw}')
    a.label(Lg)


def mkchunks(a, dst, vals):
    for i, v in enumerate(vals):
        a(f'v_mov_b32 v{dst+2*i}, v{v}')
        a(f'v_mov_b32 v{dst+2*i+1}, s{S_TA if i % 2 == 0 else S_TB}')


def stamp(a, cfg, sreg):
    if cfg.get('prof'): a(f's_memrealtime s[{sreg}:{sreg+1}]')

PROFV = 251
class Prof:
    slots = 0
def stamp_store(a, cfg, pairs, vt):
    if not cfg.get('prof'): return
    a('s_waitcnt lgkmcnt(0)')
    for slot, sreg in pairs:
        a(f'v_writelane_b32 v{PROFV}, s{sreg}, {slot}')

def stamp_flush(a, cfg, slots, vt):
    if not cfg.get('prof'): return
    m = sum(1 << s for s in slots)
    a(f's_lshl_b32 s78, s2, 7')
    a(f's_add_u32 s78, s78, {WS_PROF:#x}')
    a(f'v_lshlrev_b32 v{vt}, 2, v0')
    a(f's_mov_b32 exec_lo, {m:#x}')
    a('s_mov_b32 exec_hi, 0')
    a(f'buffer_store_dword v{PROFV}, v{vt}, s[{S_WS}:{S_WS+3}], s78 offen')
    a('s_mov_b64 exec, -1')


DEF_MAP = 'v t1 t0 w3 t2^w5 t3^w6 t4^w7 t5 w0 w1 w2 w4 w5 w6 w7'
def map_cols(cfg):
    f = cfg.get('map', DEF_MAP).split()
    assert len(f) == 15 and f[12:] == ['w5', 'w6', 'w7']
    cols = {}
    for b, e in enumerate(f):
        for n in e.split('^'):
            cols[n] = cols.get(n, 0) ^ (1 << (13 + b))
    names = ['v'] + [f't{i}' for i in range(6)] + [f'w{i}' for i in range(8)]
    seen = set()
    for h in range(1 << 15):
        x = 0
        for i, n in enumerate(names):
            if h >> i & 1: x ^= cols[n]
        seen.add(x)
    assert len(seen) == 1 << 15
    return cols
def tconst(cols, t):
    x = 0
    for i in range(6):
        if t >> i & 1: x ^= cols[f't{i}']
    return x
def runs(cl):
    out = []; i = 0
    while i < len(cl):
        c = cl[i]
        if c & (c - 1):
            out.append((i, None, c)); i += 1; continue
        n = 1
        while i + n < len(cl) and cl[i + n] == c << n: n += 1
        out.append((i, n, c.bit_length() - 1)); i += n
    return out
def smap(a, dst, src, cl, tmp, first=True):
    for st, n, o in runs(cl):
        d = dst if first else tmp
        if n is None:
            a(f's_bitcmp1_b32 s{src}, {st}')
            a(f's_cselect_b32 s{d}, {o:#x}, 0')
        else:
            a(f's_bfe_u32 s{d}, s{src}, {(n << 16) | st:#x}')
            a(f's_lshl_b32 s{d}, s{d}, {o}')
        if not first: a(f's_xor_b32 s{dst}, s{dst}, s{tmp}')
        first = False
def vmap(a, dst, src, off, cl, tmp):
    for st, n, o in runs(cl):
        if n is None:
            a(f'v_bfe_i32 v{tmp}, v{src}, {off + st}, 1')
            a(f'v_and_b32 v{tmp}, {o:#x}, v{tmp}')
        else:
            a(f'v_bfe_u32 v{tmp}, v{src}, {off + st}, {n}')
            a(f'v_lshlrev_b32 v{tmp}, {o}, v{tmp}')
        a(f'v_xor_b32 v{dst}, v{dst}, v{tmp}')


CM = [[0, 1, 2, 4], [5, 6, 7, 3]]
def gen_stream(a, cfg):
    NA = 8
    cols = map_cols(cfg)
    flags = 'nt'
    V = Regs(1, 256)
    vKoff = [V.alloc(), V.alloc()]; vVoff = [V.alloc(), V.alloc()]; vOo = [V.alloc(), V.alloc()]
    vm = V.alloc(); vl = V.alloc(); vt0 = V.alloc(); vt1 = V.alloc(); valpha = V.alloc(); vmc = V.alloc()
    vc = V.alloc(); vg = V.alloc(); vRa = V.alloc()
    vTk = V.alloc(); vOne = V.alloc()
    vIt = V.alloc(); vF1 = V.alloc(); vZero = V.alloc()
    vTbl = V.alloc(); vSa = V.alloc(); vSb = V.alloc(); vSr = V.alloc()
    vAd = V.alloc(2, 2)
    vRec = V.alloc(2, 2)
    vSc = V.alloc(2, 2)
    vRef = V.alloc(4, 4)
    vmask = V.alloc(4, 4)
    vS = V.alloc(4, 4)
    vP = V.alloc(4, 4)
    vacc = V.alloc(8, 4)
    vA = V.alloc(16, 4)
    vQ = V.alloc(16, 4)
    vB = [V.alloc(32, 4) for _ in range(4)]
    sK = 4; sVv = 8
    sY, sSl, sThf, sThx = 16, 17, 18, 19
    sNom = 20; sPend = 21; sE = 22; sD = 23; sG = [24, 25, 26, 27]; sNg = 28; sL = 29
    sMode = [30, 32, 34, 36]; sCur = 38; sMf = 40; sMx = 60
    sN = 42; sCf = 43; sMk = 44; sCx = 46
    sC = 47; sTmp = 48; sBase = 49; sT2 = 52; sI = 53
    sCtr = 54; sF1 = 55; sTk = 56; sLoc = 50
    FS = cfg.get('fs', 2); B0q = int(cfg.get('b0', 2.14) / 4 * 25600)
    GF = cfg.get('gf', -14); GX = cfg.get('gx', 25)
    LOC = '' if cfg.get('loc', 0) else 'sc1'
    smap(a, sBase, 2, [cols[f'w{i}'] for i in range(8)], sTmp)
    smap(a, sBase, S_WAVE, [cols['v']], sTmp, first=False)
    srd(a, sK, P_K, 0x10000000)
    a(f'v_and_b32 v{vc}, 15, v0')
    a(f'v_lshrrev_b32 v{vg}, 4, v0')
    def chunkoff(dst, cm, qf, sf, rowf):
        def gather(d, fl, t):
            first = True
            for lb, ob, n in fl:
                r = d if first else t
                a(f'v_bfe_u32 v{r}, v0, {lb}, {n}')
                if first:
                    if ob: a(f'v_lshlrev_b32 v{d}, {ob}, v{d}')
                else:
                    a(f'v_lshl_or_b32 v{d}, v{t}, {ob}, v{d}')
                first = False
        gather(vt0, [(l, o + 2, n) for l, o, n in qf], vt1)
        gather(valpha, [(l, o + 4, n) for l, o, n in sf] + [(rowf, 11, 2)], vt1)
        for hf in range(2):
            tb = sum(cm[hf][i] << (4 * i) for i in range(4))
            a(f's_mov_b32 s{sTmp}, {tb:#x}')
            a(f'v_lshrrev_b32 v{dst[hf]}, v{vt0}, s{sTmp}')
            a(f'v_and_b32 v{dst[hf]}, 15, v{dst[hf]}')
            a(f'v_lshl_or_b32 v{dst[hf]}, v{dst[hf]}, 6, v{valpha}')
    KSC = ([(1, 0, 1), (4, 1, 1)], [(0, 0, 1), (5, 1, 1)])
    VSC = ([(1, 0, 2)], [(0, 0, 1), (3, 1, 1)])
    KMF, KMX, VMF, VMX = 0xcccc0000, 0x0000cccc, 0xc0c0c0c0, 0x0c0c0c0c
    def setmasks(mf, mx):
        for k in range(2):
            a(f's_mov_b32 s{sMf+k}, {mf:#x}')
            a(f's_mov_b32 s{sMx+k}, {mx:#x}')
    chunkoff(vKoff, CM, KSC[0], KSC[1], 2)
    def R(file, base, n): return f'{file}[{base}:{base+n-1}]'
    def issue(file, base, so, ad, srdn):
        for j in range(8):
            a(f'buffer_load_dwordx4 {R(file,base+4*j,4)}, v{ad[j&1]}, {sr(srdn,4)}, s{so} offen offset:{(j>>1)*512} {flags}')
    PST = [66 + 2 * i for i in range(11)] + [90 + 2 * i for i in range(6)]
    pst_n = [0]
    def pst():
        if cfg.get('prof') and pst_n[0] < len(PST):
            r = PST[pst_n[0]]; pst_n[0] += 1
            a(f's_memrealtime s[{r}:{r+1}]')
    a('s_barrier')
    if cfg.get('fe') == 3: a('s_barrier')
    pst()
    PD = cfg.get('pd', 4)
    seq = [('a', 32 * i) for i in range(NA)] + [('v', vB[s]) for s in range(4)]
    for i, (file, kb) in enumerate(seq):
        a(f's_xor_b32 s{sTmp}, s{sBase}, {tconst(cols, i):#x}')
        if i >= PD:
            a(f's_waitcnt vmcnt({8 * PD - 8})')
            pst()
        issue(file, kb, sTmp, vKoff, sK)
        if i == PD - 1:
            srd(a, sVv, P_V, 0x10000000)
            a(f's_mov_b32 s{sC}, {C_SCALE:#x}')
            chunkoff(vVoff, CM, VSC[0], VSC[1], 4)
            a(f'v_lshrrev_b32 v{vt1}, 2, v{vc}')
            a(f'v_and_b32 v{vt0}, 2, v0')
            a(f'v_lshlrev_b32 v{vt0}, 3, v{vt0}')
            a(f'v_mov_b32 v{vl}, 0xffff')
            a(f'v_lshlrev_b32 v{vt0}, v{vt0}, v{vl}')
            for j in range(4):
                a(f'v_cmp_eq_u32 vcc, {j}, v{vt1}')
                a('s_nop 1')
                a(f'v_cndmask_b32 v{vmask+j}, 0, v{vt0}, vcc')
            a(f'v_mov_b32 v{vm}, 0xf149f2ca')
            a(f'v_mov_b32 v{vl}, 0')
            for k in range(8):
                a(f'v_mov_b32 v{vacc+k}, 0')
            a(f's_lshl_b32 s{sT2}, s{S_WAVE}, 9')
            a(f's_add_u32 s{sT2}, s{sT2}, {LDS_REC}')
            a(f'v_lshlrev_b32 v{vRa}, 3, v0')
            a(f'v_add_u32 v{vRa}, s{sT2}, v{vRa}')
            a(f'v_mov_b32 v{vOne}, 1')
            a(f'v_mov_b32 v{vTbl}, s{sBase}')
            vmap(a, vTbl, 0, 0, [cols[f't{k}'] for k in range(6)], vt0)
            a(f's_lshl_b32 s{sT2}, s{S_WAVE}, 12')
            a(f's_add_u32 s{sT2}, s{sT2}, {LDS_SC}')
            a(f'v_and_b32 v{vSr}, 1, v0')
            a(f'v_lshlrev_b32 v{vSr}, 5, v{vSr}')
            a(f'v_lshl_add_u32 v{vSr}, v{vg}, 3, v{vSr}')
            a(f'v_add_u32 v{vSr}, s{sT2}, v{vSr}')
            a(f'v_bfe_u32 v{vSa}, v0, 2, 1')
            a(f'v_lshlrev_b32 v{vSa}, 5, v{vSa}')
            a(f'v_lshl_add_u32 v{vSa}, v{vg}, 3, v{vSa}')
            a(f'v_bfe_u32 v{vSb}, v0, 3, 1')
            a(f'v_lshl_add_u32 v{vSa}, v{vSb}, 2, v{vSa}')
            a(f'v_add_u32 v{vSa}, s{sT2}, v{vSa}')
            a(f'v_add_u32 v{vSb}, {20 * 64}, v{vSa}')
            for k in range(16):
                a(f'v_mov_b32 v{vQ+k}, 0')
            a(f's_mov_b32 s{sMk}, 0x00ff00ff')
            a(f's_mov_b32 s{sMk+1}, 0x00ff00ff')
            a(f'v_mov_b32 v{vZero}, 0')
            a(f's_lshl_b32 s{sF1}, s2, {7 if cfg.get("sp", 1) else 3}')
            a(f's_lshl_b32 s{sT2}, s{S_WAVE}, 2')
            a(f's_add_u32 s{sF1}, s{sF1}, s{sT2}')
            a(f's_add_u32 s{sF1}, s{sF1}, {WS_F1:#x}')
            a(f's_mov_b32 s{sN}, {NA + 4}')
            for r in [sY, sSl, sPend, sD, sCf, sCx] + sG + list(range(sMode[0], sCur + 2)): a(f's_mov_b32 s{r}, 0')
            a(f's_mov_b32 s{sThf}, 0x7fffffff')
            a(f's_mov_b32 s{sThx}, 0x80000000')
            a(f's_mov_b32 s{sNom}, {NA * B0q}')
            a(f's_mov_b32 s{sNg}, {NA}')
            setmasks(KMF, KMX)
    a(f'v_bfe_u32 v{vt1}, v0, 2, 1')
    a(f'v_lshlrev_b32 v{vt1}, 9, v{vt1}')
    a(f's_movk_i32 s{sTmp}, 0x1ff')
    a(f'v_and_or_b32 v{vt0}, v{vKoff[0]}, s{sTmp}, v{vt1}')
    a(f'v_and_or_b32 v{valpha}, v{vKoff[1]}, s{sTmp}, v{vt1}')
    a(f'v_mov_b32 v{vt1}, 0')
    stamp(a, cfg, 62)
    a(f's_mov_b64 exec, s[{sMk}:{sMk+1}]')
    a('s_barrier')
    a(f'ds_read_b128 {vr(vQ,4)}, v{vt0}')
    a(f'ds_read_b128 {vr(vQ+4,4)}, v{valpha}')
    a(f's_not_b64 exec, exec')
    a(f'ds_read_b128 {vr(vQ+8,4)}, v{vt0}')
    a(f'ds_read_b128 {vr(vQ+12,4)}, v{valpha}')
    a('s_mov_b64 exec, -1')
    a(f'ds_read_b32 v{vt1}, v{vt1} offset:{LDS_TAG}')
    a('s_waitcnt lgkmcnt(0)')
    a(f'v_readfirstlane_b32 s{S_TA}, v{vt1}')
    pst()

    def relayout(b, pairs):
        a(f's_xor_b64 exec, s[{sCur}:{sCur+1}], s[{sMode[b]}:{sMode[b]+1}]')
        for x, y in pairs: a(f'v_swap_b32 v{x}, v{y}')
        a(f's_mov_b64 s[{sCur}:{sCur+1}], s[{sMode[b]}:{sMode[b]+1}]')
        a('s_mov_b64 exec, -1')
    QP = [(vQ + k, vQ + 4 + k) for k in range(4)] + [(vQ + 8 + k, vQ + 12 + k) for k in range(4)]
    AP = [(vacc + k, vacc + 4 + k) for k in range(4)]
    def ctl_pre(b):
        gb = sG[b]
        a(f's_lshr_b32 s{sE}, s{sNom}, 8')
        a(f's_add_u32 s{sE}, s{sE}, s{S_TA}')
        a(f's_add_u32 s{sNom}, s{sNom}, {B0q}')
        a(f's_sub_u32 s{sPend}, s{sPend}, s{gb}')
        a(f's_add_u32 s{sD}, s{sD}, s{gb}')
        a(f's_add_u32 s{sE}, s{sE}, s{sD}')
        a(f's_ashr_i32 s{sL}, s{sY}, 8')
        a(f's_add_u32 s{sY}, s{sY}, s{sSl}')
        a(f's_sub_u32 s{sL}, s{sPend}, s{sL}')
    def ctl_post(b, off):
        gb = sG[b]; mk = sMode[b]
        a('s_waitcnt lgkmcnt(0)')
        a(f's_sub_u32 s{sE}, s58, s{sE}')
        a(f's_ashr_i32 s{sE}, s{sE}, {FS}')
        a(f's_add_u32 s{sD}, s{sD}, s{sE}')
        a(f's_add_u32 s{sE}, s{sD}, s{sL}')
        a(f's_cmp_gt_i32 s{sE}, s{sThf}')
        a(f's_cselect_b64 s[{mk}:{mk+1}], s[{sMf}:{sMf+1}], 0')
        a(f's_cselect_b32 s{gb}, {GF}, 0')
        if cfg.get('prof'): a(f's_addc_u32 s{sCf}, s{sCf}, 0')
        a(f's_cmp_lt_i32 s{sE}, s{sThx}')
        a(f's_cselect_b64 s[{mk}:{mk+1}], s[{sMx}:{sMx+1}], s[{mk}:{mk+1}]')
        a(f's_cselect_b32 s{gb}, {GX}, s{gb}')
        if cfg.get('prof'): a(f's_addc_u32 s{sCx}, s{sCx}, 0')
        if cfg.get('rndmode'):
            a(f's_lshr_b32 s{sE}, s58, 1')
            a(f's_bitcmp1_b32 s{sE}, 0')
            a(f's_cselect_b64 s[{mk}:{mk+1}], s[{sMf}:{sMf+1}], 0')
            a(f's_bitcmp1_b32 s{sE}, 1')
            a(f's_cselect_b64 s[{mk}:{mk+1}], s[{sMx}:{sMx+1}], s[{mk}:{mk+1}]')
        a(f'v_cndmask_b32 v{vAd}, v{off[0]}, v{off[1]}, s[{mk}:{mk+1}]')
        a(f'v_cndmask_b32 v{vAd+1}, v{off[1]}, v{off[0]}, s[{mk}:{mk+1}]')
        a(f's_add_u32 s{sPend}, s{sPend}, s{gb}')
    def rec():
        a(f'v_mov_b32 v{vRec}, s{sNg}')
        a(f'v_mov_b32 v{vRec+1}, s{sD}')
        a(f'ds_write_b64 v{vRa}, {vr(vRec,2)}')
        a(f's_add_u32 s{sNg}, s{sNg}, 1')
    def refread():
        a(f'ds_read_b128 {vr(vRef,4)}, v{vZero} offset:{LDS_REF}')
    def reftake():
        a('s_waitcnt lgkmcnt(0)')
        for k in range(4): a(f'v_readfirstlane_b32 s{sY+k}, v{vRef+k}')
        a(f's_mul_i32 s{sL}, s{sSl}, s{sNg}')
        a(f's_add_u32 s{sY}, s{sY}, s{sL}')

    def pmask():
        for i in range(4):
            a(f'v_cvt_pk_bf16_f32 v{vP+i}, v{vP+i}, v{vP+i}')
        for i in range(4):
            for j in range(4):
                a(f'v_and_b32 v{vA+4*i+j}, v{vP+i}, v{vmask+j}')
    def pv(file, vb):
        for i in range(4):
            for hf in range(2):
                a(f'v_mfma_f32_16x16x32_bf16 {vr(vacc+4*hf,4)}, {vr(vA+4*i,4)}, {R(file,vb+4*(2*i+hf),4)}, {vr(vacc+4*hf,4)}')
    def f1store():
        if not cfg.get('f1', 1): return
        a('s_mov_b64 exec, 1')
        a(f'buffer_store_dword v{vF1}, v{vZero}, {sr(S_WS,4)}, s{sF1} offen {LOC}')
        a('s_mov_b64 exec, -1')
    def qk1(file, kb):
        first = [True, True]
        for cg in range(2):
            for half in range(2):
                for aa in range(2):
                    j = cg * 4 + aa * 2 + half
                    d = vS if aa == 0 else vP
                    cc = '0' if first[aa] else vr(d, 4)
                    first[aa] = False
                    a(f'v_mfma_f32_16x16x32_bf16 {vr(d,4)}, {R(file,kb+4*j,4)}, {vr(vQ+8*cg+4*half,4)}, {cc}')
    def kpost(va, off):
        for d, t in ((vS, vt0), (vP, vt1)):
            a(f'v_mov_b32_dpp v{t}, v{d} quad_perm:[0,0,0,0] row_mask:0xf bank_mask:0xf')
        for i in range(1, 4):
            for d, t in ((vS, vt0), (vP, vt1)):
                a(f'v_add_f32_dpp v{t}, v{d+i}, v{t} quad_perm:[{i},{i},{i},{i}] row_mask:0xf bank_mask:0xf')
        a(f'v_cvt_pk_bf16_f32 v{vSc}, v{vt0}, v{vt1}')
        a(f'v_max3_f32 v{vm}, v{vt0}, v{vt1}, v{vm}')
        a(f'ds_write_b32 v{va}, v{vSc} offset:{off}')
    def kbody(b, va, off, nxt='K', pro=False, ref=False):
        a(f'v_readlane_b32 s{sI}, v{vTbl}, s{sN}')
        if not pro: relayout(b, QP)
        ctl_pre(b)
        a(f's_waitcnt vmcnt(24)')
        a('s_memrealtime s[58:59]')
        qk1('v', vB[b])
        a(f's_add_u32 s{sN}, s{sN}, 1')
        if pro and cfg.get('rndmode'):
            a('s_waitcnt lgkmcnt(0)')
            issue('v', vB[b], sI, vKoff, sK)
        else:
            ctl_post(b, vKoff if nxt == 'K' else vVoff)
            issue('v', vB[b], sI, [vAd, vAd + 1], sK if nxt == 'K' else sVv)
        kpost(va, off)
        rec()
        if ref: refread()
    def atile(i):
        qk1('a', 32 * i)
        a('s_nop 7')
        kpost(vSa, 64 * i)
    def vbody(b, off, last=False, ref=False):
        a('s_waitcnt lgkmcnt(0)')
        a(f'v_lshlrev_b32 v{vS}, 16, v{vSc}')
        a(f'v_and_b32 v{vS+1}, 0xffff0000, v{vSc}')
        a(f'v_lshlrev_b32 v{vS+2}, 16, v{vSc+1}')
        a(f'v_and_b32 v{vS+3}, 0xffff0000, v{vSc+1}')
        if off is not None:
            a(f'ds_read_b64 {vr(vSc,2)}, v{vSb} offset:{off}')
        if ref: refread()
        for i in range(4):
            a(f'v_fma_f32 v{vP+i}, v{vS+i}, s{sC}, -v{vmc}')
        for i in range(4):
            a(f'v_exp_f32 v{vP+i}, v{vP+i}')
        if not last:
            a(f'v_readlane_b32 s{sI}, v{vTbl}, s{sN}')
        else:
            a('s_nop 0')
        pmask()
        relayout(b, AP)
        if not last:
            ctl_pre(b)
            a(f's_waitcnt vmcnt(24)')
            a('s_memrealtime s[58:59]')
            a(f's_add_u32 s{sN}, s{sN}, 1')
            pv('v', vB[b])
            ctl_post(b, vVoff)
            issue('v', vB[b], sI, [vAd, vAd + 1], sVv)
            rec()
        else:
            if b == 1:
                for i in range(8):
                    a(f'v_mov_b32 v{vB[0]+2*i+1}, s{S_TA if i % 2 == 0 else S_TB}')
            if b == 3:
                a(f'v_lshlrev_b32 v{vt0}, 4, v0')
                a(f's_mul_i32 s{sBase}, s2, {OSTR}')
                a(f's_add_u32 s{sBase}, s{sBase}, {WS_O:#x}')
                a(f'v_mov_b32 v{vRa}, {LDS_CTR}')
            a(f's_waitcnt vmcnt({24 - 8 * b})')
            pv('v', vB[b])
            if b < 3: rec()
    pat = cfg.get('pat', '0123ab0c1d2e3f0g1h23')
    kt = NA
    for ci, ch in enumerate(pat):
        if ch in '0123':
            kbody(int(ch), vSa, 64 * kt, pro=True, ref=(ci == len(pat) - 1)); kt += 1
        else: atile(ord(ch) - ord('a'))
        if ch in '13bdf': pst()
        if kt == NA + 1 and ch == '0':
            tagB(a)
            a(f'v_mov_b32 v{vF1}, s{S_TA}')
    assert kt == 20 and pat[-1] == '3'
    LK = a.newlabel('st_loopK'); LV = a.newlabel('st_loopV')
    def itstamp():
        if cfg.get('prof'):
            a('s_mov_b32 m0, s57')
            a('s_add_u32 s57, s57, 1')
            a(f'v_writelane_b32 v{vIt}, s58, m0')
    if cfg.get('prof'):
        a('s_mov_b32 s57, 0')
        a(f'v_mov_b32 v{vIt}, 0')
        a('s_waitcnt lgkmcnt(0)')
        for k in range(pst_n[0]):
            a(f'v_writelane_b32 v{vIt}, s{PST[k]}, {40 + k}')
    a.label(LK)
    itstamp()
    reftake()
    for b in range(4): kbody(b, vSb, 64 * b, ref=(b == 3))
    a(f'v_add_u32 v{vSb}, 256, v{vSb}')
    a(f's_cmp_lt_u32 s{sN}, 64')
    a(f's_cbranch_scc1 {LK}')
    itstamp()
    reftake()
    a(f's_mov_b32 s{sN}, 0')
    setmasks(VMF, VMX)
    for b in range(4): kbody(b, vSb, 64 * b, 'V', ref=(b == 3))
    a(f's_mov_b64 s[{sCur}:{sCur+1}], 0')
    a(f'ds_read_b64 {vr(vSc,2)}, v{vSr}')
    a(f'v_mov_b32 v{vSb}, v{vSr}')
    xlane_reduce(a, [vm], [vt0], 'v_max_f32', ['r8', 'p32', 'p16'])
    a(f'v_cvt_pk_bf16_f32 v{vm}, v{vm}, v{vm}')
    a(f'v_lshlrev_b32 v{vm}, 16, v{vm}')
    a('s_mov_b32 vcc_lo, 0xaaaaaaaa')
    a('s_mov_b32 vcc_hi, 0xaaaaaaaa')
    a(f'v_readlane_b32 s{sMk}, v{vm}, 0')
    a(f'v_readlane_b32 s{sMk+1}, v{vm}, 4')
    a('s_nop 1')
    a(f'v_mov_b32 v{vm}, s{sMk}')
    a(f'v_mov_b32 v{vt0}, s{sMk+1}')
    a(f'v_cndmask_b32 v{vm}, v{vm}, v{vt0}, vcc')
    a(f'v_mul_f32 v{vmc}, s{sC}, v{vm}')
    a.label(LV)
    itstamp()
    reftake()
    for b in range(4): vbody(b, 64 * (b + 1), ref=(b == 3))
    a(f'v_add_u32 v{vSb}, 256, v{vSb}')
    a(f's_cmp_lt_u32 s{sN}, 64')
    a(f's_cbranch_scc1 {LV}')
    itstamp()
    Lz = a.newlabel('st_zw'); Lzg = a.newlabel('st_zg')
    a(f'v_and_b32 v{vt0}, 1, v0')
    a(f'v_lshlrev_b32 v{vt0}, 2, v{vt0}')
    a(f's_mov_b32 s{sCtr}, {POLL_MAX * 16}')
    a.label(Lz)
    a(f'ds_read_b64 {vr(vRec,2)}, v{vZero} offset:{LDS_FLAGZ}')
    a(f'ds_read_b32 v{vt1}, v{vt0} offset:{LDS_Z}')
    a('s_waitcnt lgkmcnt(0)')
    a(f'v_readfirstlane_b32 s{sTk}, v{vRec}')
    a(f'v_readfirstlane_b32 s{sLoc}, v{vRec+1}')
    a(f's_cmp_eq_u32 s{sTk}, s{S_TA}')
    a(f's_cbranch_scc1 {Lzg}')
    a(f's_sub_u32 s{sCtr}, s{sCtr}, 1')
    a(f's_cbranch_scc0 {Lz}')
    a.label(Lzg)
    a(f'v_sub_f32 v{valpha}, v{vmc}, v{vt1}')
    a(f'v_exp_f32 v{valpha}, v{valpha}')
    a(f'v_mov_b32 v{vmc}, v{vt1}')
    a('s_nop 1')
    for i in range(8):
        qp = '[0,0,2,2]' if (i & 1) == 0 else '[1,1,3,3]'
        a(f'v_mul_f32_dpp v{vacc+i}, v{valpha}, v{vacc+i} quad_perm:{qp} row_mask:0xf bank_mask:0xf')
    for b in range(4): vbody(b, 64 * (b + 1) if b < 3 else None, last=True)
    a('s_mov_b64 exec, 1')
    a(f'ds_add_rtn_u32 v{vTk}, v{vRa}, v{vOne} offset:{LDS_DONE - LDS_CTR}')
    a(f's_mov_b64 exec, s[{sCur}:{sCur+1}]')
    a(f's_nop 4')
    for x, y in AP: a(f'v_swap_b32 v{x}, v{y}')
    a('s_mov_b64 exec, -1')
    L2nd = a.newlabel('st_2nd'); LB3 = a.newlabel('st_b3')
    a('s_waitcnt lgkmcnt(0)')
    a(f'v_readfirstlane_b32 s{sTk}, v{vTk}')
    a(f's_cmp_lg_u32 s{sTk}, 0')
    a(f's_cbranch_scc1 {L2nd}')
    a(f'ds_write_b128 v{vt0}, {vr(vacc,4)} offset:{LDS_CMB}')
    a(f'ds_write_b128 v{vt0}, {vr(vacc+4,4)} offset:{LDS_CMB+1024}')
    a(f'ds_write_b32 v{vRa}, v{vF1} offset:{LDS_FLAG2 - LDS_CTR}')
    a(f's_branch {LB3}')
    a.label(L2nd)
    Lw2 = a.newlabel('st_w2'); Lg2 = a.newlabel('st_g2')
    a(f's_mov_b32 s{sCtr}, {POLL_MAX}')
    a.label(Lw2)
    a(f'ds_read_b32 v{vTk}, v{vRa} offset:{LDS_FLAG2 - LDS_CTR}')
    a(f'ds_read_b128 {vr(vA,4)}, v{vt0} offset:{LDS_CMB}')
    a(f'ds_read_b128 {vr(vA+4,4)}, v{vt0} offset:{LDS_CMB+1024}')
    a('s_waitcnt lgkmcnt(2)')
    a(f'v_readfirstlane_b32 s{sTk}, v{vTk}')
    a(f's_cmp_eq_u32 s{sTk}, s{S_TA}')
    a(f's_cbranch_scc1 {Lg2}')
    a(f's_sub_u32 s{sCtr}, s{sCtr}, 1')
    a(f's_cbranch_scc1 {Lg2}')
    a('s_waitcnt lgkmcnt(0)')
    a(f's_branch {Lw2}')
    a.label(Lg2)
    Lrem = a.newlabel('st_rem')
    a(f's_cmp_eq_u32 s{sLoc}, 0')
    a(f's_cbranch_scc1 {Lrem}')
    for fl in (cfg.get('lfl', ''), 'sc1'):
        if fl == 'sc1': a.label(Lrem)
        for i in range(4):
            if i % 2 == 0: a(f's_waitcnt lgkmcnt({1 - i // 2})')
            for e in range(2):
                a(f'v_add_f32 v{vB[0]+4*i+2*e}, v{vacc+2*i+e}, v{vA+2*i+e}')
            a(f'buffer_store_dwordx4 {vr(vB[0]+4*i,4)}, v{vt0}, {sr(S_WS,4)}, s{sBase} offen offset:{1024*i} {fl}')
        if fl != 'sc1': a(f's_branch {LB3}')
    a.label(LB3)
    if cfg.get('prof'):
        a(f's_memrealtime s[58:59]')
    a(f'v_mov_b32 v{vt0}, 0')
    if cfg.get('prof'):
        a(f's_add_u32 s{sT2}, s{S_WAVE}, 4')
        a(f's_lshl_b32 s{sTmp}, s2, 5')
        a(f's_add_u32 s{sTmp}, s{sTmp}, s{sT2}')
        a(f's_lshl_b32 s{sTmp}, s{sTmp}, 2')
        a(f's_add_u32 s{sTmp}, s{sTmp}, {WS_PROF:#x}')
        a('s_waitcnt lgkmcnt(0)')
        a(f'v_mov_b32 v{vt1}, s58')
        a(f'buffer_store_dword v{vt1}, v{vt0}, {sr(S_WS,4)}, s{sTmp} offen')
        a(f'v_mov_b32 v{vt1}, s62')
        a(f'buffer_store_dword v{vt1}, v{vt0}, {sr(S_WS,4)}, s{sTmp} offen offset:28')
        a(f'v_writelane_b32 v{vIt}, s{sCf}, 62')
        a(f'v_writelane_b32 v{vIt}, s{sCx}, 63')
        a(f's_lshl_b32 s{sTmp}, s2, 1')
        a(f's_add_u32 s{sTmp}, s{sTmp}, s{S_WAVE}')
        a(f's_lshl_b32 s{sTmp}, s{sTmp}, 8')
        a(f's_add_u32 s{sTmp}, s{sTmp}, {WS_IT:#x}')
        a(f'v_lshlrev_b32 v{vt0}, 2, v0')
        a(f'buffer_store_dword v{vIt}, v{vt0}, {sr(S_WS,4)}, s{sTmp} offen')
    a('s_endpgm')
    return V.n


def gemv_pairs(a, vm, W, nrows, ndw, vX, acc, tmps, loads, first=True):
    for t in range(nrows // 2):
        if loads is not None:
            vm.wait(loads[2 * t + 1])
        for d in range(ndw):
            lo, hi = tmps[2 * d], tmps[2 * d + 1]
            a(f'v_perm_b32 v{lo}, v{W[2*t+1]+d}, v{W[2*t]+d}, s{S_SELLO}')
            a(f'v_perm_b32 v{hi}, v{W[2*t+1]+d}, v{W[2*t]+d}, s{S_SELHI}')
        for d in range(ndw):
            lo, hi = tmps[2 * d], tmps[2 * d + 1]
            c0 = '0' if (t == 0 and first) else f'v{acc[2*d]}'
            c1 = '0' if (t == 0 and first) else f'v{acc[2*d+1]}'
            a(f'v_dot2_f32_bf16 v{acc[2*d]}, v{lo}, v{vX+t}, {c0}')
            a(f'v_dot2_f32_bf16 v{acc[2*d+1]}, v{hi}, v{vX+t}, {c1}')
    a('s_nop 2')


def rnd_bf16(a, d, s, t):
    a(f'v_cvt_pk_bf16_f32 v{t}, v{s}, v{s}')
    a(f'v_lshlrev_b32 v{d}, 16, v{t}')


def ksplit_loads(a, vm, sX, sW, rowbytes, sKq, sColByte, vX, vW, vo1, vo2, vo3, sT, sT2, pace=0):
    a(f'v_lshrrev_b32 v{vo1}, 3, v0')
    a(f'v_mul_u32_u24 v{vo2}, {14*rowbytes}, v{vo1}')
    a(f'v_and_b32 v{vo3}, 7, v0')
    a(f'v_lshl_add_u32 v{vo2}, v{vo3}, 4, v{vo2}')
    a(f's_mul_i32 s{sT2}, s{sKq}, {112*rowbytes}')
    a(f's_add_u32 s{sT2}, s{sT2}, s{sColByte}')
    lw = []
    for k in range(14):
        lw.append(vm.issue(f'buffer_load_dwordx4 {vr(vW+4*k,4)}, v{vo2}, {sr(sW,4)}, s{sT2} offen nt'))
        if k < 13: a(f's_add_u32 s{sT2}, s{sT2}, {rowbytes}')
        if pace: a(f's_sleep {pace}')
        if k == 0:
            a(f'v_mul_u32_u24 v{vo3}, 28, v{vo1}')
            a(f's_mul_i32 s{sT}, s{sKq}, 224')
            vm.issue(f'buffer_load_dwordx4 {vr(vX,4)}, v{vo3}, {sr(sX,4)}, s{sT} offen')
            vm.issue(f'buffer_load_dwordx3 {vr(vX+4,3)}, v{vo3}, {sr(sX,4)}, s{sT} offen offset:16')
    return lw


def gen_auxA(a, cfg):
    V = Regs(1, 256)
    vt = V.alloc(8, 4)
    vX = V.alloc(8, 4)
    vacc = V.alloc(8, 4)
    vtmp = V.alloc(8, 4)
    vo1 = V.alloc(); vo2 = V.alloc(); vo3 = V.alloc(); vTag = V.alloc(); vOa = vTag; vYs = V.alloc(); vWa = V.alloc()
    vCh = V.alloc(16, 4)
    vW = V.alloc(80, 4); vSet = vW
    vWp = V.alloc(64, 4)
    vOq = V.alloc(16, 4)
    vML = V.alloc(8, 4)
    sX = 4; sWQ = 8; sDBG = 44; sWO = 48
    sT = 52; sT2 = 53; sHead = 54; sJ = 55; sCnt = 56; sC = 57; sKq = 58; sCb = 59
    sPk = 80; sWoB = 19
    vm = VM(a)
    stamp(a, cfg, 62)
    srd(a, sX, P_X, 896)
    srd(a, sWQ, P_WQ, 448 * 8192)
    a(f's_lshr_b32 s{sHead}, s2, 5')
    a(f's_and_b32 s{sJ}, s2, 31')
    a(f's_and_b32 s{sKq}, s2, 3')
    a(f's_lshr_b32 s{sCb}, s2, 2')
    a(f's_lshl_b32 s{sCb}, s{sCb}, 7')
    WOE = cfg.get('woe', 0)
    def wosetup():
        a(f's_lshl_b32 s{sT}, s{sHead}, 9')
        a(f's_and_b32 s{sT2}, s{sJ}, 1')
        a(f's_lshl_b32 s{sT2}, s{sT2}, 4')
        a(f's_add_u32 s{sT}, s{sT}, s{sT2}')
        a(f's_and_b32 s{sT2}, s{sJ}, 6')
        a(f's_add_u32 s{sT}, s{sT}, s{sT2}')
        a(f's_bfe_u32 s{sT2}, s{sJ}, 0x10003')
        a(f's_add_u32 s{sT}, s{sT}, s{sT2}')
        a(f's_mul_i32 s{sWoB}, s{sT}, 896')
        a(f'v_min_u32 v{vWa}, 55, v0')
        a(f'v_lshlrev_b32 v{vWa}, 4, v{vWa}')
    def woload(vR):
        for g2 in range(4):
            a(f's_bitcmp1_b32 s{sJ}, 4')
            a(f's_cselect_b32 s22, {CM[1][g2]}, {CM[0][g2]}')
            a(f's_mul_i32 s22, s22, {32 * 896}')
            a(f's_add_u32 s22, s22, s{sWoB}')
            for hh in range(2):
                for u1 in range(2):
                    a(f's_add_u32 s23, s22, {(hh * 256 + 8 * u1) * 896}')
                    vm.issue(f'buffer_load_dwordx4 {vr(vR+4*(8*hh+2*g2+u1),4)}, v{vWa}, {sr(sWO,4)}, s23 offen nt')
    lw = ksplit_loads(a, vm, sX, sWQ, 8192, sKq, sCb, vX, vW, vo1, vo2, vo3, sT, sT2)
    if WOE:
        srd(a, sWO, P_WO, 4096 * 896)
        wosetup()
        woload(vWp)
    a('s_barrier')
    if cfg.get('fe') == 3: a('s_barrier')
    srd(a, sDBG, P_DBG, 256)
    if not WOE: srd(a, sWO, P_WO, 4096 * 896)
    a(f's_mov_b64 s[42:43], s[{P_OUT}:{P_OUT+1}]')
    a(f'v_mov_b32 v{vo3}, 0')
    vm.issue(f'buffer_load_dword v{vTag}, v{vo3}, {sr(sDBG,4)}, 0 offen sc1')
    gemv_pairs(a, vm, [vW + 4 * k for k in range(14)], 14, 4, vX, [vacc + i for i in range(8)], [vtmp + i for i in range(8)], lw)
    xlane_reduce(a, [vacc + i for i in range(8)], [vtmp + i for i in range(8)], 'v_add_f32', ['r8', 'p16', 'p32'])
    stamp(a, cfg, 64)
    a(f'v_lshlrev_b32 v{vo1}, 4, v0')
    a(f's_lshl_b32 s{sT}, s{sHead}, 14')
    a(f's_lshl_b32 s{sT2}, s{sKq}, 12')
    a(f's_add_u32 s{sT2}, s{sT2}, s{sT}')
    a(f's_and_b32 s{sC}, s{sCb}, 0x380')
    a(f's_lshl_b32 s{sC}, s{sC}, 2')
    a(f's_add_u32 s{sT2}, s{sT2}, s{sC}')
    L = a.newlabel('ptag'); Dn = a.newlabel('ptag_done')
    a(f's_mov_b32 s{sCnt}, {POLL_MAX}')
    a.label(L)
    a('s_waitcnt vmcnt(0)')
    a(f'v_readfirstlane_b32 s{S_TA}, v{vTag}')
    a(f's_cmp_lg_u32 s{S_TA}, 0')
    a(f's_cbranch_scc1 {Dn}')
    a(f's_sub_u32 s{sCnt}, s{sCnt}, 1')
    a(f's_cbranch_scc1 {Dn}')
    a('s_sleep 1')
    a(f'buffer_load_dword v{vTag}, v{vo3}, {sr(sDBG,4)}, 0 offen sc1')
    a(f's_branch {L}')
    a.label(Dn)
    tagB(a)
    stamp(a, cfg, 66)
    mkchunks(a, vCh, [vacc + i for i in range(8)])
    a('s_mov_b64 exec, 0xff')
    for c in range(4):
        a(f'buffer_store_dwordx4 {vr(vCh+4*c,4)}, v{vo1}, {sr(S_WS,4)}, s{sT2} offen offset:{128*c} sc1')
    a('s_mov_b64 exec, -1')
    a(f'v_lshrrev_b32 v{vo2}, 5, v0')
    a(f'v_lshlrev_b32 v{vo2}, 7, v{vo2}')
    a(f'v_and_b32 v{vt}, 7, v0')
    a(f'v_lshl_add_u32 v{vo2}, v{vt}, 4, v{vo2}')
    a(f'v_bfe_u32 v{vt}, v0, 3, 2')
    a(f'v_lshl_add_u32 v{vo2}, v{vt}, 2, v{vo2}')
    for kq in range(1, 4):
        a(f's_add_u32 s{80+kq}, s{sT}, {4096*kq}')
    loads = []
    for kq in range(4):
        for i in range(4):
            so = sT if kq == 0 else 80 + kq
            loads.append(f'buffer_load_dwordx4 {vr(vW+4*(4*kq+i),4)}, v{vo1}, {sr(S_WS,4)}, s{so} offen offset:{i*1024} sc1')
    a(f'v_mov_b32 v{vML}, 0')
    a(f'v_mov_b32 v{vML+1}, 0')
    a(f'v_mov_b32 v{vML+2}, 0x7fffffff')
    a(f'v_mov_b32 v{vML+3}, 0x80000000')
    if cfg.get('qsleep'): a(f's_sleep {cfg["qsleep"]}')
    if cfg.get('noq'):
        for k in range(64): a(f'v_mov_b32 v{vW+k}, 0')
    else: poll(a, loads, [vW + 4 * k for k in range(16)], vt, sCnt, name='pq')
    stamp(a, cfg, 68)
    for i in range(4):
        for e in (0, 2):
            a(f'v_add_f32 v{vW+4*i+e}, v{vW+4*i+e}, v{vW+4*(4+i)+e}')
            a(f'v_add_f32 v{vW+4*(8+i)+e}, v{vW+4*(8+i)+e}, v{vW+4*(12+i)+e}')
    for i in range(4):
        for e in (0, 2):
            a(f'v_add_f32 v{vW+4*i+e}, v{vW+4*i+e}, v{vW+4*(8+i)+e}')
    for i in range(4):
        a(f'v_cvt_pk_bf16_f32 v{vt+i}, v{vW+4*i}, v{vW+4*i+2}')
    for i in range(4):
        a(f'ds_write_b32 v{vo2}, v{vt+i} offset:{256*i}')
    a(f'ds_write_b32 v{vo3}, v{vTag} offset:{LDS_TAG}')
    a(f'ds_write_b128 v{vo3}, {vr(vML,4)} offset:{LDS_REF}')
    a(f'ds_write_b32 v{vo3}, v{vo3} offset:{LDS_DONE}')
    a(f'ds_write_b32 v{vo3}, v{vo3} offset:{LDS_FLAG3}')
    a(f'ds_write_b32 v{vo3}, v{vo3} offset:{LDS_FLAGZ}')
    a(f'ds_write_b32 v{vo3}, v{vo3} offset:{LDS_FLAGO}')
    a(f'ds_write_b64 v{vo3}, {vr(vML,2)} offset:{LDS_REC}')
    a(f'ds_write_b64 v{vo3}, {vr(vML,2)} offset:{LDS_REC + 512}')
    a('s_waitcnt lgkmcnt(0)')
    a('s_barrier')
    stamp(a, cfg, 70)
    stamp_store(a, cfg, [(0, 62), (7, 64), (8, 66), (9, 68), (1, 70), (27, 98)], vt)
    for k, off in enumerate(cfg.get('tw', [])):
        a('s_mov_b64 exec, 1')
        a(f's_mov_b32 s22, {off:#x}')
        a(f'buffer_load_dword v{vOq+k}, v{vo3}, {sr(S_WS,4)}, s22 offen {cfg.get("twf", "nt")}')
        a('s_mov_b64 exec, -1')
    if not WOE: wosetup()
    WOL = cfg.get('wol', 0)
    vR = vW + 16
    def woperm():
        for pr in range(8):
            r0 = vR + 4 * (2 * pr); r1 = vR + 4 * (2 * pr + 1)
            for d in range(4):
                a(f'v_perm_b32 v{vWp+8*pr+2*d}, v{r1+d}, v{r0+d}, s{S_SELLO}')
                a(f'v_perm_b32 v{vWp+8*pr+2*d+1}, v{r1+d}, v{r0+d}, s{S_SELHI}')
    Wc = lambda pr, col: vWp + 8 * pr + col
    if WOE:
        Wc = lambda pr, col: vWp + 8 * pr + (col & 1) * 4 + (col >> 1)
        for pr in range(8):
            r0 = vWp + 8 * pr; r1 = r0 + 4
            for d in range(4):
                a(f'v_perm_b32 v{vt+d}, v{r1+d}, v{r0+d}, s{S_SELLO}')
                a(f'v_perm_b32 v{r1+d}, v{r1+d}, v{r0+d}, s{S_SELHI}')
            for d in range(4):
                a(f'v_mov_b32 v{r0+d}, v{vt+d}')
    elif not WOL:
        woload(vR)
        a('s_waitcnt vmcnt(0)')
        woperm()
    a(f'v_and_b32 v{vo2}, 31, v0')
    a(f'v_mul_u32_u24 v{vo2}, {OSTR}, v{vo2}')
    a(f'v_lshrrev_b32 v{vo3}, 3, v0')
    a(f'v_mul_u32_u24 v{vOa}, {OSTR}, v{vo3}')
    a(f'v_and_b32 v{vt}, 7, v0')
    a(f'v_lshl_add_u32 v{vOa}, v{vt}, 4, v{vOa}')
    a(f'v_lshlrev_b32 v{vo3}, 2, v{vo3}')
    a(f's_mul_i32 s{sT2}, s{sHead}, {32 * OSTR}')
    a(f's_add_u32 s{sT2}, s{sT2}, {WS_O:#x}')
    a(f's_lshl_b32 s{sT}, s{sJ}, 7')
    a(f's_add_u32 s{sT}, s{sT}, s{sT2}')
    for k in range(1, 4):
        a(f's_add_u32 s{72+k}, s{sT}, {8 * k * OSTR}')
    a(f's_add_u32 s{sT2}, s{sT2}, 4096')
    a(f's_mov_b32 s{sC}, {C_SCALE:#x}')
    a(f's_lshl_b32 s72, s2, 6')
    for c in range(4):
        a(f's_add_u32 s{24+c}, s72, {WS_Y + c * 14 * 16384:#x}')
    a(f'v_lshrrev_b32 v{vYs}, 2, v0')
    a(f'v_lshlrev_b32 v{vYs}, 14, v{vYs}')
    a(f'v_and_b32 v{vt}, 3, v0')
    a(f'v_lshl_add_u32 v{vYs}, v{vt}, 4, v{vYs}')
    H3 = cfg.get('h3', 0)
    if H3:
        for i in range(4):
            a(f'v_lshl_add_u32 v{vt}, v0, 2, {i}')
            a(f'v_mul_u32_u24 v{vt+1}, 9363, v{vt}')
            a(f'v_lshrrev_b32 v{vt+1}, 16, v{vt+1}')
            a(f'v_mul_u32_u24 v{vt+2}, 7, v{vt+1}')
            a(f'v_sub_u32 v{vt}, v{vt}, v{vt+2}')
            a(f'v_mul_u32_u24 v{vt+1}, {OSTR}, v{vt+1}')
            a(f'v_lshl_add_u32 v{vML+i}, v{vt}, 4, v{vt+1}')
        a(f's_not_b32 s24, s{S_TA}')
        a(f's_not_b32 s25, s{S_TB}')
        for i in range(8):
            a(f'v_mov_b32 v{vCh+2*i+1}, s{24 + i % 2}')
        a(f's_mov_b32 s24, s{sT}')
        a(f's_lshl_b32 s25, s{sJ}, 10')
        a(f's_add_u32 s25, s25, {WS_Y:#x}')
        a(f's_mul_i32 s26, s{sJ}, 28')
        a(f's_and_b32 s27, s{sJ}, 7')
        srd(a, 76, 42, 896)
    else:
        for i in range(8):
            a(f'v_mov_b32 v{vCh+2*i+1}, s{S_TA if i % 2 == 0 else S_TB}')
    a(f's_mul_i32 s37, s{sHead}, 11')
    a('s_lshr_b32 s37, s37, 5')
    a('s_mul_i32 s37, s37, 3')
    a(f's_sub_u32 s37, s{sHead}, s37')
    a('s_bfe_u32 s38, s2, 0x20003')
    a(f's_lshl_b32 s36, s{sHead}, 3')
    a('s_and_b32 s39, s2, 7')
    a('s_add_u32 s36, s36, s39')
    a('s_lshl_b32 s36, s36, 4')
    a('s_cmp_eq_u32 s37, s38')
    a('s_cselect_b32 s36, s36, 0x40000000')
    hook = None
    if not cfg.get('noctl'):
        aux_rounds(a, cfg, dict(v=vW, s=28, S_WS=S_WS, S_TA=S_TA, S_TB=S_TB, LDS_REC=LDS_REC, LDS_REF=LDS_REF, WS_R=WS_PLAN, sPub=36), hook=hook)
    stamp(a, cfg, 70)
    stamp_store(a, cfg, [(20, 70)], vt)
    sEX = 16; sDry = 18
    WARM = 0
    a(f's_mov_b64 s[{sEX}:{sEX+1}], -1')
    a(f'v_mov_b32 v{vSet+4}, s{S_TA}')
    a(f'v_mov_b32 v{vSet+5}, 0')
    vBp = vSet + 8; vGs = vSet + 6
    ldswait(a, LDS_FLAGZ, vSet + 5, vt, 22, sCnt, 'za', slp=8)
    a(f'ds_read_b128 {vr(vBp,4)}, v{vo1} offset:{LDS_B}')
    a(f'ds_read_b128 {vr(vBp+4,4)}, v{vo1} offset:{LDS_B+1024}')
    a(f'ds_read_b32 v{vGs}, v{vSet+5} offset:{LDS_G}')
    a(f'ds_read_b32 v{vt}, v{vSet+5} offset:{LDS_FLAGZ+4}')
    a('s_waitcnt lgkmcnt(0)')
    a(f'v_readfirstlane_b32 s20, v{vt}')
    if H3 and cfg.get('zpt'):
        Lz = a.newlabel('zpt')
        a(f's_cmp_lg_u32 s27, s{sHead}')
        a(f's_cbranch_scc1 {Lz}')
        progwait(a, cfg['zpt'], vSet + 5, vt, 22, sCnt, 8, 'zp')
        a(f'buffer_load_dwordx4 {vr(vOq+8,4)}, v{vo1}, {sr(S_WS,4)}, s25 offen sc1')
        a.label(Lz)
    a(f'v_lshlrev_b32 v{vo2}, 2, v0')
    LdA = dry_begin(a, cfg, 'dryA', sEX)
    if not WOE and WOL:
        progwait(a, WOL, vSet + 5, vt, 22, sCnt, 2, 'wo')
        stamp(a, cfg, 64)
        woload(vR)
        a('s_waitcnt vmcnt(0)')
        if cfg.get('prof'):
            stamp(a, cfg, 62)
            stamp_store(a, cfg, [(16, 62), (17, 64)], vt)
        woperm()
    else:
        progwait(a, 124, vSet + 5, vt, 22, sCnt, 8, 'wo')
    Lo = a.newlabel('ow'); Log = a.newlabel('og')
    setcnt(a, sCnt, POLL_MAX * 16)
    a.label(Lo)
    a(f'ds_read_b32 v{vt}, v{vSet+5} offset:{LDS_FLAGO}')
    a(f'ds_read_b128 {vr(vOq,4)}, v{vSet+5} offset:{LDS_O}')
    a(f'ds_read_b128 {vr(vOq+4,4)}, v{vSet+5} offset:{LDS_O+16}')
    a('s_waitcnt lgkmcnt(2)')
    a(f'v_readfirstlane_b32 s22, v{vt}')
    a(f's_cmp_eq_u32 s22, s{S_TA}')
    a(f's_cbranch_scc1 {Log}')
    a(f's_sub_u32 s{sCnt}, s{sCnt}, 1')
    a('s_waitcnt lgkmcnt(0)')
    a(f's_cbranch_scc0 {Lo}')
    a.label(Log)
    stamp(a, cfg, 62)
    for pr in range(8):
        if pr % 4 == 0: a(f's_waitcnt lgkmcnt({(1 - pr // 4) + (1 if cfg.get("prof") else 0)})' if False else f's_waitcnt lgkmcnt(0)' if cfg.get('prof') else f's_waitcnt lgkmcnt({1 - pr // 4})')
        for col in range(8):
            c0 = '0' if pr == 0 else f'v{vCh+2*col}'
            a(f'v_dot2_f32_bf16 v{vCh+2*col}, v{Wc(pr, col)}, v{vOq+pr}, {c0}')
    a(f's_and_b32 exec_hi, s{sEX+1}, 0x00ffffff')
    if H3:
        Lr = a.newlabel('y_rem'); Ld = a.newlabel('y_done')
        a('s_cmp_eq_u32 s20, 0')
        a(f's_cbranch_scc1 {Lr}')
        for fl in ('', 'sc1'):
            if fl: a.label(Lr)
            for c in range(4):
                for e in range(2):
                    a(f'v_fma_f32 v{vCh+4*c+2*e}, v{vCh+4*c+2*e}, v{vGs}, v{vBp+2*c+e}')
                a(f'buffer_store_dwordx4 {vr(vCh+4*c,4)}, v{vML+c}, {sr(S_WS,4)}, s24 offen {fl}')
            if not fl: a(f's_branch {Ld}')
        a.label(Ld)
    else:
        for c in range(4):
            for e in range(2):
                a(f'v_fma_f32 v{vCh+4*c+2*e}, v{vCh+4*c+2*e}, v{vGs}, v{vBp+2*c+e}')
            a(f'buffer_store_dwordx4 {vr(vCh+4*c,4)}, v{vYs}, {sr(S_WS,4)}, s{24+c} offen sc1')
    setex(a, -1)
    if WARM:
        a(f's_cmp_lg_u32 s{sDry}, 0')
        a(f's_cbranch_scc1 {Lreal}')
    stamp(a, cfg, 64)
    a(f'ds_write_b32 v{vSet+5}, v{vSet+4} offset:{LDS_FLAG3}')
    if cfg.get('prof'):
        a('s_getreg_b32 s68, hwreg(HW_REG_XCC_ID)')
        a('s_mov_b32 s69, s100')
    stamp_store(a, cfg, [(30, 62), (3, 64), (25, 68), (26, 69)], vt)
    if H3:
        Lnf = a.newlabel('a_nofin')
        a(f's_cmp_lg_u32 s27, s{sHead}                ; h3')
        a(f's_cbranch_scc1 {Lnf}')
        if cfg.get('dz'): a(f's_sleep {cfg["dz"]}')
        setex(a, 0x7f7f7f7f7f7f7f7f)
        stamp(a, cfg, 66)
        poll(a, [f'buffer_load_dwordx4 {vr(vOq,4)}, v{vo1}, {sr(S_WS,4)}, s25 offen sc1'], [vOq], vt, sCnt, name='pz', sleep=cfg.get('zsleep', 1))
        xlane_reduce(a, [vOq, vOq + 2], [vtmp, vtmp + 1], 'v_add_f32', ['r8', 'p16', 'p32'])
        a(f'v_cvt_pk_bf16_f32 v{vt}, v{vOq}, v{vOq+2}')
        setex(a, 0x7f)
        a(f'buffer_store_dword v{vt}, v{vo2}, {sr(76,4)}, s26 offen')
        setex(a, -1)
        stamp(a, cfg, 62)
        if cfg.get('prof'): a(f's_sub_u32 s23, {POLL_MAX}, s{sCnt}')
        stamp_store(a, cfg, [(6, 62), (23, 66), (24, 23)], vt)
        a.label(Lnf)
    dry_end(a, LdA)
    stamp_flush(a, cfg, [0, 7, 8, 9, 1, 16, 17, 20, 30, 3, 25, 26, 27] + ([6, 23, 24] if H3 else []), vt)
    a('s_endpgm')
    return V.n


def gen_auxB(a, cfg):
    V = Regs(1, 256)
    vt = V.alloc(8, 4)
    vf = V.alloc(8, 4)
    vo1 = V.alloc(); vo2 = V.alloc(); vo3 = V.alloc(); vg = V.alloc(); vYa = V.alloc(); vZ = V.alloc()
    vX = V.alloc(16, 4)
    vacc = V.alloc(8, 4)
    vtmp = V.alloc(8, 4)
    vCh = V.alloc(8, 4)
    vW = V.alloc(64, 4)
    vD = V.alloc(64, 4)
    vY = vW
    sX = 4; sWG = 8; sWD = 48; sDBG = 64; sGW = 68; sOUT = 72
    sT = 52; sT2 = 53; sKq = 54; sJ = 55; sCnt = 56; sF = 57; sG = 62; sG1 = 63; sR = 58; sCb = 59
    sPk = 16; sLoc = 38
    vOa = V.alloc()
    vm = VM(a)
    srd(a, sDBG, P_DBG, 256)
    Lnt = a.newlabel('notag')
    a(f'v_mov_b32 v{vZ}, 0')
    a('s_cmp_lg_u32 s2, 0')
    a(f's_cbranch_scc1 {Lnt}')
    a(f's_memrealtime s[{sG}:{sG1}]')
    a('s_waitcnt lgkmcnt(0)')
    a(f's_or_b32 s{sG}, s{sG}, 1')
    a(f'v_mov_b32 v{vo2}, s{sG}')
    a('s_mov_b64 exec, 1')
    a(f'buffer_store_dword v{vo2}, v{vZ}, {sr(sDBG,4)}, 0 offen sc1')
    a('s_mov_b64 exec, -1')
    a.label(Lnt)
    FE = cfg.get('fe', 0)
    if not FE: a('s_barrier')
    srd(a, sX, P_X, 896)
    srd(a, sWD, P_WD, 1792 * 896)
    srd(a, sGW, P_GW, 896)
    srd(a, sOUT, P_OUT, 896)
    a(f's_lshr_b32 s{sT}, s2, 5')
    a(f's_add_u32 s{sR}, s2, s{sT}')
    a(f's_and_b32 s{sR}, s{sR}, 31')
    a(f's_mul_i32 s{sF}, s{sT}, 14')
    a(f's_add_u32 s{sF}, s{sF}, s{sR}')
    a(f's_lshr_b32 s{sCb}, s{sF}, 1')
    a(f's_cmp_ge_u32 s{sCb}, 28')
    a(f's_cselect_b32 s{sWG}, s{P_WU}, s{P_WG}')
    a(f's_cselect_b32 s{sWG+1}, s{P_WU+1}, s{P_WG+1}')
    a(f's_cselect_b32 s{sT2}, 28, 0')
    a(f's_cselect_b32 s{sJ}, 256, 0')
    a(f's_mov_b32 s{sWG+2}, {448 * 3584:#x}')
    a(f's_mov_b32 s{sWG+3}, 0x00020000')
    a(f's_sub_u32 s{sCb}, s{sCb}, s{sT2}')
    a(f'v_lshlrev_b32 v{vYa}, 4, v0')
    Lf2 = a.newlabel('ffn2'); Lfd = a.newlabel('ffnd'); Lnofin = a.newlabel('nofin')
    def f1loads():
        a(f's_and_b32 s{sKq}, s{sF}, 1')
        a(f's_lshl_b32 s{sKq}, s{sKq}, 1')
        a(f's_lshl_b32 s{sF}, s{sCb}, 7')
        l0 = ksplit_loads(a, vm, sX, sWG, 3584, sKq, sF, vX, vW, vo1, vo2, vo3, sT, sT2, pace=cfg.get('f1p', 0))
        a(f's_add_u32 s{sKq}, s{sKq}, 1')
        l1 = ksplit_loads(a, vm, sX, sWG, 3584, sKq, sF, vX + 8, vD, vo1, vo2, vo3, sT, sT2, pace=cfg.get('f1p', 0))
        return l0, l1
    def f2loads():
        a(f's_sub_u32 s{sF}, s{sF}, 14')
        a(f'v_min_u32 v{vo1}, 55, v0')
        a(f'v_lshlrev_b32 v{vo1}, 4, v{vo1}')
        a(f's_mul_i32 s{sT}, s{sF}, {16*896}')
        for e in range(16):
            a(f'buffer_load_dwordx4 {vr(vW+4*e,4)}, v{vo1}, {sr(sWD,4)}, s{sT} offen offset:{(e%4)*896} nt')
            if e % 4 == 3 and e < 15: a(f's_add_u32 s{sT}, s{sT}, {4*896}')
    if FE:
        Le2 = a.newlabel('fe2'); Led = a.newlabel('fed')
        if FE != 2: a('s_barrier')
        if cfg.get('fes'): a(f's_sleep {cfg["fes"]}')
        a(f's_cmp_ge_u32 s{sR}, 14')
        a(f's_cbranch_scc1 {Le2}')
        f1loads()
        a(f's_branch {Led}')
        a.label(Le2)
        if not cfg.get('f2late'):
            a(f's_cmp_ge_u32 s{sR}, 28')
            a(f's_cbranch_scc1 {Led}')
            f2loads()
        a.label(Led)
        if FE >= 2: a('s_barrier')
    vGx = vacc
    a('s_barrier')
    a(f'ds_read_b32 v{vo2}, v{vZ} offset:{LDS_TAG}')
    a(f'buffer_load_dwordx4 {vr(vGx,4)}, v{vYa}, {sr(sX,4)}, 0 offen')
    a(f'buffer_load_dwordx4 {vr(vGx+4,4)}, v{vYa}, {sr(sGW,4)}, 0 offen')
    a('s_waitcnt lgkmcnt(0)')
    a(f'v_readfirstlane_b32 s{S_TA}, v{vo2}')
    tagB(a)
    for i in range(8):
        a(f'v_mov_b32 v{vCh+i}, 0')
    a('s_waitcnt vmcnt(0)')
    for d in range(4):
        a(f'v_lshlrev_b32 v{vt}, 16, v{vGx+d}')
        a(f'v_lshlrev_b32 v{vt+1}, 16, v{vGx+4+d}')
        a(f'v_and_b32 v{vt+2}, 0xffff0000, v{vGx+d}')
        a(f'v_and_b32 v{vt+3}, 0xffff0000, v{vGx+4+d}')
        a(f'v_mul_f32 v{vt}, v{vt}, v{vt+1}')
        a(f'v_mul_f32 v{vt+2}, v{vt+2}, v{vt+3}')
        a(f'v_cvt_pk_bf16_f32 v{vt}, v{vt}, v{vt+2}')
        a(f'v_lshlrev_b32 v{vt+1}, 16, v{vt}')
        a(f'v_and_b32 v{vt+2}, 0xffff0000, v{vt}')
        if d == 0:
            a(f'v_add_f32 v{vg}, v{vt+1}, v{vt+2}')
        else:
            a(f'v_add_f32 v{vg}, v{vg}, v{vt+1}')
            a(f'v_add_f32 v{vg}, v{vg}, v{vt+2}')
    xlane_reduce(a, [vg], [vt], 'v_add_f32', ['x1', 'x2', 'r4', 'r8', 'p16', 'p32'])
    rnd_bf16(a, vg, vg, vt)
    a(f'v_mul_f32 v{vg}, {f2u(-1.4426950408889634):#x}, v{vg}')
    a(f'v_exp_f32 v{vg}, v{vg}')
    a('s_nop 0')
    a(f'v_add_f32 v{vg}, 1.0, v{vg}')
    a(f'v_rcp_f32 v{vg}, v{vg}')
    a('s_nop 0')
    rnd_bf16(a, vg, vg, vt)
    a(f'v_sub_f32 v{vt+1}, 1.0, v{vg}')
    rnd_bf16(a, vt + 1, vt + 1, vt)
    a(f'ds_write_b32 v{vZ}, v{vg} offset:{LDS_G}')
    a(f'v_readfirstlane_b32 s{sG1}, v{vt+1}')
    if cfg.get('noffn'): a(f's_branch {Lfd}')
    a(f's_cmp_ge_u32 s{sR}, 14')
    a(f's_cbranch_scc1 {Lf2}')
    if cfg.get('fsleep'): a(f's_sleep {cfg["fsleep"]}')
    if FE: l0 = l1 = None
    else: l0, l1 = f1loads()
    a(f'v_bfe_u32 v{vo1}, v0, 1, 2')
    a(f'v_lshlrev_b32 v{vo1}, 9, v{vo1}')
    a(f'v_and_b32 v{vo2}, 1, v0')
    a(f'v_lshl_or_b32 v{vo1}, v{vo2}, 6, v{vo1}')
    a(f'v_bfe_u32 v{vo2}, v0, 3, 2')
    a(f'v_lshl_or_b32 v{vo1}, v{vo2}, 4, v{vo1}')
    a(f's_lshl_b32 s{sT}, s{sCb}, 11')
    a(f's_add_u32 s{sT}, s{sT}, s{sJ}')
    a(f's_lshl_b32 s{sKq}, s{sKq}, 6')
    a(f's_and_b32 s{sKq}, s{sKq}, 128')
    a(f's_add_u32 s{sT}, s{sT}, s{sKq}')
    a(f's_add_u32 s{sT}, s{sT}, {WS_B:#x}')
    A8 = [vacc + i for i in range(8)]; T8 = [vtmp + i for i in range(8)]
    gemv_pairs(a, vm, [vW + 4 * k for k in range(14)], 14, 4, vX, A8, T8, l0)
    gemv_pairs(a, vm, [vD + 4 * k for k in range(14)], 14, 4, vX + 8, A8, T8, l1, first=False)
    xlane_reduce(a, A8, T8, 'v_add_f32', ['r8', 'p16', 'p32'])
    a('s_mov_b32 vcc_lo, 0xff00ff00')
    a('s_mov_b32 vcc_hi, 0xff00ff00')
    for i in range(4):
        a(f'v_cndmask_b32 v{vtmp+i}, v{vacc+(i&1)+4*(i>>1)}, v{vacc+2+(i&1)+4*(i>>1)}, vcc')
    a('s_mov_b32 vcc_lo, 0xffff0000')
    a('s_mov_b32 vcc_hi, 0xffff0000')
    a(f'v_cndmask_b32 v{vt}, v{vtmp}, v{vtmp+2}, vcc')
    a(f'v_cndmask_b32 v{vt+2}, v{vtmp+1}, v{vtmp+3}, vcc')
    a(f'v_mov_b32 v{vt+1}, s{S_TA}')
    a(f'v_mov_b32 v{vt+3}, s{S_TB}')
    a('s_mov_b32 exec_hi, 0')
    a(f'buffer_store_dwordx4 {vr(vt,4)}, v{vo1}, {sr(S_WS,4)}, s{sT} offen sc1')
    a('s_mov_b32 exec_hi, -1')
    stamp(a, cfg, 90)
    stamp_store(a, cfg, [(13, 90)], vt)
    a(f's_branch {Lfd}')
    a.label(Lf2)
    a(f's_cmp_ge_u32 s{sR}, 28')
    a(f's_cbranch_scc1 {Lfd}')
    if not FE or cfg.get('f2late'): f2loads()
    a('s_waitcnt vmcnt(0)')
    for pr in range(8):
        r0 = vW + 4 * (2 * pr); r1 = vW + 4 * (2 * pr + 1)
        for d in range(4):
            a(f'v_perm_b32 v{vD+8*pr+2*d}, v{r1+d}, v{r0+d}, s{S_SELLO}')
            a(f'v_perm_b32 v{vD+8*pr+2*d+1}, v{r1+d}, v{r0+d}, s{S_SELHI}')
    Lw = a.newlabel('fl_w'); Lg = a.newlabel('fl_g')
    a(f's_mov_b32 s{sCnt}, {POLL_MAX}')
    a.label(Lw)
    a(f'ds_read_b32 v{vo2}, v{vZ} offset:{LDS_REC}')
    a('s_waitcnt lgkmcnt(0)')
    a(f'v_readfirstlane_b32 s{sT}, v{vo2}')
    a(f's_cmp_ge_u32 s{sT}, {cfg.get("bstep", 36)}')
    a(f's_cbranch_scc1 {Lg}')
    a(f's_sub_u32 s{sCnt}, s{sCnt}, 1')
    a(f's_cbranch_scc1 {Lg}')
    a('s_sleep 64')
    a(f's_branch {Lw}')
    a.label(Lg)
    a(f's_lshl_b32 s{sT}, s{sF}, 9')
    a(f's_add_u32 s{sT}, s{sT}, {WS_B:#x}')
    a(f'v_and_b32 v{vo2}, 0x1f0, v{vYa}')
    stamp(a, cfg, 90)
    poll(a, [f'buffer_load_dwordx4 {vr(vX,4)}, v{vo2}, {sr(S_WS,4)}, s{sT} offen sc1'], [vX], vt, sCnt, name='pb', sleep=cfg.get('bsleep', 32))
    stamp(a, cfg, 92)
    xlane_reduce(a, [vX, vX + 2], [vt, vt + 1], 'v_add_f32', ['r8'])
    for i in range(2):
        rnd_bf16(a, vacc + i, vX + 2 * i, vt + i)
    for i in range(2):
        a(f'v_mov_b32 v{vacc+2+i}, v{vacc+i}')
    a(f's_mov_b32 s{sT}, {f2u(0.044715):#x}')
    a(f's_mov_b32 s{sT2}, {f2u(-2*0.7978845608028654*1.4426950408889634):#x}')
    for i in range(2):
        a(f'v_permlane16_swap_b32 v{vacc+i}, v{vacc+2+i}')
    for i in range(2):
        x = vacc + i; t = vtmp + i
        a(f'v_mul_f32 v{t}, v{x}, v{x}')
        a(f'v_mul_f32 v{t}, v{t}, v{x}')
        a(f'v_fma_f32 v{t}, v{t}, s{sT}, v{x}')
        a(f'v_mul_f32 v{t}, s{sT2}, v{t}')
    for i in range(2):
        a(f'v_exp_f32 v{vtmp+i}, v{vtmp+i}')
    a('s_nop 0')
    for i in range(2):
        a(f'v_add_f32 v{vtmp+i}, 1.0, v{vtmp+i}')
    for i in range(2):
        a(f'v_rcp_f32 v{vtmp+i}, v{vtmp+i}')
    a('s_nop 0')
    for i in range(2):
        a(f'v_mul_f32 v{vacc+i}, v{vacc+i}, v{vtmp+i}')
    for i in range(2):
        rnd_bf16(a, vacc + i, vacc + i, vtmp + i)
    for i in range(2):
        a(f'v_mul_f32 v{vacc+i}, v{vacc+i}, v{vacc+2+i}')
    a(f'v_cvt_pk_bf16_f32 v{vt}, v{vacc}, v{vacc+1}')
    a('s_nop 0')
    for pr in range(8):
        a(f'v_readlane_b32 s{sPk+pr}, v{vt}, {pr}')
    a('s_nop 1')
    for pr in range(8):
        for col in range(8):
            a(f'v_dot2_f32_bf16 v{vCh+col}, v{vD+8*pr+col}, s{sPk+pr}, v{vCh+col}')
    a('s_nop 2')
    for col in range(8):
        a(f'v_mul_f32 v{vCh+col}, s{sG1}, v{vCh+col}')
    stamp(a, cfg, 94)
    stamp_store(a, cfg, [(13, 90), (14, 92), (15, 94)], vt)
    a.label(Lfd)
    a(f'ds_write_b128 v{vYa}, {vr(vCh,4)} offset:{LDS_B}')
    a(f'ds_write_b128 v{vYa}, {vr(vCh+4,4)} offset:{LDS_B+1024}')
    a(f's_mov_b32 s34, {C_SCALE:#x}')
    a(f's_lshl_b32 s35, s2, 5')
    a(f's_add_u32 s35, s35, {WS_ML:#x}')
    a(f's_and_b32 s36, s35, 0xfffffc00')
    a(f'v_lshlrev_b32 v{vo1}, 3, v0')
    a(f'v_mov_b32 v{vo3}, s{S_TA}')
    progwait(a, 63, vZ, vt, sT, sCnt, 32, 'mlw', both=True)
    for k in range(8):
        a(f'ds_read_b128 {vr(vD+4*k,4)}, v{vYa} offset:{LDS_SC + 1024 * k}')
    for k in range(8):
        a(f's_waitcnt lgkmcnt({7 - k})')
        for d in range(4):
            a(f'v_lshlrev_b32 v{vW+8*k+2*d}, 16, v{vD+4*k+d}')
            a(f'v_and_b32 v{vW+8*k+2*d+1}, 0xffff0000, v{vD+4*k+d}')
    a(f'v_max_f32 v{vf}, v{vW}, v{vW+1}')
    for k in range(1, 32):
        a(f'v_max3_f32 v{vf}, v{vW+2*k}, v{vW+2*k+1}, v{vf}')
    xlane_reduce(a, [vf], [vt], 'v_max_f32', ['x1', 'r4', 'r8', 'p16', 'p32'])
    a(f'v_mul_f32 v{vf}, s34, v{vf}')
    for k in range(64):
        a(f'v_fma_f32 v{vW+k}, v{vW+k}, s34, -v{vf}')
    for k in range(64):
        a(f'v_exp_f32 v{vW+k}, v{vW+k}')
    a('s_nop 0')
    n = 32
    while n >= 1:
        for k in range(n):
            a(f'v_add_f32 v{vW+k}, v{vW+k}, v{vW+n+k}')
        n //= 2
    xlane_reduce(a, [vW], [vt], 'v_add_f32', ['x1', 'r4', 'r8', 'p16', 'p32'])
    a(f'v_mov_b32 v{vf+1}, s{S_TA}')
    a(f'v_mov_b32 v{vf+2}, v{vW}')
    a('s_getreg_b32 s37, hwreg(HW_REG_XCC_ID)')
    a('s_and_b32 s37, s37, 15')
    if cfg.get('fakex'): a(f's_xor_b32 s37, s37, s2'); a('s_and_b32 s37, s37, 15')
    a(f's_xor_b32 s37, s37, s{S_TB}')
    a(f'v_mov_b32 v{vf+3}, s37')
    a('s_mov_b64 exec, 5')
    a(f'buffer_store_dwordx4 {vr(vf,4)}, v{vo1}, {sr(S_WS,4)}, s35 offen sc1')
    a('s_mov_b64 exec, -1')
    progwait(a, cfg.get('mlg', 72), vZ, vt, sT, sCnt, 32, 'mlg')
    Lm = a.newlabel('pml'); Lmd = a.newlabel('pml_done')
    a(f's_mov_b32 s{sCnt}, {POLL_MAX}')
    a(f'buffer_load_dwordx4 {vr(vX,4)}, v{vYa}, {sr(S_WS,4)}, s36 offen')
    a.label(Lm)
    a('s_waitcnt vmcnt(0)')
    a(f'v_xor_b32 v{vt}, s{S_TA}, v{vX+1}')
    a(f'v_xor_b32 v{vt+1}, s37, v{vX+3}')
    a(f'v_lshrrev_b32 v{vt+2}, 4, v{vt+1}')
    a(f'v_or_b32 v{vt}, v{vt}, v{vt+2}')
    a(f'v_cmp_ne_u32 vcc, 0, v{vt}')
    a('s_mov_b64 exec, vcc')
    a(f's_cbranch_execz {Lmd}')
    a(f's_sub_u32 s{sCnt}, s{sCnt}, 1')
    a(f's_cbranch_scc1 {Lmd}')
    a('s_sleep 32')
    a(f'buffer_load_dwordx4 {vr(vX,4)}, v{vYa}, {sr(S_WS,4)}, s36 offen sc1')
    a(f's_branch {Lm}')
    a.label(Lmd)
    a('s_mov_b64 exec, -1')
    a(f'v_cmp_ne_u32 vcc, 0, v{vt+1}')
    a('s_cmp_eq_u64 vcc, 0')
    a(f's_cselect_b32 s{sLoc}, {0 if cfg.get("noloc") else 1}, 0')
    a(f'v_mov_b32 v{vf}, v{vX}')
    xlane_reduce(a, [vf], [vt], 'v_max_f32', ['x2', 'r4', 'r8', 'p16', 'p32'])
    a(f'v_sub_f32 v{vX}, v{vX}, v{vf}')
    a(f'v_exp_f32 v{vX}, v{vX}')
    a('s_nop 0')
    a(f'v_mul_f32 v{vX}, v{vX}, v{vX+2}')
    xlane_reduce(a, [vX], [vt], 'v_add_f32', ['x2', 'r4', 'r8', 'p16', 'p32'])
    a(f'v_log_f32 v{vX}, v{vX}')
    a(f'v_lshlrev_b32 v{vo1}, 2, v0')
    a(f'v_mov_b32 v{vf+2}, s{S_TA}')
    a(f'v_mov_b32 v{vf+3}, s{sLoc}')
    a(f'v_add_f32 v{vX}, v{vX}, v{vf}')
    a('s_mov_b64 exec, 3')
    a(f'ds_write_b32 v{vo1}, v{vX} offset:{LDS_Z}')
    a(f'ds_write_b64 v{vZ}, {vr(vf+2,2)} offset:{LDS_FLAGZ}')
    a('s_mov_b64 exec, -1')
    stamp(a, cfg, 90)
    stamp_store(a, cfg, [(18, 90)], vt)
    R2 = cfg.get('r2', 4); F2M = cfg.get('f2m', 1)
    a(f'v_lshrrev_b32 v{vo3}, 3, v0')
    a(f'v_mul_u32_u24 v{vOa}, {OSTR}, v{vo3}')
    a(f'v_and_b32 v{vt}, 7, v0')
    a(f'v_lshl_add_u32 v{vOa}, v{vt}, 4, v{vOa}')
    a(f's_lshr_b32 s28, s2, 5')
    a(f's_mul_i32 s28, s28, {32 * OSTR}')
    a(f's_and_b32 s29, s2, 31')
    a(f's_lshl_b32 s29, s29, 7')
    a(f's_add_u32 s28, s28, s29')
    a(f's_add_u32 s28, s28, {WS_O:#x}')
    for k in range(1, 4):
        a(f's_add_u32 s{28+k}, s28, {8 * k * OSTR}')
    a(f's_lshl_b32 s21, s2, 7')
    a(f's_add_u32 s21, s21, {WS_F2:#x}')
    a(f's_and_b32 s22, s2, {32 // R2 - 1}')
    a(f's_cmp_lg_u32 s22, {cfg.get("r2c", 3) % (32 // R2)}')
    a(f's_cselect_b32 s21, 0x40000000, s21')
    a(f'v_lshlrev_b32 v{vo1}, 1, v0')
    a(f'v_mov_b32 v{vo3}, s{S_TA}')
    def gather():
        gl = lambda fl: [f'buffer_load_dwordx4 {vr(vX+4*k,4)}, v{vOa}, {sr(S_WS,4)}, s{28+k} offen {fl}' for k in range(4)]
        Lr = a.newlabel('g_rem'); Lp = a.newlabel('g_poll'); Lw = a.newlabel('g_w')
        a(f's_cmp_eq_u32 s{sLoc}, 0')
        a(f's_cbranch_scc1 {Lr}')
        if cfg.get('pt'):
            progwait(a, cfg['pt'], vZ, vt, sKq, sCnt, 16, 'ptw')
            stamp(a, cfg, 90)
            for l in gl(cfg.get('ptf', 'nt')): a(l)
            a('s_waitcnt vmcnt(0)')
            stamp(a, cfg, 92)
            stamp_store(a, cfg, [(28, 90), (29, 92)], vt)
        if cfg.get('p1', 126) <= 126:
            progwait(a, cfg.get('p1', 126), vZ, vt, sKq, sCnt, cfg.get('p1s', 2), 'p1w')
            a(f's_branch {Lp}')
        a.label(Lr)
        setcnt(a, sCnt, POLL_MAX * 16)
        a.label(Lw)
        a(f'ds_read_b32 v{vt}, v{vZ} offset:{LDS_DONE}')
        a('s_waitcnt lgkmcnt(0)')
        a(f'v_readfirstlane_b32 s{sKq}, v{vt}')
        a(f's_cmp_ge_u32 s{sKq}, {cfg.get("dn2", 2)}')
        a(f's_cbranch_scc1 {Lp}')
        a(f's_sub_u32 s{sCnt}, s{sCnt}, 1')
        a('s_sleep 1')
        a(f's_cbranch_scc0 {Lw}')
        a.label(Lp)
        stamp(a, cfg, 90)
        poll(a, gl(cfg.get('pf', 'sc1')), [vX + 4 * k for k in range(4)], vt, sCnt, name='ps2', sleep=cfg.get('s2sleep', 1))
        stamp(a, cfg, 92)
        for hh in range(2):
            a(f'v_add_f32 v{vacc+hh}, v{vX+2*hh}, v{vX+4+2*hh}')
            a(f'v_add_f32 v{vacc+2+hh}, v{vX+8+2*hh}, v{vX+12+2*hh}')
        for hh in range(2):
            a(f'v_add_f32 v{vacc+hh}, v{vacc+hh}, v{vacc+2+hh}')
        xlane_reduce(a, [vacc, vacc + 1], [vtmp, vtmp + 1], 'v_add_f32', ['r8', 'p16', 'p32'])
        a('s_nop 0')
        for hh in range(2):
            a(f'v_mov_b32_dpp v{vacc+2+hh}, v{vacc+hh} quad_perm:[1,0,3,2] row_mask:0xf bank_mask:0xf')
        for hh in range(2):
            a(f'v_cvt_pk_bf16_f32 v{vt+hh}, v{vacc+hh}, v{vacc+2+hh}')
        setex(a, 0x55)
        for hh in range(2):
            a(f'ds_write_b32 v{vo1}, v{vt+hh} offset:{LDS_O + 16 * hh}')
        setex(a, 1)
        a(f'ds_write_b32 v{vZ}, v{vo3} offset:{LDS_FLAGO}')
        if F2M: a(f'buffer_store_dword v{vo3}, v{vZ}, {sr(S_WS,4)}, s21 offen sc1')
        setex(a, -1)
        if cfg.get('prof'): a(f's_sub_u32 s23, {POLL_MAX}, s{sCnt}')
        stamp_store(a, cfg, [(21, 90), (2, 92), (22, 23)], vt)
    if cfg.get('h3', 0):
        F2M = 0
        a(f's_mul_i32 s24, s2, {OSTR}')
        a(f's_add_u32 s24, s24, {WS_O:#x}')
        a(f's_not_b32 s26, s{S_TA}')
        a(f's_not_b32 s27, s{S_TB}')
        a(f's_and_b32 s25, s2, 31')
        a(f's_lshl_b32 s25, s25, 10')
        a(f's_lshr_b32 s{sT}, s2, 5')
        a(f's_lshl_b32 s{sT}, s{sT}, 7')
        a(f's_add_u32 s25, s25, s{sT}')
        a(f's_add_u32 s25, s25, {WS_Y:#x}')
        a(f'v_mov_b32 v{vf+1}, s{S_TA}')
        a(f'v_mov_b32 v{vf+3}, s{S_TB}')
        LdB = dry_begin(a, cfg, 'dryB', 32)
        gather()
        if cfg.get('b4', 0): ldswait(a, LDS_FLAG3, vZ, vt, sKq, sCnt, 'b4', slp=1)
        if cfg.get('d3'): a(f's_sleep {cfg["d3"]}')
        setex(a, 0x7f7f7f7f7f7f7f7f)
        stamp(a, cfg, 90)
        poll(a, [f'buffer_load_dwordx4 {vr(vX+4*k,4)}, v{vYa}, {sr(S_WS,4)}, s24 offen offset:{1024*k} sc1' for k in range(4)],
             [vX + 4 * k for k in range(4)], vt, sCnt, name='pg2', sleep=cfg.get('s3sleep', 1), tags=(26, 27))
        stamp(a, cfg, 92)
        for hh in range(2):
            a(f'v_add_f32 v{vf+2*hh}, v{vX+2*hh}, v{vX+4+2*hh}')
            a(f'v_add_f32 v{vacc+2+hh}, v{vX+8+2*hh}, v{vX+12+2*hh}')
        for hh in range(2):
            a(f'v_add_f32 v{vf+2*hh}, v{vf+2*hh}, v{vacc+2+hh}')
        xlane_reduce(a, [vf, vf + 2], [vtmp, vtmp + 1], 'v_add_f32', ['r8', 'p16', 'p32'])
        setex(a, 0x7f)
        a(f'buffer_store_dwordx4 {vr(vf,4)}, v{vYa}, {sr(S_WS,4)}, s25 offen sc1')
        setex(a, -1)
        stamp(a, cfg, 94)
        stamp_store(a, cfg, [(10, 90), (19, 92), (31, 94)], vt)
        dry_end(a, LdB)
        stamp_flush(a, cfg, [13, 14, 15, 18, 21, 2, 22, 28, 29, 10, 19, 31], vt)
        a('s_endpgm')
        return V.n
    a(f's_cmp_lt_u32 s100, {FIN0}')
    a(f's_cbranch_scc1 {Lnofin}')
    a(f's_sub_u32 s{sJ}, s100, {FIN0}')
    a(f's_and_b32 s{sT}, s{sJ}, 3')
    a(f's_mul_i32 s{sT}, s{sT}, 14')
    a(f's_lshr_b32 s{sT2}, s{sJ}, 2')
    a(f's_add_u32 s{sT}, s{sT}, s{sT2}')
    def sumup(dst, n, src):
        for e in range(2):
            a(f'v_add_f32 v{dst+e}, v{src+2*e}, v{src+4+2*e}')
            a(f'v_add_f32 v{dst+2+e}, v{src+8+2*e}, v{src+12+2*e}')
        for k in range(4, n):
            for e in range(2):
                d = dst + e + 2 * (k & 1)
                a(f'v_add_f32 v{d}, v{d}, v{src+4*k+2*e}')
        for e in range(2):
            a(f'v_add_f32 v{dst+e}, v{dst+e}, v{dst+2+e}')
    def xsum(dst):
        xlane_reduce(a, [dst, dst + 1], [vf + 4, vf + 5], 'v_add_f32', ['r4', 'r8', 'p16', 'p32'])
    a(f's_lshl_b32 s{sT}, s{sT}, 14')
    for k in range(4):
        a(f's_add_u32 s{24+k}, s{sT}, {WS_Y + k * 4096:#x}')
    a(f's_lshr_b32 s{sT2}, s{sJ}, 2')
    a(f's_lshl_b32 s{sT2}, s{sT2}, 6')
    a(f's_and_b32 s{sKq}, s{sJ}, 3')
    a(f's_lshl_b32 s{sKq}, s{sKq}, 2')
    a(f's_add_u32 s{sT2}, s{sT2}, s{sKq}')
    if F2M == 1:
        a(f'v_lshrrev_b32 v{vo2}, 3, v0')
        a(f'v_lshlrev_b32 v{vo2}, 12, v{vo2}')
        a(f'v_and_b32 v{vf+7}, {R2 - 1}, v0')
        a(f'v_mul_u32_u24 v{vf+7}, {(32 // R2) * 128}, v{vf+7}')
        a(f'v_add_u32 v{vo2}, v{vo2}, v{vf+7}')
        a(f's_mov_b32 s35, {WS_F2 + (cfg.get("r2c", 3) % (32 // R2)) * 128:#x}')
    elif F2M == 2:
        a(f'v_and_b32 v{vo2}, {8 * R2 - 1}, v0')
        a(f'v_lshlrev_b32 v{vo2}, 7, v{vo2}')
        a(f's_mul_i32 s35, s{sJ}, {8 * R2 * 128 + 128}')
        a(f's_add_u32 s35, s35, {WS_F2P:#x}')
    f2l = f'buffer_load_dword v{vf+7}, v{vo2}, {sr(S_WS,4)}, s35 offen sc1'
    f2mask = f'{(1 << (8 * R2)) - 1:#x}' if F2M == 2 and R2 < 4 else None
    LdB = dry_begin(a, cfg, 'dryB', 32)
    if cfg.get('fp0') and F2M:
        progwait(a, cfg['fp0'], vZ, vt, sT, sCnt, 32, 'fpa')
        a(f2l)
    gather()
    if cfg.get('b4', 0): ldswait(a, LDS_FLAG3, vZ, vt, sKq, sCnt, 'b4', slp=1)
    if cfg.get('d3'): a(f's_sleep {cfg["d3"]}')
    if F2M: flagpoll(a, f2l, [vf + 7], vt, sCnt, 'pf2', sleep=cfg.get('sl2', 1), mask=f2mask)
    if cfg.get('d2'): a(f's_sleep {cfg["d2"]}')
    stamp(a, cfg, 78)
    poll(a, [f'buffer_load_dwordx4 {vr(vY+4*k,4)}, v{vYa}, {sr(S_WS,4)}, s{24+k//4} offen offset:{(k%4)*1024} sc1' for k in range(16)],
         [vY + 4 * k for k in range(16)], vt, sCnt, name='py', sleep=cfg.get('ysleep', 1))
    if cfg.get('prof'): a(f's_sub_u32 s36, {POLL_MAX}, s{sCnt}')
    sumup(vf, 16, vY)
    xsum(vf)
    a(f'v_cvt_pk_bf16_f32 v{vt}, v{vf}, v{vf+1}')
    setex(a, 15)
    a(f'buffer_store_dword v{vt}, v{vYa}, {sr(sOUT,4)}, s{sT2} offen')
    setex(a, -1)
    stamp(a, cfg, 76)
    stamp_store(a, cfg, [(6, 76), (23, 78), (24, 36)], vt + 2)
    dry_end(a, LdB)
    stamp_flush(a, cfg, [13, 14, 15, 6, 23, 24, 18, 21, 2, 22, 28, 29], vt + 2)
    a('s_endpgm')
    a.label(Lnofin)
    LdB = dry_begin(a, cfg, 'dryB', 32)
    gather()
    dry_end(a, LdB)
    stamp_flush(a, cfg, [13, 14, 15, 18, 21, 2, 22, 28, 29], vt)
    a('s_endpgm')
    return V.n


def gen(cfg):
    global WS_O, WS_Y, OSTR, WS_B
    WS_O = cfg.get('wso', WS_O); WS_Y = cfg.get('wsy', WS_Y); OSTR = cfg.get('ostr', OSTR); WS_B = cfg.get('wsb', WS_B)
    a = Asm()
    a.raw(kernel_header(NAME))
    if cfg.get('prof'): a('s_memrealtime s[98:99]')
    a('s_cmp_ge_u32 s2, 256')
    a('s_cbranch_scc1 L_end')
    a('s_load_dwordx16 s[16:31], s[0:1], 0')
    a('s_mov_b32 s100, s2')
    if cfg.get('ren', 1):
        a('s_and_b32 s3, s2, 7                 ; ren')
        a('s_lshr_b32 s2, s2, 3')
        a('s_lshl_b32 s3, s3, 5')
        a('s_or_b32 s2, s2, s3')
    a('s_load_dwordx8 s[32:39], s[0:1], 64')
    a('s_load_dwordx2 s[40:41], s[0:1], 96')
    a('v_lshrrev_b32 v1, 6, v0')
    a('v_and_b32 v0, 63, v0')
    a(f'v_readfirstlane_b32 s{S_WAVE}, v1')
    a(f's_mov_b32 s{S_SELLO}, 0x05040100')
    a(f's_mov_b32 s{S_SELHI}, 0x07060302')
    a('s_waitcnt lgkmcnt(0)')
    srd(a, S_WS, P_WS, WS_SIZE)
    a(f's_cmp_eq_u32 s{S_WAVE}, 2')
    a('s_cbranch_scc1 L_auxA')
    a(f's_cmp_eq_u32 s{S_WAVE}, 3')
    a('s_cbranch_scc1 L_auxB')
    n0 = gen_stream(a, cfg)
    a.label('L_auxA')
    n1 = gen_auxA(a, cfg)
    a.label('L_auxB')
    n2 = gen_auxB(a, cfg)
    a.label('L_end')
    a('s_endpgm')
    nv = max(n0, n1, n2)
    if cfg.get('prof'): nv = max(nv, PROFV + 1)
    acc_off = (nv + 3) // 4 * 4
    npre = cfg.get('npre', 4)
    print('vgprs', n0, n1, n2, 'agprs', 64 * npre, file=sys.stderr)
    hdr = open('gated_mix__gqa_block_cached__geglu_ffn__decode.s.ref').read().split('; @launch')[0]
    lds = cfg.get('lds', 18432)
    hdr += f'; @launch grid=(256,1,1) block=(256,1,1) lds={lds}\n.amdgcn_target "amdgcn-amd-amdhsa--gfx950"\n'
    return hdr + a.text() + kernel_desc(NAME, acc_off + 64 * npre, 102, acc_off)


if __name__ == '__main__':
    cfg = json.loads(sys.argv[2]) if len(sys.argv) > 2 else {}
    open(sys.argv[1], 'w').write(gen(cfg))
```
